```python
import torch

def _softmax(x, axis=-1):
    return torch.softmax(x, dim=axis)
def _gelu(x):
    return torch.nn.functional.gelu(x, approximate="tanh")
def _silu(x):
    return torch.nn.functional.silu(x)
def _sigmoid(x):
    return torch.sigmoid(x)
def _layernorm(x, axis=-1, eps=1e-5):
    m = x.mean(dim=axis, keepdim=True)
    v = x.var(dim=axis, keepdim=True, unbiased=False)
    return (x - m) / torch.sqrt(v + eps)
def _scatter_add(tgt, idx, src, axis=0):
    return tgt.clone().index_add_(axis, idx, src)
def _segment_sum(src, seg, n):
    out = torch.zeros((n,) + src.shape[1:], dtype=src.dtype)
    return out.index_add_(0, seg, src)
def _pad(x, pw):
    flat = tuple(v for pair in reversed(pw) for v in pair)
    return torch.nn.functional.pad(x, flat)

kernel_name = 'sequential_preLN__ssm_conv_s4d__moe_arch_mod__prompt'

def setup_inputs():

    _w = (lambda a: (lambda t: t.to(torch.bfloat16) if t.is_floating_point() else t)(torch.as_tensor(a)))
    def _A_setup():
        Bsz, L, D, N = 1, 2048, 640, 192
        return {
            "u": _w((lambda *s: torch.randn(*s, dtype=torch.bfloat16) * 0.05)(Bsz, L, D)),
            "log_A_real": _w((lambda *s: torch.randn(*s, dtype=torch.bfloat16) * 6.4)(D, N) * 0.5),
            "A_imag": _w((lambda *s: torch.randn(*s, dtype=torch.bfloat16) * 0.05)(D, N) * 3.14),
            "C_real": _w((lambda *s: torch.randn(*s, dtype=torch.bfloat16) * 0.05)(D, N) / N ** 0.5),
            "C_imag": _w((lambda *s: torch.randn(*s, dtype=torch.bfloat16) * 0.05)(D, N) / N ** 0.5),
            "log_dt": _w((lambda *s: torch.randn(*s, dtype=torch.bfloat16) * 0.05)(D) * 0.5 - 4.0),
            "D_skip": _w((lambda *s: torch.randn(*s, dtype=torch.bfloat16) * 0.05)(D)),
        }
    _A_in = _A_setup()

    def _B_setup():
        B, S, D, F, C = 1, 2048, 640, 1536, 8
        return {
            "x": _w((lambda *s: torch.randn(*s, dtype=torch.bfloat16) * 0.05)(B, S, D)),
            "w_r": _w((lambda *s: torch.randn(*s, dtype=torch.bfloat16) * 0.05)(D)),
            "w_gate": _w((lambda *s: torch.randn(*s, dtype=torch.bfloat16) * 0.05)(D, F)),
            "w_up": _w((lambda *s: torch.randn(*s, dtype=torch.bfloat16) * 0.05)(D, F)),
            "w_down": _w((lambda *s: torch.randn(*s, dtype=torch.bfloat16) * 0.05)(F, D)),
        }
    _B_in = _B_setup()

    return {
        "A_u": _A_in["u"],
        "A_log_A_real": _A_in["log_A_real"],
        "A_A_imag": _A_in["A_imag"],
        "A_C_real": _A_in["C_real"],
        "A_C_imag": _A_in["C_imag"],
        "A_log_dt": _A_in["log_dt"],
        "A_D_skip": _A_in["D_skip"],
        "B_x": _B_in["x"],
        "B_w_r": _B_in["w_r"],
        "B_w_gate": _B_in["w_gate"],
        "B_w_up": _B_in["w_up"],
        "B_w_down": _B_in["w_down"],
    }

def reference(A_u, A_log_A_real, A_A_imag, A_C_real, A_C_imag, A_log_dt, A_D_skip, B_x, B_w_r, B_w_gate, B_w_up, B_w_down):
    def _A_ref(u, log_A_real, A_imag, C_real, C_imag, log_dt, D_skip):
        L = u.shape[1]
        dt = torch.exp(log_dt)
        A = -torch.exp(log_A_real) + 1j * A_imag
        C = (C_real + 1j * C_imag) * dt[:, None]
        pos = (lambda x, dt: x.to(dt))(torch.arange(L), log_dt.dtype)
        P = torch.exp((A * dt[:, None])[:, :, None] * pos[None, None, :])
        K = 2.0 * torch.einsum("dn,dnl->dl", C, P).real
        L2 = 2 * L
        u_t = (lambda x, *d: x.permute(*d))(u, 0, 2, 1)
        Kf = (lambda x, *a, **k: torch.fft.rfft(x.float(), *a, **k))(K, L2)
        Uf = (lambda x, *a, **k: torch.fft.rfft(x.float(), *a, **k))(u_t, L2)
        y = (lambda x, *a, **k: torch.fft.irfft(x, *a, **k).to(torch.bfloat16))(Uf * Kf[None, :, :], L2)[:, :, :L]
        y = (lambda x, *d: x.permute(*d))(y, 0, 2, 1)
        return y + u * D_skip[None, None, :]

    def _B_ref(x, w_r, w_gate, w_up, w_down):
        B, S, D = x.shape
        C = 8
        r = x @ w_r
        idx = torch.argsort(-r, axis=-1)[:, :C]
        idx_e = (lambda x, n, axis: torch.repeat_interleave(x, n, dim=axis))(idx.reshape(B, C, 1), D, axis=2)
        x_sel = (lambda x, i, axis: torch.take_along_dim(x, i, dim=axis))(x, idx_e, axis=1)
        g = _silu(x_sel @ w_gate)
        u = x_sel @ w_up
        y = (g * u) @ w_down
        r_sel = _sigmoid((lambda x, i, axis: torch.take_along_dim(x, i, dim=axis))(r, idx, axis=1))
        y = y * r_sel.reshape(B, C, 1)
        b_off = (torch.arange(B) * S).reshape(B, 1)
        flat_idx = (idx + b_off).reshape(B * C)
        zero = (x * 0.0).reshape(B * S, D)
        upd = _scatter_add(zero, flat_idx, y.reshape(B * C, D), axis=0)
        return x + upd.reshape(B, S, D)

    x = A_u
    h = x + _A_ref(_layernorm(x, axis=-1), A_log_A_real, A_A_imag, A_C_real, A_C_imag, A_log_dt, A_D_skip)
    h2 = h + _B_ref(_layernorm(h, axis=-1), B_w_r, B_w_gate, B_w_up, B_w_down)
    return h2
```

```python
import sys

NAME = "sequential_preLN__ssm_conv_s4d__moe_arch_mod__prompt"

UROW = 4128
WS_UT, SZ_UT = 0x000000, 0x290000
WS_KR, SZ_KR = 0x290000, 0x280000
WS_KS, SZ_KS = 0x510000, 0x1000
WS_AT, SZ_AT = 0x520000, 0x280000
WS_Z,  SZ_Z  = 0x7A0000, 0x280000
WS_H,  SZ_H  = 0xA20000, 0x280000
WS_KEY, SZ_KEY = 0xCA0000, 0x2000
WS_HID, SZ_HID = 0xCA2000, 0x6000
WS_SEL, SZ_SEL = 0xCA8000, 0x100

ARG = dict(x=0, lar=8, aim=16, cre=24, cim=32, ldt=40, dsk=48, bx=56, wr=64, wg=72, wu=80, wd=88, out=96, dbg=104, ws=112)

class Asm:
    def __init__(self):
        self.l = []
    def __call__(self, s):
        for ln in s.strip("\n").split("\n"):
            ln = ln.strip()
            if not ln: continue
            if ln.endswith(":"): self.l.append(ln)
            else: self.l.append("  " + ln)
    def text(self): return "\n".join(self.l) + "\n"

def srd(A, n, lo, hi, off, size):
    if off:
        A(f"s_add_u32 s{n}, s{lo}, {hex(off)}")
        A(f"s_addc_u32 s{n+1}, s{hi}, 0")
    else:
        A(f"s_mov_b32 s{n}, s{lo}")
        A(f"s_mov_b32 s{n+1}, s{hi}")
    A(f"s_mov_b32 s{n+2}, {hex(size)}")
    A(f"s_mov_b32 s{n+3}, 0x20000")

def kernel_head(A, name):
    A.l.append(f".globl {name}")
    A.l.append(".p2align 8")
    A.l.append(f".type {name},@function")
    A.l.append(f"{name}:")

def kernel_desc(name, vgpr, sgpr, accum):
    return f""".amdhsa_kernel {name}
  .amdhsa_next_free_vgpr {vgpr}
  .amdhsa_next_free_sgpr {sgpr}
  .amdhsa_accum_offset {accum}
  .amdhsa_group_segment_fixed_size 0
  .amdhsa_kernarg_size 120
  .amdhsa_user_sgpr_count 2
  .amdhsa_user_sgpr_kernarg_segment_ptr 1
  .amdhsa_system_sgpr_workgroup_id_x 1
.end_amdhsa_kernel
"""

DPP = "row_mask:0xf bank_mask:0xf"

def allreduce16(A, op, x):
    for pat in ("quad_perm:[1,0,3,2]", "quad_perm:[2,3,0,1]", "row_half_mirror", "row_mirror"):
        A("s_nop 1")
        A(f"{op}_dpp v{x}, v{x}, v{x} {pat} {DPP}")

def xor16(A, op, x, t):
    A(f"v_mov_b32 v{t}, v{x}")
    A("s_nop 1")
    A(f"v_permlane16_swap_b32 v{x}, v{t}")
    A("s_nop 1")
    A(f"{op} v{x}, v{x}, v{t}")

def xor32(A, op, x, t):
    A(f"v_mov_b32 v{t}, v{x}")
    A("s_nop 1")
    A(f"v_permlane32_swap_b32 v{x}, v{t}")
    A("s_nop 1")
    A(f"{op} v{x}, v{x}, v{t}")

def unpack_bf16(A, src, dlo, dhi):
    A(f"v_lshlrev_b32 v{dlo}, 16, v{src}")
    A(f"v_and_b32 v{dhi}, 0xffff0000, v{src}")

F_INV640 = 0x3ACCCCCD
F_EPS = 0x3727C5AC
F_LOG2E = 0x3FB8AA3B
F_INV2PI = 0x3E22F983

def ln_scalars(A, mean, var, t, m_out, rinv_out):
    A(f"v_cvt_pk_bf16_f32 v{t}, v{mean}, v{var}")
    A(f"v_lshlrev_b32 v{m_out}, 16, v{t}")
    A(f"v_and_b32 v{t}, 0xffff0000, v{t}")
    A(f"v_add_f32 v{t}, {hex(F_EPS)}, v{t}")
    A(f"v_cvt_pk_bf16_f32 v{t}, v{t}, v{t}")
    A(f"v_lshlrev_b32 v{t}, 16, v{t}")
    A(f"v_sqrt_f32 v{t}, v{t}")
    A("s_nop 0")
    A(f"v_cvt_pk_bf16_f32 v{t}, v{t}, v{t}")
    A(f"v_lshlrev_b32 v{t}, 16, v{t}")
    A(f"v_rcp_f32 v{rinv_out}, v{t}")
    A("s_nop 0")

def cmul(A, z, x, y, t):
    A(f"v_pk_mul_f32 v[{t}:{t+1}], v[{x}:{x+1}], v[{y}:{y+1}] op_sel:[0,0] op_sel_hi:[1,0]")
    A(f"v_pk_fma_f32 v[{z}:{z+1}], v[{x}:{x+1}], v[{y}:{y+1}], v[{t}:{t+1}] op_sel:[1,1,0] op_sel_hi:[0,1,1] neg_lo:[1,0,0]")

def gen_k1(A):
    name = "k1_kernel"
    kernel_head(A, name)
    A("s_cmp_ge_u32 s2, 896")
    A("s_cbranch_scc1 k1_end")
    A(f"s_load_dwordx2 s[6:7], s[0:1], {ARG['ws']}")
    A("s_cmp_ge_u32 s2, 256")
    A("s_cbranch_scc1 k1_kgen")
    A(f"s_load_dwordx2 s[4:5], s[0:1], {ARG['x']}")
    A("""
    s_and_b32 s8, s2, 7
    s_lshl_b32 s8, s8, 5
    s_lshr_b32 s9, s2, 3
    s_add_u32 s8, s8, s9
    s_lshl_b32 s9, s8, 3
    v_lshrrev_b32 v1, 5, v0
    v_and_b32 v2, 31, v0
    v_add_u32 v3, s9, v1
    s_movk_i32 s10, 1280
    v_mul_lo_u32 v3, v3, s10
    v_lshl_add_u32 v4, v2, 4, v3
    v_lshl_add_u32 v5, v2, 3, v3
    s_waitcnt lgkmcnt(0)
    """)
    srd(A, 12, 4, 5, 0, 2621440)
    srd(A, 16, 6, 7, WS_UT, SZ_UT)
    A("""
    buffer_load_dwordx4 v[8:11], v4, s[12:15], 0 offen
    buffer_load_dwordx4 v[12:15], v4, s[12:15], 0 offen offset:512
    buffer_load_dwordx2 v[16:17], v5, s[12:15], 0 offen offset:1024
    """)
    A("""
    s_movk_i32 s10, 1344
    v_mul_lo_u32 v6, v1, s10
    v_lshl_add_u32 v7, v2, 3, v6
    v_lshl_add_u32 v6, v2, 4, v6
    s_waitcnt vmcnt(0)
    """)
    F = 20
    for i in range(10):
        unpack_bf16(A, 8 + i, F + 2 * i, F + 2 * i + 1)
    A(f"v_pk_add_f32 v[40:41], v[{F}:{F+1}], v[{F+2}:{F+3}]")
    for i in range(2, 10):
        A(f"v_pk_add_f32 v[40:41], v[40:41], v[{F+2*i}:{F+2*i+1}]")
    A("v_add_f32 v40, v40, v41")
    allreduce16(A, "v_add_f32", 40)
    xor16(A, "v_add_f32", 40, 41)
    A(f"v_mul_f32 v40, {hex(F_INV640)}, v40")
    for i in range(10):
        A(f"v_pk_add_f32 v[44:45], v[{F+2*i}:{F+2*i+1}], v[40:41] op_sel_hi:[1,0] neg_lo:[0,1] neg_hi:[0,1]")
        if i == 0:
            A("v_pk_mul_f32 v[42:43], v[44:45], v[44:45]")
        else:
            A("v_pk_fma_f32 v[42:43], v[44:45], v[44:45], v[42:43]")
    A("v_add_f32 v42, v42, v43")
    allreduce16(A, "v_add_f32", 42)
    xor16(A, "v_add_f32", 42, 43)
    A(f"v_mul_f32 v42, {hex(F_INV640)}, v42")
    ln_scalars(A, 40, 42, 43, 44, 46)
    for i in range(10):
        a, b = F + 2 * i, F + 2 * i + 1
        A(f"v_pk_add_f32 v[{a}:{b}], v[{a}:{b}], v[44:45] op_sel_hi:[1,0] neg_lo:[0,1] neg_hi:[0,1]")
        A(f"v_cvt_pk_bf16_f32 v48, v{a}, v{b}")
        unpack_bf16(A, 48, a, b)
        A(f"v_pk_mul_f32 v[{a}:{b}], v[{a}:{b}], v[46:47] op_sel_hi:[1,0]")
        A(f"v_cvt_pk_bf16_f32 v48, v{a}, v{b}")
        unpack_bf16(A, 48, a, b)
        A(f"v_cvt_pk_f16_f32 v{8+i}, v{a}, v{b}")
    A("""
    ds_write_b128 v6, v[8:11]
    ds_write_b128 v6, v[12:15] offset:512
    ds_write_b64 v7, v[16:17] offset:1024
    """)
    A("""
    v_and_b32 v1, 63, v0
    v_lshrrev_b32 v2, 6, v0
    v_bfe_u32 v3, v1, 2, 2
    s_movk_i32 s10, 1344
    v_mul_lo_u32 v3, v3, s10
    v_lshrrev_b32 v4, 4, v1
    v_lshl_add_u32 v3, v4, 5, v3
    v_and_b32 v4, 3, v1
    v_lshl_add_u32 v3, v4, 3, v3
    v_lshl_add_u32 v3, v2, 7, v3
    """)
    A(f"""
    v_lshl_add_u32 v4, v2, 6, v1
    s_movk_i32 s10, {UROW}
    v_mul_lo_u32 v4, v4, s10
    s_lshl_b32 s11, s9, 1
    s_add_u32 s11, s11, 32
    v_add_u32 v4, s11, v4
    s_waitcnt lgkmcnt(0)
    s_barrier
    """)
    A(f"""
    ds_read_b64_tr_b16 v[8:9], v3
    ds_read_b64_tr_b16 v[10:11], v3 offset:{4*1344}
    ds_read_b64_tr_b16 v[12:13], v3 offset:512
    ds_read_b64_tr_b16 v[14:15], v3 offset:{4*1344+512}
    ds_read_b64_tr_b16 v[16:17], v3 offset:1024
    ds_read_b64_tr_b16 v[18:19], v3 offset:{4*1344+1024}
    s_mov_b32 s20, {256*UROW}
    s_mov_b32 s21, {512*UROW}
    s_waitcnt lgkmcnt(0)
    buffer_store_dwordx4 v[8:11], v4, s[16:19], 0 offen
    buffer_store_dwordx4 v[12:15], v4, s[16:19], s20 offen
    v_readfirstlane_b32 s22, v2
    s_nop 3
    s_cmp_ge_u32 s22, 2
    s_cbranch_scc1 k1_ln_skip
    buffer_store_dwordx4 v[16:19], v4, s[16:19], s21 offen
    k1_ln_skip:
    s_cmp_lg_u32 s8, 0
    s_cbranch_scc1 k1_end
    """)
    A(f"""
    v_mov_b32 v8, 0
    v_mov_b32 v9, 0
    v_mov_b32 v10, 0
    v_mov_b32 v11, 0
    v_subrev_u32 v4, s11, v4
    buffer_store_dwordx4 v[8:11], v4, s[16:19], 0 offen
    buffer_store_dwordx4 v[8:11], v4, s[16:19], 0 offen offset:16
    buffer_store_dwordx4 v[8:11], v4, s[16:19], s20 offen
    buffer_store_dwordx4 v[8:11], v4, s[16:19], s20 offen offset:16
    s_cmp_ge_u32 s22, 2
    s_cbranch_scc1 k1_end
    buffer_store_dwordx4 v[8:11], v4, s[16:19], s21 offen
    buffer_store_dwordx4 v[8:11], v4, s[16:19], s21 offen offset:16
    s_branch k1_end
    """)
    A("k1_kgen:")
    A(f"""
    s_load_dwordx4 s[24:27], s[0:1], {ARG['lar']}
    s_load_dwordx4 s[28:31], s[0:1], {ARG['cre']}
    s_load_dwordx2 s[32:33], s[0:1], {ARG['ldt']}
    s_sub_u32 s8, s2, 256
    v_lshrrev_b32 v2, 6, v0
    v_and_b32 v1, 63, v0
    s_nop 0
    v_readfirstlane_b32 s9, v2
    s_mul_i32 s10, s8, 384
    s_waitcnt lgkmcnt(0)
    """)
    srd(A, 36, 24, 25, 0, 245760)
    srd(A, 40, 26, 27, 0, 245760)
    srd(A, 44, 28, 29, 0, 245760)
    srd(A, 48, 30, 31, 0, 245760)
    srd(A, 52, 6, 7, WS_KR, SZ_KR)
    srd(A, 56, 6, 7, WS_KS, SZ_KS)
    A("""
    s_cmp_ge_u32 s9, 3
    s_cbranch_scc1 k1_kg_bar1
    s_and_b32 s11, s8, 0xfffffffe
    s_lshl_b32 s11, s11, 1
    s_load_dword s34, s[32:33], s11
    v_lshlrev_b32 v3, 1, v0
    """)
    A("""
    buffer_load_ushort v4, v3, s[36:39], s10 offen
    buffer_load_ushort v5, v3, s[40:43], s10 offen
    buffer_load_ushort v6, v3, s[44:47], s10 offen
    buffer_load_ushort v7, v3, s[48:51], s10 offen
    v_lshlrev_b32 v8, 3, v1
    v_cmp_gt_u32 vcc, 48, v1
    v_mov_b32 v10, 0
    v_mov_b32 v11, 0
    v_mov_b32 v12, 0
    v_mov_b32 v13, 0
    s_and_saveexec_b64 s[60:61], vcc
    buffer_load_dwordx2 v[10:11], v8, s[44:47], s10 offen
    buffer_load_dwordx2 v[12:13], v8, s[48:51], s10 offen
    s_mov_b64 exec, s[60:61]
    """)
    A(f"""
    s_waitcnt lgkmcnt(0)
    s_bitcmp1_b32 s8, 0
    s_cbranch_scc1 k1_kg_odd
    s_lshl_b32 s34, s34, 16
    k1_kg_odd:
    s_and_b32 s34, s34, 0xffff0000
    v_mov_b32 v14, {hex(F_LOG2E)}
    v_mul_f32 v15, s34, v14
    v_exp_f32 v15, v15
    s_nop 0
    v_cvt_pk_bf16_f32 v15, v15, v15
    v_lshlrev_b32 v15, 16, v15
    """)
    A("""
    s_waitcnt vmcnt(0)
    s_mov_b32 s35, 0x7fff7fff
    v_and_b32 v10, s35, v10
    v_and_b32 v11, s35, v11
    v_and_b32 v12, s35, v12
    v_and_b32 v13, s35, v13
    v_pk_max_u16 v10, v10, v11
    v_pk_max_u16 v12, v12, v13
    v_pk_max_u16 v10, v10, v12
    v_lshrrev_b32 v11, 16, v10
    v_and_b32 v10, 0xffff, v10
    v_max_u32 v10, v10, v11
    """)
    allreduce16(A, "v_max_u32", 10)
    xor16(A, "v_max_u32", 10, 11)
    xor32(A, "v_max_u32", 10, 11)
    A("""
    v_lshrrev_b32 v10, 7, v10
    v_max_u32 v10, 5, v10
    v_min_u32 v10, 0xfe, v10
    v_sub_u32 v11, 0x103, v10
    v_lshlrev_b32 v11, 23, v11
    v_subrev_u32 v12, 4, v10
    v_lshlrev_b32 v12, 23, v12
    v_mul_f32 v12, v12, v15
    """)
    A(f"""
    v_lshlrev_b32 v4, 16, v4
    v_lshlrev_b32 v5, 16, v5
    v_lshlrev_b32 v6, 16, v6
    v_lshlrev_b32 v7, 16, v7
    v_mul_f32 v4, v14, v4
    v_exp_f32 v4, v4
    s_nop 0
    v_cvt_pk_bf16_f32 v4, v4, v4
    v_lshlrev_b32 v4, 16, v4
    v_mul_f32 v4, v4, v15
    v_mul_f32 v4, v4, v14
    v_sub_f32 v4, 0, v4
    v_mul_f32 v5, v5, v15
    v_mul_f32 v5, {hex(F_INV2PI)}, v5
    v_mul_f32 v16, v6, v11
    v_mul_f32 v17, v7, v11
    """)
    def cexp(dst, p, conj=False):
        if p == 1:
            A(f"v_exp_f32 v8, v4")
            A(f"v_fract_f32 v9, v5")
        else:
            A(f"v_mul_f32 v8, {float(p)}, v4" if p in (2,4) else f"v_mul_f32 v8, {hex(f32bits(p))}, v4")
            A(f"v_mul_f32 v9, {hex(f32bits(p))}, v5")
            A(f"v_exp_f32 v8, v8")
            A(f"v_fract_f32 v9, v9")
        A(f"v_cos_f32 v{dst}, v9")
        A(f"v_sin_f32 v{dst+1}, v9")
        A("s_nop 0")
        A(f"v_mul_f32 v{dst}, v{dst}, v8")
        if conj:
            A(f"v_mul_f32 v{dst+1}, -v{dst+1}, v8")
        else:
            A(f"v_mul_f32 v{dst+1}, v{dst+1}, v8")
    E1, E2, E4, E256, E512, W8 = 18, 20, 22, 24, 26, 28
    T = 30; CUR = 32; X12 = 34; X16 = 36
    cexp(E1, 1)
    cexp(W8, 8)
    cexp(E256, 256)
    cmul(A, E2, E1, E1, T)
    cmul(A, E4, E2, E2, T)
    cmul(A, E512, E256, E256, T)
    A(f"""
    s_mul_i32 s11, s9, 13568
    v_lshlrev_b32 v38, 2, v1
    v_add_u32 v38, s11, v38
    """)
    for i in range(16):
        if i == 0:
            A("v_mov_b32 v40, v38")
        else:
            A(f"v_xor_b32 v{40+i}, {i*16}, v38")
    def put(row, pair, neg_im=False):
        A(f"v_cvt_pk_f16_f32 v39, v{pair}, {'-' if neg_im else ''}v{pair+1}")
        A(f"ds_write_b32 v{40 + row % 16}, v39 offset:{row*256}")
    C = 16
    put(0, C)
    cmul(A, CUR, C, E1, T); put(1, CUR)
    for e in range(2, 8):
        cmul(A, CUR, CUR, E1, T); put(e, CUR)
    cmul(A, CUR, C, E256, T); put(8, CUR)
    for e in range(9, 12):
        cmul(A, CUR, CUR, E2, T); put(e, CUR)
    cmul(A, X12, C, E512, T); put(12, X12)
    cmul(A, CUR, X12, E4, T); put(13, CUR)
    cmul(A, CUR, X12, E256, T); put(14, CUR)
    cmul(A, CUR, CUR, E4, T); put(15, CUR)
    cmul(A, X16, X12, E512, T); put(16, X16)
    cmul(A, CUR, X16, E256, T); put(17, CUR)
    cmul(A, X16, X16, E512, T); put(18, X16)
    cmul(A, CUR, X16, E256, T); put(19, CUR)
    cmul(A, CUR, X16, E512, T); put(20, CUR)
    A("v_mov_b32 v39, 0x3c00")
    A(f"ds_write_b32 v{40 + 21 % 16}, v39 offset:{21*256}")
    put(22, W8, True)
    cmul(A, CUR, W8, W8, T); put(23, CUR, True)
    for c in range(3, 32):
        cmul(A, CUR, CUR, W8, T); put(21 + c, CUR, True)
    A(f"""
    v_and_b32 v14, 31, v1
    v_lshrrev_b32 v15, 5, v1
    v_and_b32 v16, 15, v14
    v_xor_b32 v16, v16, v15
    v_lshlrev_b32 v16, 4, v16
    v_lshl_add_u32 v16, v14, 8, v16
    v_add_u32 v16, s11, v16
    v_add_u32 v17, 21, v14
    v_and_b32 v18, 15, v17
    v_xor_b32 v18, v18, v15
    v_lshlrev_b32 v18, 4, v18
    v_lshl_add_u32 v17, v17, 8, v18
    v_add_u32 v17, s11, v17
    s_waitcnt lgkmcnt(0)
    """)
    for s in range(8):
        if s == 0:
            A("ds_read_b128 v[64:67], v16")
            A("ds_read_b128 v[68:71], v17")
        else:
            A(f"v_xor_b32 v18, {s*32}, v16")
            A(f"v_xor_b32 v19, {s*32}, v17")
            A(f"ds_read_b128 v[{64+8*s}:{67+8*s}], v18")
            A(f"ds_read_b128 v[{68+8*s}:{71+8*s}], v19")
    for s in range(8):
        A(f"s_waitcnt lgkmcnt({min(15, 2*(7-s))})")
        c = "0" if s == 0 else "v[20:35]"
        A(f"v_mfma_f32_32x32x16_f16 v[20:35], v[{64+8*s}:{67+8*s}], v[{68+8*s}:{71+8*s}], {c}")
    A("""
    s_nop 15
    v_lshlrev_b32 v18, 4, v1
    v_add_u32 v18, s11, v18
    ds_write_b128 v18, v[20:23]
    ds_write_b128 v18, v[24:27] offset:1024
    ds_write_b128 v18, v[28:31] offset:2048
    """)
    A("""
    s_cmp_lg_u32 s9, 0
    s_cbranch_scc1 k1_kg_noks
    s_lshl_b32 s12, s8, 2
    v_mov_b32 v19, s12
    v_cmp_eq_u32 vcc, 0, v1
    s_and_saveexec_b64 s[60:61], vcc
    buffer_store_dword v12, v19, s[56:59], 0 offen
    s_mov_b64 exec, s[60:61]
    k1_kg_noks:
    s_waitcnt lgkmcnt(0)
    k1_kg_bar1:
    s_barrier
    """)
    TB = 4096
    A(f"""
    s_cmp_ge_u32 s9, 3
    s_cbranch_scc1 k1_kg_bar2
    v_lshlrev_b32 v18, 4, v1
    s_lshl_b32 s12, s9, 10
    v_add_u32 v18, s12, v18
    ds_read_b128 v[20:23], v18
    ds_read_b128 v[24:27], v18 offset:13568
    ds_read_b128 v[28:31], v18 offset:{2*13568}
    v_and_b32 v14, 31, v1
    v_lshrrev_b32 v15, 5, v1
    s_waitcnt lgkmcnt(0)
    v_pk_add_f32 v[20:21], v[20:21], v[24:25]
    v_pk_add_f32 v[22:23], v[22:23], v[26:27]
    v_pk_add_f32 v[20:21], v[20:21], v[28:29]
    v_pk_add_f32 v[22:23], v[22:23], v[30:31]
    s_cmp_eq_u32 s9, 1
    s_cbranch_scc1 k1_kg_w1
    s_cmp_eq_u32 s9, 2
    s_cbranch_scc1 k1_kg_w2
    """)
    A(f"""
    v_cvt_pk_f16_f32 v24, v23, v22
    v_cvt_pk_f16_f32 v25, v21, v20
    v_lshlrev_b32 v16, 4, v14
    v_lshl_add_u32 v16, v15, 3, v16
    v_sub_u32 v16, {TB+504}, v16
    ds_write_b64 v16, v[24:25]
    s_branch k1_kg_w3
    k1_kg_w1:
    v_cvt_pk_f16_f32 v24, v20, v21
    v_cvt_pk_f16_f32 v25, v22, v23
    """)
    A(f"""
    v_lshlrev_b32 v16, 3, v14
    v_add_u32 v16, {TB+512}, v16
    v_add_u32 v17, 4, v16
    v_lshlrev_b32 v18, 2, v14
    v_add_u32 v18, {TB+768}, v18
    v_add_u32 v19, 128, v18
    v_cmp_eq_u32 vcc, 0, v15
    s_nop 1
    v_cndmask_b32 v16, v18, v16, vcc
    v_cndmask_b32 v17, v19, v17, vcc
    ds_write_b32 v16, v24
    ds_write_b32 v17, v25
    s_branch k1_kg_w3
    k1_kg_w2:
    v_cvt_pk_f16_f32 v24, v20, v21
    v_cvt_pk_f16_f32 v25, v22, v23
    v_lshlrev_b32 v16, 4, v14
    v_lshl_add_u32 v16, v15, 3, v16
    v_add_u32 v16, {TB+1024}, v16
    ds_write_b64 v16, v[24:25]
    k1_kg_w3:
    s_waitcnt lgkmcnt(0)
    k1_kg_bar2:
    s_barrier
    """)
    A(f"""
    v_and_b32 v1, 63, v0
    s_mov_b32 s12, 0x05040100
    s_mov_b32 s13, 0x01000100
    s_lshl_b32 s14, s8, 12
    v_lshlrev_b32 v3, 4, v0
    s_cmp_ge_u32 s9, 2
    s_cbranch_scc1 k1_ex_23
    """)
    A(f"""
    v_sub_u32 v4, 127, v0
    v_add_u32 v5, 1, v4
    v_and_b32 v6, 31, v4
    v_lshrrev_b32 v7, 5, v4
    v_lshlrev_b32 v6, 4, v6
    v_lshl_add_u32 v6, v7, 1, v6
    v_and_b32 v8, 31, v5
    v_lshrrev_b32 v7, 5, v5
    v_lshlrev_b32 v8, 4, v8
    v_lshl_add_u32 v8, v7, 1, v8
    ds_read_u16 v10, v6 offset:{TB+1024}
    ds_read_u16 v11, v8 offset:{TB+1024}
    v_and_b32 v9, 1, v4
    v_cmp_eq_u32 vcc, 1, v9
    s_waitcnt lgkmcnt(0)
    """)
    A(f"""
    v_cndmask_b32 v12, v10, v11, vcc
    v_perm_b32 v20, v11, v11, s13
    v_perm_b32 v21, v12, v11, s12
    v_perm_b32 v22, v10, v10, s13
    v_mov_b32 v23, v22
    s_branch k1_ex_store
    k1_ex_23:
    s_cmp_eq_u32 s9, 3
    s_cbranch_scc1 k1_ex_3
    """)
    A(f"""
    v_sub_u32 v4, 63, v1
    v_lshlrev_b32 v4, 2, v4
    v_add_u32 v4, {TB+768}, v4
    ds_read2_b32 v[10:11], v4 offset0:0 offset1:1
    s_mov_b32 s15, 0x03020302
    s_waitcnt lgkmcnt(0)
    v_perm_b32 v20, v11, v11, s13
    v_perm_b32 v21, v10, v10, s15
    v_alignbit_b32 v22, v10, v10, 16
    v_perm_b32 v23, v10, v10, s13
    s_branch k1_ex_store
    k1_ex_3:
    """)
    A(f"""
    v_sub_u32 v4, 31, v1
    v_and_b32 v4, 31, v4
    v_lshlrev_b32 v4, 3, v4
    ds_read_b64 v[10:11], v4 offset:{TB+512}
    ds_read_u16 v12, v4 offset:{TB+512+8}
    v_sub_u32 v5, 63, v1
    v_and_b32 v5, 31, v5
    v_lshlrev_b32 v5, 4, v5
    v_sub_u32 v5, {TB+496}, v5
    ds_read_b128 v[24:27], v5
    s_mov_b32 s15, 0x03020100
    s_mov_b32 s16, 0x07060100
    s_mov_b32 s17, 0x03020504
    v_cmp_gt_u32 vcc, 32, v1
    s_waitcnt lgkmcnt(0)
    """)
    A(f"""
    v_perm_b32 v20, v11, v12, s16
    v_perm_b32 v21, v11, v11, s13
    v_perm_b32 v22, v11, v10, s17
    v_perm_b32 v23, v10, v10, s13
    v_cndmask_b32 v20, v24, v20, vcc
    v_cndmask_b32 v21, v25, v21, vcc
    v_cndmask_b32 v22, v26, v22, vcc
    v_cndmask_b32 v23, v27, v23, vcc
    k1_ex_store:
    buffer_store_dwordx4 v[20:23], v3, s[52:55], s14 offen
    k1_end:
    s_endpgm
    """)
    return name, 128, 64, 128

import struct
def f32bits(x): return struct.unpack("<I", struct.pack("<f", float(x)))[0]


K2_WAVE_LDS = 21248
K2_COPY = 4160
K2_KOFF = 16640
def gen_k2(A):
    name = "k2_kernel"
    kernel_head(A, name)
    A("s_cmp_ge_u32 s2, 160")
    A("s_cbranch_scc1 k2_end")
    A(f"""
    s_load_dwordx2 s[6:7], s[0:1], {ARG['ws']}
    s_load_dwordx2 s[4:5], s[0:1], {ARG['dsk']}
    v_lshrrev_b32 v2, 6, v0
    v_and_b32 v1, 63, v0
    s_nop 0
    v_readfirstlane_b32 s9, v2
    s_lshl_b32 s8, s2, 2
    s_nop 2
    s_add_u32 s8, s8, s9
    s_mul_i32 s10, s9, {K2_WAVE_LDS}
    s_waitcnt lgkmcnt(0)
    """)
    srd(A, 12, 6, 7, WS_UT, SZ_UT)
    srd(A, 16, 6, 7, WS_KR, SZ_KR)
    srd(A, 20, 6, 7, WS_AT, SZ_AT)
    A(f"""
    s_add_u32 s24, s6, {hex(WS_KS)}
    s_addc_u32 s25, s7, 0
    s_lshl_b32 s26, s8, 2
    s_load_dword s27, s[24:25], s26
    s_and_b32 s26, s8, 0xfffffffe
    s_lshl_b32 s26, s26, 1
    s_load_dword s28, s[4:5], s26
    s_lshl_b32 s29, s8, 12
    s_mul_i32 s30, s8, {UROW}
    v_lshlrev_b32 v3, 4, v1
    """)
    A(f"s_add_u32 s31, s10, {K2_KOFF}")
    A("s_mov_b32 m0, s31")
    A("s_nop 0")
    for i in range(4):
        A(f"buffer_load_dwordx4 v3, s[16:19], s29 offen offset:{1024*i} lds")
    for c in range(4):
        A(f"v_add_u32 v{4+c}, {2*c}, v3")
        A(f"s_add_u32 s{32+c}, s10, {K2_COPY*c}")
    for i in range(4):
        for c in range(4):
            A(f"s_mov_b32 m0, s{32+c}")
            A("s_nop 0")
            A(f"buffer_load_dwordx4 v{4+c}, s[12:15], s30 offen offset:{1024*i} lds")
    A(f"""
    v_lshrrev_b32 v8, 1, v1
    v_and_b32 v9, 1, v1
    v_lshlrev_b32 v9, 4, v9
    v_lshl_add_u32 v10, v8, 1, v9
    v_add_u32 v10, 4096, v10
    s_movk_i32 s36, {K2_COPY}
    v_mul_lo_u32 v11, v8, s36
    v_add_u32 v11, v11, v9
    v_add_u32 v11, s10, v11
    v_cmp_gt_u32 vcc, 8, v1
    s_and_saveexec_b64 s[40:41], vcc
    buffer_load_dwordx4 v[12:15], v10, s[12:15], s30 offen
    s_mov_b64 exec, s[40:41]
    """)
    A(f"""
    v_mov_b32 v16, 0
    v_mov_b32 v17, 0
    v_mov_b32 v18, 0
    v_mov_b32 v19, 0
    v_add_u32 v20, s31, v3
    v_cmp_gt_u32 vcc, 30, v1
    s_and_saveexec_b64 s[40:41], vcc
    ds_write_b128 v20, v[16:19] offset:4096
    s_mov_b64 exec, s[40:41]
    """)
    A(f"""
    v_and_b32 v21, 15, v1
    v_lshrrev_b32 v22, 4, v1
    v_add_u32 v23, 1, v21
    v_and_b32 v24, 3, v23
    v_mul_lo_u32 v24, v24, s36
    v_lshrrev_b32 v23, 2, v23
    v_lshl_add_u32 v24, v23, 3, v24
    v_lshl_add_u32 v24, v22, 4, v24
    v_add_u32 v24, s10, v24
    """)
    A(f"""
    v_lshlrev_b32 v25, 5, v21
    v_sub_u32 v25, {2*2032 - 64*56}, v25
    v_lshl_add_u32 v25, v22, 4, v25
    v_add_u32 v25, s31, v25
    """)
    A(f"""
    v_lshlrev_b32 v26, 5, v21
    v_lshl_add_u32 v26, v22, 3, v26
    v_add_u32 v27, 32, v26
    v_add_u32 v27, s10, v27
    """)
    A(f"""
    s_waitcnt lgkmcnt(0)
    s_bitcmp1_b32 s8, 0
    s_cbranch_scc1 k2_odd
    s_lshl_b32 s28, s28, 16
    k2_odd:
    s_and_b32 s28, s28, 0xffff0000
    """)
    A("""
    s_waitcnt vmcnt(0)
    v_cmp_gt_u32 vcc, 8, v1
    s_and_saveexec_b64 s[40:41], vcc
    ds_write_b128 v11, v[12:15] offset:4096
    s_mov_b64 exec, s[40:41]
    s_waitcnt lgkmcnt(0)
    """)
    ACC = 32
    AR = 64
    NR = 4
    def loadA(al):
        r = AR + 4 * (al % NR)
        A(f"ds_read_b64 v[{r}:{r+1}], v24 offset:{64*al}")
        A(f"ds_read_b64 v[{r+2}:{r+3}], v24 offset:{64*al+8}")
    def loadB(g):
        r = 4 * (g + 7)
        A(f"ds_read_b128 a[{r}:{r+3}], v25 offset:{64*(56-g)}")
    def epilogue(q):
        a = ACC + 4 * q
        L = []
        L.append(f"v_mul_f32 v82, s27, v{a}")
        L.append(f"v_mul_f32 v83, s27, v{a+1}")
        L.append(f"v_mul_f32 v84, s27, v{a+2}")
        L.append(f"v_mul_f32 v85, s27, v{a+3}")
        L.append(f"v_cvt_pk_bf16_f32 v82, v82, v83")
        L.append(f"v_cvt_pk_bf16_f32 v84, v84, v85")
        L.append(f"v_fma_mix_f32 v86, v80, s28, 0 op_sel_hi:[1,0,0]")
        L.append(f"v_fma_mix_f32 v87, v80, s28, 0 op_sel:[1,0,0] op_sel_hi:[1,0,0]")
        L.append(f"v_fma_mix_f32 v88, v81, s28, 0 op_sel_hi:[1,0,0]")
        L.append(f"v_fma_mix_f32 v89, v81, s28, 0 op_sel:[1,0,0] op_sel_hi:[1,0,0]")
        L.append(f"v_cvt_pk_bf16_f32 v86, v86, v87")
        L.append(f"v_cvt_pk_bf16_f32 v88, v88, v89")
        L.append(f"v_lshlrev_b32 v90, 16, v82")
        L.append(f"v_and_b32 v91, 0xffff0000, v82")
        L.append(f"v_lshlrev_b32 v92, 16, v86")
        L.append(f"v_and_b32 v93, 0xffff0000, v86")
        L.append(f"v_pk_add_f32 v[90:91], v[90:91], v[92:93]")
        L.append(f"v_cvt_pk_bf16_f32 v94, v90, v91")
        L.append(f"v_lshlrev_b32 v90, 16, v84")
        L.append(f"v_and_b32 v91, 0xffff0000, v84")
        L.append(f"v_lshlrev_b32 v92, 16, v88")
        L.append(f"v_and_b32 v93, 0xffff0000, v88")
        L.append(f"v_pk_add_f32 v[90:91], v[90:91], v[92:93]")
        L.append(f"v_cvt_pk_bf16_f32 v95, v90, v91")
        L.append(f"buffer_store_dwordx2 v[94:95], v26, s[20:23], s29 offen offset:{512*q}")
        return L
    loadA(0); loadA(1)
    for q in range(8): loadB(8*q - 0)
    for al in range(64):
        nl = 0
        if al + 2 < 64:
            loadA(al + 2); nl += 2
        if al + 1 <= 7:
            for q in range(8):
                loadB(8*q - (al+1)); nl += 1
        A(f"s_waitcnt lgkmcnt({min(nl + (2 if al+1 < 64 else 0), 15) if False else min(nl,15)})")
        r = AR + 4 * (al % NR)
        q0 = al // 8
        for q in range(q0, 8):
            g = 8 * q - al
            c = "0" if al == 0 else f"v[{ACC+4*q}:{ACC+4*q+3}]"
            A(f"v_mfma_f32_16x16x32_f16 v[{ACC+4*q}:{ACC+4*q+3}], v[{r}:{r+3}], a[{4*(g+7)}:{4*(g+7)+3}], {c}")
        if al % 8 == 7:
            q = al // 8
            A(f"ds_read_b64 v[80:81], v27 offset:{512*q}")
            A("s_nop 7")
            A("s_waitcnt lgkmcnt(0)")
            for ins in epilogue(q): A(ins)
    A("k2_end:")
    A("s_endpgm")
    return name, 512, 64, 256

def gen_k3(A):
    name = "k3_kernel"
    kernel_head(A, name)
    A("s_cmp_ge_u32 s2, 256")
    A("s_cbranch_scc1 k3_end")
    A(f"""
    s_load_dwordx2 s[4:5], s[0:1], {ARG['x']}
    s_load_dwordx2 s[6:7], s[0:1], {ARG['ws']}
    s_load_dwordx2 s[8:9], s[0:1], {ARG['wr']}
    s_load_dwordx2 s[10:11], s[0:1], {ARG['out']}
    s_and_b32 s12, s2, 7
    s_lshl_b32 s12, s12, 5
    s_lshr_b32 s13, s2, 3
    s_add_u32 s12, s12, s13
    s_lshl_b32 s13, s12, 3
    v_lshrrev_b32 v2, 6, v0
    v_and_b32 v1, 63, v0
    s_nop 0
    v_readfirstlane_b32 s14, v2
    s_waitcnt lgkmcnt(0)
    """)
    srd(A, 16, 4, 5, 0, 2621440)
    srd(A, 20, 6, 7, WS_AT, SZ_AT)
    srd(A, 24, 8, 9, 0, 1280)
    srd(A, 28, 10, 11, 0, 2621440)
    srd(A, 32, 6, 7, WS_Z, SZ_Z)
    srd(A, 36, 6, 7, WS_H, SZ_H)
    srd(A, 40, 6, 7, WS_KEY, SZ_KEY)
    A(f"""
    v_lshlrev_b32 v3, 12, v0
    s_lshl_b32 s15, s13, 1
    s_lshl_b32 s44, s14, 10
    s_mov_b32 m0, s44
    s_nop 0
    buffer_load_dwordx4 v3, s[20:23], s15 offen lds
    s_add_u32 s45, s15, {256*4096}
    s_add_u32 s44, s44, 4096
    s_mov_b32 m0, s44
    s_nop 0
    buffer_load_dwordx4 v3, s[20:23], s45 offen lds
    s_cmp_ge_u32 s14, 2
    s_cbranch_scc1 k3_nodma3
    s_add_u32 s45, s15, {512*4096}
    s_add_u32 s44, s44, 4096
    s_mov_b32 m0, s44
    s_nop 0
    buffer_load_dwordx4 v3, s[20:23], s45 offen lds
    k3_nodma3:
    """)
    A(f"""
    v_and_b32 v4, 7, v1
    v_lshrrev_b32 v5, 3, v1
    v_add_u32 v6, s13, v4
    s_movk_i32 s46, 1280
    v_mul_lo_u32 v6, v6, s46
    s_mul_i32 s47, s14, 320
    v_lshl_add_u32 v7, v5, 3, s47
    v_add_u32 v6, v6, v7
    """)
    for i in range(5):
        A(f"buffer_load_dwordx2 v[{10+2*i}:{11+2*i}], v6, s[16:19], 0 offen offset:{64*i}")
    for i in range(5):
        A(f"buffer_load_dwordx2 v[{20+2*i}:{21+2*i}], v7, s[24:27], 0 offen offset:{64*i}")
    A(f"""
    v_lshrrev_b32 v8, 4, v1
    v_lshlrev_b32 v8, 3, v8
    v_bfe_u32 v9, v1, 1, 1
    v_lshl_add_u32 v8, v9, 2, v8
    v_bfe_u32 v9, v1, 2, 2
    v_add_u32 v8, v8, v9
    s_mul_i32 s47, s14, 160
    v_add_u32 v8, s47, v8
    v_lshlrev_b32 v8, 4, v8
    v_and_b32 v9, 1, v1
    v_lshl_add_u32 v8, v9, 3, v8
    s_waitcnt vmcnt(0)
    s_barrier
    """)
    for i in range(5):
        A(f"ds_read_b64_tr_b16 v[{30+2*i}:{31+2*i}], v8 offset:{512*i}")
    A("s_waitcnt lgkmcnt(0)")
    H = 40
    for i in range(10):
        a, b = H + 2*i, H + 2*i + 1
        unpack_bf16(A, 10 + i, a, b)
        unpack_bf16(A, 30 + i, 70, 71)
        A(f"v_pk_add_f32 v[{a}:{b}], v[{a}:{b}], v[70:71]")
        A(f"v_cvt_pk_bf16_f32 v{60+i}, v{a}, v{b}")
        unpack_bf16(A, 60 + i, a, b)
    for i in range(5):
        A(f"buffer_store_dwordx2 v[{60+2*i}:{61+2*i}], v6, s[36:39], 0 offen offset:{64*i}")
    A(f"v_pk_add_f32 v[72:73], v[{H}:{H+1}], v[{H+2}:{H+3}]")
    for i in range(2, 10):
        A(f"v_pk_add_f32 v[72:73], v[72:73], v[{H+2*i}:{H+2*i+1}]")
    A("v_add_f32 v72, v72, v73")
    def red8(x, t):
        A("s_nop 1")
        A(f"v_add_f32_dpp v{x}, v{x}, v{x} row_ror:8 {DPP}")
        xor16(A, "v_add_f32", x, t)
        xor32(A, "v_add_f32", x, t)
    red8(72, 73)
    A(f"v_mul_f32 v72, {hex(f32bits(1/160))}, v72")
    for i in range(10):
        A(f"v_pk_add_f32 v[70:71], v[{H+2*i}:{H+2*i+1}], v[72:73] op_sel_hi:[1,0] neg_lo:[0,1] neg_hi:[0,1]")
        if i == 0: A("v_pk_mul_f32 v[74:75], v[70:71], v[70:71]")
        else: A("v_pk_fma_f32 v[74:75], v[70:71], v[70:71], v[74:75]")
    A("v_add_f32 v73, v74, v75")
    red8(73, 74)
    A(f"""
    v_lshlrev_b32 v76, 3, v4
    v_add_u32 v76, 10240, v76
    s_lshl_b32 s47, s14, 6
    v_add_u32 v77, s47, v76
    v_cmp_gt_u32 vcc, 8, v1
    s_and_saveexec_b64 s[48:49], vcc
    ds_write_b64 v77, v[72:73]
    s_mov_b64 exec, s[48:49]
    s_waitcnt lgkmcnt(0)
    s_barrier
    ds_read_b64 v[78:79], v76
    ds_read_b64 v[80:81], v76 offset:64
    ds_read_b64 v[82:83], v76 offset:128
    ds_read_b64 v[84:85], v76 offset:192
    s_waitcnt lgkmcnt(0)
    v_add_f32 v72, v78, v80
    v_add_f32 v73, v82, v84
    v_add_f32 v72, v72, v73
    v_mul_f32 v72, 0.25, v72
    v_sub_f32 v78, v78, v72
    v_sub_f32 v80, v80, v72
    v_sub_f32 v82, v82, v72
    v_sub_f32 v84, v84, v72
    v_mul_f32 v73, v78, v78
    v_fmac_f32 v73, v80, v80
    v_fmac_f32 v73, v82, v82
    v_fmac_f32 v73, v84, v84
    v_add_f32 v79, v79, v81
    v_add_f32 v83, v83, v85
    v_add_f32 v79, v79, v83
    v_mov_b32 v74, {hex(f32bits(160))}
    v_fmac_f32 v79, v74, v73
    v_mul_f32 v74, {hex(F_INV640)}, v79
    """)
    ln_scalars(A, 72, 74, 75, 78, 80)
    A("v_mov_b32 v82, 0")
    for i in range(10):
        a, b = H + 2*i, H + 2*i + 1
        A(f"v_pk_add_f32 v[70:71], v[{a}:{b}], v[78:79] op_sel_hi:[1,0] neg_lo:[0,1] neg_hi:[0,1]")
        A(f"v_cvt_pk_bf16_f32 v84, v70, v71")
        unpack_bf16(A, 84, 70, 71)
        A(f"v_pk_mul_f32 v[70:71], v[70:71], v[80:81] op_sel_hi:[1,0]")
        A(f"v_cvt_pk_bf16_f32 v{30+i}, v70, v71")
        unpack_bf16(A, 30 + i, 70, 71)
        unpack_bf16(A, 20 + i, 84, 85)
        A(f"v_fmac_f32 v82, v70, v84")
        A(f"v_fmac_f32 v82, v71, v85")
        A(f"v_pk_add_f32 v[70:71], v[70:71], v[{a}:{b}]")
        A(f"v_cvt_pk_bf16_f32 v{10+i}, v70, v71")
    for i in range(5):
        A(f"buffer_store_dwordx2 v[{10+2*i}:{11+2*i}], v6, s[28:31], 0 offen offset:{64*i}")
        A(f"buffer_store_dwordx2 v[{30+2*i}:{31+2*i}], v6, s[32:35], 0 offen offset:{64*i}")
    red8(82, 83)
    A(f"""
    v_lshlrev_b32 v76, 2, v4
    v_add_u32 v76, 10496, v76
    s_lshl_b32 s47, s14, 5
    v_add_u32 v77, s47, v76
    v_cmp_gt_u32 vcc, 8, v1
    s_and_saveexec_b64 s[48:49], vcc
    ds_write_b32 v77, v82
    s_mov_b64 exec, s[48:49]
    s_waitcnt lgkmcnt(0)
    s_barrier
    s_cmp_lg_u32 s14, 0
    s_cbranch_scc1 k3_end
    ds_read_b32 v78, v76
    ds_read_b32 v79, v76 offset:32
    ds_read_b32 v80, v76 offset:64
    ds_read_b32 v81, v76 offset:96
    s_waitcnt lgkmcnt(0)
    v_add_f32 v78, v78, v79
    v_add_f32 v80, v80, v81
    v_add_f32 v78, v78, v80
    v_cvt_pk_bf16_f32 v78, v78, v78
    v_and_b32 v78, 0xffff, v78
    """)
    A(f"""
    v_xor_b32 v79, 0xffff, v78
    v_or_b32 v80, 0x8000, v78
    v_cmp_lt_u32 vcc, 0x7fff, v78
    s_nop 1
    v_cndmask_b32 v78, v80, v79, vcc
    v_lshlrev_b32 v78, 16, v78
    v_add_u32 v79, s13, v4
    v_sub_u32 v80, 0xffff, v79
    v_or_b32 v78, v78, v80
    v_lshlrev_b32 v79, 2, v79
    v_cmp_gt_u32 vcc, 8, v1
    s_and_saveexec_b64 s[48:49], vcc
    buffer_store_dword v78, v79, s[40:43], 0 offen
    s_mov_b64 exec, s[48:49]
    k3_end:
    s_endpgm
    """)
    return name, 96, 64, 96

def topk_code(A, pfx, MISC):
    A(f"""
    v_lshlrev_b32 v9, 5, v0
    buffer_load_dwordx4 v[10:13], v9, s[40:43], 0 offen
    buffer_load_dwordx4 v[14:17], v9, s[40:43], 0 offen offset:16
    v_mov_b32 v18, 0
    v_mov_b32 v19, {MISC+32}
    ds_write_b32 v19, v18
    s_waitcnt vmcnt(0)
    v_max3_u32 v18, v10, v11, v12
    v_max3_u32 v18, v18, v13, v14
    v_max3_u32 v18, v18, v15, v16
    v_max_u32 v18, v18, v17
    s_nop 1
    v_max_u32_dpp v18, v18, v18 row_ror:8 {DPP}
    """)
    xor16(A, "v_max_u32", 18, 20)
    xor32(A, "v_max_u32", 18, 20)
    A(f"""
    v_and_b32 v20, 7, v1
    v_lshlrev_b32 v20, 2, v20
    v_add_u32 v20, {MISC+64}, v20
    s_lshl_b32 s44, s14, 5
    v_add_u32 v21, s44, v20
    v_cmp_gt_u32 vcc, 8, v1
    s_and_saveexec_b64 s[46:47], vcc
    ds_write_b32 v21, v18
    s_mov_b64 exec, s[46:47]
    s_waitcnt lgkmcnt(0)
    s_barrier
    ds_read_b32 v22, v20
    ds_read_b32 v23, v20 offset:32
    ds_read_b32 v24, v20 offset:64
    ds_read_b32 v25, v20 offset:96
    s_waitcnt lgkmcnt(0)
    v_max3_u32 v22, v22, v23, v24
    v_max_u32 v22, v22, v25
    """)
    for pat in ("quad_perm:[1,0,3,2]", "quad_perm:[2,3,0,1]", "row_half_mirror"):
        A("s_nop 1")
        A(f"v_min_u32_dpp v22, v22, v22 {pat} {DPP}")
    A("v_mov_b32 v23, 0")
    for i in range(8):
        A(f"v_cmp_ge_u32 vcc, v{10+i}, v22")
        A("s_nop 1")
        A(f"v_addc_co_u32 v23, vcc, 0, v23, vcc")
    A(f"""
    v_mov_b32 v19, {MISC+32}
    v_cmp_lt_u32 vcc, 0, v23
    s_and_saveexec_b64 s[46:47], vcc
    ds_add_rtn_u32 v24, v19, v23
    s_waitcnt lgkmcnt(0)
    v_lshlrev_b32 v24, 2, v24
    v_add_u32 v24, {MISC+256}, v24
    s_mov_b64 s[48:49], exec
    """)
    for i in range(8):
        A(f"s_mov_b64 exec, s[48:49]")
        A(f"v_cmp_ge_u32 vcc, v{10+i}, v22")
        A(f"s_and_b64 exec, s[48:49], vcc")
        A(f"ds_write_b32 v24, v{10+i}")
        A(f"v_add_u32 v24, 4, v24")
    A(f"""
    s_mov_b64 exec, s[46:47]
    s_waitcnt lgkmcnt(0)
    s_barrier
    ds_read_b32 v23, v19
    s_waitcnt lgkmcnt(0)
    v_readfirstlane_b32 s44, v23
    """)
    A(f"""
    s_mov_b32 s45, 0
    {pfx}_rank_outer:
    v_add_u32 v24, s45, v0
    v_cmp_gt_u32 vcc, s44, v24
    s_and_saveexec_b64 s[46:47], vcc
    s_cbranch_execz {pfx}_rank_next
    v_lshlrev_b32 v25, 2, v24
    ds_read_b32 v26, v25 offset:{MISC+256}
    v_mov_b32 v27, 0
    v_mov_b32 v28, {MISC+256}
    s_mov_b32 s50, 0
    {pfx}_rank_inner:
    ds_read_b32 v29, v28
    v_add_u32 v28, 4, v28
    s_add_u32 s50, s50, 1
    s_waitcnt lgkmcnt(0)
    v_cmp_gt_u32 vcc, v29, v26
    s_nop 1
    v_addc_co_u32 v27, vcc, 0, v27, vcc
    s_cmp_lt_u32 s50, s44
    s_cbranch_scc1 {pfx}_rank_inner
    v_cmp_gt_u32 vcc, 8, v27
    s_and_b64 exec, exec, vcc
    s_cbranch_execz {pfx}_rank_next
    v_lshlrev_b32 v27, 2, v27
    ds_write_b32 v27, v26 offset:{MISC}
    {pfx}_rank_next:
    s_mov_b64 exec, s[46:47]
    s_add_u32 s45, s45, 256
    s_cmp_lt_u32 s45, s44
    s_cbranch_scc1 {pfx}_rank_outer
    s_waitcnt lgkmcnt(0)
    s_barrier
    """)

def gen_k4(A):
    name = "k4_kernel"
    kernel_head(A, name)
    MISC = 20480
    A("s_cmp_ge_u32 s2, 192")
    A("s_cbranch_scc1 k4_end")
    A(f"""
    s_load_dwordx4 s[4:7], s[0:1], {ARG['wg']}
    s_load_dwordx2 s[8:9], s[0:1], {ARG['ws']}
    s_and_b32 s12, s2, 7
    s_mul_i32 s12, s12, 24
    s_lshr_b32 s13, s2, 3
    s_add_u32 s12, s12, s13
    v_lshrrev_b32 v2, 6, v0
    v_and_b32 v1, 63, v0
    s_nop 0
    v_readfirstlane_b32 s14, v2
    s_waitcnt lgkmcnt(0)
    """)
    srd(A, 16, 4, 5, 0, 640*3072)
    srd(A, 20, 6, 7, 0, 640*3072)
    srd(A, 24, 8, 9, WS_Z, SZ_Z)
    srd(A, 28, 8, 9, WS_HID, SZ_HID)
    srd(A, 32, 8, 9, WS_SEL, SZ_SEL)
    srd(A, 40, 8, 9, WS_KEY, SZ_KEY)
    A(f"""
    s_movk_i32 s15, 3072
    v_mul_lo_u32 v3, v0, s15
    s_lshl_b32 s15, s12, 4
    s_lshl_b32 s44, s14, 10
    """)
    for it in range(3):
        if it == 2:
            A("s_cmp_ge_u32 s14, 2")
            A("s_cbranch_scc1 k4_nodma3")
        A(f"s_add_u32 s45, s15, {it*256*3072}")
        A(f"s_add_u32 s46, s44, {it*4096}")
        A("s_mov_b32 m0, s46")
        A("s_nop 0")
        A("buffer_load_dwordx4 v3, s[16:19], s45 offen lds")
        A(f"s_add_u32 s46, s44, {it*4096 + 10240}")
        A("s_mov_b32 m0, s46")
        A("s_nop 0")
        A("buffer_load_dwordx4 v3, s[20:23], s45 offen lds")
    A("k4_nodma3:")
    topk_code(A, "k4", MISC)
    A(f"""
    v_and_b32 v4, 7, v1
    v_lshlrev_b32 v5, 2, v4
    ds_read_b32 v6, v5 offset:{MISC}
    v_lshrrev_b32 v7, 4, v1
    s_waitcnt lgkmcnt(0)
    v_and_b32 v8, 0xffff, v6
    v_sub_u32 v8, 0xffff, v8
    s_movk_i32 s15, 1280
    v_mul_lo_u32 v9, v8, s15
    v_lshl_add_u32 v9, v7, 4, v9
    s_mul_i32 s44, s14, 320
    """)
    for i in range(5):
        A(f"buffer_load_dwordx4 v[{40+4*i}:{43+4*i}], v9, s[24:27], s44 offen offset:{64*i}")
    A(f"""
    s_or_b32 s45, s2, s14
    s_cmp_lg_u32 s45, 0
    s_cbranch_scc1 k4_nosel
    v_lshrrev_b32 v10, 16, v6
    v_xor_b32 v11, 0xffff, v10
    v_and_b32 v12, 0x7fff, v10
    v_cmp_lt_u32 vcc, 0x7fff, v10
    s_nop 1
    v_cndmask_b32 v10, v11, v12, vcc
    v_lshlrev_b32 v10, 16, v10
    v_mul_f32 v10, {hex(F_LOG2E)}, v10
    v_exp_f32 v10, -v10
    s_nop 0
    v_add_f32 v10, 1.0, v10
    v_rcp_f32 v10, v10
    s_nop 0
    v_cvt_pk_bf16_f32 v10, v10, v10
    v_lshlrev_b32 v10, 16, v10
    v_cmp_gt_u32 vcc, 8, v1
    s_and_saveexec_b64 s[46:47], vcc
    buffer_store_dword v8, v5, s[32:35], 0 offen
    buffer_store_dword v10, v5, s[32:35], 0 offen offset:32
    s_mov_b64 exec, s[46:47]
    k4_nosel:
    """)
    A(f"""
    v_lshlrev_b32 v10, 3, v7
    v_bfe_u32 v11, v1, 2, 2
    v_add_u32 v10, v10, v11
    v_lshlrev_b32 v10, 4, v10
    v_and_b32 v11, 1, v1
    v_lshl_add_u32 v10, v11, 3, v10
    v_bfe_u32 v11, v1, 1, 1
    s_movk_i32 s15, 10240
    v_mul_lo_u32 v11, v11, s15
    v_add_u32 v10, v10, v11
    s_mul_i32 s44, s14, {5*512}
    v_add_u32 v10, s44, v10
    """)
    for i in range(5):
        A(f"ds_read_b64_tr_b16 v[{60+4*i}:{61+4*i}], v10 offset:{512*i}")
        A(f"ds_read_b64_tr_b16 v[{62+4*i}:{63+4*i}], v10 offset:{512*i+64}")
    A("s_waitcnt vmcnt(0) lgkmcnt(0)")
    for i in range(5):
        c = "0" if i == 0 else "v[80:83]"
        A(f"v_mfma_f32_16x16x32_bf16 v[80:83], v[{40+4*i}:{43+4*i}], v[{60+4*i}:{63+4*i}], {c}")
    A(f"""
    s_nop 7
    v_lshlrev_b32 v11, 4, v1
    s_lshl_b32 s44, s14, 10
    v_add_u32 v12, s44, v11
    ds_write_b128 v12, v[80:83] offset:{MISC+256}
    s_waitcnt lgkmcnt(0)
    s_barrier
    s_cmp_lg_u32 s14, 0
    s_cbranch_scc1 k4_end
    ds_read_b128 v[80:83], v11 offset:{MISC+256}
    ds_read_b128 v[84:87], v11 offset:{MISC+256+1024}
    ds_read_b128 v[88:91], v11 offset:{MISC+256+2048}
    ds_read_b128 v[92:95], v11 offset:{MISC+256+3072}
    s_waitcnt lgkmcnt(0)
    v_pk_add_f32 v[80:81], v[80:81], v[84:85]
    v_pk_add_f32 v[82:83], v[82:83], v[86:87]
    v_pk_add_f32 v[88:89], v[88:89], v[92:93]
    v_pk_add_f32 v[90:91], v[90:91], v[94:95]
    v_pk_add_f32 v[80:81], v[80:81], v[88:89]
    v_pk_add_f32 v[82:83], v[82:83], v[90:91]
    v_cvt_pk_bf16_f32 v84, v80, v81
    v_cvt_pk_bf16_f32 v85, v82, v83
    """)
    unpack_bf16(A, 84, 80, 81)
    unpack_bf16(A, 85, 82, 83)
    for r in range(4):
        A("s_nop 1")
        A(f"v_mov_b32_dpp v{84+r}, v{80+r} row_ror:8 {DPP}")
    for r in range(4):
        g, u = 80 + r, 84 + r
        A(f"v_mul_f32 v88, {hex(F_LOG2E)}, v{g}")
        A(f"v_exp_f32 v88, -v88")
        A("s_nop 0")
        A(f"v_add_f32 v88, 1.0, v88")
        A(f"v_rcp_f32 v88, v88")
        A("s_nop 0")
        A(f"v_mul_f32 v88, v88, v{g}")
        A(f"v_cvt_pk_bf16_f32 v88, v88, v88")
        A(f"v_lshlrev_b32 v88, 16, v88")
        A(f"v_mul_f32 v88, v88, v{u}")
        A(f"v_cvt_pk_bf16_f32 v{g}, v88, v88")
    A(f"""
    v_and_b32 v11, 15, v1
    v_lshlrev_b32 v12, 1, v11
    s_movk_i32 s15, {4*3072}
    v_mul_lo_u32 v13, v7, s15
    v_add_u32 v12, v12, v13
    s_lshl_b32 s44, s12, 4
    v_cmp_gt_u32 vcc, 8, v11
    v_cmp_gt_u32 s[48:49], 2, v7
    s_and_b64 vcc, vcc, s[48:49]
    s_and_saveexec_b64 s[46:47], vcc
    s_add_u32 s45, s44, 3072
    s_add_u32 s50, s44, {2*3072}
    s_add_u32 s51, s44, {3*3072}
    buffer_store_short v80, v12, s[28:31], s44 offen
    buffer_store_short v81, v12, s[28:31], s45 offen
    buffer_store_short v82, v12, s[28:31], s50 offen
    buffer_store_short v83, v12, s[28:31], s51 offen
    s_mov_b64 exec, s[46:47]
    k4_end:
    s_endpgm
    """)
    return name, 96, 64, 96

def gen_k5(A):
    name = "k5_kernel"
    kernel_head(A, name)
    RED = 24576
    A("s_cmp_ge_u32 s2, 80")
    A("s_cbranch_scc1 k5_end")
    A(f"""
    s_load_dwordx4 s[4:7], s[0:1], {ARG['wd']}
    s_load_dwordx2 s[8:9], s[0:1], {ARG['ws']}
    s_and_b32 s12, s2, 7
    s_mul_i32 s12, s12, 10
    s_lshr_b32 s13, s2, 3
    s_add_u32 s12, s12, s13
    v_lshrrev_b32 v2, 6, v0
    v_and_b32 v1, 63, v0
    s_nop 0
    v_readfirstlane_b32 s14, v2
    s_waitcnt lgkmcnt(0)
    """)
    srd(A, 16, 4, 5, 0, 1536*1280)
    srd(A, 20, 6, 7, 0, 2621440)
    srd(A, 24, 8, 9, WS_Z, SZ_Z)
    srd(A, 28, 8, 9, WS_HID, SZ_HID)
    srd(A, 32, 8, 9, WS_SEL, SZ_SEL)
    srd(A, 36, 8, 9, WS_H, SZ_H)
    A(f"""
    s_movk_i32 s15, 1280
    v_mul_lo_u32 v3, v0, s15
    s_lshl_b32 s15, s12, 4
    s_lshl_b32 s44, s14, 10
    """)
    for it in range(6):
        A(f"s_add_u32 s45, s15, {it*256*1280}")
        A(f"s_add_u32 s46, s44, {it*4096}")
        A("s_mov_b32 m0, s46")
        A("s_nop 0")
        A("buffer_load_dwordx4 v3, s[16:19], s45 offen lds")
    A(f"""
    v_and_b32 v4, 7, v1
    v_bfe_u32 v5, v1, 3, 1
    v_lshrrev_b32 v7, 4, v1
    s_movk_i32 s15, 3072
    v_mul_lo_u32 v9, v4, s15
    s_movk_i32 s15, 1536
    v_mul_lo_u32 v10, v5, s15
    v_add_u32 v9, v9, v10
    v_lshl_add_u32 v9, v7, 4, v9
    s_mul_i32 s44, s14, {6*64}
    """)
    for i in range(6):
        A(f"buffer_load_dwordx4 v[{40+4*i}:{43+4*i}], v9, s[28:31], s44 offen offset:{64*i}")
    A(f"""
    v_lshlrev_b32 v11, 2, v4
    buffer_load_dword v12, v11, s[32:35], 0 offen
    buffer_load_dword v13, v11, s[32:35], 0 offen offset:32
    """)
    A(f"""
    v_lshlrev_b32 v14, 3, v7
    v_bfe_u32 v15, v1, 2, 2
    v_add_u32 v14, v14, v15
    v_bfe_u32 v15, v1, 1, 1
    s_movk_i32 s15, 768
    v_mul_lo_u32 v15, v15, s15
    v_add_u32 v14, v14, v15
    v_lshlrev_b32 v14, 4, v14
    v_and_b32 v15, 1, v1
    v_lshl_add_u32 v14, v15, 3, v14
    s_mul_i32 s44, s14, {6*512}
    v_add_u32 v14, s44, v14
    s_waitcnt vmcnt(0)
    s_barrier
    """)
    for i in range(6):
        A(f"ds_read_b64_tr_b16 v[{64+4*i}:{65+4*i}], v14 offset:{512*i}")
        A(f"ds_read_b64_tr_b16 v[{66+4*i}:{67+4*i}], v14 offset:{512*i+64}")
    A("s_waitcnt lgkmcnt(0)")
    for i in range(6):
        c = "0" if i == 0 else "v[88:91]"
        A(f"v_mfma_f32_16x16x32_bf16 v[88:91], v[{40+4*i}:{43+4*i}], v[{64+4*i}:{67+4*i}], {c}")
    A(f"""
    s_nop 7
    v_lshlrev_b32 v15, 4, v1
    s_lshl_b32 s44, s14, 10
    v_add_u32 v16, s44, v15
    ds_write_b128 v16, v[88:91] offset:{RED}
    s_waitcnt lgkmcnt(0)
    s_barrier
    s_cmp_lg_u32 s14, 0
    s_cbranch_scc1 k5_end
    """)
    A(f"""
    v_lshrrev_b32 v20, 3, v1
    v_and_b32 v21, 7, v1
    v_lshrrev_b32 v22, 2, v20
    v_lshl_add_u32 v22, v22, 4, v21
    v_lshlrev_b32 v22, 4, v22
    v_and_b32 v23, 3, v20
    v_lshl_add_u32 v22, v23, 2, v22
    """)
    for w in range(4):
        A(f"ds_read_b32 v{24+2*w}, v22 offset:{RED + 1024*w}")
        A(f"ds_read_b32 v{25+2*w}, v22 offset:{RED + 1024*w + 640}")
    A(f"""
    v_lshlrev_b32 v32, 2, v20
    ds_bpermute_b32 v33, v32, v12
    ds_bpermute_b32 v34, v32, v13
    s_waitcnt lgkmcnt(0)
    v_add_f32 v24, v24, v25
    v_add_f32 v26, v26, v27
    v_add_f32 v28, v28, v29
    v_add_f32 v30, v30, v31
    v_add_f32 v24, v24, v26
    v_add_f32 v28, v28, v30
    v_add_f32 v24, v24, v28
    s_movk_i32 s15, 1280
    v_mul_lo_u32 v35, v33, s15
    v_lshl_add_u32 v35, v21, 1, v35
    s_lshl_b32 s44, s12, 4
    buffer_load_ushort v36, v35, s[24:27], s44 offen
    buffer_load_ushort v37, v35, s[36:39], s44 offen
    v_cvt_pk_bf16_f32 v24, v24, v24
    v_lshlrev_b32 v24, 16, v24
    v_mul_f32 v24, v24, v34
    v_cvt_pk_bf16_f32 v24, v24, v24
    v_lshlrev_b32 v24, 16, v24
    s_waitcnt vmcnt(0)
    v_lshlrev_b32 v36, 16, v36
    v_lshlrev_b32 v37, 16, v37
    v_add_f32 v24, v36, v24
    v_cvt_pk_bf16_f32 v24, v24, v24
    v_lshlrev_b32 v24, 16, v24
    v_add_f32 v24, v37, v24
    v_cvt_pk_bf16_f32 v24, v24, v24
    buffer_store_short v24, v35, s[20:23], s44 offen
    k5_end:
    s_endpgm
    """)
    return name, 96, 64, 96

def main():
    A = Asm()
    hdr = open("cdna_kernels/%s.s.ref" % NAME).read().split("; Override launch")[0]
    kernels = []
    body = Asm()
    for g in (gen_k1, gen_k2, gen_k3, gen_k4, gen_k5):
        kernels.append(g(body))
    launches = [
        ("k1_kernel", 896, 256, 40960),
        ("k2_kernel", 160, 256, 4 * K2_WAVE_LDS),
        ("k3_kernel", 256, 256, 10752),
        ("k4_kernel", 192, 256, 20480 + 256 + 8192),
        ("k5_kernel", 80, 256, 24576 + 4096),
    ]
    out = hdr
    for k, g, b, l in launches:
        out += f"; @launch kernel={k} grid=({g},1,1) block=({b},1,1) lds={l}\n"
    out += '.amdgcn_target "amdgcn-amd-amdhsa--gfx950"\n.text\n'
    out += body.text()
    out += '.section .rodata,"a"\n'
    for name, vg, sg, acc in kernels:
        out += ".p2align 6\n" + kernel_desc(name, vg, sg, acc)
    path = sys.argv[1] if len(sys.argv) > 1 else "cdna_kernels/%s.s" % NAME
    open(path, "w").write(out)
    print("wrote", path, len(out))

if __name__ == "__main__":
    main()
```

```python
import sys

NAME = "sequential_preLN__ssm_conv_s4d__moe_arch_mod__prompt"

UROW = 4128
WS_UT, SZ_UT = 0x000000, 0x290000
WS_KR, SZ_KR = 0x290000, 0x280000
WS_KS, SZ_KS = 0x510000, 0x1000
WS_AT, SZ_AT = 0x520000, 0x280000
WS_Z,  SZ_Z  = 0x7A0000, 0x280000
WS_H,  SZ_H  = 0xA20000, 0x280000
WS_KEY, SZ_KEY = 0xCA0000, 0x2000
WS_HID, SZ_HID = 0xCA2000, 0x6000
WS_SEL, SZ_SEL = 0xCA8000, 0x100

ARG = dict(x=0, lar=8, aim=16, cre=24, cim=32, ldt=40, dsk=48, bx=56, wr=64, wg=72, wu=80, wd=88, out=96, dbg=104, ws=112)

class Asm:
    def __init__(self):
        self.l = []
    def __call__(self, s):
        for ln in s.strip("\n").split("\n"):
            ln = ln.strip()
            if not ln: continue
            if ln.startswith("STAMP "):
                if STAMP:
                    r = {1: 92, 2: 94, 3: 76, 4: 78}[int(ln.split()[1])]
                    self.l.append(f"  s_memrealtime s[{r}:{r+1}]")
                continue
            if ln.endswith(":"): self.l.append(ln)
            else: self.l.append("  " + ln)
    def text(self): return "\n".join(self.l) + "\n"

def srd(A, n, lo, hi, off, size):
    if off:
        A(f"s_add_u32 s{n}, s{lo}, {hex(off)}")
        A(f"s_addc_u32 s{n+1}, s{hi}, 0")
    else:
        A(f"s_mov_b32 s{n}, s{lo}")
        A(f"s_mov_b32 s{n+1}, s{hi}")
    A(f"s_mov_b32 s{n+2}, {hex(size)}")
    A(f"s_mov_b32 s{n+3}, 0x20000")

def kernel_head(A, name):
    A.l.append(f".globl {name}")
    A.l.append(".p2align 8")
    A.l.append(f".type {name},@function")
    A.l.append(f"{name}:")

def kernel_desc(name, vgpr, sgpr, accum):
    return f""".amdhsa_kernel {name}
  .amdhsa_next_free_vgpr {vgpr}
  .amdhsa_next_free_sgpr {sgpr}
  .amdhsa_accum_offset {accum}
  .amdhsa_group_segment_fixed_size 0
  .amdhsa_kernarg_size 120
  .amdhsa_user_sgpr_count 2
  .amdhsa_user_sgpr_kernarg_segment_ptr 1
  .amdhsa_system_sgpr_workgroup_id_x 1
.end_amdhsa_kernel
"""

DPP = "row_mask:0xf bank_mask:0xf"
STAMP = False
WS_STAMP = 0x1000000
def stamp_begin(A):
    if STAMP:
        A("s_memrealtime s[96:97]")
        A("s_memtime s[80:81]")
def stamp_mid(A, slot):
    if STAMP:
        r = {1: 92, 2: 94, 3: 76, 4: 78}[slot]
        A(f"s_memrealtime s[{r}:{r+1}]")
def stamp_end(A, kid):
    if STAMP:
        A("s_memrealtime s[74:75]")
        A("s_waitcnt vmcnt(0) lgkmcnt(0)")
        A("s_memrealtime s[98:99]")
        A("s_memtime s[82:83]")
        A(f"s_load_dwordx2 s[88:89], s[0:1], {ARG['ws']}")
        A("s_waitcnt lgkmcnt(0)")
        srd(A, 84, 88, 89, WS_STAMP + kid * 0x40000, 0x40000)
        A("s_mov_b64 exec, 1")
        A("v_lshrrev_b32 v2, 6, v0")
        A("s_lshl_b32 s91, s2, 2")
        A("v_add_u32 v2, s91, v2")
        A("v_lshlrev_b32 v2, 5, v2")
        A("v_mov_b32 v4, s96")
        A("v_mov_b32 v5, s92")
        A("v_mov_b32 v6, s94")
        A("v_mov_b32 v7, s98")
        A("buffer_store_dwordx4 v[4:7], v2, s[84:87], 0 offen")
        A("s_sub_u32 s82, s82, s80")
        A("v_mov_b32 v8, s82")
        A("v_mov_b32 v9, s74")
        A("v_mov_b32 v10, s76")
        A("v_mov_b32 v11, s78")
        A("buffer_store_dwordx4 v[8:11], v2, s[84:87], 0 offen offset:16")
def allreduce16(A, op, x):
    for pat in ("quad_perm:[1,0,3,2]", "quad_perm:[2,3,0,1]", "row_half_mirror", "row_mirror"):
        A("s_nop 1")
        A(f"{op}_dpp v{x}, v{x}, v{x} {pat} {DPP}")

def xor16(A, op, x, t):
    A(f"v_mov_b32 v{t}, v{x}")
    A("s_nop 1")
    A(f"v_permlane16_swap_b32 v{x}, v{t}")
    A("s_nop 1")
    A(f"{op} v{x}, v{x}, v{t}")

def xor32(A, op, x, t):
    A(f"v_mov_b32 v{t}, v{x}")
    A("s_nop 1")
    A(f"v_permlane32_swap_b32 v{x}, v{t}")
    A("s_nop 1")
    A(f"{op} v{x}, v{x}, v{t}")

def unpack_bf16(A, src, dlo, dhi):
    A(f"v_lshlrev_b32 v{dlo}, 16, v{src}")
    A(f"v_and_b32 v{dhi}, 0xffff0000, v{src}")

F_INV640 = 0x3ACCCCCD
F_EPS = 0x3727C5AC
F_LOG2E = 0x3FB8AA3B
F_INV2PI = 0x3E22F983

def ln_scalars(A, mean, var, t, m_out, rinv_out):
    A(f"v_cvt_pk_bf16_f32 v{t}, v{mean}, v{var}")
    A(f"v_lshlrev_b32 v{m_out}, 16, v{t}")
    A(f"v_and_b32 v{t}, 0xffff0000, v{t}")
    A(f"v_add_f32 v{t}, {hex(F_EPS)}, v{t}")
    A(f"v_cvt_pk_bf16_f32 v{t}, v{t}, v{t}")
    A(f"v_lshlrev_b32 v{t}, 16, v{t}")
    A(f"v_sqrt_f32 v{t}, v{t}")
    A("s_nop 0")
    A(f"v_cvt_pk_bf16_f32 v{t}, v{t}, v{t}")
    A(f"v_lshlrev_b32 v{t}, 16, v{t}")
    A(f"v_rcp_f32 v{rinv_out}, v{t}")
    A("s_nop 0")

def cmul(A, z, x, y, t):
    A(f"v_pk_mul_f32 v[{t}:{t+1}], v[{x}:{x+1}], v[{y}:{y+1}] op_sel:[0,0] op_sel_hi:[1,0]")
    A(f"v_pk_fma_f32 v[{z}:{z+1}], v[{x}:{x+1}], v[{y}:{y+1}], v[{t}:{t+1}] op_sel:[1,1,0] op_sel_hi:[0,1,1] neg_lo:[1,0,0]")

def gen_k1(A):
    name = "k1_kernel"
    kernel_head(A, name)
    A("s_cmp_ge_u32 s2, 896")
    A("s_cbranch_scc1 k1_exit")
    stamp_begin(A)
    A(f"s_load_dwordx2 s[6:7], s[0:1], {ARG['ws']}")
    A("s_cmp_ge_u32 s2, 256")
    A("s_cbranch_scc1 k1_kgen")
    A(f"s_load_dwordx2 s[4:5], s[0:1], {ARG['x']}")
    A("""
    s_and_b32 s8, s2, 7
    s_lshl_b32 s8, s8, 5
    s_lshr_b32 s9, s2, 3
    s_add_u32 s8, s8, s9
    s_lshl_b32 s9, s8, 3
    v_lshrrev_b32 v1, 5, v0
    v_and_b32 v2, 31, v0
    v_add_u32 v3, s9, v1
    s_movk_i32 s10, 1280
    v_mul_lo_u32 v3, v3, s10
    v_lshl_add_u32 v4, v2, 4, v3
    v_lshl_add_u32 v5, v2, 3, v3
    s_waitcnt lgkmcnt(0)
    STAMP 1
    """)
    srd(A, 12, 4, 5, 0, 2621440)
    srd(A, 16, 6, 7, WS_UT, SZ_UT)
    A("""
    buffer_load_dwordx4 v[8:11], v4, s[12:15], 0 offen
    buffer_load_dwordx4 v[12:15], v4, s[12:15], 0 offen offset:512
    buffer_load_dwordx2 v[16:17], v5, s[12:15], 0 offen offset:1024
    """)
    A("""
    s_movk_i32 s10, 1344
    v_mul_lo_u32 v6, v1, s10
    v_lshl_add_u32 v7, v2, 3, v6
    v_lshl_add_u32 v6, v2, 4, v6
    s_waitcnt vmcnt(0)
    STAMP 2
    """)
    F = 20
    for i in range(10):
        unpack_bf16(A, 8 + i, F + 2 * i, F + 2 * i + 1)
    A(f"v_pk_add_f32 v[40:41], v[{F}:{F+1}], v[{F+2}:{F+3}]")
    for i in range(2, 10):
        A(f"v_pk_add_f32 v[40:41], v[40:41], v[{F+2*i}:{F+2*i+1}]")
    A("v_add_f32 v40, v40, v41")
    allreduce16(A, "v_add_f32", 40)
    xor16(A, "v_add_f32", 40, 41)
    A(f"v_mul_f32 v40, {hex(F_INV640)}, v40")
    for i in range(10):
        A(f"v_pk_add_f32 v[44:45], v[{F+2*i}:{F+2*i+1}], v[40:41] op_sel_hi:[1,0] neg_lo:[0,1] neg_hi:[0,1]")
        if i == 0:
            A("v_pk_mul_f32 v[42:43], v[44:45], v[44:45]")
        else:
            A("v_pk_fma_f32 v[42:43], v[44:45], v[44:45], v[42:43]")
    A("v_add_f32 v42, v42, v43")
    allreduce16(A, "v_add_f32", 42)
    xor16(A, "v_add_f32", 42, 43)
    A(f"v_mul_f32 v42, {hex(F_INV640)}, v42")
    ln_scalars(A, 40, 42, 43, 44, 46)
    for i in range(10):
        a, b = F + 2 * i, F + 2 * i + 1
        A(f"v_pk_add_f32 v[{a}:{b}], v[{a}:{b}], v[44:45] op_sel_hi:[1,0] neg_lo:[0,1] neg_hi:[0,1]")
        A(f"v_cvt_pk_bf16_f32 v48, v{a}, v{b}")
        unpack_bf16(A, 48, a, b)
        A(f"v_pk_mul_f32 v[{a}:{b}], v[{a}:{b}], v[46:47] op_sel_hi:[1,0]")
        A(f"v_cvt_pk_bf16_f32 v48, v{a}, v{b}")
        unpack_bf16(A, 48, a, b)
        A(f"v_cvt_pk_f16_f32 v{8+i}, v{a}, v{b}")
    A("""
    ds_write_b128 v6, v[8:11]
    ds_write_b128 v6, v[12:15] offset:512
    ds_write_b64 v7, v[16:17] offset:1024
    """)
    A("""
    v_and_b32 v1, 63, v0
    v_lshrrev_b32 v2, 6, v0
    v_bfe_u32 v3, v1, 2, 2
    s_movk_i32 s10, 1344
    v_mul_lo_u32 v3, v3, s10
    v_lshrrev_b32 v4, 4, v1
    v_lshl_add_u32 v3, v4, 5, v3
    v_and_b32 v4, 3, v1
    v_lshl_add_u32 v3, v4, 3, v3
    v_lshl_add_u32 v3, v2, 7, v3
    """)
    A(f"""
    v_lshl_add_u32 v4, v2, 6, v1
    s_movk_i32 s10, {UROW}
    v_mul_lo_u32 v4, v4, s10
    s_lshl_b32 s11, s9, 1
    s_add_u32 s11, s11, 32
    v_add_u32 v4, s11, v4
    s_waitcnt lgkmcnt(0)
    s_barrier
    STAMP 3
    """)
    A(f"""
    ds_read_b64_tr_b16 v[8:9], v3
    ds_read_b64_tr_b16 v[10:11], v3 offset:{4*1344}
    ds_read_b64_tr_b16 v[12:13], v3 offset:512
    ds_read_b64_tr_b16 v[14:15], v3 offset:{4*1344+512}
    ds_read_b64_tr_b16 v[16:17], v3 offset:1024
    ds_read_b64_tr_b16 v[18:19], v3 offset:{4*1344+1024}
    s_mov_b32 s20, {256*UROW}
    s_mov_b32 s21, {512*UROW}
    s_waitcnt lgkmcnt(0)
    buffer_store_dwordx4 v[8:11], v4, s[16:19], 0 offen
    buffer_store_dwordx4 v[12:15], v4, s[16:19], s20 offen
    v_readfirstlane_b32 s22, v2
    s_nop 3
    s_cmp_ge_u32 s22, 2
    s_cbranch_scc1 k1_ln_skip
    buffer_store_dwordx4 v[16:19], v4, s[16:19], s21 offen
    k1_ln_skip:
    s_cmp_lg_u32 s8, 0
    s_cbranch_scc1 k1_end
    """)
    A(f"""
    v_mov_b32 v8, 0
    v_mov_b32 v9, 0
    v_mov_b32 v10, 0
    v_mov_b32 v11, 0
    v_subrev_u32 v4, s11, v4
    buffer_store_dwordx4 v[8:11], v4, s[16:19], 0 offen
    buffer_store_dwordx4 v[8:11], v4, s[16:19], 0 offen offset:16
    buffer_store_dwordx4 v[8:11], v4, s[16:19], s20 offen
    buffer_store_dwordx4 v[8:11], v4, s[16:19], s20 offen offset:16
    s_cmp_ge_u32 s22, 2
    s_cbranch_scc1 k1_end
    buffer_store_dwordx4 v[8:11], v4, s[16:19], s21 offen
    buffer_store_dwordx4 v[8:11], v4, s[16:19], s21 offen offset:16
    s_branch k1_end
    """)
    A("k1_kgen:")
    A(f"""
    s_load_dwordx4 s[24:27], s[0:1], {ARG['lar']}
    s_load_dwordx4 s[28:31], s[0:1], {ARG['cre']}
    s_load_dwordx2 s[32:33], s[0:1], {ARG['ldt']}
    s_sub_u32 s8, s2, 256
    v_lshrrev_b32 v2, 6, v0
    v_and_b32 v1, 63, v0
    s_nop 0
    v_readfirstlane_b32 s9, v2
    s_mul_i32 s10, s8, 384
    s_waitcnt lgkmcnt(0)
    STAMP 1
    """)
    srd(A, 36, 24, 25, 0, 245760)
    srd(A, 40, 26, 27, 0, 245760)
    srd(A, 44, 28, 29, 0, 245760)
    srd(A, 48, 30, 31, 0, 245760)
    srd(A, 52, 6, 7, WS_KR, SZ_KR)
    srd(A, 56, 6, 7, WS_KS, SZ_KS)
    A("""
    s_cmp_ge_u32 s9, 3
    s_cbranch_scc1 k1_kg_bar1
    s_and_b32 s11, s8, 0xfffffffe
    s_lshl_b32 s11, s11, 1
    s_load_dword s34, s[32:33], s11
    v_lshlrev_b32 v3, 1, v0
    """)
    A("""
    buffer_load_ushort v4, v3, s[36:39], s10 offen
    buffer_load_ushort v5, v3, s[40:43], s10 offen
    buffer_load_ushort v6, v3, s[44:47], s10 offen
    buffer_load_ushort v7, v3, s[48:51], s10 offen
    v_lshlrev_b32 v8, 3, v1
    v_cmp_gt_u32 vcc, 48, v1
    v_mov_b32 v10, 0
    v_mov_b32 v11, 0
    v_mov_b32 v12, 0
    v_mov_b32 v13, 0
    s_and_saveexec_b64 s[60:61], vcc
    buffer_load_dwordx2 v[10:11], v8, s[44:47], s10 offen
    buffer_load_dwordx2 v[12:13], v8, s[48:51], s10 offen
    s_mov_b64 exec, s[60:61]
    """)
    A(f"""
    s_waitcnt lgkmcnt(0)
    s_bitcmp1_b32 s8, 0
    s_cbranch_scc1 k1_kg_odd
    s_lshl_b32 s34, s34, 16
    k1_kg_odd:
    s_and_b32 s34, s34, 0xffff0000
    v_mov_b32 v14, {hex(F_LOG2E)}
    v_mul_f32 v15, s34, v14
    v_exp_f32 v15, v15
    s_nop 0
    v_cvt_pk_bf16_f32 v15, v15, v15
    v_lshlrev_b32 v15, 16, v15
    """)
    A("""
    s_waitcnt vmcnt(0)
    s_mov_b32 s35, 0x7fff7fff
    STAMP 2
    v_and_b32 v10, s35, v10
    v_and_b32 v11, s35, v11
    v_and_b32 v12, s35, v12
    v_and_b32 v13, s35, v13
    v_pk_max_u16 v10, v10, v11
    v_pk_max_u16 v12, v12, v13
    v_pk_max_u16 v10, v10, v12
    v_lshrrev_b32 v11, 16, v10
    v_and_b32 v10, 0xffff, v10
    v_max_u32 v10, v10, v11
    """)
    allreduce16(A, "v_max_u32", 10)
    xor16(A, "v_max_u32", 10, 11)
    xor32(A, "v_max_u32", 10, 11)
    A("""
    v_lshrrev_b32 v10, 7, v10
    v_max_u32 v10, 5, v10
    v_min_u32 v10, 0xfe, v10
    v_sub_u32 v11, 0x103, v10
    v_lshlrev_b32 v11, 23, v11
    v_subrev_u32 v12, 4, v10
    v_lshlrev_b32 v12, 23, v12
    v_mul_f32 v12, v12, v15
    """)
    A(f"""
    v_lshlrev_b32 v4, 16, v4
    v_lshlrev_b32 v5, 16, v5
    v_lshlrev_b32 v6, 16, v6
    v_lshlrev_b32 v7, 16, v7
    v_mul_f32 v4, v14, v4
    v_exp_f32 v4, v4
    s_nop 0
    v_cvt_pk_bf16_f32 v4, v4, v4
    v_lshlrev_b32 v4, 16, v4
    v_mul_f32 v4, v4, v15
    v_mul_f32 v4, v4, v14
    v_sub_f32 v4, 0, v4
    v_mul_f32 v5, v5, v15
    v_mul_f32 v5, {hex(F_INV2PI)}, v5
    v_mul_f32 v16, v6, v11
    v_mul_f32 v17, v7, v11
    """)
    def cexp(dst, p, conj=False):
        if p == 1:
            A(f"v_exp_f32 v8, v4")
            A(f"v_fract_f32 v9, v5")
        else:
            A(f"v_mul_f32 v8, {float(p)}, v4" if p in (2,4) else f"v_mul_f32 v8, {hex(f32bits(p))}, v4")
            A(f"v_mul_f32 v9, {hex(f32bits(p))}, v5")
            A(f"v_exp_f32 v8, v8")
            A(f"v_fract_f32 v9, v9")
        A(f"v_cos_f32 v{dst}, v9")
        A(f"v_sin_f32 v{dst+1}, v9")
        A("s_nop 0")
        A(f"v_mul_f32 v{dst}, v{dst}, v8")
        if conj:
            A(f"v_mul_f32 v{dst+1}, -v{dst+1}, v8")
        else:
            A(f"v_mul_f32 v{dst+1}, v{dst+1}, v8")
    E1, E2, E4, E256, E512, W8 = 18, 20, 22, 24, 26, 28
    T = 30; CUR = 32; X12 = 34; X16 = 36
    cexp(E1, 1)
    cexp(W8, 8)
    cexp(E256, 256)
    cmul(A, E2, E1, E1, T)
    cmul(A, E4, E2, E2, T)
    cmul(A, E512, E256, E256, T)
    A(f"""
    s_mul_i32 s11, s9, 13568
    v_lshlrev_b32 v38, 2, v1
    v_add_u32 v38, s11, v38
    """)
    for i in range(16):
        if i == 0:
            A("v_mov_b32 v40, v38")
        else:
            A(f"v_xor_b32 v{40+i}, {i*16}, v38")
    def put(row, pair, neg_im=False):
        A(f"v_cvt_pk_f16_f32 v39, v{pair}, {'-' if neg_im else ''}v{pair+1}")
        A(f"ds_write_b32 v{40 + row % 16}, v39 offset:{row*256}")
    C = 16
    put(0, C)
    cmul(A, CUR, C, E1, T); put(1, CUR)
    for e in range(2, 8):
        cmul(A, CUR, CUR, E1, T); put(e, CUR)
    cmul(A, CUR, C, E256, T); put(8, CUR)
    for e in range(9, 12):
        cmul(A, CUR, CUR, E2, T); put(e, CUR)
    cmul(A, X12, C, E512, T); put(12, X12)
    cmul(A, CUR, X12, E4, T); put(13, CUR)
    cmul(A, CUR, X12, E256, T); put(14, CUR)
    cmul(A, CUR, CUR, E4, T); put(15, CUR)
    cmul(A, X16, X12, E512, T); put(16, X16)
    cmul(A, CUR, X16, E256, T); put(17, CUR)
    cmul(A, X16, X16, E512, T); put(18, X16)
    cmul(A, CUR, X16, E256, T); put(19, CUR)
    cmul(A, CUR, X16, E512, T); put(20, CUR)
    A("v_mov_b32 v39, 0x3c00")
    A(f"ds_write_b32 v{40 + 21 % 16}, v39 offset:{21*256}")
    put(22, W8, True)
    cmul(A, CUR, W8, W8, T); put(23, CUR, True)
    for c in range(3, 32):
        cmul(A, CUR, CUR, W8, T); put(21 + c, CUR, True)
    A(f"""
    v_and_b32 v14, 31, v1
    v_lshrrev_b32 v15, 5, v1
    v_and_b32 v16, 15, v14
    v_xor_b32 v16, v16, v15
    v_lshlrev_b32 v16, 4, v16
    v_lshl_add_u32 v16, v14, 8, v16
    v_add_u32 v16, s11, v16
    v_add_u32 v17, 21, v14
    v_and_b32 v18, 15, v17
    v_xor_b32 v18, v18, v15
    v_lshlrev_b32 v18, 4, v18
    v_lshl_add_u32 v17, v17, 8, v18
    v_add_u32 v17, s11, v17
    s_waitcnt lgkmcnt(0)
    """)
    for s in range(8):
        if s == 0:
            A("ds_read_b128 v[64:67], v16")
            A("ds_read_b128 v[68:71], v17")
        else:
            A(f"v_xor_b32 v18, {s*32}, v16")
            A(f"v_xor_b32 v19, {s*32}, v17")
            A(f"ds_read_b128 v[{64+8*s}:{67+8*s}], v18")
            A(f"ds_read_b128 v[{68+8*s}:{71+8*s}], v19")
    for s in range(8):
        A(f"s_waitcnt lgkmcnt({min(15, 2*(7-s))})")
        c = "0" if s == 0 else "v[20:35]"
        A(f"v_mfma_f32_32x32x16_f16 v[20:35], v[{64+8*s}:{67+8*s}], v[{68+8*s}:{71+8*s}], {c}")
    A("""
    s_nop 15
    v_lshlrev_b32 v18, 4, v1
    v_add_u32 v18, s11, v18
    ds_write_b128 v18, v[20:23]
    ds_write_b128 v18, v[24:27] offset:1024
    ds_write_b128 v18, v[28:31] offset:2048
    """)
    A("""
    s_cmp_lg_u32 s9, 0
    s_cbranch_scc1 k1_kg_noks
    s_lshl_b32 s12, s8, 2
    v_mov_b32 v19, s12
    v_cmp_eq_u32 vcc, 0, v1
    s_and_saveexec_b64 s[60:61], vcc
    buffer_store_dword v12, v19, s[56:59], 0 offen
    s_mov_b64 exec, s[60:61]
    k1_kg_noks:
    s_waitcnt lgkmcnt(0)
    k1_kg_bar1:
    s_barrier
    STAMP 3
    """)
    TB = 4096
    A(f"""
    s_cmp_ge_u32 s9, 3
    s_cbranch_scc1 k1_kg_bar2
    v_lshlrev_b32 v18, 4, v1
    s_lshl_b32 s12, s9, 10
    v_add_u32 v18, s12, v18
    ds_read_b128 v[20:23], v18
    ds_read_b128 v[24:27], v18 offset:13568
    ds_read_b128 v[28:31], v18 offset:{2*13568}
    v_and_b32 v14, 31, v1
    v_lshrrev_b32 v15, 5, v1
    s_waitcnt lgkmcnt(0)
    v_pk_add_f32 v[20:21], v[20:21], v[24:25]
    v_pk_add_f32 v[22:23], v[22:23], v[26:27]
    v_pk_add_f32 v[20:21], v[20:21], v[28:29]
    v_pk_add_f32 v[22:23], v[22:23], v[30:31]
    s_cmp_eq_u32 s9, 1
    s_cbranch_scc1 k1_kg_w1
    s_cmp_eq_u32 s9, 2
    s_cbranch_scc1 k1_kg_w2
    """)
    A(f"""
    v_cvt_pk_f16_f32 v24, v23, v22
    v_cvt_pk_f16_f32 v25, v21, v20
    v_lshlrev_b32 v16, 4, v14
    v_lshl_add_u32 v16, v15, 3, v16
    v_sub_u32 v16, {TB+504}, v16
    ds_write_b64 v16, v[24:25]
    s_branch k1_kg_w3
    k1_kg_w1:
    v_cvt_pk_f16_f32 v24, v20, v21
    v_cvt_pk_f16_f32 v25, v22, v23
    """)
    A(f"""
    v_lshlrev_b32 v16, 3, v14
    v_add_u32 v16, {TB+512}, v16
    v_add_u32 v17, 4, v16
    v_lshlrev_b32 v18, 2, v14
    v_add_u32 v18, {TB+768}, v18
    v_add_u32 v19, 128, v18
    v_cmp_eq_u32 vcc, 0, v15
    s_nop 1
    v_cndmask_b32 v16, v18, v16, vcc
    v_cndmask_b32 v17, v19, v17, vcc
    ds_write_b32 v16, v24
    ds_write_b32 v17, v25
    s_branch k1_kg_w3
    k1_kg_w2:
    v_cvt_pk_f16_f32 v24, v20, v21
    v_cvt_pk_f16_f32 v25, v22, v23
    v_lshlrev_b32 v16, 4, v14
    v_lshl_add_u32 v16, v15, 3, v16
    v_add_u32 v16, {TB+1024}, v16
    ds_write_b64 v16, v[24:25]
    k1_kg_w3:
    s_waitcnt lgkmcnt(0)
    k1_kg_bar2:
    s_barrier
    STAMP 4
    """)
    A(f"""
    v_and_b32 v1, 63, v0
    s_mov_b32 s12, 0x05040100
    s_mov_b32 s13, 0x01000100
    s_lshl_b32 s14, s8, 12
    v_lshlrev_b32 v3, 4, v0
    s_cmp_ge_u32 s9, 2
    s_cbranch_scc1 k1_ex_23
    """)
    A(f"""
    v_sub_u32 v4, 127, v0
    v_add_u32 v5, 1, v4
    v_and_b32 v6, 31, v4
    v_lshrrev_b32 v7, 5, v4
    v_lshlrev_b32 v6, 4, v6
    v_lshl_add_u32 v6, v7, 1, v6
    v_and_b32 v8, 31, v5
    v_lshrrev_b32 v7, 5, v5
    v_lshlrev_b32 v8, 4, v8
    v_lshl_add_u32 v8, v7, 1, v8
    ds_read_u16 v10, v6 offset:{TB+1024}
    ds_read_u16 v11, v8 offset:{TB+1024}
    v_and_b32 v9, 1, v4
    v_cmp_eq_u32 vcc, 1, v9
    s_waitcnt lgkmcnt(0)
    """)
    A(f"""
    v_cndmask_b32 v12, v10, v11, vcc
    v_perm_b32 v20, v11, v11, s13
    v_perm_b32 v21, v12, v11, s12
    v_perm_b32 v22, v10, v10, s13
    v_mov_b32 v23, v22
    s_branch k1_ex_store
    k1_ex_23:
    s_cmp_eq_u32 s9, 3
    s_cbranch_scc1 k1_ex_3
    """)
    A(f"""
    v_sub_u32 v4, 63, v1
    v_lshlrev_b32 v4, 2, v4
    v_add_u32 v4, {TB+768}, v4
    ds_read2_b32 v[10:11], v4 offset0:0 offset1:1
    s_mov_b32 s15, 0x03020302
    s_waitcnt lgkmcnt(0)
    v_perm_b32 v20, v11, v11, s13
    v_perm_b32 v21, v10, v10, s15
    v_alignbit_b32 v22, v10, v10, 16
    v_perm_b32 v23, v10, v10, s13
    s_branch k1_ex_store
    k1_ex_3:
    """)
    A(f"""
    v_sub_u32 v4, 31, v1
    v_and_b32 v4, 31, v4
    v_lshlrev_b32 v4, 3, v4
    ds_read_b64 v[10:11], v4 offset:{TB+512}
    ds_read_u16 v12, v4 offset:{TB+512+8}
    v_sub_u32 v5, 63, v1
    v_and_b32 v5, 31, v5
    v_lshlrev_b32 v5, 4, v5
    v_sub_u32 v5, {TB+496}, v5
    ds_read_b128 v[24:27], v5
    s_mov_b32 s15, 0x03020100
    s_mov_b32 s16, 0x07060100
    s_mov_b32 s17, 0x03020504
    v_cmp_gt_u32 vcc, 32, v1
    s_waitcnt lgkmcnt(0)
    """)
    A(f"""
    v_perm_b32 v20, v11, v12, s16
    v_perm_b32 v21, v11, v11, s13
    v_perm_b32 v22, v11, v10, s17
    v_perm_b32 v23, v10, v10, s13
    v_cndmask_b32 v20, v24, v20, vcc
    v_cndmask_b32 v21, v25, v21, vcc
    v_cndmask_b32 v22, v26, v22, vcc
    v_cndmask_b32 v23, v27, v23, vcc
    k1_ex_store:
    buffer_store_dwordx4 v[20:23], v3, s[52:55], s14 offen
    k1_end:
    """)
    stamp_end(A, 0)
    A("k1_exit:")
    A("s_endpgm")
    return name, 128, 64, 128

import struct
def f32bits(x): return struct.unpack("<I", struct.pack("<f", float(x)))[0]


K2_WAVE_LDS = 21248
K2_COPY = 4160
K2_KOFF = 16640
def gen_k2(A):
    name = "k2_kernel"
    kernel_head(A, name)
    A("s_cmp_ge_u32 s2, 160")
    A("s_cbranch_scc1 k2_exit")
    stamp_begin(A)
    A(f"""
    s_load_dwordx2 s[6:7], s[0:1], {ARG['ws']}
    s_load_dwordx2 s[4:5], s[0:1], {ARG['dsk']}
    v_lshrrev_b32 v2, 6, v0
    v_and_b32 v1, 63, v0
    s_nop 0
    v_readfirstlane_b32 s9, v2
    s_lshl_b32 s8, s2, 2
    s_nop 2
    s_add_u32 s8, s8, s9
    s_mul_i32 s10, s9, {K2_WAVE_LDS}
    s_waitcnt lgkmcnt(0)
    STAMP 1
    """)
    srd(A, 12, 6, 7, WS_UT, SZ_UT)
    srd(A, 16, 6, 7, WS_KR, SZ_KR)
    srd(A, 20, 6, 7, WS_AT, SZ_AT)
    A(f"""
    s_add_u32 s24, s6, {hex(WS_KS)}
    s_addc_u32 s25, s7, 0
    s_lshl_b32 s26, s8, 2
    s_load_dword s27, s[24:25], s26
    s_and_b32 s26, s8, 0xfffffffe
    s_lshl_b32 s26, s26, 1
    s_load_dword s28, s[4:5], s26
    s_lshl_b32 s29, s8, 12
    s_mul_i32 s30, s8, {UROW}
    v_lshlrev_b32 v3, 4, v1
    """)
    A(f"s_add_u32 s31, s10, {K2_KOFF}")
    A("s_mov_b32 m0, s31")
    A("s_nop 0")
    for i in range(4):
        A(f"buffer_load_dwordx4 v3, s[16:19], s29 offen offset:{1024*i} lds")
    for c in range(4):
        A(f"v_add_u32 v{4+c}, {2*c}, v3")
        A(f"s_add_u32 s{32+c}, s10, {K2_COPY*c}")
    for i in range(4):
        for c in range(4):
            A(f"s_mov_b32 m0, s{32+c}")
            A("s_nop 0")
            A(f"buffer_load_dwordx4 v{4+c}, s[12:15], s30 offen offset:{1024*i} lds")
    A(f"""
    v_lshrrev_b32 v8, 1, v1
    v_and_b32 v9, 1, v1
    v_lshlrev_b32 v9, 4, v9
    v_lshl_add_u32 v10, v8, 1, v9
    v_add_u32 v10, 4096, v10
    s_movk_i32 s36, {K2_COPY}
    v_mul_lo_u32 v11, v8, s36
    v_add_u32 v11, v11, v9
    v_add_u32 v11, s10, v11
    v_cmp_gt_u32 vcc, 8, v1
    s_and_saveexec_b64 s[40:41], vcc
    buffer_load_dwordx4 v[12:15], v10, s[12:15], s30 offen
    s_mov_b64 exec, s[40:41]
    """)
    A(f"""
    v_mov_b32 v16, 0
    v_mov_b32 v17, 0
    v_mov_b32 v18, 0
    v_mov_b32 v19, 0
    v_add_u32 v20, s31, v3
    v_cmp_gt_u32 vcc, 30, v1
    s_and_saveexec_b64 s[40:41], vcc
    ds_write_b128 v20, v[16:19] offset:4096
    s_mov_b64 exec, s[40:41]
    """)
    A(f"""
    v_and_b32 v21, 15, v1
    v_lshrrev_b32 v22, 4, v1
    v_add_u32 v23, 1, v21
    v_and_b32 v24, 3, v23
    v_mul_lo_u32 v24, v24, s36
    v_lshrrev_b32 v23, 2, v23
    v_lshl_add_u32 v24, v23, 3, v24
    v_lshl_add_u32 v24, v22, 4, v24
    v_add_u32 v24, s10, v24
    """)
    A(f"""
    v_lshlrev_b32 v25, 5, v21
    v_sub_u32 v25, {2*2032 - 64*56}, v25
    v_lshl_add_u32 v25, v22, 4, v25
    v_add_u32 v25, s31, v25
    """)
    A(f"""
    v_lshlrev_b32 v26, 5, v21
    v_lshl_add_u32 v26, v22, 3, v26
    v_add_u32 v27, 32, v26
    v_add_u32 v27, s10, v27
    """)
    A(f"""
    s_waitcnt lgkmcnt(0)
    s_bitcmp1_b32 s8, 0
    s_cbranch_scc1 k2_odd
    s_lshl_b32 s28, s28, 16
    k2_odd:
    s_and_b32 s28, s28, 0xffff0000
    """)
    A("""
    s_waitcnt vmcnt(0)
    v_cmp_gt_u32 vcc, 8, v1
    s_and_saveexec_b64 s[40:41], vcc
    ds_write_b128 v11, v[12:15] offset:4096
    s_mov_b64 exec, s[40:41]
    s_waitcnt lgkmcnt(0)
    STAMP 2
    """)
    ACC = 32
    AR = 64
    NR = 4
    def loadA(al):
        r = AR + 4 * (al % NR)
        A(f"ds_read_b64 v[{r}:{r+1}], v24 offset:{64*al}")
        A(f"ds_read_b64 v[{r+2}:{r+3}], v24 offset:{64*al+8}")
    def loadB(g):
        r = 4 * (g + 7)
        A(f"ds_read_b128 a[{r}:{r+3}], v25 offset:{64*(56-g)}")
    def epilogue(q):
        a = ACC + 4 * q
        L = []
        L.append(f"v_mul_f32 v82, s27, v{a}")
        L.append(f"v_mul_f32 v83, s27, v{a+1}")
        L.append(f"v_mul_f32 v84, s27, v{a+2}")
        L.append(f"v_mul_f32 v85, s27, v{a+3}")
        L.append(f"v_cvt_pk_bf16_f32 v82, v82, v83")
        L.append(f"v_cvt_pk_bf16_f32 v84, v84, v85")
        L.append(f"v_fma_mix_f32 v86, v80, s28, 0 op_sel_hi:[1,0,0]")
        L.append(f"v_fma_mix_f32 v87, v80, s28, 0 op_sel:[1,0,0] op_sel_hi:[1,0,0]")
        L.append(f"v_fma_mix_f32 v88, v81, s28, 0 op_sel_hi:[1,0,0]")
        L.append(f"v_fma_mix_f32 v89, v81, s28, 0 op_sel:[1,0,0] op_sel_hi:[1,0,0]")
        L.append(f"v_cvt_pk_bf16_f32 v86, v86, v87")
        L.append(f"v_cvt_pk_bf16_f32 v88, v88, v89")
        L.append(f"v_lshlrev_b32 v90, 16, v82")
        L.append(f"v_and_b32 v91, 0xffff0000, v82")
        L.append(f"v_lshlrev_b32 v92, 16, v86")
        L.append(f"v_and_b32 v93, 0xffff0000, v86")
        L.append(f"v_pk_add_f32 v[90:91], v[90:91], v[92:93]")
        L.append(f"v_cvt_pk_bf16_f32 v94, v90, v91")
        L.append(f"v_lshlrev_b32 v90, 16, v84")
        L.append(f"v_and_b32 v91, 0xffff0000, v84")
        L.append(f"v_lshlrev_b32 v92, 16, v88")
        L.append(f"v_and_b32 v93, 0xffff0000, v88")
        L.append(f"v_pk_add_f32 v[90:91], v[90:91], v[92:93]")
        L.append(f"v_cvt_pk_bf16_f32 v95, v90, v91")
        L.append(f"buffer_store_dwordx2 v[94:95], v26, s[20:23], s29 offen offset:{512*q}")
        return L
    loadA(0); loadA(1)
    for q in range(8): loadB(8*q - 0)
    for al in range(64):
        nl = 0
        if al + 2 < 64:
            loadA(al + 2); nl += 2
        if al + 1 <= 7:
            for q in range(8):
                loadB(8*q - (al+1)); nl += 1
        A(f"s_waitcnt lgkmcnt({min(nl + (2 if al+1 < 64 else 0), 15) if False else min(nl,15)})")
        r = AR + 4 * (al % NR)
        q0 = al // 8
        for q in range(q0, 8):
            g = 8 * q - al
            c = "0" if al == 0 else f"v[{ACC+4*q}:{ACC+4*q+3}]"
            A(f"v_mfma_f32_16x16x32_f16 v[{ACC+4*q}:{ACC+4*q+3}], v[{r}:{r+3}], a[{4*(g+7)}:{4*(g+7)+3}], {c}")
        if al % 8 == 7:
            q = al // 8
            A(f"ds_read_b64 v[80:81], v27 offset:{512*q}")
            A("s_nop 7")
            A("s_waitcnt lgkmcnt(0)")
            for ins in epilogue(q): A(ins)
    A("k2_end:")
    stamp_end(A, 1)
    A("k2_exit:")
    A("s_endpgm")
    return name, 512, 64, 256

def gen_k3(A):
    name = "k3_kernel"
    kernel_head(A, name)
    A("s_cmp_ge_u32 s2, 256")
    A("s_cbranch_scc1 k3_exit")
    stamp_begin(A)
    A(f"""
    s_load_dwordx2 s[4:5], s[0:1], {ARG['x']}
    s_load_dwordx2 s[6:7], s[0:1], {ARG['ws']}
    s_load_dwordx2 s[8:9], s[0:1], {ARG['wr']}
    s_load_dwordx2 s[10:11], s[0:1], {ARG['out']}
    s_and_b32 s12, s2, 7
    s_lshl_b32 s12, s12, 5
    s_lshr_b32 s13, s2, 3
    s_add_u32 s12, s12, s13
    s_lshl_b32 s13, s12, 3
    v_lshrrev_b32 v2, 6, v0
    v_and_b32 v1, 63, v0
    s_nop 0
    v_readfirstlane_b32 s14, v2
    s_waitcnt lgkmcnt(0)
    STAMP 1
    """)
    srd(A, 16, 4, 5, 0, 2621440)
    srd(A, 20, 6, 7, WS_AT, SZ_AT)
    srd(A, 24, 8, 9, 0, 1280)
    srd(A, 28, 10, 11, 0, 2621440)
    srd(A, 32, 6, 7, WS_Z, SZ_Z)
    srd(A, 36, 6, 7, WS_H, SZ_H)
    srd(A, 40, 6, 7, WS_KEY, SZ_KEY)
    A(f"""
    v_lshlrev_b32 v3, 12, v0
    s_lshl_b32 s15, s13, 1
    s_lshl_b32 s44, s14, 10
    s_mov_b32 m0, s44
    s_nop 0
    buffer_load_dwordx4 v3, s[20:23], s15 offen lds
    s_add_u32 s45, s15, {256*4096}
    s_add_u32 s44, s44, 4096
    s_mov_b32 m0, s44
    s_nop 0
    buffer_load_dwordx4 v3, s[20:23], s45 offen lds
    s_cmp_ge_u32 s14, 2
    s_cbranch_scc1 k3_nodma3
    s_add_u32 s45, s15, {512*4096}
    s_add_u32 s44, s44, 4096
    s_mov_b32 m0, s44
    s_nop 0
    buffer_load_dwordx4 v3, s[20:23], s45 offen lds
    k3_nodma3:
    """)
    A(f"""
    v_and_b32 v4, 7, v1
    v_lshrrev_b32 v5, 3, v1
    v_add_u32 v6, s13, v4
    s_movk_i32 s46, 1280
    v_mul_lo_u32 v6, v6, s46
    s_mul_i32 s47, s14, 320
    v_lshl_add_u32 v7, v5, 3, s47
    v_add_u32 v6, v6, v7
    """)
    for i in range(5):
        A(f"buffer_load_dwordx2 v[{10+2*i}:{11+2*i}], v6, s[16:19], 0 offen offset:{64*i}")
    for i in range(5):
        A(f"buffer_load_dwordx2 v[{20+2*i}:{21+2*i}], v7, s[24:27], 0 offen offset:{64*i}")
    A(f"""
    v_lshrrev_b32 v8, 4, v1
    v_lshlrev_b32 v8, 3, v8
    v_bfe_u32 v9, v1, 1, 1
    v_lshl_add_u32 v8, v9, 2, v8
    v_bfe_u32 v9, v1, 2, 2
    v_add_u32 v8, v8, v9
    s_mul_i32 s47, s14, 160
    v_add_u32 v8, s47, v8
    v_lshlrev_b32 v8, 4, v8
    v_and_b32 v9, 1, v1
    v_lshl_add_u32 v8, v9, 3, v8
    s_waitcnt vmcnt(0)
    s_barrier
    STAMP 2
    """)
    for i in range(5):
        A(f"ds_read_b64_tr_b16 v[{30+2*i}:{31+2*i}], v8 offset:{512*i}")
    A("s_waitcnt lgkmcnt(0)")
    H = 40
    for i in range(10):
        a, b = H + 2*i, H + 2*i + 1
        unpack_bf16(A, 10 + i, a, b)
        unpack_bf16(A, 30 + i, 70, 71)
        A(f"v_pk_add_f32 v[{a}:{b}], v[{a}:{b}], v[70:71]")
        A(f"v_cvt_pk_bf16_f32 v{60+i}, v{a}, v{b}")
        unpack_bf16(A, 60 + i, a, b)
    for i in range(5):
        A(f"buffer_store_dwordx2 v[{60+2*i}:{61+2*i}], v6, s[36:39], 0 offen offset:{64*i}")
    A(f"v_pk_add_f32 v[72:73], v[{H}:{H+1}], v[{H+2}:{H+3}]")
    for i in range(2, 10):
        A(f"v_pk_add_f32 v[72:73], v[72:73], v[{H+2*i}:{H+2*i+1}]")
    A("v_add_f32 v72, v72, v73")
    def red8(x, t):
        A("s_nop 1")
        A(f"v_add_f32_dpp v{x}, v{x}, v{x} row_ror:8 {DPP}")
        xor16(A, "v_add_f32", x, t)
        xor32(A, "v_add_f32", x, t)
    red8(72, 73)
    A(f"v_mul_f32 v72, {hex(f32bits(1/160))}, v72")
    for i in range(10):
        A(f"v_pk_add_f32 v[70:71], v[{H+2*i}:{H+2*i+1}], v[72:73] op_sel_hi:[1,0] neg_lo:[0,1] neg_hi:[0,1]")
        if i == 0: A("v_pk_mul_f32 v[74:75], v[70:71], v[70:71]")
        else: A("v_pk_fma_f32 v[74:75], v[70:71], v[70:71], v[74:75]")
    A("v_add_f32 v73, v74, v75")
    red8(73, 74)
    A(f"""
    v_lshlrev_b32 v76, 3, v4
    v_add_u32 v76, 10240, v76
    s_lshl_b32 s47, s14, 6
    v_add_u32 v77, s47, v76
    v_cmp_gt_u32 vcc, 8, v1
    s_and_saveexec_b64 s[48:49], vcc
    ds_write_b64 v77, v[72:73]
    s_mov_b64 exec, s[48:49]
    s_waitcnt lgkmcnt(0)
    s_barrier
    STAMP 3
    ds_read_b64 v[78:79], v76
    ds_read_b64 v[80:81], v76 offset:64
    ds_read_b64 v[82:83], v76 offset:128
    ds_read_b64 v[84:85], v76 offset:192
    s_waitcnt lgkmcnt(0)
    v_add_f32 v72, v78, v80
    v_add_f32 v73, v82, v84
    v_add_f32 v72, v72, v73
    v_mul_f32 v72, 0.25, v72
    v_sub_f32 v78, v78, v72
    v_sub_f32 v80, v80, v72
    v_sub_f32 v82, v82, v72
    v_sub_f32 v84, v84, v72
    v_mul_f32 v73, v78, v78
    v_fmac_f32 v73, v80, v80
    v_fmac_f32 v73, v82, v82
    v_fmac_f32 v73, v84, v84
    v_add_f32 v79, v79, v81
    v_add_f32 v83, v83, v85
    v_add_f32 v79, v79, v83
    v_mov_b32 v74, {hex(f32bits(160))}
    v_fmac_f32 v79, v74, v73
    v_mul_f32 v74, {hex(F_INV640)}, v79
    """)
    ln_scalars(A, 72, 74, 75, 78, 80)
    A("v_mov_b32 v82, 0")
    for i in range(10):
        a, b = H + 2*i, H + 2*i + 1
        A(f"v_pk_add_f32 v[70:71], v[{a}:{b}], v[78:79] op_sel_hi:[1,0] neg_lo:[0,1] neg_hi:[0,1]")
        A(f"v_cvt_pk_bf16_f32 v84, v70, v71")
        unpack_bf16(A, 84, 70, 71)
        A(f"v_pk_mul_f32 v[70:71], v[70:71], v[80:81] op_sel_hi:[1,0]")
        A(f"v_cvt_pk_bf16_f32 v{30+i}, v70, v71")
        unpack_bf16(A, 30 + i, 70, 71)
        unpack_bf16(A, 20 + i, 84, 85)
        A(f"v_fmac_f32 v82, v70, v84")
        A(f"v_fmac_f32 v82, v71, v85")
        A(f"v_pk_add_f32 v[70:71], v[70:71], v[{a}:{b}]")
        A(f"v_cvt_pk_bf16_f32 v{10+i}, v70, v71")
    for i in range(5):
        A(f"buffer_store_dwordx2 v[{10+2*i}:{11+2*i}], v6, s[28:31], 0 offen offset:{64*i}")
        A(f"buffer_store_dwordx2 v[{30+2*i}:{31+2*i}], v6, s[32:35], 0 offen offset:{64*i}")
    red8(82, 83)
    A(f"""
    v_lshlrev_b32 v76, 2, v4
    v_add_u32 v76, 10496, v76
    s_lshl_b32 s47, s14, 5
    v_add_u32 v77, s47, v76
    v_cmp_gt_u32 vcc, 8, v1
    s_and_saveexec_b64 s[48:49], vcc
    ds_write_b32 v77, v82
    s_mov_b64 exec, s[48:49]
    s_waitcnt lgkmcnt(0)
    s_barrier
    STAMP 4
    s_cmp_lg_u32 s14, 0
    s_cbranch_scc1 k3_end
    ds_read_b32 v78, v76
    ds_read_b32 v79, v76 offset:32
    ds_read_b32 v80, v76 offset:64
    ds_read_b32 v81, v76 offset:96
    s_waitcnt lgkmcnt(0)
    v_add_f32 v78, v78, v79
    v_add_f32 v80, v80, v81
    v_add_f32 v78, v78, v80
    v_cvt_pk_bf16_f32 v78, v78, v78
    v_and_b32 v78, 0xffff, v78
    """)
    A(f"""
    v_xor_b32 v79, 0xffff, v78
    v_or_b32 v80, 0x8000, v78
    v_cmp_lt_u32 vcc, 0x7fff, v78
    s_nop 1
    v_cndmask_b32 v78, v80, v79, vcc
    v_lshlrev_b32 v78, 16, v78
    v_add_u32 v79, s13, v4
    v_sub_u32 v80, 0xffff, v79
    v_or_b32 v78, v78, v80
    v_lshlrev_b32 v79, 2, v79
    v_cmp_gt_u32 vcc, 8, v1
    s_and_saveexec_b64 s[48:49], vcc
    buffer_store_dword v78, v79, s[40:43], 0 offen
    s_mov_b64 exec, s[48:49]
    k3_end:
    """)
    stamp_end(A, 2)
    A("k3_exit:")
    A("s_endpgm")
    return name, 96, 64, 96

def topk_code(A, pfx, MISC):
    A(f"""
    v_lshlrev_b32 v9, 5, v0
    buffer_load_dwordx4 v[10:13], v9, s[40:43], 0 offen
    buffer_load_dwordx4 v[14:17], v9, s[40:43], 0 offen offset:16
    v_mov_b32 v18, 0
    v_mov_b32 v19, {MISC+32}
    ds_write_b32 v19, v18
    s_waitcnt vmcnt(0)
    STAMP 2
    v_max3_u32 v18, v10, v11, v12
    v_max3_u32 v18, v18, v13, v14
    v_max3_u32 v18, v18, v15, v16
    v_max_u32 v18, v18, v17
    s_nop 1
    v_max_u32_dpp v18, v18, v18 row_ror:8 {DPP}
    """)
    xor16(A, "v_max_u32", 18, 20)
    xor32(A, "v_max_u32", 18, 20)
    A(f"""
    v_and_b32 v20, 7, v1
    v_lshlrev_b32 v20, 2, v20
    v_add_u32 v20, {MISC+64}, v20
    s_lshl_b32 s44, s14, 5
    v_add_u32 v21, s44, v20
    v_cmp_gt_u32 vcc, 8, v1
    s_and_saveexec_b64 s[46:47], vcc
    ds_write_b32 v21, v18
    s_mov_b64 exec, s[46:47]
    s_waitcnt lgkmcnt(0)
    s_barrier
    ds_read_b32 v22, v20
    ds_read_b32 v23, v20 offset:32
    ds_read_b32 v24, v20 offset:64
    ds_read_b32 v25, v20 offset:96
    s_waitcnt lgkmcnt(0)
    v_max3_u32 v22, v22, v23, v24
    v_max_u32 v22, v22, v25
    """)
    for pat in ("quad_perm:[1,0,3,2]", "quad_perm:[2,3,0,1]", "row_half_mirror"):
        A("s_nop 1")
        A(f"v_min_u32_dpp v22, v22, v22 {pat} {DPP}")
    A("v_mov_b32 v23, 0")
    for i in range(8):
        A(f"v_cmp_ge_u32 vcc, v{10+i}, v22")
        A("s_nop 1")
        A(f"v_addc_co_u32 v23, vcc, 0, v23, vcc")
    A(f"""
    v_mov_b32 v19, {MISC+32}
    v_cmp_lt_u32 vcc, 0, v23
    s_and_saveexec_b64 s[46:47], vcc
    ds_add_rtn_u32 v24, v19, v23
    s_waitcnt lgkmcnt(0)
    v_lshlrev_b32 v24, 2, v24
    v_add_u32 v24, {MISC+256}, v24
    s_mov_b64 s[48:49], exec
    """)
    for i in range(8):
        A(f"s_mov_b64 exec, s[48:49]")
        A(f"v_cmp_ge_u32 vcc, v{10+i}, v22")
        A(f"s_and_b64 exec, s[48:49], vcc")
        A(f"ds_write_b32 v24, v{10+i}")
        A(f"v_add_u32 v24, 4, v24")
    A(f"""
    s_mov_b64 exec, s[46:47]
    s_waitcnt lgkmcnt(0)
    s_barrier
    ds_read_b32 v23, v19
    s_waitcnt lgkmcnt(0)
    v_readfirstlane_b32 s44, v23
    """)
    A(f"""
    s_mov_b32 s45, 0
    {pfx}_rank_outer:
    v_add_u32 v24, s45, v0
    v_cmp_gt_u32 vcc, s44, v24
    s_and_saveexec_b64 s[46:47], vcc
    s_cbranch_execz {pfx}_rank_next
    v_lshlrev_b32 v25, 2, v24
    ds_read_b32 v26, v25 offset:{MISC+256}
    v_mov_b32 v27, 0
    v_mov_b32 v28, {MISC+256}
    s_mov_b32 s50, 0
    {pfx}_rank_inner:
    ds_read_b32 v29, v28
    v_add_u32 v28, 4, v28
    s_add_u32 s50, s50, 1
    s_waitcnt lgkmcnt(0)
    v_cmp_gt_u32 vcc, v29, v26
    s_nop 1
    v_addc_co_u32 v27, vcc, 0, v27, vcc
    s_cmp_lt_u32 s50, s44
    s_cbranch_scc1 {pfx}_rank_inner
    v_cmp_gt_u32 vcc, 8, v27
    s_and_b64 exec, exec, vcc
    s_cbranch_execz {pfx}_rank_next
    v_lshlrev_b32 v27, 2, v27
    ds_write_b32 v27, v26 offset:{MISC}
    {pfx}_rank_next:
    s_mov_b64 exec, s[46:47]
    s_add_u32 s45, s45, 256
    s_cmp_lt_u32 s45, s44
    s_cbranch_scc1 {pfx}_rank_outer
    s_waitcnt lgkmcnt(0)
    s_barrier
    STAMP 3
    """)

def gen_k4(A):
    name = "k4_kernel"
    kernel_head(A, name)
    MISC = 20480
    A("s_cmp_ge_u32 s2, 192")
    A("s_cbranch_scc1 k4_exit")
    stamp_begin(A)
    A(f"""
    s_load_dwordx4 s[4:7], s[0:1], {ARG['wg']}
    s_load_dwordx2 s[8:9], s[0:1], {ARG['ws']}
    s_and_b32 s12, s2, 7
    s_mul_i32 s12, s12, 24
    s_lshr_b32 s13, s2, 3
    s_add_u32 s12, s12, s13
    v_lshrrev_b32 v2, 6, v0
    v_and_b32 v1, 63, v0
    s_nop 0
    v_readfirstlane_b32 s14, v2
    s_waitcnt lgkmcnt(0)
    STAMP 1
    """)
    srd(A, 16, 4, 5, 0, 640*3072)
    srd(A, 20, 6, 7, 0, 640*3072)
    srd(A, 24, 8, 9, WS_Z, SZ_Z)
    srd(A, 28, 8, 9, WS_HID, SZ_HID)
    srd(A, 32, 8, 9, WS_SEL, SZ_SEL)
    srd(A, 40, 8, 9, WS_KEY, SZ_KEY)
    A(f"""
    s_movk_i32 s15, 3072
    v_mul_lo_u32 v3, v0, s15
    s_lshl_b32 s15, s12, 4
    s_lshl_b32 s44, s14, 10
    """)
    for it in range(3):
        if it == 2:
            A("s_cmp_ge_u32 s14, 2")
            A("s_cbranch_scc1 k4_nodma3")
        A(f"s_add_u32 s45, s15, {it*256*3072}")
        A(f"s_add_u32 s46, s44, {it*4096}")
        A("s_mov_b32 m0, s46")
        A("s_nop 0")
        A("buffer_load_dwordx4 v3, s[16:19], s45 offen lds")
        A(f"s_add_u32 s46, s44, {it*4096 + 10240}")
        A("s_mov_b32 m0, s46")
        A("s_nop 0")
        A("buffer_load_dwordx4 v3, s[20:23], s45 offen lds")
    A("k4_nodma3:")
    topk_code(A, "k4", MISC)
    A(f"""
    v_and_b32 v4, 7, v1
    v_lshlrev_b32 v5, 2, v4
    ds_read_b32 v6, v5 offset:{MISC}
    v_lshrrev_b32 v7, 4, v1
    s_waitcnt lgkmcnt(0)
    v_and_b32 v8, 0xffff, v6
    v_sub_u32 v8, 0xffff, v8
    s_movk_i32 s15, 1280
    v_mul_lo_u32 v9, v8, s15
    v_lshl_add_u32 v9, v7, 4, v9
    s_mul_i32 s44, s14, 320
    """)
    for i in range(5):
        A(f"buffer_load_dwordx4 v[{40+4*i}:{43+4*i}], v9, s[24:27], s44 offen offset:{64*i}")
    A(f"""
    s_or_b32 s45, s2, s14
    s_cmp_lg_u32 s45, 0
    s_cbranch_scc1 k4_nosel
    v_lshrrev_b32 v10, 16, v6
    v_xor_b32 v11, 0xffff, v10
    v_and_b32 v12, 0x7fff, v10
    v_cmp_lt_u32 vcc, 0x7fff, v10
    s_nop 1
    v_cndmask_b32 v10, v11, v12, vcc
    v_lshlrev_b32 v10, 16, v10
    v_mul_f32 v10, {hex(F_LOG2E)}, v10
    v_exp_f32 v10, -v10
    s_nop 0
    v_add_f32 v10, 1.0, v10
    v_rcp_f32 v10, v10
    s_nop 0
    v_cvt_pk_bf16_f32 v10, v10, v10
    v_lshlrev_b32 v10, 16, v10
    v_cmp_gt_u32 vcc, 8, v1
    s_and_saveexec_b64 s[46:47], vcc
    buffer_store_dword v8, v5, s[32:35], 0 offen
    buffer_store_dword v10, v5, s[32:35], 0 offen offset:32
    s_mov_b64 exec, s[46:47]
    k4_nosel:
    """)
    A(f"""
    v_lshlrev_b32 v10, 3, v7
    v_bfe_u32 v11, v1, 2, 2
    v_add_u32 v10, v10, v11
    v_lshlrev_b32 v10, 4, v10
    v_and_b32 v11, 1, v1
    v_lshl_add_u32 v10, v11, 3, v10
    v_bfe_u32 v11, v1, 1, 1
    s_movk_i32 s15, 10240
    v_mul_lo_u32 v11, v11, s15
    v_add_u32 v10, v10, v11
    s_mul_i32 s44, s14, {5*512}
    v_add_u32 v10, s44, v10
    """)
    for i in range(5):
        A(f"ds_read_b64_tr_b16 v[{60+4*i}:{61+4*i}], v10 offset:{512*i}")
        A(f"ds_read_b64_tr_b16 v[{62+4*i}:{63+4*i}], v10 offset:{512*i+64}")
    A("s_waitcnt vmcnt(0) lgkmcnt(0)")
    A("STAMP 4")
    for i in range(5):
        c = "0" if i == 0 else "v[80:83]"
        A(f"v_mfma_f32_16x16x32_bf16 v[80:83], v[{40+4*i}:{43+4*i}], v[{60+4*i}:{63+4*i}], {c}")
    A(f"""
    s_nop 7
    v_lshlrev_b32 v11, 4, v1
    s_lshl_b32 s44, s14, 10
    v_add_u32 v12, s44, v11
    ds_write_b128 v12, v[80:83] offset:{MISC+256}
    s_waitcnt lgkmcnt(0)
    s_barrier
    s_cmp_lg_u32 s14, 0
    s_cbranch_scc1 k4_end
    ds_read_b128 v[80:83], v11 offset:{MISC+256}
    ds_read_b128 v[84:87], v11 offset:{MISC+256+1024}
    ds_read_b128 v[88:91], v11 offset:{MISC+256+2048}
    ds_read_b128 v[92:95], v11 offset:{MISC+256+3072}
    s_waitcnt lgkmcnt(0)
    v_pk_add_f32 v[80:81], v[80:81], v[84:85]
    v_pk_add_f32 v[82:83], v[82:83], v[86:87]
    v_pk_add_f32 v[88:89], v[88:89], v[92:93]
    v_pk_add_f32 v[90:91], v[90:91], v[94:95]
    v_pk_add_f32 v[80:81], v[80:81], v[88:89]
    v_pk_add_f32 v[82:83], v[82:83], v[90:91]
    v_cvt_pk_bf16_f32 v84, v80, v81
    v_cvt_pk_bf16_f32 v85, v82, v83
    """)
    unpack_bf16(A, 84, 80, 81)
    unpack_bf16(A, 85, 82, 83)
    for r in range(4):
        A("s_nop 1")
        A(f"v_mov_b32_dpp v{84+r}, v{80+r} row_ror:8 {DPP}")
    for r in range(4):
        g, u = 80 + r, 84 + r
        A(f"v_mul_f32 v88, {hex(F_LOG2E)}, v{g}")
        A(f"v_exp_f32 v88, -v88")
        A("s_nop 0")
        A(f"v_add_f32 v88, 1.0, v88")
        A(f"v_rcp_f32 v88, v88")
        A("s_nop 0")
        A(f"v_mul_f32 v88, v88, v{g}")
        A(f"v_cvt_pk_bf16_f32 v88, v88, v88")
        A(f"v_lshlrev_b32 v88, 16, v88")
        A(f"v_mul_f32 v88, v88, v{u}")
        A(f"v_cvt_pk_bf16_f32 v{g}, v88, v88")
    A(f"""
    v_and_b32 v11, 15, v1
    v_lshlrev_b32 v12, 1, v11
    s_movk_i32 s15, {4*3072}
    v_mul_lo_u32 v13, v7, s15
    v_add_u32 v12, v12, v13
    s_lshl_b32 s44, s12, 4
    v_cmp_gt_u32 vcc, 8, v11
    v_cmp_gt_u32 s[48:49], 2, v7
    s_and_b64 vcc, vcc, s[48:49]
    s_and_saveexec_b64 s[46:47], vcc
    s_add_u32 s45, s44, 3072
    s_add_u32 s50, s44, {2*3072}
    s_add_u32 s51, s44, {3*3072}
    buffer_store_short v80, v12, s[28:31], s44 offen
    buffer_store_short v81, v12, s[28:31], s45 offen
    buffer_store_short v82, v12, s[28:31], s50 offen
    buffer_store_short v83, v12, s[28:31], s51 offen
    s_mov_b64 exec, s[46:47]
    k4_end:
    """)
    stamp_end(A, 3)
    A("k4_exit:")
    A("s_endpgm")
    return name, 96, 64, 96

def gen_k5(A):
    name = "k5_kernel"
    kernel_head(A, name)
    RED = 24576
    A("s_cmp_ge_u32 s2, 80")
    A("s_cbranch_scc1 k5_exit")
    stamp_begin(A)
    A(f"""
    s_load_dwordx4 s[4:7], s[0:1], {ARG['wd']}
    s_load_dwordx2 s[8:9], s[0:1], {ARG['ws']}
    s_and_b32 s12, s2, 7
    s_mul_i32 s12, s12, 10
    s_lshr_b32 s13, s2, 3
    s_add_u32 s12, s12, s13
    v_lshrrev_b32 v2, 6, v0
    v_and_b32 v1, 63, v0
    s_nop 0
    v_readfirstlane_b32 s14, v2
    s_waitcnt lgkmcnt(0)
    STAMP 1
    """)
    srd(A, 16, 4, 5, 0, 1536*1280)
    srd(A, 20, 6, 7, 0, 2621440)
    srd(A, 24, 8, 9, WS_Z, SZ_Z)
    srd(A, 28, 8, 9, WS_HID, SZ_HID)
    srd(A, 32, 8, 9, WS_SEL, SZ_SEL)
    srd(A, 36, 8, 9, WS_H, SZ_H)
    A(f"""
    s_movk_i32 s15, 1280
    v_mul_lo_u32 v3, v0, s15
    s_lshl_b32 s15, s12, 4
    s_lshl_b32 s44, s14, 10
    """)
    for it in range(6):
        A(f"s_add_u32 s45, s15, {it*256*1280}")
        A(f"s_add_u32 s46, s44, {it*4096}")
        A("s_mov_b32 m0, s46")
        A("s_nop 0")
        A("buffer_load_dwordx4 v3, s[16:19], s45 offen lds")
    A(f"""
    v_and_b32 v4, 7, v1
    v_bfe_u32 v5, v1, 3, 1
    v_lshrrev_b32 v7, 4, v1
    s_movk_i32 s15, 3072
    v_mul_lo_u32 v9, v4, s15
    s_movk_i32 s15, 1536
    v_mul_lo_u32 v10, v5, s15
    v_add_u32 v9, v9, v10
    v_lshl_add_u32 v9, v7, 4, v9
    s_mul_i32 s44, s14, {6*64}
    """)
    for i in range(6):
        A(f"buffer_load_dwordx4 v[{40+4*i}:{43+4*i}], v9, s[28:31], s44 offen offset:{64*i}")
    A(f"""
    v_lshlrev_b32 v11, 2, v4
    buffer_load_dword v12, v11, s[32:35], 0 offen
    buffer_load_dword v13, v11, s[32:35], 0 offen offset:32
    """)
    A(f"""
    v_lshlrev_b32 v14, 3, v7
    v_bfe_u32 v15, v1, 2, 2
    v_add_u32 v14, v14, v15
    v_bfe_u32 v15, v1, 1, 1
    s_movk_i32 s15, 768
    v_mul_lo_u32 v15, v15, s15
    v_add_u32 v14, v14, v15
    v_lshlrev_b32 v14, 4, v14
    v_and_b32 v15, 1, v1
    v_lshl_add_u32 v14, v15, 3, v14
    s_mul_i32 s44, s14, {6*512}
    v_add_u32 v14, s44, v14
    s_waitcnt vmcnt(0)
    s_barrier
    STAMP 2
    """)
    for i in range(6):
        A(f"ds_read_b64_tr_b16 v[{64+4*i}:{65+4*i}], v14 offset:{512*i}")
        A(f"ds_read_b64_tr_b16 v[{66+4*i}:{67+4*i}], v14 offset:{512*i+64}")
    A("s_waitcnt lgkmcnt(0)")
    for i in range(6):
        c = "0" if i == 0 else "v[88:91]"
        A(f"v_mfma_f32_16x16x32_bf16 v[88:91], v[{40+4*i}:{43+4*i}], v[{64+4*i}:{67+4*i}], {c}")
    A(f"""
    s_nop 7
    v_lshlrev_b32 v15, 4, v1
    s_lshl_b32 s44, s14, 10
    v_add_u32 v16, s44, v15
    ds_write_b128 v16, v[88:91] offset:{RED}
    s_waitcnt lgkmcnt(0)
    s_barrier
    STAMP 3
    s_cmp_lg_u32 s14, 0
    s_cbranch_scc1 k5_end
    """)
    A(f"""
    v_lshrrev_b32 v20, 3, v1
    v_and_b32 v21, 7, v1
    v_lshrrev_b32 v22, 2, v20
    v_lshl_add_u32 v22, v22, 4, v21
    v_lshlrev_b32 v22, 4, v22
    v_and_b32 v23, 3, v20
    v_lshl_add_u32 v22, v23, 2, v22
    """)
    for w in range(4):
        A(f"ds_read_b32 v{24+2*w}, v22 offset:{RED + 1024*w}")
        A(f"ds_read_b32 v{25+2*w}, v22 offset:{RED + 1024*w + 640}")
    A(f"""
    v_lshlrev_b32 v32, 2, v20
    ds_bpermute_b32 v33, v32, v12
    ds_bpermute_b32 v34, v32, v13
    s_waitcnt lgkmcnt(0)
    v_add_f32 v24, v24, v25
    v_add_f32 v26, v26, v27
    v_add_f32 v28, v28, v29
    v_add_f32 v30, v30, v31
    v_add_f32 v24, v24, v26
    v_add_f32 v28, v28, v30
    v_add_f32 v24, v24, v28
    s_movk_i32 s15, 1280
    v_mul_lo_u32 v35, v33, s15
    v_lshl_add_u32 v35, v21, 1, v35
    s_lshl_b32 s44, s12, 4
    buffer_load_ushort v36, v35, s[24:27], s44 offen
    buffer_load_ushort v37, v35, s[36:39], s44 offen
    v_cvt_pk_bf16_f32 v24, v24, v24
    v_lshlrev_b32 v24, 16, v24
    v_mul_f32 v24, v24, v34
    v_cvt_pk_bf16_f32 v24, v24, v24
    v_lshlrev_b32 v24, 16, v24
    s_waitcnt vmcnt(0)
    v_lshlrev_b32 v36, 16, v36
    v_lshlrev_b32 v37, 16, v37
    v_add_f32 v24, v36, v24
    v_cvt_pk_bf16_f32 v24, v24, v24
    v_lshlrev_b32 v24, 16, v24
    v_add_f32 v24, v37, v24
    v_cvt_pk_bf16_f32 v24, v24, v24
    buffer_store_short v24, v35, s[20:23], s44 offen
    k5_end:
    """)
    stamp_end(A, 4)
    A("k5_exit:")
    A("s_endpgm")
    return name, 96, 64, 96

def main():
    global STAMP
    if "--stamp" in sys.argv:
        STAMP = True
        sys.argv.remove("--stamp")
    A = Asm()
    hdr = open("cdna_kernels/%s.s.ref" % NAME).read().split("; Override launch")[0]
    kernels = []
    body = Asm()
    for g in (gen_k1, gen_k2, gen_k3, gen_k4, gen_k5):
        kernels.append(g(body))
    launches = [
        ("k1_kernel", 896, 256, 40960),
        ("k2_kernel", 160, 256, 4 * K2_WAVE_LDS),
        ("k3_kernel", 256, 256, 10752),
        ("k4_kernel", 192, 256, 20480 + 256 + 8192),
        ("k5_kernel", 80, 256, 24576 + 4096),
    ]
    out = hdr
    for k, g, b, l in launches:
        out += f"; @launch kernel={k} grid=({g},1,1) block=({b},1,1) lds={l}\n"
    out += '.amdgcn_target "amdgcn-amd-amdhsa--gfx950"\n.text\n'
    out += body.text()
    out += '.section .rodata,"a"\n'
    for name, vg, sg, acc in kernels:
        out += ".p2align 6\n" + kernel_desc(name, vg, 100 if STAMP else sg, acc)
    path = sys.argv[1] if len(sys.argv) > 1 else "cdna_kernels/%s.s" % NAME
    open(path, "w").write(out)
    print("wrote", path, len(out))

if __name__ == "__main__":
    main()
```

```python
import sys
import gen
from gen import Asm, srd, kernel_head, kernel_desc, DPP, allreduce16, xor16, xor32, unpack_bf16, ln_scalars, f32bits
from gen import F_INV640, F_LOG2E, ARG, NAME, UROW

WS_UT = 0x000000
WS_KR = 0x290000
WS_KS = 0x510000
WS_AT = 0x520000
WS_KEY = 0x7A0000
WS_SM = 0x7A2000
WS_ZS = WS_SM
WS_HS = WS_SM + 10240
WS_META = WS_SM + 20480
WS_HID = WS_SM + 20736
WS_SIZE = 0x7B0000
WS_STAMP = 0x1000000

STAMP = False
NSTAMP = [0]
def stamp(A, k):
    if STAMP:
        A("s_memrealtime s[98:99]")
        A("s_waitcnt lgkmcnt(0)")
        A(f"v_writelane_b32 v255, s98, {k}")

def stamp_flush(A, kid):
    if STAMP:
        A("s_waitcnt vmcnt(0) lgkmcnt(0)")
        stamp(A, 15)
        A(f"s_load_dwordx2 s[88:89], s[0:1], {ARG['ws']}")
        A("s_waitcnt lgkmcnt(0)")
        srd(A, 84, 88, 89, WS_STAMP + kid * 0x40000, 0x40000)
        A("v_lshrrev_b32 v2, 6, v0")
        A("s_lshl_b32 s91, s2, 2")
        A("v_add_u32 v2, s91, v2")
        A("v_lshlrev_b32 v2, 6, v2")
        A("v_and_b32 v3, 63, v0")
        A("v_lshl_add_u32 v2, v3, 2, v2")
        A("s_mov_b64 exec, 0xffff")
        A("buffer_store_dword v255, v2, s[84:87], 0 offen")

WAVE_LDS = 21248
COPY = 4160
KOFF = 16640
L_AT = 0
L_MISC = 10240
L_ST = L_MISC
L_RP = L_MISC + 256
L_CNT = L_MISC + 384
L_RED = L_MISC + 512
LBASE = 19200
L_G, L_U, L_WD = LBASE, LBASE + 20480, LBASE + 40960
LDS_TOTAL = LBASE + 4 * 21248
POLL_LIMIT = 30000

lblc = [0]
def newlbl(p):
    lblc[0] += 1
    return f"{p}_{lblc[0]}"

def poll_begin(A, cnt):
    L = newlbl("poll")
    A(f"s_mov_b32 s{cnt}, 0")
    A(f"{L}:")
    return L
def poll_end(A, L, cnt, sleep):
    D = L + "_done"
    A("s_cmp_eq_u64 vcc, 0")
    A(f"s_cbranch_scc1 {D}")
    A(f"s_add_u32 s{cnt}, s{cnt}, 1")
    if sleep: A(f"s_sleep {sleep}")
    A(f"s_cmp_lt_u32 s{cnt}, {POLL_LIMIT}")
    A(f"s_cbranch_scc1 {L}")
    A(f"{D}:")

VX = 200
VW = 210
VROW = 220
VCH = 221
VTOK = 222

def conv_phase(A):
    vm = []
    A(f"""
    s_lshl_b32 s38, s2, 2
    s_add_u32 s38, s38, s3
    s_mul_i32 s39, s3, {WAVE_LDS}
    s_add_u32 s39, s39, {LBASE}
    s_add_u32 s40, s39, {KOFF}
    s_lshl_b32 s41, s38, 12
    s_add_u32 s42, s41, {WS_KR}
    s_mul_i32 s43, s38, {UROW}
    s_add_u32 s44, s41, {WS_AT}
    v_lshlrev_b32 v3, 4, v1
    s_mov_b32 m0, s40
    s_nop 0
    """)
    for i in range(4):
        A(f"buffer_load_dwordx4 v3, s[8:11], s42 offen offset:{1024*i} lds"); vm.append("K")
    for c in range(4):
        A(f"v_add_u32 v{4+c}, {2*c}, v3")
        A(f"s_add_u32 s{48+c}, s39, {COPY*c}")
    for i in range(4):
        for c in range(4):
            A(f"s_mov_b32 m0, s{48+c}")
            A("s_nop 0")
            A(f"buffer_load_dwordx4 v{4+c}, s[8:11], s43 offen offset:{1024*i} lds"); vm.append(f"U{i}")
    A(f"""
    v_lshrrev_b32 v8, 1, v1
    v_and_b32 v9, 1, v1
    v_lshlrev_b32 v9, 4, v9
    v_lshl_add_u32 v10, v8, 1, v9
    v_add_u32 v10, 4096, v10
    s_movk_i32 s46, {COPY}
    v_mul_lo_u32 v11, v8, s46
    v_add_u32 v11, v11, v9
    v_add_u32 v11, s39, v11
    v_cmp_gt_u32 vcc, 8, v1
    s_and_saveexec_b64 s[52:53], vcc
    buffer_load_dwordx4 v[12:15], v10, s[8:11], s43 offen
    s_mov_b64 exec, s[52:53]
    """); vm.append("T")
    A(f"""
    s_add_u32 s54, s6, {hex(WS_KS)}
    s_addc_u32 s55, s7, 0
    s_lshl_b32 s56, s38, 2
    s_load_dword s45, s[54:55], s56
    s_and_b32 s56, s38, 0xfffffffe
    s_lshl_b32 s56, s56, 1
    s_load_dword s47, s[60:61], s56
    v_mov_b32 v16, 0
    v_mov_b32 v17, 0
    v_mov_b32 v18, 0
    v_mov_b32 v19, 0
    v_add_u32 v20, s40, v3
    v_cmp_gt_u32 vcc, 30, v1
    s_and_saveexec_b64 s[52:53], vcc
    ds_write_b128 v20, v[16:19] offset:4096
    s_mov_b64 exec, s[52:53]
    v_and_b32 v21, 15, v1
    v_lshrrev_b32 v22, 4, v1
    v_add_u32 v23, 1, v21
    v_and_b32 v24, 3, v23
    v_mul_lo_u32 v24, v24, s46
    v_lshrrev_b32 v23, 2, v23
    v_lshl_add_u32 v24, v23, 3, v24
    v_lshl_add_u32 v24, v22, 4, v24
    v_add_u32 v24, s39, v24
    v_lshlrev_b32 v25, 5, v21
    v_sub_u32 v25, {2*2032 - 64*56}, v25
    v_lshl_add_u32 v25, v22, 4, v25
    v_add_u32 v25, s40, v25
    v_lshlrev_b32 v26, 5, v21
    v_lshl_add_u32 v27, v22, 3, v26
    v_add_u32 v27, 32, v27
    v_add_u32 v27, s39, v27
    v_lshrrev_b32 v28, 1, v22
    v_lshl_add_u32 v26, v28, 4, v26
    s_waitcnt lgkmcnt(0)
    s_bitcmp1_b32 s38, 0
    s_cbranch_scc1 cv_odd
    s_lshl_b32 s47, s47, 16
    cv_odd:
    s_and_b32 s47, s47, 0xffff0000
    s_mov_b32 s56, 0x0000ffff
    s_mov_b32 s57, 0x0000ffff
    """)
    ACC = 32
    AR = 64
    NR = 12
    EP = 112
    def vm_wait(name):
        if name not in vm: return
        idx = max(i for i, n in enumerate(vm) if n == name)
        n_after = len(vm) - 1 - idx
        A(f"s_waitcnt vmcnt({n_after})")
        del vm[:idx+1]
    mf = []
    for al in range(64):
        for q in range(al // 8, 8):
            mf.append((q, al))
    first_use = {}
    for i, (q, al) in enumerate(mf):
        first_use.setdefault(("A", al), i)
        first_use.setdefault(("B", 8*q - al), i)
    loads = sorted(first_use.items(), key=lambda kv: (kv[1], kv[0][0]))
    last_of_tile = {q: max(i for i, (qq, al) in enumerate(mf) if qq == q) for q in range(8)}
    lastuse_A = {al: max(i for i, (q, a2) in enumerate(mf) if a2 == al) for al in range(64)}
    def epi_instrs(q):
        a = ACC + 4 * q
        e = EP + 16 * (q % 2)
        U = e + 14
        L = []
        L.append(("lds", f"ds_read_b64 v[{U}:{U+1}], v27 offset:{512*q}"))
        L.append(("v", f"v_mul_f32 v{e}, s45, v{a}"))
        L.append(("v", f"v_mul_f32 v{e+1}, s45, v{a+1}"))
        L.append(("v", f"v_mul_f32 v{e+2}, s45, v{a+2}"))
        L.append(("v", f"v_mul_f32 v{e+3}, s45, v{a+3}"))
        L.append(("v", f"v_cvt_pk_bf16_f32 v{e}, v{e}, v{e+1}"))
        L.append(("v", f"v_cvt_pk_bf16_f32 v{e+2}, v{e+2}, v{e+3}"))
        L.append(("waitu", None))
        L.append(("v", f"v_fma_mix_f32 v{e+4}, v{U}, s47, 0 op_sel_hi:[1,0,0]"))
        L.append(("v", f"v_fma_mix_f32 v{e+5}, v{U}, s47, 0 op_sel:[1,0,0] op_sel_hi:[1,0,0]"))
        L.append(("v", f"v_fma_mix_f32 v{e+6}, v{U+1}, s47, 0 op_sel_hi:[1,0,0]"))
        L.append(("v", f"v_fma_mix_f32 v{e+7}, v{U+1}, s47, 0 op_sel:[1,0,0] op_sel_hi:[1,0,0]"))
        L.append(("v", f"v_cvt_pk_bf16_f32 v{e+4}, v{e+4}, v{e+5}"))
        L.append(("v", f"v_cvt_pk_bf16_f32 v{e+6}, v{e+6}, v{e+7}"))
        L.append(("v", f"v_lshlrev_b32 v{e+8}, 16, v{e}"))
        L.append(("v", f"v_and_b32 v{e+9}, 0xffff0000, v{e}"))
        L.append(("v", f"v_lshlrev_b32 v{e+10}, 16, v{e+4}"))
        L.append(("v", f"v_and_b32 v{e+11}, 0xffff0000, v{e+4}"))
        L.append(("v", f"v_pk_add_f32 v[{e+8}:{e+9}], v[{e+8}:{e+9}], v[{e+10}:{e+11}]"))
        L.append(("v", f"v_cvt_pk_bf16_f32 v{e}, v{e+8}, v{e+9}"))
        L.append(("v", f"v_lshlrev_b32 v{e+8}, 16, v{e+2}"))
        L.append(("v", f"v_and_b32 v{e+9}, 0xffff0000, v{e+2}"))
        L.append(("v", f"v_lshlrev_b32 v{e+10}, 16, v{e+6}"))
        L.append(("v", f"v_and_b32 v{e+11}, 0xffff0000, v{e+6}"))
        L.append(("v", f"v_pk_add_f32 v[{e+8}:{e+9}], v[{e+8}:{e+9}], v[{e+10}:{e+11}]"))
        L.append(("v", f"v_cvt_pk_bf16_f32 v{e+1}, v{e+8}, v{e+9}"))
        L.append(("v", "s_nop 1"))
        L.append(("v", f"v_permlane16_swap_b32 v{e}, v{e+2}"))
        L.append(("v", f"v_permlane16_swap_b32 v{e+1}, v{e+3}"))
        L.append(("st", [f"s_mov_b64 exec, s[56:57]",
                         f"buffer_store_dwordx4 v[{e}:{e+3}], v26, s[8:11], s44 offen offset:{512*q} sc1",
                         f"s_mov_b64 exec, -1"]))
        return L
    ldsq = []
    issued = set()
    confirmed_chunk = -1
    def lds_wait_for(idset):
        idxs = [i for i, n in enumerate(ldsq) if n in idset]
        if not idxs: return
        k = max(idxs)
        n_after = len(ldsq) - 1 - k
        A(f"s_waitcnt lgkmcnt({n_after})")
        del ldsq[:k+1]
    def issue_load(key):
        nonlocal confirmed_chunk
        kind, v = key
        if kind == "A":
            need = (32 * v + 47) // 512
            need = min(need, 3)
            while confirmed_chunk < need:
                confirmed_chunk += 1
                vm_wait(f"U{confirmed_chunk}")
            if v >= 62 and "T" in vm or (v >= 62 and not tail_done[0]):
                do_tail()
            r = AR + 4 * (v % NR)
            A(f"ds_read_b64 v[{r}:{r+1}], v24 offset:{64*v}"); ldsq.append(key)
            A(f"ds_read_b64 v[{r+2}:{r+3}], v24 offset:{64*v+8}"); ldsq.append(key)
        else:
            r = 4 * (v + 7)
            A(f"ds_read_b128 a[{r}:{r+3}], v25 offset:{64*(56-v)}"); ldsq.append(key)
        issued.add(key)
    tail_done = [False]
    def do_tail():
        if tail_done[0]: return
        tail_done[0] = True
        if "T" in vm: vm_wait("T")
        A("v_cmp_gt_u32 vcc, 8, v1")
        A("s_and_saveexec_b64 s[52:53], vcc")
        A("ds_write_b128 v11, v[12:15] offset:4096"); ldsq.append(("TW", 0))
        A("s_mov_b64 exec, s[52:53]")
    vm_wait("K")
    stamp(A, 2)
    li = 0
    epi_q = []
    WINDOW = 10
    MAXQ = 13
    for i, (q, al) in enumerate(mf):
        budget = 2 if i > 0 else 99
        while li < len(loads):
            key, dl = loads[li]
            n = 2 if key[0] == "A" else 1
            must = dl <= i
            if not must:
                if dl - i > WINDOW or budget <= 0: break
                if len(ldsq) + n > MAXQ: break
                if key[0] == "A" and key[1] >= NR and lastuse_A[key[1] - NR] >= i: break
            else:
                if len(ldsq) + n > 15:
                    A(f"s_waitcnt lgkmcnt({15-n})"); del ldsq[:len(ldsq) - (15 - n)]
            issue_load(key)
            budget -= n
            li += 1
        if al == 40 and q == 5: do_tail()
        while budget > 0 and epi_q and epi_q[0][0] <= i:
            _, kind, txt, eq = epi_q.pop(0)
            if kind == "lds":
                if len(ldsq) + 1 > 15:
                    A("s_waitcnt lgkmcnt(14)"); del ldsq[:len(ldsq) - 14]
                A(txt); ldsq.append(("EU", eq))
            elif kind == "waitu":
                lds_wait_for({("EU", eq)})
                continue
            elif kind == "st":
                for t in txt: A(t)
                vm.append("S")
            else:
                A(txt)
            budget -= 1
        lds_wait_for({("A", al), ("B", 8*q - al)})
        r = AR + 4 * (al % NR)
        g = 8 * q - al
        c = "0" if al == 0 else f"v[{ACC+4*q}:{ACC+4*q+3}]"
        A(f"v_mfma_f32_16x16x32_f16 v[{ACC+4*q}:{ACC+4*q+3}], v[{r}:{r+3}], a[{4*(g+7)}:{4*(g+7)+3}], {c}")
        if i == last_of_tile[q]:
            for kind, txt in epi_instrs(q):
                epi_q.append((i + (1 if kind == "lds" else 4), kind, txt, q))
    A("s_nop 7")
    for _, kind, txt, eq in epi_q:
        if kind == "lds":
            A(txt); ldsq.append(("EU", eq))
        elif kind == "waitu":
            lds_wait_for({("EU", eq)})
        elif kind == "st":
            for t in txt: A(t)
        else:
            A(txt)

def red8(A, x, t):
    A("s_nop 1")
    A(f"v_add_f32_dpp v{x}, v{x}, v{x} row_ror:8 {DPP}")
    xor16(A, "v_add_f32", x, t)
    xor32(A, "v_add_f32", x, t)

def gen_k2f(A):
    name = "k2_kernel"
    kernel_head(A, name)
    A("s_cmp_ge_u32 s2, 256")
    A("s_cbranch_scc1 k2_exit")
    if STAMP: A("v_mov_b32 v255, 0")
    stamp(A, 0)
    A(f"""
    s_load_dwordx2 s[4:5], s[0:1], {ARG['x']}
    s_load_dwordx2 s[6:7], s[0:1], {ARG['ws']}
    s_load_dwordx2 s[58:59], s[0:1], {ARG['wr']}
    s_load_dwordx2 s[60:61], s[0:1], {ARG['dsk']}
    s_load_dwordx2 s[62:63], s[0:1], {ARG['out']}
    s_load_dwordx4 s[64:67], s[0:1], {ARG['wg']}
    s_load_dwordx2 s[68:69], s[0:1], {ARG['wd']}
    s_and_b32 s36, s2, 7
    s_lshl_b32 s36, s36, 5
    s_lshr_b32 s37, s2, 3
    s_add_u32 s36, s36, s37
    s_lshl_b32 s37, s36, 3
    v_lshrrev_b32 v2, 6, v0
    v_and_b32 v1, 63, v0
    s_nop 0
    v_readfirstlane_b32 s3, v2
    v_and_b32 v{VTOK}, 7, v1
    v_lshrrev_b32 v5, 3, v1
    v_add_u32 v6, s37, v{VTOK}
    s_movk_i32 s46, 1280
    v_mul_lo_u32 v6, v6, s46
    s_mul_i32 s47, s3, 320
    v_lshl_add_u32 v{VCH}, v5, 3, s47
    v_add_u32 v{VROW}, v6, v{VCH}
    s_waitcnt lgkmcnt(0)
    """)
    srd(A, 8, 6, 7, 0, WS_SIZE)
    srd(A, 12, 4, 5, 0, 2621440)
    srd(A, 16, 58, 59, 0, 1280)
    for i in range(5):
        A(f"buffer_load_dwordx2 v[{VX+2*i}:{VX+2*i+1}], v{VROW}, s[12:15], 0 offen offset:{64*i}")
    for i in range(5):
        A(f"buffer_load_dwordx2 v[{VW+2*i}:{VW+2*i+1}], v{VCH}, s[16:19], 0 offen offset:{64*i}")
    srd(A, 12, 62, 63, 0, 2621440)
    stamp(A, 1)
    A("s_cmp_ge_u32 s2, 160")
    A("s_cbranch_scc1 k2_ffn_pre")
    conv_phase(A)
    stamp(A, 3)
    A("s_branch k2_ln2")
    A("k2_ffn_pre:")
    srd(A, 20, 64, 65, 0, 640*3072)
    srd(A, 24, 66, 67, 0, 640*3072)
    srd(A, 28, 68, 69, 0, 1536*1280)
    A(f"""
    s_sub_u32 s38, s2, 160
    s_and_b32 s39, s38, 7
    s_lshr_b32 s40, s38, 3
    s_mul_i32 s41, s39, 12
    s_add_u32 s41, s41, s40
    s_mul_i32 s42, s39, 10
    s_add_u32 s42, s42, s40
    v_lshrrev_b32 v3, 1, v0
    s_movk_i32 s46, 3072
    v_mul_lo_u32 v3, v3, s46
    v_and_b32 v4, 1, v0
    v_lshl_add_u32 v3, v4, 4, v3
    s_lshl_b32 s43, s41, 5
    s_lshl_b32 s44, s3, 10
    """)
    for it in range(5):
        A(f"s_add_u32 s45, s43, {it*128*3072}")
        A(f"s_add_u32 s47, s44, {L_G + it*4096}")
        A("s_mov_b32 m0, s47")
        A("s_nop 0")
        A("buffer_load_dwordx4 v3, s[20:23], s45 offen lds")
        A(f"s_add_u32 s47, s44, {L_U + it*4096}")
        A("s_mov_b32 m0, s47")
        A("s_nop 0")
        A("buffer_load_dwordx4 v3, s[24:27], s45 offen lds")
    A(f"""
    s_cmp_ge_u32 s38, 80
    s_cbranch_scc1 k2_ffn_nowd
    s_movk_i32 s46, 1280
    v_mul_lo_u32 v3, v0, s46
    s_lshl_b32 s43, s42, 4
    """)
    for it in range(6):
        A(f"s_add_u32 s45, s43, {it*256*1280}")
        A(f"s_add_u32 s47, s44, {L_WD + it*4096}")
        A("s_mov_b32 m0, s47")
        A("s_nop 0")
        A("buffer_load_dwordx4 v3, s[28:31], s45 offen lds")
    A("k2_ffn_nowd:")
    A(f"""
    v_lshlrev_b32 v3, 12, v0
    s_lshl_b32 s43, s37, 1
    s_add_u32 s43, s43, {WS_AT}
    """)
    L = poll_begin(A, 46)
    A("buffer_load_dwordx4 v[8:11], v3, s[8:11], s43 offen sc1")
    A("s_waitcnt vmcnt(0)")
    A("v_max3_u32 v8, v8, v9, v10")
    A("v_max_u32 v8, v8, v11")
    A("v_cmp_eq_u32 vcc, -1, v8")
    poll_end(A, L, 46, 12)
    stamp(A, 3)
    A("k2_ln2:")
    A(f"""
    v_lshlrev_b32 v3, 12, v0
    s_lshl_b32 s43, s37, 1
    s_add_u32 s43, s43, {WS_AT}
    s_add_u32 s44, s43, {256*4096}
    s_add_u32 s45, s43, {512*4096}
    v_mov_b32 v16, 0
    v_mov_b32 v17, 0
    v_mov_b32 v18, 0
    v_mov_b32 v19, 0
    """)
    L = poll_begin(A, 46)
    A(f"""
    buffer_load_dwordx4 v[8:11], v3, s[8:11], s43 offen sc1
    buffer_load_dwordx4 v[12:15], v3, s[8:11], s44 offen sc1
    s_cmp_ge_u32 s3, 2
    s_cbranch_scc1 {L}_skip
    buffer_load_dwordx4 v[16:19], v3, s[8:11], s45 offen sc1
    {L}_skip:
    s_waitcnt vmcnt(0)
    v_max3_u32 v20, v8, v9, v10
    v_max3_u32 v20, v20, v11, v12
    v_max3_u32 v20, v20, v13, v14
    v_max3_u32 v20, v20, v15, v16
    v_max3_u32 v20, v20, v17, v18
    v_max_u32 v20, v20, v19
    v_cmp_eq_u32 vcc, -1, v20
    """)
    poll_end(A, L, 46, 2)
    A(f"""
    v_lshlrev_b32 v3, 4, v0
    ds_write_b128 v3, v[8:11] offset:{L_AT}
    ds_write_b128 v3, v[12:15] offset:{L_AT+4096}
    s_cmp_ge_u32 s3, 2
    s_cbranch_scc1 k2_ln2_w3
    ds_write_b128 v3, v[16:19] offset:{L_AT+8192}
    k2_ln2_w3:
    v_lshrrev_b32 v8, 4, v1
    v_lshlrev_b32 v8, 3, v8
    v_bfe_u32 v9, v1, 1, 1
    v_lshl_add_u32 v8, v9, 2, v8
    v_bfe_u32 v9, v1, 2, 2
    v_add_u32 v8, v8, v9
    s_mul_i32 s47, s3, 160
    v_add_u32 v8, s47, v8
    v_lshlrev_b32 v8, 4, v8
    v_and_b32 v9, 1, v1
    v_lshl_add_u32 v8, v9, 3, v8
    s_waitcnt lgkmcnt(0)
    s_barrier
    """)
    stamp(A, 4)
    for i in range(5):
        A(f"ds_read_b64_tr_b16 v[{30+2*i}:{31+2*i}], v8 offset:{L_AT+512*i}")
    A("s_waitcnt lgkmcnt(0)")
    H = 40
    for i in range(10):
        a, b = H + 2*i, H + 2*i + 1
        unpack_bf16(A, VX + i, a, b)
        unpack_bf16(A, 30 + i, 70, 71)
        A(f"v_pk_add_f32 v[{a}:{b}], v[{a}:{b}], v[70:71]")
        A(f"v_cvt_pk_bf16_f32 v{60+i}, v{a}, v{b}")
        unpack_bf16(A, 60 + i, a, b)
    A(f"v_pk_add_f32 v[72:73], v[{H}:{H+1}], v[{H+2}:{H+3}]")
    for i in range(2, 10):
        A(f"v_pk_add_f32 v[72:73], v[72:73], v[{H+2*i}:{H+2*i+1}]")
    A("v_add_f32 v72, v72, v73")
    red8(A, 72, 73)
    A(f"v_mul_f32 v72, {hex(f32bits(1/160))}, v72")
    for i in range(10):
        A(f"v_pk_add_f32 v[70:71], v[{H+2*i}:{H+2*i+1}], v[72:73] op_sel_hi:[1,0] neg_lo:[0,1] neg_hi:[0,1]")
        if i == 0: A("v_pk_mul_f32 v[74:75], v[70:71], v[70:71]")
        else: A("v_pk_fma_f32 v[74:75], v[70:71], v[70:71], v[74:75]")
    A("v_add_f32 v73, v74, v75")
    red8(A, 73, 74)
    A(f"""
    v_lshlrev_b32 v76, 3, v{VTOK}
    v_add_u32 v76, {L_ST}, v76
    s_lshl_b32 s47, s3, 6
    v_add_u32 v77, s47, v76
    v_cmp_gt_u32 vcc, 8, v1
    s_and_saveexec_b64 s[48:49], vcc
    ds_write_b64 v77, v[72:73]
    s_mov_b64 exec, s[48:49]
    s_waitcnt lgkmcnt(0)
    s_barrier
    ds_read_b64 v[78:79], v76
    ds_read_b64 v[80:81], v76 offset:64
    ds_read_b64 v[82:83], v76 offset:128
    ds_read_b64 v[84:85], v76 offset:192
    s_waitcnt lgkmcnt(0)
    v_add_f32 v72, v78, v80
    v_add_f32 v73, v82, v84
    v_add_f32 v72, v72, v73
    v_mul_f32 v72, 0.25, v72
    v_sub_f32 v78, v78, v72
    v_sub_f32 v80, v80, v72
    v_sub_f32 v82, v82, v72
    v_sub_f32 v84, v84, v72
    v_mul_f32 v73, v78, v78
    v_fmac_f32 v73, v80, v80
    v_fmac_f32 v73, v82, v82
    v_fmac_f32 v73, v84, v84
    v_add_f32 v79, v79, v81
    v_add_f32 v83, v83, v85
    v_add_f32 v79, v79, v83
    v_mov_b32 v74, {hex(f32bits(160))}
    v_fmac_f32 v79, v74, v73
    v_mul_f32 v74, {hex(F_INV640)}, v79
    """)
    ln_scalars(A, 72, 74, 75, 78, 80)
    A("v_mov_b32 v82, 0")
    for i in range(10):
        a, b = H + 2*i, H + 2*i + 1
        A(f"v_pk_add_f32 v[70:71], v[{a}:{b}], v[78:79] op_sel_hi:[1,0] neg_lo:[0,1] neg_hi:[0,1]")
        A(f"v_cvt_pk_bf16_f32 v84, v70, v71")
        unpack_bf16(A, 84, 70, 71)
        A(f"v_pk_mul_f32 v[70:71], v[70:71], v[80:81] op_sel_hi:[1,0]")
        A(f"v_cvt_pk_bf16_f32 v{30+i}, v70, v71")
        unpack_bf16(A, 30 + i, 70, 71)
        unpack_bf16(A, VW + i, 84, 85)
        A(f"v_fmac_f32 v82, v70, v84")
        A(f"v_fmac_f32 v82, v71, v85")
    red8(A, 82, 83)
    A(f"""
    v_lshlrev_b32 v76, 2, v{VTOK}
    v_add_u32 v76, {L_RP}, v76
    s_lshl_b32 s47, s3, 5
    v_add_u32 v77, s47, v76
    v_cmp_gt_u32 vcc, 8, v1
    s_and_saveexec_b64 s[48:49], vcc
    ds_write_b32 v77, v82
    s_mov_b64 exec, s[48:49]
    s_waitcnt lgkmcnt(0)
    s_barrier
    ds_read_b32 v78, v76
    ds_read_b32 v79, v76 offset:32
    ds_read_b32 v80, v76 offset:64
    ds_read_b32 v81, v76 offset:96
    s_waitcnt lgkmcnt(0)
    v_add_f32 v78, v78, v79
    v_add_f32 v80, v80, v81
    v_add_f32 v78, v78, v80
    v_cvt_pk_bf16_f32 v78, v78, v78
    v_and_b32 v78, 0xffff, v78
    v_xor_b32 v79, 0xffff, v78
    v_or_b32 v80, 0x8000, v78
    v_cmp_lt_u32 vcc, 0x7fff, v78
    v_lshlrev_b32 v87, 16, v78
    s_nop 0
    v_cndmask_b32 v78, v80, v79, vcc
    v_lshlrev_b32 v78, 16, v78
    v_add_u32 v79, s37, v{VTOK}
    v_sub_u32 v80, 0xffff, v79
    v_or_b32 v86, v78, v80
    """)
    A(f"""
    s_cmp_lg_u32 s3, 0
    s_cbranch_scc1 k2_nokey
    v_lshlrev_b32 v80, 2, v79
    s_mov_b32 s47, {WS_KEY}
    v_cmp_gt_u32 vcc, 8, v1
    s_and_saveexec_b64 s[48:49], vcc
    buffer_store_dword v86, v80, s[8:11], s47 offen sc1
    s_mov_b64 exec, s[48:49]
    k2_nokey:
    """)
    stamp(A, 5)
    for i in range(10):
        a, b = H + 2*i, H + 2*i + 1
        unpack_bf16(A, 30 + i, 70, 71)
        A(f"v_pk_add_f32 v[70:71], v[70:71], v[{a}:{b}]")
        A(f"v_cvt_pk_bf16_f32 v{10+i}, v70, v71")
    A(f"""
    v_lshlrev_b32 v9, 5, v0
    s_mov_b32 s47, {WS_KEY}
    """)
    L = poll_begin(A, 46)
    A(f"""
    buffer_load_dwordx4 v[90:93], v9, s[8:11], s47 offen sc1
    buffer_load_dwordx4 v[94:97], v9, s[8:11], s47 offen offset:16 sc1
    s_waitcnt vmcnt(0)
    v_min3_u32 v98, v90, v91, v92
    v_min3_u32 v98, v98, v93, v94
    v_min3_u32 v98, v98, v95, v96
    v_min_u32 v98, v98, v97
    v_cmp_eq_u32 vcc, 0, v98
    """)
    poll_end(A, L, 46, 4)
    stamp(A, 6)
    A(f"""
    s_mov_b32 s50, -1
    s_mov_b64 s[52:53], 0
    s_mov_b32 s51, 0
    k2_own:
    v_cmp_gt_u32 vcc, s50, v86
    s_nop 1
    v_cndmask_b32 v98, 0, v86, vcc
    """)
    for pat in ("quad_perm:[1,0,3,2]", "quad_perm:[2,3,0,1]", "row_half_mirror"):
        A("s_nop 1")
        A(f"v_max_u32_dpp v98, v98, v98 {pat} {DPP}")
    A(f"""
    s_nop 0
    v_readfirstlane_b32 s54, v98
    s_nop 3
    s_cmp_eq_u32 s54, 0
    s_cbranch_scc1 k2_own_done
    s_mov_b32 s55, 0
    """)
    for r in range(8):
        A(f"v_cmp_lt_u32 vcc, s54, v{90+r}")
        A(f"s_bcnt1_i32_b64 s56, vcc")
        A(f"s_add_u32 s55, s55, s56")
    A(f"""
    s_lshl_b32 s56, s51, 4
    s_lshl_b32 s57, s3, 2
    s_add_u32 s57, s57, s56
    s_add_u32 s57, s57, {L_CNT}
    v_mov_b32 v99, s57
    v_mov_b32 v100, s55
    s_add_u32 s56, s56, {L_CNT}
    v_mov_b32 v101, s56
    s_mov_b64 s[48:49], exec
    s_mov_b64 exec, 1
    ds_write_b32 v99, v100
    s_mov_b64 exec, s[48:49]
    s_waitcnt lgkmcnt(0)
    s_barrier
    ds_read_b128 v[102:105], v101
    s_waitcnt lgkmcnt(0)
    v_add_u32 v102, v102, v103
    v_add3_u32 v102, v102, v104, v105
    s_nop 0
    v_readfirstlane_b32 s55, v102
    s_nop 3
    s_cmp_ge_u32 s55, 8
    s_cbranch_scc1 k2_own_done
    """)
    A(f"""
    v_cmp_eq_u32 vcc, s54, v86
    s_or_b64 s[52:53], s[52:53], vcc
    s_and_saveexec_b64 s[48:49], vcc
    s_mul_i32 s56, s55, 1280
    s_add_u32 s57, s56, {WS_HS}
    s_add_u32 s56, s56, {WS_ZS}
    """)
    for i in range(5):
        A(f"buffer_store_dwordx2 v[{30+2*i}:{31+2*i}], v{VCH}, s[8:11], s56 offen offset:{64*i} sc1")
    for i in range(5):
        A(f"buffer_store_dwordx2 v[{60+2*i}:{61+2*i}], v{VCH}, s[8:11], s57 offen offset:{64*i} sc1")
    A(f"""
    s_cmp_lg_u32 s3, 0
    s_cbranch_scc1 k2_own_nometa
    v_cmp_gt_u32 vcc, 8, v1
    s_and_b64 exec, exec, vcc
    v_mul_f32 v99, {hex(F_LOG2E)}, v87
    v_exp_f32 v99, -v99
    s_nop 0
    v_add_f32 v99, 1.0, v99
    v_rcp_f32 v99, v99
    s_nop 0
    v_cvt_pk_bf16_f32 v99, v99, v99
    v_lshlrev_b32 v99, 16, v99
    s_lshl_b32 s56, s55, 2
    s_add_u32 s56, s56, {WS_META}
    v_mov_b32 v100, 0
    buffer_store_dword v79, v100, s[8:11], s56 offen sc1
    buffer_store_dword v99, v100, s[8:11], s56 offen offset:32 sc1
    k2_own_nometa:
    s_mov_b64 exec, s[48:49]
    s_mov_b32 s50, s54
    s_xor_b32 s51, s51, 1
    s_branch k2_own
    k2_own_done:
    """)
    stamp(A, 7)
    A("s_andn2_b64 exec, exec, s[52:53]")
    for i in range(5):
        A(f"buffer_store_dwordx2 v[{10+2*i}:{11+2*i}], v{VROW}, s[12:15], 0 offen offset:{64*i}")
    A("s_mov_b64 exec, -1")
    A("s_cmp_lt_u32 s2, 160")
    A("s_cbranch_scc1 k2_end")
    A(f"""
    v_lshrrev_b32 v7, 4, v1
    s_movk_i32 s46, 1280
    v_mul_lo_u32 v9, v{VTOK}, s46
    v_lshl_add_u32 v9, v7, 4, v9
    s_mul_i32 s47, s3, 320
    s_add_u32 s47, s47, {WS_ZS}
    v_lshlrev_b32 v10, 3, v7
    v_bfe_u32 v11, v1, 2, 2
    v_add_u32 v10, v10, v11
    v_lshlrev_b32 v10, 5, v10
    v_and_b32 v11, 3, v1
    v_lshl_add_u32 v10, v11, 3, v10
    s_mul_i32 s44, s3, {5*32*32}
    s_add_u32 s44, s44, {L_G}
    v_add_u32 v10, s44, v10
    """)
    for i in range(5):
        A(f"ds_read_b64_tr_b16 v[{120+4*i}:{121+4*i}], v10 offset:{1024*i}")
        A(f"ds_read_b64_tr_b16 v[{122+4*i}:{123+4*i}], v10 offset:{1024*i + 128}")
        A(f"ds_read_b64_tr_b16 v[{140+4*i}:{141+4*i}], v10 offset:{L_U - L_G + 1024*i}")
        A(f"ds_read_b64_tr_b16 v[{142+4*i}:{143+4*i}], v10 offset:{L_U - L_G + 1024*i + 128}")
        if i % 2 == 1: A("s_waitcnt lgkmcnt(0)")
    L = poll_begin(A, 46)
    for i in range(5):
        A(f"buffer_load_dwordx4 v[{40+4*i}:{43+4*i}], v9, s[8:11], s47 offen offset:{64*i} sc1")
    A("s_waitcnt vmcnt(0)")
    A("v_max3_u32 v60, v40, v41, v42")
    for j in range(43, 59, 2):
        A(f"v_max3_u32 v60, v60, v{j}, v{j+1}")
    A("v_max_u32 v60, v60, v59")
    A("v_cmp_eq_u32 vcc, -1, v60")
    poll_end(A, L, 46, 2)
    stamp(A, 8)
    A("s_waitcnt lgkmcnt(0)")
    for i in range(5):
        c = "0" if i == 0 else "v[80:83]"
        A(f"v_mfma_f32_16x16x32_bf16 v[80:83], v[{40+4*i}:{43+4*i}], v[{120+4*i}:{123+4*i}], {c}")
        c = "0" if i == 0 else "v[84:87]"
        A(f"v_mfma_f32_16x16x32_bf16 v[84:87], v[{40+4*i}:{43+4*i}], v[{140+4*i}:{143+4*i}], {c}")
    A(f"""
    s_nop 7
    v_lshlrev_b32 v11, 4, v1
    s_lshl_b32 s44, s3, 11
    v_add_u32 v12, s44, v11
    ds_write_b128 v12, v[80:83] offset:{L_RED}
    ds_write_b128 v12, v[84:87] offset:{L_RED+1024}
    s_waitcnt lgkmcnt(0)
    s_barrier
    s_cmp_lg_u32 s3, 0
    s_cbranch_scc1 k2_g2
    """)
    for w in range(4):
        A(f"ds_read_b128 v[{40+8*w}:{43+8*w}], v11 offset:{L_RED + 2048*w}")
        A(f"ds_read_b128 v[{44+8*w}:{47+8*w}], v11 offset:{L_RED + 2048*w + 1024}")
    A("s_waitcnt lgkmcnt(0)")
    for h in (0, 4):
        for p in (0, 2):
            A(f"v_pk_add_f32 v[{40+h+p}:{41+h+p}], v[{40+h+p}:{41+h+p}], v[{48+h+p}:{49+h+p}]")
            A(f"v_pk_add_f32 v[{56+h+p}:{57+h+p}], v[{56+h+p}:{57+h+p}], v[{64+h+p}:{65+h+p}]")
            A(f"v_pk_add_f32 v[{40+h+p}:{41+h+p}], v[{40+h+p}:{41+h+p}], v[{56+h+p}:{57+h+p}]")
    A("""
    v_cvt_pk_bf16_f32 v48, v40, v41
    v_cvt_pk_bf16_f32 v49, v42, v43
    v_cvt_pk_bf16_f32 v50, v44, v45
    v_cvt_pk_bf16_f32 v51, v46, v47
    """)
    unpack_bf16(A, 48, 40, 41); unpack_bf16(A, 49, 42, 43); unpack_bf16(A, 50, 44, 45); unpack_bf16(A, 51, 46, 47)
    for r in range(4):
        g, u = 40 + r, 44 + r
        A(f"v_mul_f32 v52, {hex(F_LOG2E)}, v{g}")
        A(f"v_exp_f32 v52, -v52")
        A("s_nop 0")
        A(f"v_add_f32 v52, 1.0, v52")
        A(f"v_rcp_f32 v52, v52")
        A("s_nop 0")
        A(f"v_mul_f32 v52, v52, v{g}")
        A(f"v_cvt_pk_bf16_f32 v52, v52, v52")
        A(f"v_lshlrev_b32 v52, 16, v52")
        A(f"v_mul_f32 v52, v52, v{u}")
        A(f"v_cvt_pk_bf16_f32 v{g}, v52, v52")
    for r in range(4):
        A("s_nop 1")
        A(f"v_mov_b32_dpp v{44+r}, v{40+r} quad_perm:[1,1,3,3] {DPP}")
        A(f"v_perm_b32 v{40+r}, v{44+r}, v{40+r}, s58") if False else None
    A("s_mov_b32 s58, 0x05040100")
    for r in range(4):
        A(f"v_perm_b32 v{40+r}, v{44+r}, v{40+r}, s58")
    A(f"""
    v_and_b32 v11, 15, v1
    v_lshlrev_b32 v12, 1, v11
    v_lshrrev_b32 v7, 4, v1
    s_movk_i32 s46, {4*3072}
    v_mul_lo_u32 v13, v7, s46
    v_add_u32 v12, v12, v13
    s_lshl_b32 s44, s41, 5
    s_add_u32 s44, s44, {WS_HID}
    v_and_b32 v11, 1, v1
    v_cmp_eq_u32 vcc, 0, v11
    v_cmp_gt_u32 s[48:49], 2, v7
    s_and_b64 vcc, vcc, s[48:49]
    s_and_saveexec_b64 s[48:49], vcc
    s_add_u32 s45, s44, 3072
    s_add_u32 s50, s44, {2*3072}
    s_add_u32 s51, s44, {3*3072}
    buffer_store_dword v40, v12, s[8:11], s44 offen sc1
    buffer_store_dword v41, v12, s[8:11], s45 offen sc1
    buffer_store_dword v42, v12, s[8:11], s50 offen sc1
    buffer_store_dword v43, v12, s[8:11], s51 offen sc1
    s_mov_b64 exec, s[48:49]
    """)
    A("k2_g2:")
    stamp(A, 9)
    A("s_cmp_ge_u32 s38, 80")
    A("s_cbranch_scc1 k2_end")
    A(f"""
    v_bfe_u32 v5, v1, 3, 1
    v_lshrrev_b32 v7, 4, v1
    s_movk_i32 s46, 3072
    v_mul_lo_u32 v9, v{VTOK}, s46
    s_movk_i32 s46, 1536
    v_mul_lo_u32 v10, v5, s46
    v_add_u32 v9, v9, v10
    v_lshl_add_u32 v9, v7, 4, v9
    s_mul_i32 s47, s3, {6*64}
    s_add_u32 s47, s47, {WS_HID}
    v_lshlrev_b32 v14, 3, v7
    v_bfe_u32 v15, v1, 2, 2
    v_add_u32 v14, v14, v15
    v_bfe_u32 v15, v1, 1, 1
    s_movk_i32 s46, 768
    v_mul_lo_u32 v15, v15, s46
    v_add_u32 v14, v14, v15
    v_lshlrev_b32 v14, 4, v14
    v_and_b32 v15, 1, v1
    v_lshl_add_u32 v14, v15, 3, v14
    s_mul_i32 s44, s3, {6*512}
    s_add_u32 s44, s44, {L_WD}
    v_add_u32 v14, s44, v14
    """)
    for i in range(6):
        A(f"ds_read_b64_tr_b16 v[{120+4*i}:{121+4*i}], v14 offset:{512*i}")
        A(f"ds_read_b64_tr_b16 v[{122+4*i}:{123+4*i}], v14 offset:{512*i + 64}")
    A(f"""
    v_lshrrev_b32 v20, 3, v1
    v_and_b32 v21, 7, v1
    s_movk_i32 s46, 1280
    v_mul_lo_u32 v35, v20, s46
    v_lshl_add_u32 v35, v21, 1, v35
    v_and_b32 v35, 0xfffffffc, v35
    s_lshl_b32 s44, s42, 4
    s_add_u32 s50, s44, {WS_ZS}
    s_add_u32 s51, s44, {WS_HS}
    v_lshlrev_b32 v32, 2, v20
    s_mov_b32 s45, {WS_META}
    """)
    L = poll_begin(A, 46)
    for i in range(6):
        A(f"buffer_load_dwordx4 v[{40+4*i}:{43+4*i}], v9, s[8:11], s47 offen offset:{64*i} sc1")
    A(f"""
    buffer_load_dword v36, v35, s[8:11], s50 offen sc1
    buffer_load_dword v37, v35, s[8:11], s51 offen sc1
    buffer_load_dword v33, v32, s[8:11], s45 offen sc1
    buffer_load_dword v34, v32, s[8:11], s45 offen offset:32 sc1
    s_waitcnt vmcnt(0)
    v_max3_u32 v64, v36, v37, v33
    v_max_u32 v64, v64, v34
    """)
    A("v_pk_max_u16 v65, v40, v41")
    for j in range(42, 64):
        A(f"v_pk_max_u16 v65, v65, v{j}")if False else A(f"v_pk_max_u16 v65, v65, v{j}")
    A("""
    v_cmp_eq_u32 vcc, -1, v64
    v_cmp_eq_u32 s[48:49], -1, v65
    s_or_b64 vcc, vcc, s[48:49]
    """)
    poll_end(A, L, 46, 2)
    stamp(A, 10)
    A("s_waitcnt lgkmcnt(0)")
    for i in range(6):
        c = "0" if i == 0 else "v[88:91]"
        A(f"v_mfma_f32_16x16x32_bf16 v[88:91], v[{40+4*i}:{43+4*i}], v[{120+4*i}:{123+4*i}], {c}")
    A(f"""
    s_nop 7
    v_lshlrev_b32 v15, 4, v1
    s_lshl_b32 s44, s3, 10
    v_add_u32 v16, s44, v15
    s_barrier
    ds_write_b128 v16, v[88:91] offset:{L_RED}
    s_waitcnt lgkmcnt(0)
    s_barrier
    s_cmp_lg_u32 s3, 0
    s_cbranch_scc1 k2_end
    v_lshrrev_b32 v22, 2, v20
    v_lshl_add_u32 v22, v22, 4, v21
    v_lshlrev_b32 v22, 4, v22
    v_and_b32 v23, 3, v20
    v_lshl_add_u32 v22, v23, 2, v22
    """)
    for w in range(4):
        A(f"ds_read_b32 v{24+2*w}, v22 offset:{L_RED + 1024*w}")
        A(f"ds_read_b32 v{25+2*w}, v22 offset:{L_RED + 1024*w + 640}")
    A(f"""
    v_and_b32 v38, 1, v21
    v_cmp_eq_u32 vcc, 1, v38
    v_lshlrev_b32 v38, 16, v36
    v_and_b32 v36, 0xffff0000, v36
    v_cndmask_b32 v36, v38, v36, vcc
    v_lshlrev_b32 v38, 16, v37
    v_and_b32 v37, 0xffff0000, v37
    v_cndmask_b32 v37, v38, v37, vcc
    s_waitcnt lgkmcnt(0)
    v_add_f32 v24, v24, v25
    v_add_f32 v26, v26, v27
    v_add_f32 v28, v28, v29
    v_add_f32 v30, v30, v31
    v_add_f32 v24, v24, v26
    v_add_f32 v28, v28, v30
    v_add_f32 v24, v24, v28
    s_movk_i32 s46, 1280
    v_mul_lo_u32 v35, v33, s46
    v_lshl_add_u32 v35, v21, 1, v35
    s_lshl_b32 s44, s42, 4
    v_cvt_pk_bf16_f32 v24, v24, v24
    v_lshlrev_b32 v24, 16, v24
    v_mul_f32 v24, v24, v34
    v_cvt_pk_bf16_f32 v24, v24, v24
    v_lshlrev_b32 v24, 16, v24
    v_add_f32 v24, v36, v24
    v_cvt_pk_bf16_f32 v24, v24, v24
    v_lshlrev_b32 v24, 16, v24
    v_add_f32 v24, v37, v24
    v_cvt_pk_bf16_f32 v24, v24, v24
    buffer_store_short v24, v35, s[12:15], s44 offen
    k2_end:
    """)
    stamp_flush(A, 1)
    A("k2_exit:")
    A("s_endpgm")
    return name, 512, 100, 256

def patch_k1(text):
    marker = "  buffer_load_dwordx2 v[16:17], v5, s[12:15], 0 offen offset:1024\n"
    assert marker in text
    C = Asm()
    srd(C, 24, 6, 7, 0, WS_SIZE)
    C(f"""
    v_mov_b32 v40, -1
    v_mov_b32 v41, -1
    v_mov_b32 v42, -1
    v_mov_b32 v43, -1
    v_lshlrev_b32 v44, 4, v0
    s_mul_i32 s28, s2, 10240
    s_add_u32 s28, s28, {WS_AT}
    buffer_store_dwordx4 v[40:43], v44, s[24:27], s28 offen
    s_add_u32 s29, s28, 4096
    buffer_store_dwordx4 v[40:43], v44, s[24:27], s29 offen
    v_cmp_gt_u32 vcc, 128, v0
    s_and_saveexec_b64 s[30:31], vcc
    s_add_u32 s29, s28, 8192
    buffer_store_dwordx4 v[40:43], v44, s[24:27], s29 offen
    v_cmp_gt_u32 vcc, 12, v0
    s_and_b64 exec, exec, vcc
    s_mul_i32 s28, s2, 192
    s_add_u32 s28, s28, {WS_SM}
    buffer_store_dwordx4 v[40:43], v44, s[24:27], s28 offen
    v_cmp_gt_u32 vcc, 2, v0
    s_and_b64 exec, exec, vcc
    v_mov_b32 v46, 0
    v_mov_b32 v47, 0
    v_mov_b32 v48, 0
    v_mov_b32 v49, 0
    s_lshl_b32 s28, s2, 5
    s_add_u32 s28, s28, {WS_KEY}
    buffer_store_dwordx4 v[46:49], v44, s[24:27], s28 offen
    s_mov_b64 exec, s[30:31]
    """)
    old = "  v_lshl_add_u32 v6, v2, 4, v6\n  s_waitcnt vmcnt(0)\n"
    assert old in text
    text = text.replace(old, old + C.text())
    return text

def main():
    global STAMP
    if "--stamp" in sys.argv:
        STAMP = True; gen.STAMP = True
        sys.argv.remove("--stamp")
    hdr = open("cdna_kernels/%s.s.ref" % NAME).read().split("; Override launch")[0]
    b1 = Asm(); k1 = gen.gen_k1(b1)
    t1 = patch_k1(b1.text())
    b2 = Asm(); k2 = gen_k2f(b2)
    launches = [("k1_kernel", 896, 256, 40960), ("k2_kernel", 256, 256, LDS_TOTAL)]
    out = hdr
    for k, g, b, l in launches:
        out += f"; @launch kernel={k} grid=({g},1,1) block=({b},1,1) lds={l}\n"
    out += '.amdgcn_target "amdgcn-amd-amdhsa--gfx950"\n.text\n'
    out += t1 + b2.text()
    out += '.section .rodata,"a"\n'
    for name, vg, sg, acc in (k1, k2):
        out += ".p2align 6\n" + kernel_desc(name, vg, 100 if STAMP else max(sg, 72), acc)
    path = sys.argv[1] if len(sys.argv) > 1 else "cdna_kernels/%s.s" % NAME
    open(path, "w").write(out)
    print("wrote", path, len(out))

if __name__ == "__main__":
    main()
```

```python
import sys

NAME = "sequential_preLN__ssm_conv_s4d__moe_arch_mod__prompt"

UROW = 4128
WS_UT, SZ_UT = 0x000000, 0x290000
WS_KR, SZ_KR = 0x290000, 0x280000
WS_KS, SZ_KS = 0x510000, 0x1000
WS_AT, SZ_AT = 0x520000, 0x280000
WS_Z,  SZ_Z  = 0x7A0000, 0x280000
WS_H,  SZ_H  = 0xA20000, 0x280000
WS_KEY, SZ_KEY = 0xCA0000, 0x2000
WS_HID, SZ_HID = 0xCA2000, 0x6000
WS_SEL, SZ_SEL = 0xCA8000, 0x100

ARG = dict(x=0, lar=8, aim=16, cre=24, cim=32, ldt=40, dsk=48, bx=56, wr=64, wg=72, wu=80, wd=88, out=96, dbg=104, ws=112)

class Asm:
    def __init__(self):
        self.l = []
    def __call__(self, s):
        for ln in s.strip("\n").split("\n"):
            ln = ln.strip()
            if not ln: continue
            if ln.startswith("STAMP "):
                if STAMP:
                    r = {1: 92, 2: 94, 3: 76, 4: 78}[int(ln.split()[1])]
                    self.l.append(f"  s_memrealtime s[{r}:{r+1}]")
                continue
            if ln.endswith(":"): self.l.append(ln)
            else: self.l.append("  " + ln)
    def text(self): return "\n".join(self.l) + "\n"

def srd(A, n, lo, hi, off, size):
    if off:
        A(f"s_add_u32 s{n}, s{lo}, {hex(off)}")
        A(f"s_addc_u32 s{n+1}, s{hi}, 0")
    else:
        A(f"s_mov_b32 s{n}, s{lo}")
        A(f"s_mov_b32 s{n+1}, s{hi}")
    A(f"s_mov_b32 s{n+2}, {hex(size)}")
    A(f"s_mov_b32 s{n+3}, 0x20000")

def kernel_head(A, name):
    A.l.append(f".globl {name}")
    A.l.append(".p2align 8")
    A.l.append(f".type {name},@function")
    A.l.append(f"{name}:")

def kernel_desc(name, vgpr, sgpr, accum):
    return f""".amdhsa_kernel {name}
  .amdhsa_next_free_vgpr {vgpr}
  .amdhsa_next_free_sgpr {sgpr}
  .amdhsa_accum_offset {accum}
  .amdhsa_group_segment_fixed_size 0
  .amdhsa_kernarg_size 120
  .amdhsa_user_sgpr_count 2
  .amdhsa_user_sgpr_kernarg_segment_ptr 1
  .amdhsa_system_sgpr_workgroup_id_x 1
.end_amdhsa_kernel
"""

DPP = "row_mask:0xf bank_mask:0xf"
STAMP = False
WS_STAMP = 0x1000000
def stamp_begin(A):
    if STAMP:
        A("s_memrealtime s[96:97]")
        A("s_memtime s[80:81]")
def stamp_mid(A, slot):
    if STAMP:
        r = {1: 92, 2: 94, 3: 76, 4: 78}[slot]
        A(f"s_memrealtime s[{r}:{r+1}]")
def stamp_end(A, kid):
    if STAMP:
        A("s_memrealtime s[74:75]")
        A("s_waitcnt vmcnt(0) lgkmcnt(0)")
        A("s_memrealtime s[98:99]")
        A("s_memtime s[82:83]")
        A(f"s_load_dwordx2 s[88:89], s[0:1], {ARG['ws']}")
        A("s_waitcnt lgkmcnt(0)")
        srd(A, 84, 88, 89, WS_STAMP + kid * 0x40000, 0x40000)
        A("s_mov_b64 exec, 1")
        A("v_lshrrev_b32 v2, 6, v0")
        A("s_lshl_b32 s91, s2, 2")
        A("v_add_u32 v2, s91, v2")
        A("v_lshlrev_b32 v2, 5, v2")
        A("v_mov_b32 v4, s96")
        A("v_mov_b32 v5, s92")
        A("v_mov_b32 v6, s94")
        A("v_mov_b32 v7, s98")
        A("buffer_store_dwordx4 v[4:7], v2, s[84:87], 0 offen")
        A("s_sub_u32 s82, s82, s80")
        A("v_mov_b32 v8, s82")
        A("v_mov_b32 v9, s74")
        A("v_mov_b32 v10, s76")
        A("v_mov_b32 v11, s78")
        A("buffer_store_dwordx4 v[8:11], v2, s[84:87], 0 offen offset:16")
def allreduce16(A, op, x):
    for pat in ("quad_perm:[1,0,3,2]", "quad_perm:[2,3,0,1]", "row_half_mirror", "row_mirror"):
        A("s_nop 1")
        A(f"{op}_dpp v{x}, v{x}, v{x} {pat} {DPP}")

def xor16(A, op, x, t):
    A(f"v_mov_b32 v{t}, v{x}")
    A("s_nop 1")
    A(f"v_permlane16_swap_b32 v{x}, v{t}")
    A("s_nop 1")
    A(f"{op} v{x}, v{x}, v{t}")

def xor32(A, op, x, t):
    A(f"v_mov_b32 v{t}, v{x}")
    A("s_nop 1")
    A(f"v_permlane32_swap_b32 v{x}, v{t}")
    A("s_nop 1")
    A(f"{op} v{x}, v{x}, v{t}")

def unpack_bf16(A, src, dlo, dhi):
    A(f"v_lshlrev_b32 v{dlo}, 16, v{src}")
    A(f"v_and_b32 v{dhi}, 0xffff0000, v{src}")

F_INV640 = 0x3ACCCCCD
F_EPS = 0x3727C5AC
F_LOG2E = 0x3FB8AA3B
F_INV2PI = 0x3E22F983

def ln_scalars(A, mean, var, t, m_out, rinv_out):
    A(f"v_cvt_pk_bf16_f32 v{t}, v{mean}, v{var}")
    A(f"v_lshlrev_b32 v{m_out}, 16, v{t}")
    A(f"v_and_b32 v{t}, 0xffff0000, v{t}")
    A(f"v_add_f32 v{t}, {hex(F_EPS)}, v{t}")
    A(f"v_cvt_pk_bf16_f32 v{t}, v{t}, v{t}")
    A(f"v_lshlrev_b32 v{t}, 16, v{t}")
    A(f"v_sqrt_f32 v{t}, v{t}")
    A("s_nop 0")
    A(f"v_cvt_pk_bf16_f32 v{t}, v{t}, v{t}")
    A(f"v_lshlrev_b32 v{t}, 16, v{t}")
    A(f"v_rcp_f32 v{rinv_out}, v{t}")
    A("s_nop 0")

def cmul(A, z, x, y, t):
    A(f"v_pk_mul_f32 v[{t}:{t+1}], v[{x}:{x+1}], v[{y}:{y+1}] op_sel:[0,0] op_sel_hi:[1,0]")
    A(f"v_pk_fma_f32 v[{z}:{z+1}], v[{x}:{x+1}], v[{y}:{y+1}], v[{t}:{t+1}] op_sel:[1,1,0] op_sel_hi:[0,1,1] neg_lo:[1,0,0]")

def gen_k1(A):
    name = "k1_kernel"
    kernel_head(A, name)
    A("s_cmp_ge_u32 s2, 896")
    A("s_cbranch_scc1 k1_exit")
    stamp_begin(A)
    A(f"s_load_dwordx2 s[6:7], s[0:1], {ARG['ws']}")
    A("s_cmp_ge_u32 s2, 256")
    A("s_cbranch_scc1 k1_kgen")
    A(f"s_load_dwordx2 s[4:5], s[0:1], {ARG['x']}")
    A("""
    s_and_b32 s8, s2, 7
    s_lshl_b32 s8, s8, 5
    s_lshr_b32 s9, s2, 3
    s_add_u32 s8, s8, s9
    s_lshl_b32 s9, s8, 3
    v_lshrrev_b32 v1, 5, v0
    v_and_b32 v2, 31, v0
    v_add_u32 v3, s9, v1
    s_movk_i32 s10, 1280
    v_mul_lo_u32 v3, v3, s10
    v_lshl_add_u32 v4, v2, 4, v3
    v_lshl_add_u32 v5, v2, 3, v3
    s_waitcnt lgkmcnt(0)
    STAMP 1
    """)
    srd(A, 12, 4, 5, 0, 2621440)
    srd(A, 16, 6, 7, WS_UT, SZ_UT)
    A("""
    buffer_load_dwordx4 v[8:11], v4, s[12:15], 0 offen
    buffer_load_dwordx4 v[12:15], v4, s[12:15], 0 offen offset:512
    buffer_load_dwordx2 v[16:17], v5, s[12:15], 0 offen offset:1024
    """)
    A("""
    s_movk_i32 s10, 1344
    v_mul_lo_u32 v6, v1, s10
    v_lshl_add_u32 v7, v2, 3, v6
    v_lshl_add_u32 v6, v2, 4, v6
    s_waitcnt vmcnt(0)
    STAMP 2
    """)
    F = 20
    for i in range(10):
        unpack_bf16(A, 8 + i, F + 2 * i, F + 2 * i + 1)
    A(f"v_pk_add_f32 v[40:41], v[{F}:{F+1}], v[{F+2}:{F+3}]")
    for i in range(2, 10):
        A(f"v_pk_add_f32 v[40:41], v[40:41], v[{F+2*i}:{F+2*i+1}]")
    A("v_add_f32 v40, v40, v41")
    allreduce16(A, "v_add_f32", 40)
    xor16(A, "v_add_f32", 40, 41)
    A(f"v_mul_f32 v40, {hex(F_INV640)}, v40")
    for i in range(10):
        A(f"v_pk_add_f32 v[44:45], v[{F+2*i}:{F+2*i+1}], v[40:41] op_sel_hi:[1,0] neg_lo:[0,1] neg_hi:[0,1]")
        if i == 0:
            A("v_pk_mul_f32 v[42:43], v[44:45], v[44:45]")
        else:
            A("v_pk_fma_f32 v[42:43], v[44:45], v[44:45], v[42:43]")
    A("v_add_f32 v42, v42, v43")
    allreduce16(A, "v_add_f32", 42)
    xor16(A, "v_add_f32", 42, 43)
    A(f"v_mul_f32 v42, {hex(F_INV640)}, v42")
    ln_scalars(A, 40, 42, 43, 44, 46)
    for i in range(10):
        a, b = F + 2 * i, F + 2 * i + 1
        A(f"v_pk_add_f32 v[{a}:{b}], v[{a}:{b}], v[44:45] op_sel_hi:[1,0] neg_lo:[0,1] neg_hi:[0,1]")
        A(f"v_cvt_pk_bf16_f32 v48, v{a}, v{b}")
        unpack_bf16(A, 48, a, b)
        A(f"v_pk_mul_f32 v[{a}:{b}], v[{a}:{b}], v[46:47] op_sel_hi:[1,0]")
        A(f"v_cvt_pk_bf16_f32 v48, v{a}, v{b}")
        unpack_bf16(A, 48, a, b)
        A(f"v_cvt_pk_f16_f32 v{8+i}, v{a}, v{b}")
    A("""
    ds_write_b128 v6, v[8:11]
    ds_write_b128 v6, v[12:15] offset:512
    ds_write_b64 v7, v[16:17] offset:1024
    """)
    A("""
    v_and_b32 v1, 63, v0
    v_lshrrev_b32 v2, 6, v0
    v_bfe_u32 v3, v1, 2, 2
    s_movk_i32 s10, 1344
    v_mul_lo_u32 v3, v3, s10
    v_lshrrev_b32 v4, 4, v1
    v_lshl_add_u32 v3, v4, 5, v3
    v_and_b32 v4, 3, v1
    v_lshl_add_u32 v3, v4, 3, v3
    v_lshl_add_u32 v3, v2, 7, v3
    """)
    A(f"""
    v_lshl_add_u32 v4, v2, 6, v1
    s_movk_i32 s10, {UROW}
    v_mul_lo_u32 v4, v4, s10
    s_lshl_b32 s11, s9, 1
    s_add_u32 s11, s11, 32
    v_add_u32 v4, s11, v4
    s_waitcnt lgkmcnt(0)
    s_barrier
    STAMP 3
    """)
    A(f"""
    ds_read_b64_tr_b16 v[8:9], v3
    ds_read_b64_tr_b16 v[10:11], v3 offset:{4*1344}
    ds_read_b64_tr_b16 v[12:13], v3 offset:512
    ds_read_b64_tr_b16 v[14:15], v3 offset:{4*1344+512}
    ds_read_b64_tr_b16 v[16:17], v3 offset:1024
    ds_read_b64_tr_b16 v[18:19], v3 offset:{4*1344+1024}
    s_mov_b32 s20, {256*UROW}
    s_mov_b32 s21, {512*UROW}
    s_waitcnt lgkmcnt(0)
    buffer_store_dwordx4 v[8:11], v4, s[16:19], 0 offen
    buffer_store_dwordx4 v[12:15], v4, s[16:19], s20 offen
    v_readfirstlane_b32 s22, v2
    s_nop 3
    s_cmp_ge_u32 s22, 2
    s_cbranch_scc1 k1_ln_skip
    buffer_store_dwordx4 v[16:19], v4, s[16:19], s21 offen
    k1_ln_skip:
    s_cmp_lg_u32 s8, 0
    s_cbranch_scc1 k1_end
    """)
    A(f"""
    v_mov_b32 v8, 0
    v_mov_b32 v9, 0
    v_mov_b32 v10, 0
    v_mov_b32 v11, 0
    v_subrev_u32 v4, s11, v4
    buffer_store_dwordx4 v[8:11], v4, s[16:19], 0 offen
    buffer_store_dwordx4 v[8:11], v4, s[16:19], 0 offen offset:16
    buffer_store_dwordx4 v[8:11], v4, s[16:19], s20 offen
    buffer_store_dwordx4 v[8:11], v4, s[16:19], s20 offen offset:16
    s_cmp_ge_u32 s22, 2
    s_cbranch_scc1 k1_end
    buffer_store_dwordx4 v[8:11], v4, s[16:19], s21 offen
    buffer_store_dwordx4 v[8:11], v4, s[16:19], s21 offen offset:16
    s_branch k1_end
    """)
    A("k1_kgen:")
    A(f"""
    s_load_dwordx4 s[24:27], s[0:1], {ARG['lar']}
    s_load_dwordx4 s[28:31], s[0:1], {ARG['cre']}
    s_load_dwordx2 s[32:33], s[0:1], {ARG['ldt']}
    s_sub_u32 s8, s2, 256
    v_lshrrev_b32 v2, 6, v0
    v_and_b32 v1, 63, v0
    s_nop 0
    v_readfirstlane_b32 s9, v2
    s_mul_i32 s10, s8, 384
    s_waitcnt lgkmcnt(0)
    STAMP 1
    """)
    srd(A, 36, 24, 25, 0, 245760)
    srd(A, 40, 26, 27, 0, 245760)
    srd(A, 44, 28, 29, 0, 245760)
    srd(A, 48, 30, 31, 0, 245760)
    srd(A, 52, 6, 7, WS_KR, SZ_KR)
    srd(A, 56, 6, 7, WS_KS, SZ_KS)
    A("""
    s_cmp_ge_u32 s9, 3
    s_cbranch_scc1 k1_kg_bar1
    s_and_b32 s11, s8, 0xfffffffe
    s_lshl_b32 s11, s11, 1
    s_load_dword s34, s[32:33], s11
    v_lshlrev_b32 v3, 1, v0
    """)
    A("""
    buffer_load_ushort v4, v3, s[36:39], s10 offen
    buffer_load_ushort v5, v3, s[40:43], s10 offen
    buffer_load_ushort v6, v3, s[44:47], s10 offen
    buffer_load_ushort v7, v3, s[48:51], s10 offen
    v_lshlrev_b32 v8, 3, v1
    v_cmp_gt_u32 vcc, 48, v1
    v_mov_b32 v10, 0
    v_mov_b32 v11, 0
    v_mov_b32 v12, 0
    v_mov_b32 v13, 0
    s_and_saveexec_b64 s[60:61], vcc
    buffer_load_dwordx2 v[10:11], v8, s[44:47], s10 offen
    buffer_load_dwordx2 v[12:13], v8, s[48:51], s10 offen
    s_mov_b64 exec, s[60:61]
    """)
    A(f"""
    s_waitcnt lgkmcnt(0)
    s_bitcmp1_b32 s8, 0
    s_cbranch_scc1 k1_kg_odd
    s_lshl_b32 s34, s34, 16
    k1_kg_odd:
    s_and_b32 s34, s34, 0xffff0000
    v_mov_b32 v14, {hex(F_LOG2E)}
    v_mul_f32 v15, s34, v14
    v_exp_f32 v15, v15
    s_nop 0
    v_cvt_pk_bf16_f32 v15, v15, v15
    v_lshlrev_b32 v15, 16, v15
    """)
    A("""
    s_waitcnt vmcnt(0)
    s_mov_b32 s35, 0x7fff7fff
    STAMP 2
    v_and_b32 v10, s35, v10
    v_and_b32 v11, s35, v11
    v_and_b32 v12, s35, v12
    v_and_b32 v13, s35, v13
    v_pk_max_u16 v10, v10, v11
    v_pk_max_u16 v12, v12, v13
    v_pk_max_u16 v10, v10, v12
    v_lshrrev_b32 v11, 16, v10
    v_and_b32 v10, 0xffff, v10
    v_max_u32 v10, v10, v11
    """)
    allreduce16(A, "v_max_u32", 10)
    xor16(A, "v_max_u32", 10, 11)
    xor32(A, "v_max_u32", 10, 11)
    A("""
    v_lshlrev_b32 v10, 16, v10
    v_mul_f32 v10, v10, v15
    v_lshrrev_b32 v10, 23, v10
    v_max_u32 v10, 5, v10
    v_min_u32 v10, 0xfe, v10
    v_sub_u32 v11, 0x103, v10
    v_lshlrev_b32 v11, 23, v11
    v_subrev_u32 v12, 4, v10
    v_lshlrev_b32 v12, 23, v12
    """)
    A(f"""
    v_lshlrev_b32 v4, 16, v4
    v_lshlrev_b32 v5, 16, v5
    v_lshlrev_b32 v6, 16, v6
    v_lshlrev_b32 v7, 16, v7
    v_mul_f32 v4, v14, v4
    v_exp_f32 v4, v4
    s_nop 0
    v_cvt_pk_bf16_f32 v4, v4, v4
    v_lshlrev_b32 v4, 16, v4
    v_mul_f32 v4, v4, v15
    v_mul_f32 v4, v4, v14
    v_sub_f32 v4, 0, v4
    v_mul_f32 v5, v5, v15
    v_mul_f32 v5, {hex(F_INV2PI)}, v5
    v_mul_f32 v16, v6, v15
    v_mul_f32 v17, v7, v15
    v_mul_f32 v16, v16, v11
    v_mul_f32 v17, v17, v11
    """)
    def cexp(dst, p, conj=False):
        if p == 1:
            A(f"v_exp_f32 v8, v4")
            A(f"v_fract_f32 v9, v5")
        else:
            A(f"v_mul_f32 v8, {float(p)}, v4" if p in (2,4) else f"v_mul_f32 v8, {hex(f32bits(p))}, v4")
            A(f"v_mul_f32 v9, {hex(f32bits(p))}, v5")
            A(f"v_exp_f32 v8, v8")
            A(f"v_fract_f32 v9, v9")
        A(f"v_cos_f32 v{dst}, v9")
        A(f"v_sin_f32 v{dst+1}, v9")
        A("s_nop 0")
        A(f"v_mul_f32 v{dst}, v{dst}, v8")
        if conj:
            A(f"v_mul_f32 v{dst+1}, -v{dst+1}, v8")
        else:
            A(f"v_mul_f32 v{dst+1}, v{dst+1}, v8")
    E1, E2, E4, E256, E512, W8 = 18, 20, 22, 24, 26, 28
    T = 30; CUR = 32; X12 = 34; X16 = 36
    cexp(E1, 1)
    cexp(W8, 8)
    cexp(E256, 256)
    cmul(A, E2, E1, E1, T)
    cmul(A, E4, E2, E2, T)
    cmul(A, E512, E256, E256, T)
    A(f"""
    s_mul_i32 s11, s9, 13568
    v_lshlrev_b32 v38, 2, v1
    v_add_u32 v38, s11, v38
    """)
    for i in range(16):
        if i == 0:
            A("v_mov_b32 v40, v38")
        else:
            A(f"v_xor_b32 v{40+i}, {i*16}, v38")
    def put(row, pair, neg_im=False):
        A(f"v_cvt_pk_f16_f32 v39, v{pair}, {'-' if neg_im else ''}v{pair+1}")
        A(f"ds_write_b32 v{40 + row % 16}, v39 offset:{row*256}")
    C = 16
    put(0, C)
    cmul(A, CUR, C, E1, T); put(1, CUR)
    for e in range(2, 8):
        cmul(A, CUR, CUR, E1, T); put(e, CUR)
    cmul(A, CUR, C, E256, T); put(8, CUR)
    for e in range(9, 12):
        cmul(A, CUR, CUR, E2, T); put(e, CUR)
    cmul(A, X12, C, E512, T); put(12, X12)
    cmul(A, CUR, X12, E4, T); put(13, CUR)
    cmul(A, CUR, X12, E256, T); put(14, CUR)
    cmul(A, CUR, CUR, E4, T); put(15, CUR)
    cmul(A, X16, X12, E512, T); put(16, X16)
    cmul(A, CUR, X16, E256, T); put(17, CUR)
    cmul(A, X16, X16, E512, T); put(18, X16)
    cmul(A, CUR, X16, E256, T); put(19, CUR)
    cmul(A, CUR, X16, E512, T); put(20, CUR)
    A("v_mov_b32 v39, 0x3c00")
    A(f"ds_write_b32 v{40 + 21 % 16}, v39 offset:{21*256}")
    put(22, W8, True)
    cmul(A, CUR, W8, W8, T); put(23, CUR, True)
    for c in range(3, 32):
        cmul(A, CUR, CUR, W8, T); put(21 + c, CUR, True)
    A(f"""
    v_and_b32 v14, 31, v1
    v_lshrrev_b32 v15, 5, v1
    v_and_b32 v16, 15, v14
    v_xor_b32 v16, v16, v15
    v_lshlrev_b32 v16, 4, v16
    v_lshl_add_u32 v16, v14, 8, v16
    v_add_u32 v16, s11, v16
    v_add_u32 v17, 21, v14
    v_and_b32 v18, 15, v17
    v_xor_b32 v18, v18, v15
    v_lshlrev_b32 v18, 4, v18
    v_lshl_add_u32 v17, v17, 8, v18
    v_add_u32 v17, s11, v17
    s_waitcnt lgkmcnt(0)
    """)
    for s in range(8):
        if s == 0:
            A("ds_read_b128 v[64:67], v16")
            A("ds_read_b128 v[68:71], v17")
        else:
            A(f"v_xor_b32 v18, {s*32}, v16")
            A(f"v_xor_b32 v19, {s*32}, v17")
            A(f"ds_read_b128 v[{64+8*s}:{67+8*s}], v18")
            A(f"ds_read_b128 v[{68+8*s}:{71+8*s}], v19")
    for s in range(8):
        A(f"s_waitcnt lgkmcnt({min(15, 2*(7-s))})")
        c = "0" if s == 0 else "v[20:35]"
        A(f"v_mfma_f32_32x32x16_f16 v[20:35], v[{64+8*s}:{67+8*s}], v[{68+8*s}:{71+8*s}], {c}")
    A("""
    s_nop 15
    v_lshlrev_b32 v18, 4, v1
    v_add_u32 v18, s11, v18
    ds_write_b128 v18, v[20:23]
    ds_write_b128 v18, v[24:27] offset:1024
    ds_write_b128 v18, v[28:31] offset:2048
    """)
    A("""
    s_cmp_lg_u32 s9, 0
    s_cbranch_scc1 k1_kg_noks
    s_lshl_b32 s12, s8, 2
    v_mov_b32 v19, s12
    v_cmp_eq_u32 vcc, 0, v1
    s_and_saveexec_b64 s[60:61], vcc
    buffer_store_dword v12, v19, s[56:59], 0 offen
    s_mov_b64 exec, s[60:61]
    k1_kg_noks:
    s_waitcnt lgkmcnt(0)
    k1_kg_bar1:
    s_barrier
    STAMP 3
    """)
    TB = 4096
    A(f"""
    s_cmp_ge_u32 s9, 3
    s_cbranch_scc1 k1_kg_bar2
    v_lshlrev_b32 v18, 4, v1
    s_lshl_b32 s12, s9, 10
    v_add_u32 v18, s12, v18
    ds_read_b128 v[20:23], v18
    ds_read_b128 v[24:27], v18 offset:13568
    ds_read_b128 v[28:31], v18 offset:{2*13568}
    v_and_b32 v14, 31, v1
    v_lshrrev_b32 v15, 5, v1
    s_waitcnt lgkmcnt(0)
    v_pk_add_f32 v[20:21], v[20:21], v[24:25]
    v_pk_add_f32 v[22:23], v[22:23], v[26:27]
    v_pk_add_f32 v[20:21], v[20:21], v[28:29]
    v_pk_add_f32 v[22:23], v[22:23], v[30:31]
    s_cmp_eq_u32 s9, 1
    s_cbranch_scc1 k1_kg_w1
    s_cmp_eq_u32 s9, 2
    s_cbranch_scc1 k1_kg_w2
    """)
    A(f"""
    v_cvt_pk_f16_f32 v24, v23, v22
    v_cvt_pk_f16_f32 v25, v21, v20
    v_lshlrev_b32 v16, 4, v14
    v_lshl_add_u32 v16, v15, 3, v16
    v_sub_u32 v16, {TB+504}, v16
    ds_write_b64 v16, v[24:25]
    s_branch k1_kg_w3
    k1_kg_w1:
    v_cvt_pk_f16_f32 v24, v20, v21
    v_cvt_pk_f16_f32 v25, v22, v23
    """)
    A(f"""
    v_lshlrev_b32 v16, 3, v14
    v_add_u32 v16, {TB+512}, v16
    v_add_u32 v17, 4, v16
    v_lshlrev_b32 v18, 2, v14
    v_add_u32 v18, {TB+768}, v18
    v_add_u32 v19, 128, v18
    v_cmp_eq_u32 vcc, 0, v15
    s_nop 1
    v_cndmask_b32 v16, v18, v16, vcc
    v_cndmask_b32 v17, v19, v17, vcc
    ds_write_b32 v16, v24
    ds_write_b32 v17, v25
    s_branch k1_kg_w3
    k1_kg_w2:
    v_cvt_pk_f16_f32 v24, v20, v21
    v_cvt_pk_f16_f32 v25, v22, v23
    v_lshlrev_b32 v16, 4, v14
    v_lshl_add_u32 v16, v15, 3, v16
    v_add_u32 v16, {TB+1024}, v16
    ds_write_b64 v16, v[24:25]
    k1_kg_w3:
    s_waitcnt lgkmcnt(0)
    k1_kg_bar2:
    s_barrier
    STAMP 4
    """)
    A(f"""
    v_and_b32 v1, 63, v0
    s_mov_b32 s12, 0x05040100
    s_mov_b32 s13, 0x01000100
    s_lshl_b32 s14, s8, 12
    v_lshlrev_b32 v3, 4, v0
    s_cmp_ge_u32 s9, 2
    s_cbranch_scc1 k1_ex_23
    """)
    A(f"""
    v_sub_u32 v4, 127, v0
    v_add_u32 v5, 1, v4
    v_and_b32 v6, 31, v4
    v_lshrrev_b32 v7, 5, v4
    v_lshlrev_b32 v6, 4, v6
    v_lshl_add_u32 v6, v7, 1, v6
    v_and_b32 v8, 31, v5
    v_lshrrev_b32 v7, 5, v5
    v_lshlrev_b32 v8, 4, v8
    v_lshl_add_u32 v8, v7, 1, v8
    ds_read_u16 v10, v6 offset:{TB+1024}
    ds_read_u16 v11, v8 offset:{TB+1024}
    v_and_b32 v9, 1, v4
    v_cmp_eq_u32 vcc, 1, v9
    s_waitcnt lgkmcnt(0)
    """)
    A(f"""
    v_cndmask_b32 v12, v10, v11, vcc
    v_perm_b32 v20, v11, v11, s13
    v_perm_b32 v21, v12, v11, s12
    v_perm_b32 v22, v10, v10, s13
    v_mov_b32 v23, v22
    s_branch k1_ex_store
    k1_ex_23:
    s_cmp_eq_u32 s9, 3
    s_cbranch_scc1 k1_ex_3
    """)
    A(f"""
    v_sub_u32 v4, 63, v1
    v_lshlrev_b32 v4, 2, v4
    v_add_u32 v4, {TB+768}, v4
    ds_read2_b32 v[10:11], v4 offset0:0 offset1:1
    s_mov_b32 s15, 0x03020302
    s_waitcnt lgkmcnt(0)
    v_perm_b32 v20, v11, v11, s13
    v_perm_b32 v21, v10, v10, s15
    v_alignbit_b32 v22, v10, v10, 16
    v_perm_b32 v23, v10, v10, s13
    s_branch k1_ex_store
    k1_ex_3:
    """)
    A(f"""
    v_sub_u32 v4, 31, v1
    v_and_b32 v4, 31, v4
    v_lshlrev_b32 v4, 3, v4
    ds_read_b64 v[10:11], v4 offset:{TB+512}
    ds_read_u16 v12, v4 offset:{TB+512+8}
    v_sub_u32 v5, 63, v1
    v_and_b32 v5, 31, v5
    v_lshlrev_b32 v5, 4, v5
    v_sub_u32 v5, {TB+496}, v5
    ds_read_b128 v[24:27], v5
    s_mov_b32 s15, 0x03020100
    s_mov_b32 s16, 0x07060100
    s_mov_b32 s17, 0x03020504
    v_cmp_gt_u32 vcc, 32, v1
    s_waitcnt lgkmcnt(0)
    """)
    A(f"""
    v_perm_b32 v20, v11, v12, s16
    v_perm_b32 v21, v11, v11, s13
    v_perm_b32 v22, v11, v10, s17
    v_perm_b32 v23, v10, v10, s13
    v_cndmask_b32 v20, v24, v20, vcc
    v_cndmask_b32 v21, v25, v21, vcc
    v_cndmask_b32 v22, v26, v22, vcc
    v_cndmask_b32 v23, v27, v23, vcc
    k1_ex_store:
    buffer_store_dwordx4 v[20:23], v3, s[52:55], s14 offen
    k1_end:
    """)
    stamp_end(A, 0)
    A("k1_exit:")
    A("s_endpgm")
    return name, 128, 64, 128

import struct
def f32bits(x): return struct.unpack("<I", struct.pack("<f", float(x)))[0]


K2_WAVE_LDS = 21248
K2_COPY = 4160
K2_KOFF = 16640
def gen_k2(A):
    name = "k2_kernel"
    kernel_head(A, name)
    A("s_cmp_ge_u32 s2, 160")
    A("s_cbranch_scc1 k2_exit")
    stamp_begin(A)
    A(f"""
    s_load_dwordx2 s[6:7], s[0:1], {ARG['ws']}
    s_load_dwordx2 s[4:5], s[0:1], {ARG['dsk']}
    v_lshrrev_b32 v2, 6, v0
    v_and_b32 v1, 63, v0
    s_nop 0
    v_readfirstlane_b32 s9, v2
    s_lshl_b32 s8, s2, 2
    s_nop 2
    s_add_u32 s8, s8, s9
    s_mul_i32 s10, s9, {K2_WAVE_LDS}
    s_waitcnt lgkmcnt(0)
    STAMP 1
    """)
    srd(A, 12, 6, 7, WS_UT, SZ_UT)
    srd(A, 16, 6, 7, WS_KR, SZ_KR)
    srd(A, 20, 6, 7, WS_AT, SZ_AT)
    A(f"""
    s_add_u32 s24, s6, {hex(WS_KS)}
    s_addc_u32 s25, s7, 0
    s_lshl_b32 s26, s8, 2
    s_load_dword s27, s[24:25], s26
    s_and_b32 s26, s8, 0xfffffffe
    s_lshl_b32 s26, s26, 1
    s_load_dword s28, s[4:5], s26
    s_lshl_b32 s29, s8, 12
    s_mul_i32 s30, s8, {UROW}
    v_lshlrev_b32 v3, 4, v1
    """)
    A(f"s_add_u32 s31, s10, {K2_KOFF}")
    A("s_mov_b32 m0, s31")
    A("s_nop 0")
    for i in range(4):
        A(f"buffer_load_dwordx4 v3, s[16:19], s29 offen offset:{1024*i} lds")
    for c in range(4):
        A(f"v_add_u32 v{4+c}, {2*c}, v3")
        A(f"s_add_u32 s{32+c}, s10, {K2_COPY*c}")
    for i in range(4):
        for c in range(4):
            A(f"s_mov_b32 m0, s{32+c}")
            A("s_nop 0")
            A(f"buffer_load_dwordx4 v{4+c}, s[12:15], s30 offen offset:{1024*i} lds")
    A(f"""
    v_lshrrev_b32 v8, 1, v1
    v_and_b32 v9, 1, v1
    v_lshlrev_b32 v9, 4, v9
    v_lshl_add_u32 v10, v8, 1, v9
    v_add_u32 v10, 4096, v10
    s_movk_i32 s36, {K2_COPY}
    v_mul_lo_u32 v11, v8, s36
    v_add_u32 v11, v11, v9
    v_add_u32 v11, s10, v11
    v_cmp_gt_u32 vcc, 8, v1
    s_and_saveexec_b64 s[40:41], vcc
    buffer_load_dwordx4 v[12:15], v10, s[12:15], s30 offen
    s_mov_b64 exec, s[40:41]
    """)
    A(f"""
    v_mov_b32 v16, 0
    v_mov_b32 v17, 0
    v_mov_b32 v18, 0
    v_mov_b32 v19, 0
    v_add_u32 v20, s31, v3
    v_cmp_gt_u32 vcc, 30, v1
    s_and_saveexec_b64 s[40:41], vcc
    ds_write_b128 v20, v[16:19] offset:4096
    s_mov_b64 exec, s[40:41]
    """)
    A(f"""
    v_and_b32 v21, 15, v1
    v_lshrrev_b32 v22, 4, v1
    v_add_u32 v23, 1, v21
    v_and_b32 v24, 3, v23
    v_mul_lo_u32 v24, v24, s36
    v_lshrrev_b32 v23, 2, v23
    v_lshl_add_u32 v24, v23, 3, v24
    v_lshl_add_u32 v24, v22, 4, v24
    v_add_u32 v24, s10, v24
    """)
    A(f"""
    v_lshlrev_b32 v25, 5, v21
    v_sub_u32 v25, {2*2032 - 64*56}, v25
    v_lshl_add_u32 v25, v22, 4, v25
    v_add_u32 v25, s31, v25
    """)
    A(f"""
    v_lshlrev_b32 v26, 5, v21
    v_lshl_add_u32 v26, v22, 3, v26
    v_add_u32 v27, 32, v26
    v_add_u32 v27, s10, v27
    """)
    A(f"""
    s_waitcnt lgkmcnt(0)
    s_bitcmp1_b32 s8, 0
    s_cbranch_scc1 k2_odd
    s_lshl_b32 s28, s28, 16
    k2_odd:
    s_and_b32 s28, s28, 0xffff0000
    """)
    A("""
    s_waitcnt vmcnt(0)
    v_cmp_gt_u32 vcc, 8, v1
    s_and_saveexec_b64 s[40:41], vcc
    ds_write_b128 v11, v[12:15] offset:4096
    s_mov_b64 exec, s[40:41]
    s_waitcnt lgkmcnt(0)
    STAMP 2
    """)
    ACC = 32
    AR = 64
    NR = 4
    def loadA(al):
        r = AR + 4 * (al % NR)
        A(f"ds_read_b64 v[{r}:{r+1}], v24 offset:{64*al}")
        A(f"ds_read_b64 v[{r+2}:{r+3}], v24 offset:{64*al+8}")
    def loadB(g):
        r = 4 * (g + 7)
        A(f"ds_read_b128 a[{r}:{r+3}], v25 offset:{64*(56-g)}")
    def epilogue(q):
        a = ACC + 4 * q
        L = []
        L.append(f"v_mul_f32 v82, s27, v{a}")
        L.append(f"v_mul_f32 v83, s27, v{a+1}")
        L.append(f"v_mul_f32 v84, s27, v{a+2}")
        L.append(f"v_mul_f32 v85, s27, v{a+3}")
        L.append(f"v_cvt_pk_bf16_f32 v82, v82, v83")
        L.append(f"v_cvt_pk_bf16_f32 v84, v84, v85")
        L.append(f"v_fma_mix_f32 v86, v80, s28, 0 op_sel_hi:[1,0,0]")
        L.append(f"v_fma_mix_f32 v87, v80, s28, 0 op_sel:[1,0,0] op_sel_hi:[1,0,0]")
        L.append(f"v_fma_mix_f32 v88, v81, s28, 0 op_sel_hi:[1,0,0]")
        L.append(f"v_fma_mix_f32 v89, v81, s28, 0 op_sel:[1,0,0] op_sel_hi:[1,0,0]")
        L.append(f"v_cvt_pk_bf16_f32 v86, v86, v87")
        L.append(f"v_cvt_pk_bf16_f32 v88, v88, v89")
        L.append(f"v_lshlrev_b32 v90, 16, v82")
        L.append(f"v_and_b32 v91, 0xffff0000, v82")
        L.append(f"v_lshlrev_b32 v92, 16, v86")
        L.append(f"v_and_b32 v93, 0xffff0000, v86")
        L.append(f"v_pk_add_f32 v[90:91], v[90:91], v[92:93]")
        L.append(f"v_cvt_pk_bf16_f32 v94, v90, v91")
        L.append(f"v_lshlrev_b32 v90, 16, v84")
        L.append(f"v_and_b32 v91, 0xffff0000, v84")
        L.append(f"v_lshlrev_b32 v92, 16, v88")
        L.append(f"v_and_b32 v93, 0xffff0000, v88")
        L.append(f"v_pk_add_f32 v[90:91], v[90:91], v[92:93]")
        L.append(f"v_cvt_pk_bf16_f32 v95, v90, v91")
        L.append(f"buffer_store_dwordx2 v[94:95], v26, s[20:23], s29 offen offset:{512*q}")
        return L
    loadA(0); loadA(1)
    for q in range(8): loadB(8*q - 0)
    for al in range(64):
        nl = 0
        if al + 2 < 64:
            loadA(al + 2); nl += 2
        if al + 1 <= 7:
            for q in range(8):
                loadB(8*q - (al+1)); nl += 1
        A(f"s_waitcnt lgkmcnt({min(nl + (2 if al+1 < 64 else 0), 15) if False else min(nl,15)})")
        r = AR + 4 * (al % NR)
        q0 = al // 8
        for q in range(q0, 8):
            g = 8 * q - al
            c = "0" if al == 0 else f"v[{ACC+4*q}:{ACC+4*q+3}]"
            A(f"v_mfma_f32_16x16x32_f16 v[{ACC+4*q}:{ACC+4*q+3}], v[{r}:{r+3}], a[{4*(g+7)}:{4*(g+7)+3}], {c}")
        if al % 8 == 7:
            q = al // 8
            A(f"ds_read_b64 v[80:81], v27 offset:{512*q}")
            A("s_nop 7")
            A("s_waitcnt lgkmcnt(0)")
            for ins in epilogue(q): A(ins)
    A("k2_end:")
    stamp_end(A, 1)
    A("k2_exit:")
    A("s_endpgm")
    return name, 512, 64, 256

def gen_k3(A):
    name = "k3_kernel"
    kernel_head(A, name)
    A("s_cmp_ge_u32 s2, 256")
    A("s_cbranch_scc1 k3_exit")
    stamp_begin(A)
    A(f"""
    s_load_dwordx2 s[4:5], s[0:1], {ARG['x']}
    s_load_dwordx2 s[6:7], s[0:1], {ARG['ws']}
    s_load_dwordx2 s[8:9], s[0:1], {ARG['wr']}
    s_load_dwordx2 s[10:11], s[0:1], {ARG['out']}
    s_and_b32 s12, s2, 7
    s_lshl_b32 s12, s12, 5
    s_lshr_b32 s13, s2, 3
    s_add_u32 s12, s12, s13
    s_lshl_b32 s13, s12, 3
    v_lshrrev_b32 v2, 6, v0
    v_and_b32 v1, 63, v0
    s_nop 0
    v_readfirstlane_b32 s14, v2
    s_waitcnt lgkmcnt(0)
    STAMP 1
    """)
    srd(A, 16, 4, 5, 0, 2621440)
    srd(A, 20, 6, 7, WS_AT, SZ_AT)
    srd(A, 24, 8, 9, 0, 1280)
    srd(A, 28, 10, 11, 0, 2621440)
    srd(A, 32, 6, 7, WS_Z, SZ_Z)
    srd(A, 36, 6, 7, WS_H, SZ_H)
    srd(A, 40, 6, 7, WS_KEY, SZ_KEY)
    A(f"""
    v_lshlrev_b32 v3, 12, v0
    s_lshl_b32 s15, s13, 1
    s_lshl_b32 s44, s14, 10
    s_mov_b32 m0, s44
    s_nop 0
    buffer_load_dwordx4 v3, s[20:23], s15 offen lds
    s_add_u32 s45, s15, {256*4096}
    s_add_u32 s44, s44, 4096
    s_mov_b32 m0, s44
    s_nop 0
    buffer_load_dwordx4 v3, s[20:23], s45 offen lds
    s_cmp_ge_u32 s14, 2
    s_cbranch_scc1 k3_nodma3
    s_add_u32 s45, s15, {512*4096}
    s_add_u32 s44, s44, 4096
    s_mov_b32 m0, s44
    s_nop 0
    buffer_load_dwordx4 v3, s[20:23], s45 offen lds
    k3_nodma3:
    """)
    A(f"""
    v_and_b32 v4, 7, v1
    v_lshrrev_b32 v5, 3, v1
    v_add_u32 v6, s13, v4
    s_movk_i32 s46, 1280
    v_mul_lo_u32 v6, v6, s46
    s_mul_i32 s47, s14, 320
    v_lshl_add_u32 v7, v5, 3, s47
    v_add_u32 v6, v6, v7
    """)
    for i in range(5):
        A(f"buffer_load_dwordx2 v[{10+2*i}:{11+2*i}], v6, s[16:19], 0 offen offset:{64*i}")
    for i in range(5):
        A(f"buffer_load_dwordx2 v[{20+2*i}:{21+2*i}], v7, s[24:27], 0 offen offset:{64*i}")
    A(f"""
    v_lshrrev_b32 v8, 4, v1
    v_lshlrev_b32 v8, 3, v8
    v_bfe_u32 v9, v1, 1, 1
    v_lshl_add_u32 v8, v9, 2, v8
    v_bfe_u32 v9, v1, 2, 2
    v_add_u32 v8, v8, v9
    s_mul_i32 s47, s14, 160
    v_add_u32 v8, s47, v8
    v_lshlrev_b32 v8, 4, v8
    v_and_b32 v9, 1, v1
    v_lshl_add_u32 v8, v9, 3, v8
    s_waitcnt vmcnt(0)
    s_barrier
    STAMP 2
    """)
    for i in range(5):
        A(f"ds_read_b64_tr_b16 v[{30+2*i}:{31+2*i}], v8 offset:{512*i}")
    A("s_waitcnt lgkmcnt(0)")
    H = 40
    for i in range(10):
        a, b = H + 2*i, H + 2*i + 1
        unpack_bf16(A, 10 + i, a, b)
        unpack_bf16(A, 30 + i, 70, 71)
        A(f"v_pk_add_f32 v[{a}:{b}], v[{a}:{b}], v[70:71]")
        A(f"v_cvt_pk_bf16_f32 v{60+i}, v{a}, v{b}")
        unpack_bf16(A, 60 + i, a, b)
    for i in range(5):
        A(f"buffer_store_dwordx2 v[{60+2*i}:{61+2*i}], v6, s[36:39], 0 offen offset:{64*i}")
    A(f"v_pk_add_f32 v[72:73], v[{H}:{H+1}], v[{H+2}:{H+3}]")
    for i in range(2, 10):
        A(f"v_pk_add_f32 v[72:73], v[72:73], v[{H+2*i}:{H+2*i+1}]")
    A("v_add_f32 v72, v72, v73")
    def red8(x, t):
        A("s_nop 1")
        A(f"v_add_f32_dpp v{x}, v{x}, v{x} row_ror:8 {DPP}")
        xor16(A, "v_add_f32", x, t)
        xor32(A, "v_add_f32", x, t)
    red8(72, 73)
    A(f"v_mul_f32 v72, {hex(f32bits(1/160))}, v72")
    for i in range(10):
        A(f"v_pk_add_f32 v[70:71], v[{H+2*i}:{H+2*i+1}], v[72:73] op_sel_hi:[1,0] neg_lo:[0,1] neg_hi:[0,1]")
        if i == 0: A("v_pk_mul_f32 v[74:75], v[70:71], v[70:71]")
        else: A("v_pk_fma_f32 v[74:75], v[70:71], v[70:71], v[74:75]")
    A("v_add_f32 v73, v74, v75")
    red8(73, 74)
    A(f"""
    v_lshlrev_b32 v76, 3, v4
    v_add_u32 v76, 10240, v76
    s_lshl_b32 s47, s14, 6
    v_add_u32 v77, s47, v76
    v_cmp_gt_u32 vcc, 8, v1
    s_and_saveexec_b64 s[48:49], vcc
    ds_write_b64 v77, v[72:73]
    s_mov_b64 exec, s[48:49]
    s_waitcnt lgkmcnt(0)
    s_barrier
    STAMP 3
    ds_read_b64 v[78:79], v76
    ds_read_b64 v[80:81], v76 offset:64
    ds_read_b64 v[82:83], v76 offset:128
    ds_read_b64 v[84:85], v76 offset:192
    s_waitcnt lgkmcnt(0)
    v_add_f32 v72, v78, v80
    v_add_f32 v73, v82, v84
    v_add_f32 v72, v72, v73
    v_mul_f32 v72, 0.25, v72
    v_sub_f32 v78, v78, v72
    v_sub_f32 v80, v80, v72
    v_sub_f32 v82, v82, v72
    v_sub_f32 v84, v84, v72
    v_mul_f32 v73, v78, v78
    v_fmac_f32 v73, v80, v80
    v_fmac_f32 v73, v82, v82
    v_fmac_f32 v73, v84, v84
    v_add_f32 v79, v79, v81
    v_add_f32 v83, v83, v85
    v_add_f32 v79, v79, v83
    v_mov_b32 v74, {hex(f32bits(160))}
    v_fmac_f32 v79, v74, v73
    v_mul_f32 v74, {hex(F_INV640)}, v79
    """)
    ln_scalars(A, 72, 74, 75, 78, 80)
    A("v_mov_b32 v82, 0")
    for i in range(10):
        a, b = H + 2*i, H + 2*i + 1
        A(f"v_pk_add_f32 v[70:71], v[{a}:{b}], v[78:79] op_sel_hi:[1,0] neg_lo:[0,1] neg_hi:[0,1]")
        A(f"v_cvt_pk_bf16_f32 v84, v70, v71")
        unpack_bf16(A, 84, 70, 71)
        A(f"v_pk_mul_f32 v[70:71], v[70:71], v[80:81] op_sel_hi:[1,0]")
        A(f"v_cvt_pk_bf16_f32 v{30+i}, v70, v71")
        unpack_bf16(A, 30 + i, 70, 71)
        unpack_bf16(A, 20 + i, 84, 85)
        A(f"v_fmac_f32 v82, v70, v84")
        A(f"v_fmac_f32 v82, v71, v85")
        A(f"v_pk_add_f32 v[70:71], v[70:71], v[{a}:{b}]")
        A(f"v_cvt_pk_bf16_f32 v{10+i}, v70, v71")
    for i in range(5):
        A(f"buffer_store_dwordx2 v[{10+2*i}:{11+2*i}], v6, s[28:31], 0 offen offset:{64*i}")
        A(f"buffer_store_dwordx2 v[{30+2*i}:{31+2*i}], v6, s[32:35], 0 offen offset:{64*i}")
    red8(82, 83)
    A(f"""
    v_lshlrev_b32 v76, 2, v4
    v_add_u32 v76, 10496, v76
    s_lshl_b32 s47, s14, 5
    v_add_u32 v77, s47, v76
    v_cmp_gt_u32 vcc, 8, v1
    s_and_saveexec_b64 s[48:49], vcc
    ds_write_b32 v77, v82
    s_mov_b64 exec, s[48:49]
    s_waitcnt lgkmcnt(0)
    s_barrier
    STAMP 4
    s_cmp_lg_u32 s14, 0
    s_cbranch_scc1 k3_end
    ds_read_b32 v78, v76
    ds_read_b32 v79, v76 offset:32
    ds_read_b32 v80, v76 offset:64
    ds_read_b32 v81, v76 offset:96
    s_waitcnt lgkmcnt(0)
    v_add_f32 v78, v78, v79
    v_add_f32 v80, v80, v81
    v_add_f32 v78, v78, v80
    v_cvt_pk_bf16_f32 v78, v78, v78
    v_and_b32 v78, 0xffff, v78
    """)
    A(f"""
    v_xor_b32 v79, 0xffff, v78
    v_or_b32 v80, 0x8000, v78
    v_cmp_lt_u32 vcc, 0x7fff, v78
    s_nop 1
    v_cndmask_b32 v78, v80, v79, vcc
    v_lshlrev_b32 v78, 16, v78
    v_add_u32 v79, s13, v4
    v_sub_u32 v80, 0xffff, v79
    v_or_b32 v78, v78, v80
    v_lshlrev_b32 v79, 2, v79
    v_cmp_gt_u32 vcc, 8, v1
    s_and_saveexec_b64 s[48:49], vcc
    buffer_store_dword v78, v79, s[40:43], 0 offen
    s_mov_b64 exec, s[48:49]
    k3_end:
    """)
    stamp_end(A, 2)
    A("k3_exit:")
    A("s_endpgm")
    return name, 96, 64, 96

def topk_code(A, pfx, MISC):
    A(f"""
    v_lshlrev_b32 v9, 5, v0
    buffer_load_dwordx4 v[10:13], v9, s[40:43], 0 offen
    buffer_load_dwordx4 v[14:17], v9, s[40:43], 0 offen offset:16
    v_mov_b32 v18, 0
    v_mov_b32 v19, {MISC+32}
    ds_write_b32 v19, v18
    s_waitcnt vmcnt(0)
    STAMP 2
    v_max3_u32 v18, v10, v11, v12
    v_max3_u32 v18, v18, v13, v14
    v_max3_u32 v18, v18, v15, v16
    v_max_u32 v18, v18, v17
    s_nop 1
    v_max_u32_dpp v18, v18, v18 row_ror:8 {DPP}
    """)
    xor16(A, "v_max_u32", 18, 20)
    xor32(A, "v_max_u32", 18, 20)
    A(f"""
    v_and_b32 v20, 7, v1
    v_lshlrev_b32 v20, 2, v20
    v_add_u32 v20, {MISC+64}, v20
    s_lshl_b32 s44, s14, 5
    v_add_u32 v21, s44, v20
    v_cmp_gt_u32 vcc, 8, v1
    s_and_saveexec_b64 s[46:47], vcc
    ds_write_b32 v21, v18
    s_mov_b64 exec, s[46:47]
    s_waitcnt lgkmcnt(0)
    s_barrier
    ds_read_b32 v22, v20
    ds_read_b32 v23, v20 offset:32
    ds_read_b32 v24, v20 offset:64
    ds_read_b32 v25, v20 offset:96
    s_waitcnt lgkmcnt(0)
    v_max3_u32 v22, v22, v23, v24
    v_max_u32 v22, v22, v25
    """)
    for pat in ("quad_perm:[1,0,3,2]", "quad_perm:[2,3,0,1]", "row_half_mirror"):
        A("s_nop 1")
        A(f"v_min_u32_dpp v22, v22, v22 {pat} {DPP}")
    A("v_mov_b32 v23, 0")
    for i in range(8):
        A(f"v_cmp_ge_u32 vcc, v{10+i}, v22")
        A("s_nop 1")
        A(f"v_addc_co_u32 v23, vcc, 0, v23, vcc")
    A(f"""
    v_mov_b32 v19, {MISC+32}
    v_cmp_lt_u32 vcc, 0, v23
    s_and_saveexec_b64 s[46:47], vcc
    ds_add_rtn_u32 v24, v19, v23
    s_waitcnt lgkmcnt(0)
    v_lshlrev_b32 v24, 2, v24
    v_add_u32 v24, {MISC+256}, v24
    s_mov_b64 s[48:49], exec
    """)
    for i in range(8):
        A(f"s_mov_b64 exec, s[48:49]")
        A(f"v_cmp_ge_u32 vcc, v{10+i}, v22")
        A(f"s_and_b64 exec, s[48:49], vcc")
        A(f"ds_write_b32 v24, v{10+i}")
        A(f"v_add_u32 v24, 4, v24")
    A(f"""
    s_mov_b64 exec, s[46:47]
    s_waitcnt lgkmcnt(0)
    s_barrier
    ds_read_b32 v23, v19
    s_waitcnt lgkmcnt(0)
    v_readfirstlane_b32 s44, v23
    """)
    A(f"""
    s_mov_b32 s45, 0
    {pfx}_rank_outer:
    v_add_u32 v24, s45, v0
    v_cmp_gt_u32 vcc, s44, v24
    s_and_saveexec_b64 s[46:47], vcc
    s_cbranch_execz {pfx}_rank_next
    v_lshlrev_b32 v25, 2, v24
    ds_read_b32 v26, v25 offset:{MISC+256}
    v_mov_b32 v27, 0
    v_mov_b32 v28, {MISC+256}
    s_mov_b32 s50, 0
    {pfx}_rank_inner:
    ds_read_b32 v29, v28
    v_add_u32 v28, 4, v28
    s_add_u32 s50, s50, 1
    s_waitcnt lgkmcnt(0)
    v_cmp_gt_u32 vcc, v29, v26
    s_nop 1
    v_addc_co_u32 v27, vcc, 0, v27, vcc
    s_cmp_lt_u32 s50, s44
    s_cbranch_scc1 {pfx}_rank_inner
    v_cmp_gt_u32 vcc, 8, v27
    s_and_b64 exec, exec, vcc
    s_cbranch_execz {pfx}_rank_next
    v_lshlrev_b32 v27, 2, v27
    ds_write_b32 v27, v26 offset:{MISC}
    {pfx}_rank_next:
    s_mov_b64 exec, s[46:47]
    s_add_u32 s45, s45, 256
    s_cmp_lt_u32 s45, s44
    s_cbranch_scc1 {pfx}_rank_outer
    s_waitcnt lgkmcnt(0)
    s_barrier
    STAMP 3
    """)

def gen_k4(A):
    name = "k4_kernel"
    kernel_head(A, name)
    MISC = 20480
    A("s_cmp_ge_u32 s2, 192")
    A("s_cbranch_scc1 k4_exit")
    stamp_begin(A)
    A(f"""
    s_load_dwordx4 s[4:7], s[0:1], {ARG['wg']}
    s_load_dwordx2 s[8:9], s[0:1], {ARG['ws']}
    s_and_b32 s12, s2, 7
    s_mul_i32 s12, s12, 24
    s_lshr_b32 s13, s2, 3
    s_add_u32 s12, s12, s13
    v_lshrrev_b32 v2, 6, v0
    v_and_b32 v1, 63, v0
    s_nop 0
    v_readfirstlane_b32 s14, v2
    s_waitcnt lgkmcnt(0)
    STAMP 1
    """)
    srd(A, 16, 4, 5, 0, 640*3072)
    srd(A, 20, 6, 7, 0, 640*3072)
    srd(A, 24, 8, 9, WS_Z, SZ_Z)
    srd(A, 28, 8, 9, WS_HID, SZ_HID)
    srd(A, 32, 8, 9, WS_SEL, SZ_SEL)
    srd(A, 40, 8, 9, WS_KEY, SZ_KEY)
    A(f"""
    s_movk_i32 s15, 3072
    v_mul_lo_u32 v3, v0, s15
    s_lshl_b32 s15, s12, 4
    s_lshl_b32 s44, s14, 10
    """)
    for it in range(3):
        if it == 2:
            A("s_cmp_ge_u32 s14, 2")
            A("s_cbranch_scc1 k4_nodma3")
        A(f"s_add_u32 s45, s15, {it*256*3072}")
        A(f"s_add_u32 s46, s44, {it*4096}")
        A("s_mov_b32 m0, s46")
        A("s_nop 0")
        A("buffer_load_dwordx4 v3, s[16:19], s45 offen lds")
        A(f"s_add_u32 s46, s44, {it*4096 + 10240}")
        A("s_mov_b32 m0, s46")
        A("s_nop 0")
        A("buffer_load_dwordx4 v3, s[20:23], s45 offen lds")
    A("k4_nodma3:")
    topk_code(A, "k4", MISC)
    A(f"""
    v_and_b32 v4, 7, v1
    v_lshlrev_b32 v5, 2, v4
    ds_read_b32 v6, v5 offset:{MISC}
    v_lshrrev_b32 v7, 4, v1
    s_waitcnt lgkmcnt(0)
    v_and_b32 v8, 0xffff, v6
    v_sub_u32 v8, 0xffff, v8
    s_movk_i32 s15, 1280
    v_mul_lo_u32 v9, v8, s15
    v_lshl_add_u32 v9, v7, 4, v9
    s_mul_i32 s44, s14, 320
    """)
    for i in range(5):
        A(f"buffer_load_dwordx4 v[{40+4*i}:{43+4*i}], v9, s[24:27], s44 offen offset:{64*i}")
    A(f"""
    s_or_b32 s45, s2, s14
    s_cmp_lg_u32 s45, 0
    s_cbranch_scc1 k4_nosel
    v_lshrrev_b32 v10, 16, v6
    v_xor_b32 v11, 0xffff, v10
    v_and_b32 v12, 0x7fff, v10
    v_cmp_lt_u32 vcc, 0x7fff, v10
    s_nop 1
    v_cndmask_b32 v10, v11, v12, vcc
    v_lshlrev_b32 v10, 16, v10
    v_mul_f32 v10, {hex(F_LOG2E)}, v10
    v_exp_f32 v10, -v10
    s_nop 0
    v_add_f32 v10, 1.0, v10
    v_rcp_f32 v10, v10
    s_nop 0
    v_cvt_pk_bf16_f32 v10, v10, v10
    v_lshlrev_b32 v10, 16, v10
    v_cmp_gt_u32 vcc, 8, v1
    s_and_saveexec_b64 s[46:47], vcc
    buffer_store_dword v8, v5, s[32:35], 0 offen
    buffer_store_dword v10, v5, s[32:35], 0 offen offset:32
    s_mov_b64 exec, s[46:47]
    k4_nosel:
    """)
    A(f"""
    v_lshlrev_b32 v10, 3, v7
    v_bfe_u32 v11, v1, 2, 2
    v_add_u32 v10, v10, v11
    v_lshlrev_b32 v10, 4, v10
    v_and_b32 v11, 1, v1
    v_lshl_add_u32 v10, v11, 3, v10
    v_bfe_u32 v11, v1, 1, 1
    s_movk_i32 s15, 10240
    v_mul_lo_u32 v11, v11, s15
    v_add_u32 v10, v10, v11
    s_mul_i32 s44, s14, {5*512}
    v_add_u32 v10, s44, v10
    """)
    for i in range(5):
        A(f"ds_read_b64_tr_b16 v[{60+4*i}:{61+4*i}], v10 offset:{512*i}")
        A(f"ds_read_b64_tr_b16 v[{62+4*i}:{63+4*i}], v10 offset:{512*i+64}")
    A("s_waitcnt vmcnt(0) lgkmcnt(0)")
    A("STAMP 4")
    for i in range(5):
        c = "0" if i == 0 else "v[80:83]"
        A(f"v_mfma_f32_16x16x32_bf16 v[80:83], v[{40+4*i}:{43+4*i}], v[{60+4*i}:{63+4*i}], {c}")
    A(f"""
    s_nop 7
    v_lshlrev_b32 v11, 4, v1
    s_lshl_b32 s44, s14, 10
    v_add_u32 v12, s44, v11
    ds_write_b128 v12, v[80:83] offset:{MISC+256}
    s_waitcnt lgkmcnt(0)
    s_barrier
    s_cmp_lg_u32 s14, 0
    s_cbranch_scc1 k4_end
    ds_read_b128 v[80:83], v11 offset:{MISC+256}
    ds_read_b128 v[84:87], v11 offset:{MISC+256+1024}
    ds_read_b128 v[88:91], v11 offset:{MISC+256+2048}
    ds_read_b128 v[92:95], v11 offset:{MISC+256+3072}
    s_waitcnt lgkmcnt(0)
    v_pk_add_f32 v[80:81], v[80:81], v[84:85]
    v_pk_add_f32 v[82:83], v[82:83], v[86:87]
    v_pk_add_f32 v[88:89], v[88:89], v[92:93]
    v_pk_add_f32 v[90:91], v[90:91], v[94:95]
    v_pk_add_f32 v[80:81], v[80:81], v[88:89]
    v_pk_add_f32 v[82:83], v[82:83], v[90:91]
    v_cvt_pk_bf16_f32 v84, v80, v81
    v_cvt_pk_bf16_f32 v85, v82, v83
    """)
    unpack_bf16(A, 84, 80, 81)
    unpack_bf16(A, 85, 82, 83)
    for r in range(4):
        A("s_nop 1")
        A(f"v_mov_b32_dpp v{84+r}, v{80+r} row_ror:8 {DPP}")
    for r in range(4):
        g, u = 80 + r, 84 + r
        A(f"v_mul_f32 v88, {hex(F_LOG2E)}, v{g}")
        A(f"v_exp_f32 v88, -v88")
        A("s_nop 0")
        A(f"v_add_f32 v88, 1.0, v88")
        A(f"v_rcp_f32 v88, v88")
        A("s_nop 0")
        A(f"v_mul_f32 v88, v88, v{g}")
        A(f"v_cvt_pk_bf16_f32 v88, v88, v88")
        A(f"v_lshlrev_b32 v88, 16, v88")
        A(f"v_mul_f32 v88, v88, v{u}")
        A(f"v_cvt_pk_bf16_f32 v{g}, v88, v88")
    A(f"""
    v_and_b32 v11, 15, v1
    v_lshlrev_b32 v12, 1, v11
    s_movk_i32 s15, {4*3072}
    v_mul_lo_u32 v13, v7, s15
    v_add_u32 v12, v12, v13
    s_lshl_b32 s44, s12, 4
    v_cmp_gt_u32 vcc, 8, v11
    v_cmp_gt_u32 s[48:49], 2, v7
    s_and_b64 vcc, vcc, s[48:49]
    s_and_saveexec_b64 s[46:47], vcc
    s_add_u32 s45, s44, 3072
    s_add_u32 s50, s44, {2*3072}
    s_add_u32 s51, s44, {3*3072}
    buffer_store_short v80, v12, s[28:31], s44 offen
    buffer_store_short v81, v12, s[28:31], s45 offen
    buffer_store_short v82, v12, s[28:31], s50 offen
    buffer_store_short v83, v12, s[28:31], s51 offen
    s_mov_b64 exec, s[46:47]
    k4_end:
    """)
    stamp_end(A, 3)
    A("k4_exit:")
    A("s_endpgm")
    return name, 96, 64, 96

def gen_k5(A):
    name = "k5_kernel"
    kernel_head(A, name)
    RED = 24576
    A("s_cmp_ge_u32 s2, 80")
    A("s_cbranch_scc1 k5_exit")
    stamp_begin(A)
    A(f"""
    s_load_dwordx4 s[4:7], s[0:1], {ARG['wd']}
    s_load_dwordx2 s[8:9], s[0:1], {ARG['ws']}
    s_and_b32 s12, s2, 7
    s_mul_i32 s12, s12, 10
    s_lshr_b32 s13, s2, 3
    s_add_u32 s12, s12, s13
    v_lshrrev_b32 v2, 6, v0
    v_and_b32 v1, 63, v0
    s_nop 0
    v_readfirstlane_b32 s14, v2
    s_waitcnt lgkmcnt(0)
    STAMP 1
    """)
    srd(A, 16, 4, 5, 0, 1536*1280)
    srd(A, 20, 6, 7, 0, 2621440)
    srd(A, 24, 8, 9, WS_Z, SZ_Z)
    srd(A, 28, 8, 9, WS_HID, SZ_HID)
    srd(A, 32, 8, 9, WS_SEL, SZ_SEL)
    srd(A, 36, 8, 9, WS_H, SZ_H)
    A(f"""
    s_movk_i32 s15, 1280
    v_mul_lo_u32 v3, v0, s15
    s_lshl_b32 s15, s12, 4
    s_lshl_b32 s44, s14, 10
    """)
    for it in range(6):
        A(f"s_add_u32 s45, s15, {it*256*1280}")
        A(f"s_add_u32 s46, s44, {it*4096}")
        A("s_mov_b32 m0, s46")
        A("s_nop 0")
        A("buffer_load_dwordx4 v3, s[16:19], s45 offen lds")
    A(f"""
    v_and_b32 v4, 7, v1
    v_bfe_u32 v5, v1, 3, 1
    v_lshrrev_b32 v7, 4, v1
    s_movk_i32 s15, 3072
    v_mul_lo_u32 v9, v4, s15
    s_movk_i32 s15, 1536
    v_mul_lo_u32 v10, v5, s15
    v_add_u32 v9, v9, v10
    v_lshl_add_u32 v9, v7, 4, v9
    s_mul_i32 s44, s14, {6*64}
    """)
    for i in range(6):
        A(f"buffer_load_dwordx4 v[{40+4*i}:{43+4*i}], v9, s[28:31], s44 offen offset:{64*i}")
    A(f"""
    v_lshlrev_b32 v11, 2, v4
    buffer_load_dword v12, v11, s[32:35], 0 offen
    buffer_load_dword v13, v11, s[32:35], 0 offen offset:32
    """)
    A(f"""
    v_lshlrev_b32 v14, 3, v7
    v_bfe_u32 v15, v1, 2, 2
    v_add_u32 v14, v14, v15
    v_bfe_u32 v15, v1, 1, 1
    s_movk_i32 s15, 768
    v_mul_lo_u32 v15, v15, s15
    v_add_u32 v14, v14, v15
    v_lshlrev_b32 v14, 4, v14
    v_and_b32 v15, 1, v1
    v_lshl_add_u32 v14, v15, 3, v14
    s_mul_i32 s44, s14, {6*512}
    v_add_u32 v14, s44, v14
    s_waitcnt vmcnt(0)
    s_barrier
    STAMP 2
    """)
    for i in range(6):
        A(f"ds_read_b64_tr_b16 v[{64+4*i}:{65+4*i}], v14 offset:{512*i}")
        A(f"ds_read_b64_tr_b16 v[{66+4*i}:{67+4*i}], v14 offset:{512*i+64}")
    A("s_waitcnt lgkmcnt(0)")
    for i in range(6):
        c = "0" if i == 0 else "v[88:91]"
        A(f"v_mfma_f32_16x16x32_bf16 v[88:91], v[{40+4*i}:{43+4*i}], v[{64+4*i}:{67+4*i}], {c}")
    A(f"""
    s_nop 7
    v_lshlrev_b32 v15, 4, v1
    s_lshl_b32 s44, s14, 10
    v_add_u32 v16, s44, v15
    ds_write_b128 v16, v[88:91] offset:{RED}
    s_waitcnt lgkmcnt(0)
    s_barrier
    STAMP 3
    s_cmp_lg_u32 s14, 0
    s_cbranch_scc1 k5_end
    """)
    A(f"""
    v_lshrrev_b32 v20, 3, v1
    v_and_b32 v21, 7, v1
    v_lshrrev_b32 v22, 2, v20
    v_lshl_add_u32 v22, v22, 4, v21
    v_lshlrev_b32 v22, 4, v22
    v_and_b32 v23, 3, v20
    v_lshl_add_u32 v22, v23, 2, v22
    """)
    for w in range(4):
        A(f"ds_read_b32 v{24+2*w}, v22 offset:{RED + 1024*w}")
        A(f"ds_read_b32 v{25+2*w}, v22 offset:{RED + 1024*w + 640}")
    A(f"""
    v_lshlrev_b32 v32, 2, v20
    ds_bpermute_b32 v33, v32, v12
    ds_bpermute_b32 v34, v32, v13
    s_waitcnt lgkmcnt(0)
    v_add_f32 v24, v24, v25
    v_add_f32 v26, v26, v27
    v_add_f32 v28, v28, v29
    v_add_f32 v30, v30, v31
    v_add_f32 v24, v24, v26
    v_add_f32 v28, v28, v30
    v_add_f32 v24, v24, v28
    s_movk_i32 s15, 1280
    v_mul_lo_u32 v35, v33, s15
    v_lshl_add_u32 v35, v21, 1, v35
    s_lshl_b32 s44, s12, 4
    buffer_load_ushort v36, v35, s[24:27], s44 offen
    buffer_load_ushort v37, v35, s[36:39], s44 offen
    v_cvt_pk_bf16_f32 v24, v24, v24
    v_lshlrev_b32 v24, 16, v24
    v_mul_f32 v24, v24, v34
    v_cvt_pk_bf16_f32 v24, v24, v24
    v_lshlrev_b32 v24, 16, v24
    s_waitcnt vmcnt(0)
    v_lshlrev_b32 v36, 16, v36
    v_lshlrev_b32 v37, 16, v37
    v_add_f32 v24, v36, v24
    v_cvt_pk_bf16_f32 v24, v24, v24
    v_lshlrev_b32 v24, 16, v24
    v_add_f32 v24, v37, v24
    v_cvt_pk_bf16_f32 v24, v24, v24
    buffer_store_short v24, v35, s[20:23], s44 offen
    k5_end:
    """)
    stamp_end(A, 4)
    A("k5_exit:")
    A("s_endpgm")
    return name, 96, 64, 96

def main():
    global STAMP
    if "--stamp" in sys.argv:
        STAMP = True
        sys.argv.remove("--stamp")
    A = Asm()
    hdr = open("cdna_kernels/%s.s.ref" % NAME).read().split("; Override launch")[0]
    kernels = []
    body = Asm()
    for g in (gen_k1, gen_k2, gen_k3, gen_k4, gen_k5):
        kernels.append(g(body))
    launches = [
        ("k1_kernel", 896, 256, 40960),
        ("k2_kernel", 160, 256, 4 * K2_WAVE_LDS),
        ("k3_kernel", 256, 256, 10752),
        ("k4_kernel", 192, 256, 20480 + 256 + 8192),
        ("k5_kernel", 80, 256, 24576 + 4096),
    ]
    out = hdr
    for k, g, b, l in launches:
        out += f"; @launch kernel={k} grid=({g},1,1) block=({b},1,1) lds={l}\n"
    out += '.amdgcn_target "amdgcn-amd-amdhsa--gfx950"\n.text\n'
    out += body.text()
    out += '.section .rodata,"a"\n'
    for name, vg, sg, acc in kernels:
        out += ".p2align 6\n" + kernel_desc(name, vg, 100 if STAMP else sg, acc)
    path = sys.argv[1] if len(sys.argv) > 1 else "cdna_kernels/%s.s" % NAME
    open(path, "w").write(out)
    print("wrote", path, len(out))

if __name__ == "__main__":
    main()
```

```python
import sys, os, struct
from gen import Asm as Asm0, srd, DPP, allreduce16, xor16, xor32, f32bits
from gen import F_INV640, F_LOG2E, F_INV2PI, F_EPS, ARG, NAME
import gen
from gen import Asm as Asm0

WS_UB = 0x000000
WS_AT = 0x280000
WS_KEY = 0x500000
WS_SM = 0x502000
WS_ZS = WS_SM
WS_HS = WS_SM + 10240
WS_META = WS_SM + 20480
WS_HID = WS_SM + 20736
WS_FL = 0x510000
WS_SIZE = 0x520000
WS_STAMP = 0x1000000

STAMP = False
KSTAMP = os.environ.get('KSTAMP', '0') == '1'
class Asm(Asm0):
    pass

def stamp(A, k):
    if STAMP:
        A("s_memrealtime s[98:99]")
        A("s_waitcnt lgkmcnt(0)")
        A(f"v_writelane_b32 v255, s98, {k}")

def cnt_stamp(A, k, sreg):
    if STAMP:
        A(f"v_writelane_b32 v254, s{sreg}, {k}")

def stamp_flush(A):
    if STAMP:
        A("s_waitcnt vmcnt(0) lgkmcnt(0)")
        stamp(A, 15)
        A(f"s_load_dwordx2 s[88:89], s[0:1], {ARG['ws']}")
        A("s_waitcnt lgkmcnt(0)")
        srd(A, 84, 88, 89, WS_STAMP, 0x40000)
        A("v_lshrrev_b32 v2, 6, v0")
        A("s_lshl_b32 s91, s2, 2")
        A("v_add_u32 v2, s91, v2")
        A("v_lshlrev_b32 v2, 6, v2")
        A("v_and_b32 v3, 63, v0")
        A("v_lshl_add_u32 v2, v3, 2, v2")
        A("s_mov_b64 exec, 0xffff")
        A("buffer_store_dword v255, v2, s[84:87], 0 offen")
        A("v_add_u32 v2, 0x20000, v2")
        A("buffer_store_dword v254, v2, s[84:87], 0 offen")

WAVE_LDS = 30432
CB = [0, 4160, 8320, 12480]
KOFF = 16640
TSTR = 1352
L_AT = 0
L_MISC = 10816
L_ST = L_MISC
L_RP = L_MISC + 256
L_CNT = L_MISC + 384
L_NON = L_MISC + 448
L_RED = L_MISC + 512
LBASE = 19712
L_G, L_U, L_WD = LBASE, LBASE + 20480, LBASE + 40960
LDS_TOTAL = LBASE + 4 * WAVE_LDS
POLL_LIMIT = 40000
NONWG = int(os.environ.get('NONWG', '0'))
CDELAY = int(os.environ.get('CDELAY', '0'))
WPF = os.environ.get('WPF', '1') == '1'
CSLEEP = int(os.environ.get('CSLEEP', '8'))
CANARY = os.environ.get('CANARY', '1') == '1'
FSLEEP = int(os.environ.get('FSLEEP', '8'))
APLAIN = ' sc1' if os.environ.get('APLAIN', '0') == '0' else ''
AHOOK = int(os.environ.get('AHOOK', '-1'))
CODEPF = os.environ.get('CODEPF', '1') == '1'
NPF = int(os.environ.get('NPF', '6'))
KSLEEP = int(os.environ.get('KSLEEP', '8'))
ASLEEP = int(os.environ.get('ASLEEP', '2'))

S_WS, S_X, S_DBG, S_WR = 8, 12, 20, 16
S_TB, S_T0 = 40, 41
S_D, S_B, S_K, S_AO, S_F, S_DS, S_NON = 74, 75, 76, 77, 78, 79, 72
VXF = 220
VW = 240
VROW, VCH, VTOK = 250, 251, 252

lblc = [0]
def newlbl(p):
    lblc[0] += 1
    return f"{p}_{lblc[0]}"

def rnd(A, d, s):
    A(f"v_cvt_pk_bf16_f32 v{d}, 0, v{s}")

def unpack_bf16(A, src, dlo, dhi):
    A(f"v_lshlrev_b32 v{dlo}, 16, v{src}")
    A(f"v_and_b32 v{dhi}, 0xffff0000, v{src}")

def red8(A, x, t):
    A("s_nop 1")
    A(f"v_add_f32_dpp v{x}, v{x}, v{x} row_ror:8 {DPP}")
    xor16(A, "v_add_f32", x, t)
    xor32(A, "v_add_f32", x, t)

def ln_stats(A, H):
    A(f"v_pk_add_f32 v[72:73], v[{H}:{H+1}], v[{H+2}:{H+3}]")
    A(f"v_pk_add_f32 v[74:75], v[{H+4}:{H+5}], v[{H+6}:{H+7}]")
    for i in range(4, 10, 2):
        A(f"v_pk_add_f32 v[72:73], v[72:73], v[{H+2*i}:{H+2*i+1}]")
        A(f"v_pk_add_f32 v[74:75], v[74:75], v[{H+2*i+2}:{H+2*i+3}]")
    A("v_pk_add_f32 v[72:73], v[72:73], v[74:75]")
    A("v_add_f32 v72, v72, v73")
    red8(A, 72, 73)
    A(f"v_mul_f32 v72, {hex(f32bits(1/160))}, v72")
    for i in range(10):
        t = 70 if i % 2 == 0 else 76
        acc = 74 if i % 2 == 0 else 82
        A(f"v_pk_add_f32 v[{t}:{t+1}], v[{H+2*i}:{H+2*i+1}], v[72:73] op_sel_hi:[1,0] neg_lo:[0,1] neg_hi:[0,1]")
        if i < 2: A(f"v_pk_mul_f32 v[{acc}:{acc+1}], v[{t}:{t+1}], v[{t}:{t+1}]")
        else: A(f"v_pk_fma_f32 v[{acc}:{acc+1}], v[{t}:{t+1}], v[{t}:{t+1}], v[{acc}:{acc+1}]")
    A("v_pk_add_f32 v[74:75], v[74:75], v[82:83]")
    A("v_add_f32 v73, v74, v75")
    red8(A, 73, 74)
    A(f"""
    v_lshlrev_b32 v76, 3, v{VTOK}
    v_add_u32 v76, {L_ST}, v76
    s_lshl_b32 s47, s3, 6
    v_add_u32 v77, s47, v76
    v_cmp_gt_u32 vcc, 8, v1
    s_and_saveexec_b64 s[48:49], vcc
    ds_write_b64 v77, v[72:73]
    s_mov_b64 exec, s[48:49]
    s_waitcnt lgkmcnt(0)
    s_barrier
    ds_read_b64 v[78:79], v76
    ds_read_b64 v[80:81], v76 offset:64
    ds_read_b64 v[82:83], v76 offset:128
    ds_read_b64 v[84:85], v76 offset:192
    s_waitcnt lgkmcnt(0)
    v_add_f32 v72, v78, v80
    v_add_f32 v73, v82, v84
    v_add_f32 v72, v72, v73
    v_mul_f32 v72, 0.25, v72
    v_sub_f32 v78, v78, v72
    v_sub_f32 v80, v80, v72
    v_sub_f32 v82, v82, v72
    v_sub_f32 v84, v84, v72
    v_mul_f32 v73, v78, v78
    v_fmac_f32 v73, v80, v80
    v_fmac_f32 v73, v82, v82
    v_fmac_f32 v73, v84, v84
    v_add_f32 v79, v79, v81
    v_add_f32 v83, v83, v85
    v_add_f32 v79, v79, v83
    v_fmac_f32 v79, {hex(f32bits(160))}, v73
    v_mul_f32 v74, {hex(F_INV640)}, v79
    v_cvt_pk_bf16_f32 v78, 0, v72
    v_cvt_pk_bf16_f32 v75, 0, v74
    v_add_f32 v75, {hex(F_EPS)}, v75
    v_cvt_pk_bf16_f32 v75, 0, v75
    v_sqrt_f32 v75, v75
    s_nop 0
    v_cvt_pk_bf16_f32 v75, 0, v75
    v_rcp_f32 v80, v75
    s_nop 0
    """)

def cmul(A, z, x, y, t):
    A(f"v_pk_mul_f32 v[{t}:{t+1}], v[{x}:{x+1}], v[{y}:{y+1}] op_sel:[0,0] op_sel_hi:[1,0]")
    A(f"v_pk_fma_f32 v[{z}:{z+1}], v[{x}:{x+1}], v[{y}:{y+1}], v[{t}:{t+1}] op_sel:[1,1,0] op_sel_hi:[0,1,1] neg_lo:[1,0,0]")

class Poll:
    pass

def masked_poll(A, sets, cnt, sleep, tag, first=None):
    L = newlbl(tag)
    A(f"s_mov_b32 s{cnt}, 0")
    if first == "plain":
        for st in sets:
            for ld in st["loads"]: A(ld.replace(" sc1", ""))
        A("s_waitcnt vmcnt(0)")
        A(f"s_branch {L}_chk")
    elif first is not None:
        A(f"s_waitcnt vmcnt({first[1]})")
        A(f"s_branch {L}_chk")
    A(f"{L}:")
    for k, st in enumerate(sets):
        m = st["mask"]
        A(f"s_mov_b64 exec, s[{m}:{m+1}]")
        A(f"s_cbranch_execz {L}_sk{k}")
        for ld in st["loads"]: A(ld)
        A(f"{L}_sk{k}:")
    A("s_mov_b64 exec, -1")
    A("s_waitcnt vmcnt(0)")
    A(f"{L}_chk:")
    for k, st in enumerate(sets):
        m = st["mask"]; regs = st["regs"]; t = st["tmp"]
        op = "max" if st.get("sent", "max") == "max" else "min"
        r = list(regs)
        if len(r) == 1:
            src = r[0]
        else:
            if len(r) >= 3:
                A(f"v_{op}3_u32 v{t}, v{r[0]}, v{r[1]}, v{r[2]}"); r = r[3:]
            else:
                A(f"v_{op}_u32 v{t}, v{r[0]}, v{r[1]}"); r = r[2:]
            while len(r) >= 2:
                A(f"v_{op}3_u32 v{t}, v{t}, v{r[0]}, v{r[1]}"); r = r[2:]
            if r: A(f"v_{op}_u32 v{t}, v{t}, v{r[0]}")
            src = t
        sent = "-1" if op == "max" else "0"
        A(f"v_cmp_eq_u32 vcc, {sent}, v{src}")
        A(f"s_and_b64 s[{m}:{m+1}], s[{m}:{m+1}], vcc")
    m0 = sets[0]["mask"]
    if len(sets) == 1:
        A(f"s_cmp_eq_u64 s[{m0}:{m0+1}], 0")
    else:
        A(f"s_or_b64 vcc, s[{m0}:{m0+1}], s[{sets[1]['mask']}:{sets[1]['mask']+1}]")
        for st in sets[2:]:
            A(f"s_or_b64 vcc, vcc, s[{st['mask']}:{st['mask']+1}]")
        A("s_cmp_eq_u64 vcc, 0")
    A(f"s_cbranch_scc1 {L}_done")
    A(f"s_add_u32 s{cnt}, s{cnt}, 1")
    if sleep: A(f"s_sleep {sleep}")
    A(f"s_cmp_lt_u32 s{cnt}, {POLL_LIMIT}")
    A(f"s_cbranch_scc1 {L}")
    A(f"{L}_done:")

def kgen(A, mid_hook, tail_hook, hook0):
    TS = 272; TBUF = 14416; TT = 28832
    A(f"""
    s_bitcmp1_b32 s{S_D}, 0
    s_cbranch_scc1 kg_odd
    s_lshl_b32 s42, s42, 16
    s_lshl_b32 s{S_DS}, s{S_DS}, 16
    kg_odd:
    s_and_b32 s42, s42, 0xffff0000
    s_and_b32 s{S_DS}, s{S_DS}, 0xffff0000
    v_mov_b32 v14, {hex(F_LOG2E)}
    v_mul_f32 v15, s42, v14
    v_exp_f32 v15, v15
    s_mov_b32 s43, 0x7fff7fff
    v_and_b32 v112, s43, v112
    v_and_b32 v113, s43, v113
    v_and_b32 v114, s43, v114
    v_and_b32 v115, s43, v115
    v_cvt_pk_bf16_f32 v15, 0, v15
    v_pk_max_u16 v112, v112, v113
    v_pk_max_u16 v114, v114, v115
    v_pk_max_u16 v10, v112, v114
    v_lshrrev_b32 v11, 16, v10
    v_and_b32 v10, 0xffff, v10
    v_max_u32 v10, v10, v11
    """)
    E1, W8, E256, X2, X3, X4, X6, E512, XA, XB, CX, TX, C, CY, TY = 18, 20, 22, 24, 26, 28, 32, 34, 36, 38, 40, 42, 44, 116, 118
    PX, PY = [46, 47, 122, 123], [120, 121, 124, 125]
    WDELAY = int(os.environ.get('WDELAY', '1'))
    D = 48
    FR = 128
    def setup_a(p):
        L = []; a = L.append
        lar, aim = 100 + 4*p, 101 + 4*p
        a(f"v_lshlrev_b32 v{lar}, 16, v{lar}")
        a(f"v_lshlrev_b32 v{aim}, 16, v{aim}")
        a(f"v_mul_f32 v4, v14, v{lar}")
        a(f"v_exp_f32 v4, v4")
        a(f"v_mul_f32 v5, v{aim}, v15")
        a(f"v_mul_f32 v5, {hex(F_INV2PI)}, v5")
        a(f"v_cvt_pk_bf16_f32 v4, 0, v4")
        a(f"v_mul_f32 v4, v4, v15")
        a(f"v_mul_f32 v4, v4, v14")
        for k, (dst, pw) in enumerate(((E1, 1), (W8, 8), (E256, 256))):
            m, f = 6 + 2*(k % 2), 7 + 2*(k % 2)
            if pw == 1:
                a(f"v_exp_f32 v{m}, -v4")
                a(f"v_fract_f32 v{f}, v5")
            else:
                a(f"v_mul_f32 v{m}, {hex(f32bits(pw))}, v4")
                a(f"v_mul_f32 v{f}, {hex(f32bits(pw))}, v5")
                a(f"v_exp_f32 v{m}, -v{m}")
                a(f"v_fract_f32 v{f}, v{f}")
            a(f"v_cos_f32 v{dst}, v{f}")
            a(f"v_sin_f32 v{dst+1}, v{f}")
            a("s_nop 0")
            a(f"v_mul_f32 v{dst}, v{dst}, v{m}")
            a(f"v_mul_f32 v{dst+1}, v{dst+1}, v{m}")
        return L
    def setup_c(p):
        cre, cim = 102 + 4*p, 103 + 4*p
        return [f"v_lshlrev_b32 v{cre}, 16, v{cre}", f"v_lshlrev_b32 v{cim}, 16, v{cim}",
                f"v_mul_f32 v{C}, v{cre}, v11", f"v_mul_f32 v{C+1}, v{cim}, v11"]
    def cm(z, x, y, t):
        return [f"v_pk_mul_f32 v[{t}:{t+1}], v[{x}:{x+1}], v[{y}:{y+1}] op_sel:[0,0] op_sel_hi:[1,0]",
                f"v_pk_fma_f32 v[{z}:{z+1}], v[{x}:{x+1}], v[{y}:{y+1}], v[{t}:{t+1}] op_sel:[1,1,0] op_sel_hi:[0,1,1] neg_lo:[1,0,0]"]
    def tables():
        cnt = [0, 0]
        pendw = [[], []]
        def put(row, pair, neg, which, const=None):
            P = (PX, PY)[which]; r = P[cnt[which] % len(P)]; cnt[which] += 1
            L = [f"v_mov_b32 v{r}, {hex(const)}"] if const is not None else [f"v_cvt_pk_f16_f32 v{r}, v{pair}, {'-' if neg else ''}v{pair+1}"]
            pendw[which].append(f"ds_write_addtid_b32 v{r} offset:{row*TS}")
            if len(pendw[which]) > WDELAY:
                L.append(pendw[which].pop(0))
            return L
        X = []
        X += put(0, None, False, 0, const=0x3c00)
        X += put(1, E1, False, 0)
        X += cm(X2, E1, E1, TX) + put(2, X2, False, 0)
        X += put(8, E256, False, 0)
        X += cm(E512, E256, E256, TX) + put(12, E512, False, 0)
        X += cm(X3, X2, E1, TX) + put(3, X3, False, 0)
        X += cm(X4, X2, X2, TX) + put(4, X4, False, 0)
        X += cm(XA, E512, E256, TX) + put(14, XA, False, 0)
        X += cm(CX, X4, E1, TX) + put(5, CX, False, 0)
        X += cm(X6, X4, X2, TX) + put(6, X6, False, 0)
        X += cm(CX, X4, X3, TX) + put(7, CX, False, 0)
        X += cm(CX, E256, X2, TX) + put(9, CX, False, 0)
        X += cm(CX, E256, X4, TX) + put(10, CX, False, 0)
        X += cm(CX, E256, X6, TX) + put(11, CX, False, 0)
        X += cm(CX, E512, X4, TX) + put(13, CX, False, 0)
        X += cm(CX, XA, X4, TX) + put(15, CX, False, 0)
        X += cm(XA, E512, E512, TX) + put(16, XA, False, 0)
        X += cm(CX, XA, E256, TX) + put(17, CX, False, 0)
        X += cm(XB, XA, E512, TX) + put(18, XB, False, 0)
        X += cm(CX, XB, E256, TX) + put(19, CX, False, 0)
        X += cm(CX, XA, XA, TX) + put(20, CX, False, 0)
        Y = []
        Y += put(21, C, True, 1)
        Y += cm(CY, C, W8, TY) + put(22, CY, True, 1)
        for c in range(2, 32):
            Y += cm(CY, CY, W8, TY) + put(21 + c, CY, True, 1)
        X += pendw[0]; Y += pendw[1]
        out = []; i = j = 0
        while i < len(X) or j < len(Y):
            if j >= len(Y) or (i < len(X) and i * len(Y) <= j * len(X)):
                out.append(X[i]); i += 1
            else:
                out.append(Y[j]); j += 1
        return out
    sa = setup_a(0)
    red = []
    R_ = Asm0()
    allreduce16(R_, "v_max_u32", 10); xor16(R_, "v_max_u32", 10, 11); xor32(R_, "v_max_u32", 10, 11)
    R_(f"""
    v_lshlrev_b32 v10, 16, v10
    v_mul_f32 v10, v10, v15
    v_lshrrev_b32 v10, 23, v10
    v_max_u32 v10, 5, v10
    v_min_u32 v10, 0xfe, v10
    v_sub_u32 v11, 0x103, v10
    v_lshlrev_b32 v11, 23, v11
    v_subrev_u32 v30, 4, v10
    v_lshlrev_b32 v30, 23, v30
    v_mul_f32 v11, v11, v15
    v_lshrrev_b32 v13, 5, v1
    v_and_b32 v16, 31, v1
    v_mul_u32_u24 v16, {TS}, v16
    v_lshl_add_u32 v13, v13, 4, v16
    v_add_u32 v13, s{S_B}, v13
    """)
    for ins in R_.l: A(ins.strip())
    for ins in sa: A(ins)
    for ins in setup_c(0): A(ins)
    A(f"s_mov_b32 m0, s{S_B}")
    A("s_nop 0")
    for ins in tables(): A(ins)
    hook0()
    A(f"s_add_u32 s43, s{S_B}, 0")
    for p in range(3):
        buf = p % 2
        for s in range(8):
            A(f"ds_read_b128 v[{FR+8*s}:{FR+8*s+3}], v13 offset:{TBUF*buf + 32*s}")
            A(f"ds_read_b128 v[{FR+8*s+4}:{FR+8*s+7}], v13 offset:{TBUF*buf + 21*TS + 32*s}")
        if p < 2:
            A(f"s_add_u32 s43, s{S_B}, {TBUF*((p+1)%2)}")
            A("s_mov_b32 m0, s43")
            nxt = setup_a(p + 1) + setup_c(p + 1) + tables()
        else:
            mid_hook()
            nxt = []
            H_ = Asm0()
            H_(f"""
            v_and_b32 v14, 31, v1
            v_lshrrev_b32 v15, 5, v1
            v_lshlrev_b32 v16, 4, v14
            v_lshl_add_u32 v16, v15, 3, v16
            v_sub_u32 v17, {TT+504}, v16
            v_add_u32 v17, s{S_B}, v17
            v_add_u32 v16, {TT+1024}, v16
            v_add_u32 v16, s{S_B}, v16
            v_lshlrev_b32 v18, 3, v14
            v_add_u32 v18, {TT+512}, v18
            v_add_u32 v19, 4, v18
            v_lshlrev_b32 v20, 2, v14
            v_add_u32 v20, {TT+768}, v20
            v_add_u32 v21, 128, v20
            v_cmp_eq_u32 vcc, 0, v15
            s_nop 1
            v_cndmask_b32 v18, v20, v18, vcc
            v_cndmask_b32 v19, v21, v19, vcc
            v_add_u32 v18, s{S_B}, v18
            v_add_u32 v19, s{S_B}, v19
            s_add_u32 s43, s{S_B}, {TT}
            v_sub_u32 v4, 127, v1
            v_add_u32 v5, 1, v4
            v_and_b32 v6, 31, v4
            v_lshrrev_b32 v7, 5, v4
            v_lshlrev_b32 v6, 4, v6
            v_lshl_add_u32 v6, v7, 1, v6
            v_and_b32 v8, 31, v5
            v_lshrrev_b32 v7, 5, v5
            v_lshlrev_b32 v8, 4, v8
            v_lshl_add_u32 v8, v7, 1, v8
            v_add_u32 v6, s43, v6
            v_add_u32 v8, s43, v8
            v_sub_u32 v9, 63, v1
            v_lshlrev_b32 v10, 2, v9
            v_add_u32 v10, s43, v10
            v_sub_u32 v11, 31, v1
            v_and_b32 v11, 31, v11
            v_lshlrev_b32 v11, 3, v11
            v_add_u32 v11, s43, v11
            v_and_b32 v9, 31, v9
            v_lshlrev_b32 v9, 4, v9
            v_sub_u32 v9, 496, v9
            v_add_u32 v9, s43, v9
            v_lshlrev_b32 v3, 4, v1
            v_add_u32 v3, s{S_K}, v3
            """)
            nxt = [x.strip() for x in H_.l]
        nlds_after = 0
        per = (len(nxt) + 7) // 8 if nxt else 0
        lead = min(int(os.environ.get('LEAD', '30')) if p < 2 else 20, len(nxt))
        pos = 0
        for ins in nxt[:lead]:
            A(ins); pos += 1
            if ins.startswith("ds_"): nlds_after += 1
        rest = nxt[lead:]
        per = (len(rest) + 7) // 8 if rest else 0
        for s in range(8):
            need = 2 * (7 - s) + nlds_after
            if need <= 15: A(f"s_waitcnt lgkmcnt({need})")
            else: A("s_waitcnt lgkmcnt(15)") if False else A(f"s_waitcnt lgkmcnt({min(15, need)})")
            c = "0" if (s == 0 and p == 0) else f"v[{D}:{D+15}]"
            A(f"v_mfma_f32_32x32x16_f16 v[{D}:{D+15}], v[{FR+8*s}:{FR+8*s+3}], v[{FR+8*s+4}:{FR+8*s+7}], {c}")
            for ins in rest[s*per:(s+1)*per]:
                A(ins)
                if ins.startswith("ds_"): nlds_after += 1
    tail_hook()
    A(f"""
    s_nop 7
    s_nop 3
    v_cvt_pk_f16_f32 v22, v{D+3}, v{D+2}
    v_cvt_pk_f16_f32 v23, v{D+1}, v{D}
    ds_write_b64 v17, v[22:23]
    v_cvt_pk_f16_f32 v24, v{D+4}, v{D+5}
    v_cvt_pk_f16_f32 v25, v{D+6}, v{D+7}
    ds_write_b32 v18, v24
    ds_write_b32 v19, v25
    v_cvt_pk_f16_f32 v26, v{D+8}, v{D+9}
    v_cvt_pk_f16_f32 v27, v{D+10}, v{D+11}
    ds_write_b64 v16, v[26:27]
    s_mov_b32 s44, 0x05040100
    s_mov_b32 s45, 0x01000100
    s_mov_b32 s46, 0x03020302
    s_mov_b32 s47, 0x07060100
    s_mov_b32 s48, 0x03020504
    v_and_b32 v7, 1, v4
    v_cmp_eq_u32 vcc, 1, v7
    s_waitcnt lgkmcnt(0)
    ds_read_u16 v32, v6 offset:1024
    ds_read_u16 v33, v8 offset:1024
    ds_read_u16 v34, v6 offset:1020
    ds_read_u16 v35, v8 offset:1020
    ds_read2_b32 v[36:37], v10 offset0:192 offset1:193
    ds_read_b64 v[38:39], v11 offset:512
    ds_read_u16 v40, v11 offset:520
    ds_read_b128 v[44:47], v9
    s_waitcnt lgkmcnt(4)
    v_cndmask_b32 v41, v32, v33, vcc
    v_cndmask_b32 v42, v34, v35, vcc
    v_perm_b32 v48, v33, v33, s45
    v_perm_b32 v49, v41, v33, s44
    v_perm_b32 v50, v32, v32, s45
    v_mov_b32 v51, v50
    ds_write_b128 v3, v[48:51]
    v_perm_b32 v52, v35, v35, s45
    v_perm_b32 v53, v42, v35, s44
    v_perm_b32 v54, v34, v34, s45
    v_mov_b32 v55, v54
    ds_write_b128 v3, v[52:55] offset:1024
    s_waitcnt lgkmcnt(2)
    v_perm_b32 v56, v37, v37, s45
    v_perm_b32 v57, v36, v36, s46
    v_alignbit_b32 v58, v36, v36, 16
    v_perm_b32 v59, v36, v36, s45
    ds_write_b128 v3, v[56:59] offset:2048
    v_perm_b32 v60, v39, v40, s47
    v_perm_b32 v61, v39, v39, s45
    v_perm_b32 v62, v39, v38, s48
    v_perm_b32 v63, v38, v38, s45
    v_cmp_gt_u32 vcc, 32, v1
    s_nop 1
    v_cndmask_b32 v60, v44, v60, vcc
    v_cndmask_b32 v61, v45, v61, vcc
    v_cndmask_b32 v62, v46, v62, vcc
    v_cndmask_b32 v63, v47, v63, vcc
    ds_write_b128 v3, v[60:63] offset:3072
    v_mov_b32 v16, 0
    v_mov_b32 v17, 0
    v_mov_b32 v18, 0
    v_mov_b32 v19, 0
    v_cmp_gt_u32 vcc, 30, v1
    s_and_saveexec_b64 s[52:53], vcc
    ds_write_b128 v3, v[16:19] offset:4096
    s_mov_b64 exec, s[52:53]
    """)

def conv_main(A, hook_idx=None, hook=None):
    ACC, AR, NR, EP = 32, 64, 12, 112
    mf = [(q, al) for al in range(64) for q in range(al // 8, 8)]
    first_use = {}
    for i, (q, al) in enumerate(mf):
        first_use.setdefault(("A", al), i)
        first_use.setdefault(("B", 8*q - al), i)
    loads = sorted(first_use.items(), key=lambda kv: (kv[1], kv[0][0]))
    last_of_tile = {q: max(i for i, (qq, al) in enumerate(mf) if qq == q) for q in range(8)}
    lastuse_A = {al: max(i for i, (q, a2) in enumerate(mf) if a2 == al) for al in range(64)}
    def epi_instrs(q):
        a = ACC + 4 * q
        e = EP + 16 * (q % 2)
        U = e + 14
        L = [("lds", f"ds_read_b64 v[{U}:{U+1}], v27 offset:{512*q}")]
        for j in range(4): L.append(("v", f"v_cvt_pk_bf16_f32 v{e+j}, 0, v{a+j}"))
        L.append(("waitu", None))
        L.append(("v", f"v_fma_mix_f32 v{e+4}, v{U}, s{S_DS}, 0 op_sel_hi:[1,0,0]"))
        L.append(("v", f"v_fma_mix_f32 v{e+5}, v{U}, s{S_DS}, 0 op_sel:[1,0,0] op_sel_hi:[1,0,0]"))
        L.append(("v", f"v_fma_mix_f32 v{e+6}, v{U+1}, s{S_DS}, 0 op_sel_hi:[1,0,0]"))
        L.append(("v", f"v_fma_mix_f32 v{e+7}, v{U+1}, s{S_DS}, 0 op_sel:[1,0,0] op_sel_hi:[1,0,0]"))
        for j in range(4): L.append(("v", f"v_cvt_pk_bf16_f32 v{e+4+j}, 0, v{e+4+j}"))
        for j in range(4): L.append(("v", f"v_fmac_f32 v{e+4+j}, v30, v{e+j}"))
        L.append(("v", f"v_cvt_pk_bf16_f32 v{e}, v{e+4}, v{e+5}"))
        L.append(("v", f"v_cvt_pk_bf16_f32 v{e+1}, v{e+6}, v{e+7}"))
        L.append(("gap", None))
        L.append(("v", f"v_permlane16_swap_b32 v{e}, v{e+2}"))
        L.append(("v", f"v_permlane16_swap_b32 v{e+1}, v{e+3}"))
        L.append(("st", f"buffer_store_dwordx4 v[{e}:{e+3}], v26, s[{S_WS}:{S_WS+3}], s{S_AO} offen offset:{512*q} sc1"))
        return L
    ldsq = []
    cur = [0]
    LAT = 6
    def lds_wait_for(idset, extend=True):
        idxs = [i for i, n in enumerate(ldsq) if n[0] in idset]
        if not idxs: return False
        k = max(idxs)
        if extend:
            while k + 1 < len(ldsq) and ldsq[k+1][1] <= cur[0] - LAT: k += 1
        A(f"s_waitcnt lgkmcnt({len(ldsq) - 1 - k})")
        del ldsq[:k+1]
        return True
    def issue_load(key):
        kind, v = key
        if kind == "A":
            r = AR + 4 * (v % NR)
            A(f"ds_read_b64 v[{r}:{r+1}], v24 offset:{64*v}"); ldsq.append((key, cur[0]))
            A(f"ds_read_b64 v[{r+2}:{r+3}], v24 offset:{64*v+8}"); ldsq.append((key, cur[0]))
        else:
            r = 4 * (v + 7)
            A(f"ds_read_b128 a[{r}:{r+3}], v25 offset:{64*(56-v)}"); ldsq.append((key, cur[0]))
    li = 0
    epi_q = []
    stores_after = [0]
    WINDOW, MAXQ = 12, 14
    for i, (q, al) in enumerate(mf):
        cur[0] = i
        budget = 2 if i > 0 else 99
        need = {("A", al), ("B", 8*q - al)}
        if any(n[0] in need for n in ldsq): budget -= 1
        while li < len(loads):
            key, dl = loads[li]
            n = 2 if key[0] == "A" else 1
            must = dl <= i
            if not must:
                if dl - i > WINDOW or budget <= 0: break
                if len(ldsq) + n > MAXQ: break
                if key[0] == "A" and key[1] >= NR and lastuse_A[key[1] - NR] >= i: break
            else:
                if len(ldsq) + n > 15:
                    A(f"s_waitcnt lgkmcnt({15-n})"); del ldsq[:len(ldsq) - (15 - n)]
            issue_load(key)
            budget -= n
            li += 1
        while budget > 0 and epi_q and epi_q[0][0] <= i:
            _, kind, txt, eq = epi_q.pop(0)
            if kind == "lds":
                if len(ldsq) + 1 > 15:
                    A("s_waitcnt lgkmcnt(14)"); del ldsq[:len(ldsq) - 14]
                A(txt); ldsq.append((("EU", eq), i))
            elif kind == "waitu":
                if lds_wait_for({("EU", eq)}): budget -= 1
                continue
            elif kind == "gap":
                if epi_q: epi_q[0] = (i + 2,) + epi_q[0][1:]
                break
            else:
                A(txt)
                if kind == "st": stores_after[0] += 1
            budget -= 1
        if hook is not None and i == hook_idx:
            hook(); stores_after[0] = 0
        lds_wait_for(need)
        r = AR + 4 * (al % NR)
        g = 8 * q - al
        c = "0" if al == 0 else f"v[{ACC+4*q}:{ACC+4*q+3}]"
        A(f"v_mfma_f32_16x16x32_f16 v[{ACC+4*q}:{ACC+4*q+3}], v[{r}:{r+3}], a[{4*(g+7)}:{4*(g+7)+3}], {c}")
        if i == last_of_tile[q]:
            for kind, txt in epi_instrs(q):
                epi_q.append((i + (1 if kind == "lds" else 8), kind, txt, q))
    cur[0] = len(mf) + 100
    A("s_nop 7")
    for _, kind, txt, eq in epi_q:
        if kind == "lds":
            A(txt); ldsq.append((("EU", eq), 0))
        elif kind == "waitu":
            lds_wait_for({("EU", eq)}, extend=False)
        elif kind == "gap":
            A("s_nop 1")
        else:
            A(txt)
            if kind == "st": stores_after[0] += 1
    return stores_after[0]

def gen_main(A):
    name = NAME + "_kernel"
    A.l.append(f".globl {name}")
    A.l.append(".p2align 8")
    A.l.append(f".type {name},@function")
    A.l.append(f"{name}:")
    A("s_cmp_ge_u32 s2, 256")
    A("s_cbranch_scc1 k_exit")
    if STAMP: A("v_mov_b32 v255, 0")
    if STAMP: A("v_mov_b32 v254, 0")
    if CODEPF:
        A("""
        s_getpc_b64 s[90:91]
        k_pc:
        v_lshlrev_b32 v2, 4, v0
        v_mov_b32 v3, s91
        v_add_co_u32 v2, vcc, s90, v2
        v_addc_co_u32 v3, vcc, 0, v3, vcc
        """)
        for i in range(NPF):
            A(f"v_cmp_gt_u32 vcc, (k_code_end-k_pc-{4096*i})/16, v0")
            A("s_and_saveexec_b64 s[92:93], vcc")
            A(f"s_cbranch_execz k_pf_done")
            A("global_load_dwordx4 v[160:163], v[2:3], off")
            A("s_mov_b64 exec, s[92:93]")
            A("v_add_co_u32 v2, vcc, 0x1000, v2")
            A("v_addc_co_u32 v3, vcc, 0, v3, vcc")
        A("k_pf_done:")
        A("s_mov_b64 exec, -1")
    stamp(A, 0)
    WS = f"s[{S_WS}:{S_WS+3}]"
    A(f"""
    s_load_dwordx2 s[4:5], s[0:1], {ARG['x']}
    s_load_dwordx2 s[6:7], s[0:1], {ARG['ws']}
    s_load_dwordx4 s[44:47], s[0:1], {ARG['lar']}
    s_load_dwordx4 s[48:51], s[0:1], {ARG['cre']}
    s_load_dwordx4 s[56:59], s[0:1], {ARG['ldt']}
    s_load_dwordx4 s[60:63], s[0:1], {ARG['wr']}
    s_load_dwordx4 s[64:67], s[0:1], {ARG['wu']}
    s_load_dwordx4 s[68:71], s[0:1], {ARG['out']}
    s_and_b32 s52, s2, 7
    s_lshr_b32 s53, s2, 3
    s_mul_i32 s54, s52, 20
    s_add_u32 s{S_TB}, s54, s53
    s_cmp_lt_u32 s2, 160
    s_cbranch_scc1 k_tb_done
    s_mul_i32 s54, s52, 12
    s_add_u32 s54, s54, s53
    s_add_u32 s{S_TB}, s54, 140
    k_tb_done:
    s_lshl_b32 s{S_T0}, s{S_TB}, 3
    v_lshrrev_b32 v2, 6, v0
    v_and_b32 v1, 63, v0
    s_nop 0
    v_readfirstlane_b32 s3, v2
    v_and_b32 v{VTOK}, 7, v1
    v_lshrrev_b32 v5, 3, v1
    v_add_u32 v6, s{S_T0}, v{VTOK}
    s_movk_i32 s52, 1280
    v_mul_lo_u32 v6, v6, s52
    s_mul_i32 s53, s3, 320
    v_lshl_add_u32 v{VCH}, v5, 3, s53
    v_add_u32 v{VROW}, v6, v{VCH}
    s_waitcnt lgkmcnt(0)
    """)
    srd(A, S_WS, 6, 7, 0, WS_SIZE)
    srd(A, S_X, 4, 5, 0, 2621440)
    A(f"""
    v_mov_b32 v199, 0
    s_mov_b32 s52, {WS_FL}
    s_cmp_lg_u32 s2, {NONWG}
    s_cbranch_scc1 k_non0
    buffer_load_dword v197, v199, {WS}, s52 offen sc1
    k_non0:
    """)
    for i in range(5):
        A(f"buffer_load_dwordx2 v[{200+2*i}:{201+2*i}], v{VROW}, s[{S_X}:{S_X+3}], 0 offen offset:{64*i}")
    srd(A, S_DBG, 70, 71, 0, 256)
    srd(A, S_WR, 60, 61, 0, 1280)
    for i in range(5):
        A(f"buffer_load_dwordx2 v[{VW+2*i}:{VW+2*i+1}], v{VCH}, s[{S_WR}:{S_WR+3}], 0 offen offset:{64*i}")
    srd(A, S_X, 68, 69, 0, 2621440)
    def small_clears():
        A(f"""
        s_mov_b64 exec, 0xfff
        s_mul_i32 s52, s2, 192
        s_add_u32 s52, s52, {WS_SM}
        buffer_store_dwordx4 v[40:43], v44, {WS}, s52 offen sc1
        s_mov_b64 exec, 3
        v_mov_b32 v46, 0
        v_mov_b32 v47, 0
        v_mov_b32 v48, 0
        v_mov_b32 v49, 0
        s_lshl_b32 s52, s{S_TB}, 5
        s_add_u32 s52, s52, {WS_KEY}
        buffer_store_dwordx4 v[46:49], v44, {WS}, s52 offen sc1
        s_mov_b64 exec, -1
        """)
    def publish_flag(tag):
        A(f"""
        s_cmp_lg_u32 s3, 0
        s_cbranch_scc1 {tag}_w
        s_waitcnt vmcnt(0)
        v_cmp_eq_u32 vcc, 0, v198
        s_mov_b64 s[54:55], vcc
        s_cmp_eq_u64 vcc, 0
        s_cbranch_scc1 {tag}_have
        """)
        masked_poll(A, [dict(mask=54, loads=[f"buffer_load_dword v198, v199, s[{S_DBG}:{S_DBG+3}], 0 offen sc1"], regs=[198], tmp=197, sent="min")], 53, 1, tag + "non")
        A(f"""
        {tag}_have:
        v_mov_b32 v197, {L_NON}
        ds_write_b32 v197, v198
        s_waitcnt lgkmcnt(0)
        {tag}_w:
        s_waitcnt vmcnt(0)
        s_barrier
        s_cmp_lg_u32 s3, 0
        s_cbranch_scc1 {tag}_done
        v_lshlrev_b32 v197, 10, v1
        s_lshl_b32 s52, s2, 2
        s_add_u32 s52, s52, {WS_FL}
        s_mov_b64 exec, 0xff
        buffer_store_dword v198, v197, {WS}, s52 offen sc1
        s_mov_b64 exec, -1
        {tag}_done:
        v_mov_b32 v197, {L_NON}
        ds_read_b32 v199, v197
        """)
    A(f"""
    v_mov_b32 v40, -1
    v_mov_b32 v41, -1
    v_mov_b32 v42, -1
    v_mov_b32 v43, -1
    v_lshlrev_b32 v44, 4, v1
    s_cmp_ge_u32 s2, 160
    s_cbranch_scc1 k_p0_ffn
    """)
    srd(A, 24, 44, 45, 0, 245760)
    srd(A, 28, 46, 47, 0, 245760)
    srd(A, 32, 48, 49, 0, 245760)
    srd(A, 36, 50, 51, 0, 245760)
    A(f"""
    s_lshl_b32 s{S_D}, s2, 2
    s_add_u32 s{S_D}, s{S_D}, s3
    s_mul_i32 s{S_B}, s3, {WAVE_LDS}
    s_add_u32 s{S_B}, s{S_B}, {LBASE}
    s_add_u32 s{S_K}, s{S_B}, {KOFF}
    s_lshl_b32 s{S_AO}, s{S_D}, 12
    s_add_u32 s{S_AO}, s{S_AO}, {WS_AT}
    s_mul_i32 s52, s{S_D}, 384
    v_lshlrev_b32 v3, 1, v1
    s_and_b32 s53, s{S_D}, 0xfffffffe
    s_lshl_b32 s53, s53, 1
    s_load_dword s42, s[56:57], s53
    s_load_dword s{S_DS}, s[58:59], s53
    """)
    for p in range(3):
        for j in range(4):
            A(f"buffer_load_ushort v{100+4*p+j}, v3, s[{24+4*j}:{27+4*j}], s52 offen offset:{128*p}")
    A(f"""
    v_lshlrev_b32 v8, 3, v1
    v_mov_b32 v112, 0
    v_mov_b32 v113, 0
    v_mov_b32 v114, 0
    v_mov_b32 v115, 0
    v_cmp_gt_u32 vcc, 48, v1
    s_and_saveexec_b64 s[54:55], vcc
    buffer_load_dwordx2 v[112:113], v8, s[32:35], s52 offen
    buffer_load_dwordx2 v[114:115], v8, s[36:39], s52 offen
    s_mov_b64 exec, s[54:55]
    s_waitcnt vmcnt(19)
    """)
    for i in range(4):
        A(f"buffer_store_dwordx4 v[40:43], v44, {WS}, s{S_AO} offen offset:{1024*i} sc1")
    A("s_branch k_p0_join")
    A("k_p0_ffn:")
    A("s_sub_u32 s38, s2, 160")
    if WPF:
        srd(A, 24, 62, 63, 0, 640*3072)
        srd(A, 28, 64, 65, 0, 640*3072)
        srd(A, 32, 66, 67, 0, 1536*1280)
        A(f"""
        s_and_b32 s39, s38, 7
        s_lshr_b32 s42, s38, 3
        s_mul_i32 s52, s42, 160
        v_add_u32 v8, s52, v0
        v_mul_u32_u24 v9, 0x5556, v8
        v_lshrrev_b32 v9, 16, v9
        v_mul_u32_u24 v10, 3, v9
        v_sub_u32 v10, v8, v10
        v_mul_u32_u24 v9, 3072, v9
        v_lshl_add_u32 v9, v10, 7, v9
        s_mul_i32 s52, s39, 384
        v_mov_b32 v11, 0x7fffffff
        v_cmp_gt_u32 vcc, 160, v0
        s_lshl_b32 s53, s42, 8
        v_add_u32 v12, s53, v0
        v_cndmask_b32 v9, v11, v9, vcc
        buffer_load_dword v160, v9, s[24:27], s52 offen
        buffer_load_dword v161, v9, s[28:31], s52 offen
        v_lshrrev_b32 v10, 1, v12
        v_mul_u32_u24 v10, 1280, v10
        v_and_b32 v12, 1, v12
        v_lshl_add_u32 v10, v12, 7, v10
        s_mul_i32 s52, s39, 160
        s_and_b32 s52, s52, 0xffffff80
        buffer_load_dword v162, v10, s[32:35], s52 offen
        s_waitcnt vmcnt(8)
        """)
    else:
        A("s_waitcnt vmcnt(5)")
    A("k_p0_join:")
    A(f"""
    s_cmp_lg_u32 s2, {NONWG}
    s_cbranch_scc1 k_non1
    s_cmp_lg_u32 s3, 0
    s_cbranch_scc1 k_non1
    v_add_u32 v197, 1, v197
    v_max_u32 v197, 1, v197
    s_mov_b64 exec, 1
    buffer_store_dword v197, v199, s[{S_DBG}:{S_DBG+3}], 0 offen sc1
    s_mov_b64 exec, -1
    k_non1:
    """)
    stamp(A, 1)
    A("s_cmp_lg_u32 s3, 0")
    A("s_cbranch_scc1 k_p0_j2")
    small_clears()
    A("k_p0_j2:")
    for i in range(10):
        unpack_bf16(A, 200 + i, VXF + 2*i, VXF + 2*i + 1)
    ln_stats(A, VXF)
    for i in range(10):
        a_, b_ = VXF + 2*i, VXF + 2*i + 1
        t = 86 + 2 * (i % 2)
        A(f"v_pk_add_f32 v[{t}:{t+1}], v[{a_}:{b_}], v[78:79] op_sel_hi:[1,0] neg_lo:[0,1] neg_hi:[0,1]")
        rnd(A, t, t); rnd(A, t+1, t+1)
        A(f"v_pk_mul_f32 v[{t}:{t+1}], v[{t}:{t+1}], v[80:81] op_sel_hi:[1,0]")
        rnd(A, t, t); rnd(A, t+1, t+1)
        A(f"v_cvt_pk_f16_f32 v{30+i}, v{t}, v{t+1}")
    A(f"""
    s_movk_i32 s52, {TSTR}
    v_mul_lo_u32 v6, v{VTOK}, s52
    v_add_u32 v6, v6, v{VCH}
    """)
    for i in range(5):
        A(f"ds_write_b64 v6, v[{30+2*i}:{31+2*i}] offset:{L_AT + 64*i}")
    A(f"""
    v_bfe_u32 v3, v1, 2, 2
    v_mul_lo_u32 v3, v3, s52
    v_lshrrev_b32 v4, 4, v1
    v_lshl_add_u32 v3, v4, 5, v3
    v_and_b32 v4, 3, v1
    v_lshl_add_u32 v3, v4, 3, v3
    s_lshl_b32 s53, s3, 7
    v_add_u32 v3, s53, v3
    v_lshlrev_b32 v4, 4, v0
    s_mul_i32 s52, s{S_TB}, 10240
    s_add_u32 s52, s52, {WS_UB}
    s_add_u32 s53, s52, 4096
    s_add_u32 s54, s52, 8192
    s_waitcnt lgkmcnt(0)
    s_barrier
    ds_read_b64_tr_b16 v[8:9], v3 offset:{L_AT}
    ds_read_b64_tr_b16 v[10:11], v3 offset:{L_AT + 4*TSTR}
    ds_read_b64_tr_b16 v[12:13], v3 offset:{L_AT + 512}
    ds_read_b64_tr_b16 v[14:15], v3 offset:{L_AT + 4*TSTR + 512}
    ds_read_b64_tr_b16 v[16:17], v3 offset:{L_AT + 1024}
    ds_read_b64_tr_b16 v[18:19], v3 offset:{L_AT + 4*TSTR + 1024}
    s_waitcnt lgkmcnt(0)
    buffer_store_dwordx4 v[8:11], v4, {WS}, s52 offen sc1
    buffer_store_dwordx4 v[12:15], v4, {WS}, s53 offen sc1
    s_cmp_ge_u32 s3, 2
    s_cbranch_scc1 k_ln1_skip
    buffer_store_dwordx4 v[16:19], v4, {WS}, s54 offen sc1
    k_ln1_skip:
    s_cmp_lg_u32 s3, 0
    s_cbranch_scc1 k_non2
    buffer_load_dword v198, v199, s[{S_DBG}:{S_DBG+3}], 0 offen sc1
    k_non2:
    """)
    stamp(A, 2)
    A("s_cmp_lt_u32 s2, 160")
    A("s_cbranch_scc1 k_conv_role")
    publish_flag("ff")
    A("s_waitcnt lgkmcnt(0)")
    A(f"v_readfirstlane_b32 s{S_NON}, v199")
    stamp(A, 3)
    A("s_branch k_ffn_pre")
    A("k_conv_role:")
    A("s_waitcnt vmcnt(6)")
    def flag_poll(sleep, first_issued=False):
        L = newlbl("flg")
        if not first_issued:
            flag_setup()
        A(f"s_mov_b32 s53, 0")
        if first_issued:
            A(f"s_branch {L}_chk")
        A(f"{L}:")
        A(f"s_mov_b64 exec, s[54:55]")
        A(f"buffer_load_dwordx4 v[192:195], v196, {WS}, s51 offen sc1")
        A("s_mov_b64 exec, -1")
        A(f"{L}_chk:")
        A("s_waitcnt vmcnt(0)")
        A(f"v_xor_b32 v192, s{S_NON}, v192")
        A(f"v_xor_b32 v193, s{S_NON}, v193")
        A(f"v_xor_b32 v194, s{S_NON}, v194")
        A(f"v_xor_b32 v195, s{S_NON}, v195")
        A("v_or3_b32 v197, v192, v193, v194")
        A("v_or_b32 v197, v197, v195")
        A("v_cmp_ne_u32 vcc, 0, v197")
        A("s_and_b64 s[54:55], s[54:55], vcc")
        A("s_cmp_eq_u64 s[54:55], 0")
        A(f"s_cbranch_scc1 {L}_done")
        A("s_add_u32 s53, s53, 1")
        A(f"s_sleep {sleep}")
        A(f"s_cmp_lt_u32 s53, {POLL_LIMIT}")
        A(f"s_cbranch_scc1 {L}")
        A(f"{L}_done:")
    def flag_setup():
        A(f"""
        v_lshlrev_b32 v196, 4, v1
        s_and_b32 s51, s2, 7
        s_lshl_b32 s51, s51, 10
        s_add_u32 s51, s51, {WS_FL}
        s_mov_b64 s[54:55], -1
        """)
    def hook0():
        publish_flag("cf")
        stamp(A, 3)
    def mid_hook():
        A(f"v_readfirstlane_b32 s{S_NON}, v199")
        flag_setup()
        A(f"buffer_load_dwordx4 v[192:195], v196, {WS}, s51 offen sc1")
    G = 128
    def tail_hook():
        stamp(A, 4)
        flag_poll(1, first_issued=True)
        stamp(A, 5)
        A(f"""
        v_lshrrev_b32 v196, 2, v1
        s_movk_i32 s52, 10240
        v_mul_lo_u32 v197, v196, s52
        v_and_b32 v198, 3, v1
        v_lshl_add_u32 v197, v198, 4, v197
        s_mul_i32 s52, s3, {64*10240}
        s_lshl_b32 s53, s2, 6
        s_add_u32 s52, s52, s53
        s_add_u32 s52, s52, {WS_UB}
        """)
        for i in range(4):
            A(f"buffer_load_dwordx4 v[{G+4*i}:{G+4*i+3}], v197, {WS}, s52 offen sc1")
            if i < 3: A(f"s_add_u32 s52, s52, {16*10240}")
        A(f"""
        s_movk_i32 s52, {WAVE_LDS}
        v_mul_lo_u32 v198, v198, s52
        v_lshl_add_u32 v198, v196, 4, v198
        s_lshl_b32 s52, s3, 10
        s_add_u32 s52, s52, {LBASE + 32}
        v_add_u32 v198, s52, v198
        """)
    kgen(A, mid_hook, tail_hook, hook0)
    A(f"""
    v_lshlrev_b32 v9, 4, v1
    v_add_u32 v9, s{S_B}, v9
    v_add_u32 v10, 4096, v9
    v_cmp_gt_u32 vcc, 2, v1
    v_and_b32 v21, 15, v1
    v_lshrrev_b32 v22, 4, v1
    v_cndmask_b32 v10, v10, v9, vcc
    v_add_u32 v23, 1, v21
    v_and_b32 v24, 3, v23
    s_movk_i32 s53, 4160
    v_mul_lo_u32 v24, v24, s53
    v_lshrrev_b32 v23, 2, v23
    v_lshl_add_u32 v24, v23, 3, v24
    v_lshl_add_u32 v24, v22, 4, v24
    v_add_u32 v24, s{S_B}, v24
    v_lshlrev_b32 v25, 5, v21
    v_sub_u32 v25, {2*2032 - 64*56}, v25
    v_lshl_add_u32 v25, v22, 4, v25
    v_add_u32 v25, s{S_K}, v25
    v_lshlrev_b32 v26, 5, v21
    v_lshl_add_u32 v27, v22, 3, v26
    v_add_u32 v27, 32, v27
    v_add_u32 v27, s{S_B}, v27
    v_lshrrev_b32 v28, 1, v22
    v_lshl_add_u32 v26, v28, 4, v26
    v_and_b32 v28, 1, v22
    v_lshlrev_b32 v28, 30, v28
    v_or_b32 v26, v26, v28
    s_waitcnt lgkmcnt(0)
    s_barrier
    s_mov_b64 exec, 0xf
    ds_write_b128 v10, v[16:19]
    s_mov_b64 exec, -1
    """)
    for i in range(4):
        A(f"s_waitcnt vmcnt({3-i})")
        A(f"ds_write_b128 v198, v[{G+4*i}:{G+4*i+3}] offset:{256*i}")
    R = 128
    A(f"""
    v_mov_b32 v{R+32}, 0
    v_mov_b32 v{R+33}, 0
    v_mov_b32 v{R+34}, 0
    v_mov_b32 v{R+35}, 0
    s_waitcnt lgkmcnt(0)
    s_barrier
    """)
    stamp(A, 6)
    for i in range(4):
        A(f"ds_read_b128 v[{R+8*i}:{R+8*i+3}], v9 offset:{32 + 1024*i}")
        A(f"ds_read_b64 v[{R+8*i+4}:{R+8*i+5}], v9 offset:{48 + 1024*i}")
    A(f"ds_read_b64 v[{R+36}:{R+37}], v9 offset:16")
    nw = 0
    for i in range(5):
        r = R + 8*i
        reads_after = (2 * (3 - i) + 1) if i < 4 else 0
        A(f"s_waitcnt lgkmcnt({min(15, reads_after + nw)})")
        T1, T2, T3 = 176, 180, 184
        if i % 2: T1, T2, T3 = 188, 192, 196
        A(f"v_alignbit_b32 v{T1}, v{r+1}, v{r}, 16")
        A(f"v_alignbit_b32 v{T1+1}, v{r+2}, v{r+1}, 16")
        A(f"v_alignbit_b32 v{T1+2}, v{r+3}, v{r+2}, 16")
        A(f"v_alignbit_b32 v{T1+3}, v{r+4}, v{r+3}, 16")
        off = (32 + 1024*i) if i < 4 else 0
        if i == 4: A("s_mov_b64 exec, 3")
        A(f"ds_write_b128 v9, v[{T1}:{T1+3}] offset:{CB[1] + off}")
        A(f"v_mov_b32 v{T2}, v{r+1}")
        A(f"v_mov_b32 v{T2+1}, v{r+2}")
        A(f"v_mov_b32 v{T2+2}, v{r+3}")
        A(f"v_mov_b32 v{T2+3}, v{r+4}")
        A(f"ds_write_b128 v9, v[{T2}:{T2+3}] offset:{CB[2] + off}")
        A(f"v_mov_b32 v{T3}, v{T1+1}")
        A(f"v_mov_b32 v{T3+1}, v{T1+2}")
        A(f"v_mov_b32 v{T3+2}, v{T1+3}")
        A(f"v_alignbit_b32 v{T3+3}, v{r+5}, v{r+4}, 16")
        A(f"ds_write_b128 v9, v[{T3}:{T3+3}] offset:{CB[3] + off}")
        if i == 4: A("s_mov_b64 exec, -1")
        nw += 3
    A("s_waitcnt lgkmcnt(0)")
    stamp(A, 12)
    def a_setup():
        A(f"""
        v_lshlrev_b32 v3, 12, v0
        s_lshl_b32 s43, s{S_T0}, 1
        s_add_u32 s43, s43, {WS_AT}
        s_add_u32 s44, s43, {256*4096}
        s_add_u32 s45, s43, {512*4096}
        s_mov_b64 s[54:55], -1
        s_mov_b64 s[56:57], -1
        s_mov_b64 s[58:59], -1
        """)
    asets = [dict(mask=54, loads=[f"buffer_load_dwordx4 v[8:11], v3, {WS}, s43 offen sc1"], regs=[8,9,10,11], tmp=20),
             dict(mask=56, loads=[f"buffer_load_dwordx4 v[12:15], v3, {WS}, s44 offen sc1"], regs=[12,13,14,15], tmp=20),
             dict(mask=58, loads=[f"buffer_load_dwordx4 v[16:19], v3, {WS}, s45 offen sc1"], regs=[16,17,18,19], tmp=20)]
    def mask3():
        L = newlbl("m3")
        A(f"s_cmp_lt_u32 s3, 2")
        A(f"s_cbranch_scc1 {L}")
        A("s_mov_b64 s[58:59], 0")
        A(f"{L}:")
    a_setup()
    def a_hook():
        for st in asets:
            for ld in st["loads"]: A(ld.replace(" sc1", APLAIN))
    nst = conv_main(A, AHOOK, a_hook if AHOOK >= 0 else None)
    stamp(A, 7)
    if CDELAY: A(f"s_sleep {CDELAY}")
    mask3()
    masked_poll(A, asets, 46, ASLEEP, "apollc", first=(("issued", nst) if AHOOK >= 0 else None))
    cnt_stamp(A, 0, 46)
    A("s_branch k_ln2c")
    A("k_ffn_pre:")
    srd(A, 24, 62, 63, 0, 640*3072)
    srd(A, 28, 64, 65, 0, 640*3072)
    srd(A, 32, 66, 67, 0, 1536*1280)
    A(f"""
    s_sub_u32 s38, s2, 160
    s_and_b32 s39, s38, 7
    s_lshr_b32 s42, s38, 3
    s_mul_i32 s36, s39, 12
    s_add_u32 s36, s36, s42
    s_mul_i32 s37, s39, 10
    s_add_u32 s37, s37, s42
    v_lshrrev_b32 v3, 1, v0
    s_movk_i32 s46, 3072
    v_mul_lo_u32 v3, v3, s46
    v_and_b32 v4, 1, v0
    v_lshl_add_u32 v3, v4, 4, v3
    s_lshl_b32 s43, s36, 5
    s_lshl_b32 s44, s3, 10
    """)
    for it in range(5):
        A(f"s_add_u32 s45, s43, {it*128*3072}")
        A(f"s_add_u32 s47, s44, {L_G + it*4096}")
        A("s_mov_b32 m0, s47")
        A("s_nop 0")
        A("buffer_load_dwordx4 v3, s[24:27], s45 offen lds")
        A(f"s_add_u32 s47, s44, {L_U + it*4096}")
        A("s_mov_b32 m0, s47")
        A("s_nop 0")
        A("buffer_load_dwordx4 v3, s[28:31], s45 offen lds")
    A(f"""
    s_cmp_ge_u32 s38, 80
    s_cbranch_scc1 k_ffn_nowd
    s_movk_i32 s46, 1280
    v_mul_lo_u32 v3, v0, s46
    s_lshl_b32 s43, s37, 4
    """)
    for it in range(6):
        A(f"s_add_u32 s45, s43, {it*256*1280}")
        A(f"s_add_u32 s47, s44, {L_WD + it*4096}")
        A("s_mov_b32 m0, s47")
        A("s_nop 0")
        A("buffer_load_dwordx4 v3, s[32:35], s45 offen lds")
    A("k_ffn_nowd:")
    flag_poll(8)
    stamp(A, 5)
    if CANARY:
        A(f"""
        s_cmp_lg_u32 s3, 0
        s_cbranch_scc1 k_can_done
        v_lshlrev_b32 v3, 12, v0
        s_lshl_b32 s43, s{S_T0}, 1
        s_add_u32 s43, s43, {WS_AT}
        s_mov_b64 s[54:55], -1
        """)
        masked_poll(A, [dict(mask=54, loads=[f"buffer_load_dwordx4 v[8:11], v3, {WS}, s43 offen sc1"], regs=[8, 9, 10, 11], tmp=12)], 46, CSLEEP, "can")
        cnt_stamp(A, 2, 46)
        A("k_can_done:")
        A("s_barrier")
    stamp(A, 7)
    A("s_branch k_ln2b")
    A("k_ln2b:")
    a_setup()
    mask3()
    masked_poll(A, asets, 46, FSLEEP, "apoll", first=("plain" if (APLAIN == "" and CANARY) else None))
    cnt_stamp(A, 0, 46)
    A("k_ln2c:")
    A(f"""
    v_lshlrev_b32 v3, 4, v0
    ds_write_b128 v3, v[8:11] offset:{L_AT}
    ds_write_b128 v3, v[12:15] offset:{L_AT+4096}
    s_cmp_ge_u32 s3, 2
    s_cbranch_scc1 k_ln2_w3
    ds_write_b128 v3, v[16:19] offset:{L_AT+8192}
    k_ln2_w3:
    v_lshrrev_b32 v8, 4, v1
    v_lshlrev_b32 v8, 3, v8
    v_bfe_u32 v9, v1, 1, 1
    v_lshl_add_u32 v8, v9, 2, v8
    v_bfe_u32 v9, v1, 2, 2
    v_add_u32 v8, v8, v9
    s_mul_i32 s47, s3, 160
    v_add_u32 v8, s47, v8
    v_lshlrev_b32 v8, 4, v8
    v_and_b32 v9, 1, v1
    v_lshl_add_u32 v8, v9, 3, v8
    s_waitcnt lgkmcnt(0)
    s_barrier
    """)
    stamp(A, 8)
    for i in range(5):
        A(f"ds_read_b64_tr_b16 v[{30+2*i}:{31+2*i}], v8 offset:{L_AT+512*i}")
    H = 40
    for i in range(10):
        a, b = H + 2*i, H + 2*i + 1
        if i % 2 == 0: A(f"s_waitcnt lgkmcnt({4 - i//2})")
        unpack_bf16(A, 30 + i, a, b)
        A(f"v_pk_add_f32 v[{a}:{b}], v[{a}:{b}], v[{VXF+2*i}:{VXF+2*i+1}]")
        rnd(A, a, a); rnd(A, b, b)
    ln_stats(A, H)
    A("v_mov_b32 v82, 0")
    A("v_mov_b32 v83, 0")
    for i in range(10):
        a, b = H + 2*i, H + 2*i + 1
        t = 86 + 2 * (i % 2)
        A(f"v_pk_add_f32 v[{t}:{t+1}], v[{a}:{b}], v[78:79] op_sel_hi:[1,0] neg_lo:[0,1] neg_hi:[0,1]")
        rnd(A, t, t); rnd(A, t+1, t+1)
        A(f"v_pk_mul_f32 v[{t}:{t+1}], v[{t}:{t+1}], v[80:81] op_sel_hi:[1,0]")
        A(f"v_cvt_pk_bf16_f32 v{30+i}, v{t}, v{t+1}")
        A(f"v_dot2_f32_bf16 v{82 + i % 2}, v{30+i}, v{VW+i}, v{82 + i % 2}")
    A("s_nop 2")
    A("v_add_f32 v82, v82, v83")
    red8(A, 82, 83)
    A(f"""
    v_lshlrev_b32 v76, 2, v{VTOK}
    v_add_u32 v76, {L_RP}, v76
    s_lshl_b32 s47, s3, 5
    v_add_u32 v77, s47, v76
    v_cmp_gt_u32 vcc, 8, v1
    s_and_saveexec_b64 s[48:49], vcc
    ds_write_b32 v77, v82
    s_mov_b64 exec, s[48:49]
    s_waitcnt lgkmcnt(0)
    s_barrier
    ds_read_b32 v78, v76
    ds_read_b32 v79, v76 offset:32
    ds_read_b32 v80, v76 offset:64
    ds_read_b32 v81, v76 offset:96
    s_waitcnt lgkmcnt(0)
    v_add_f32 v78, v78, v79
    v_add_f32 v80, v80, v81
    v_add_f32 v78, v78, v80
    v_cvt_pk_bf16_f32 v78, v78, v78
    v_and_b32 v78, 0xffff, v78
    v_xor_b32 v79, 0xffff, v78
    v_or_b32 v80, 0x8000, v78
    v_cmp_lt_u32 vcc, 0x7fff, v78
    v_lshlrev_b32 v87, 16, v78
    s_nop 0
    v_cndmask_b32 v78, v80, v79, vcc
    v_lshlrev_b32 v78, 16, v78
    v_add_u32 v79, s{S_T0}, v{VTOK}
    v_sub_u32 v80, 0xffff, v79
    v_or_b32 v86, v78, v80
    s_cmp_lg_u32 s3, 0
    s_cbranch_scc1 k_nokey
    v_lshlrev_b32 v80, 2, v79
    s_mov_b32 s47, {WS_KEY}
    s_mov_b64 exec, 0xff
    buffer_store_dword v86, v80, {WS}, s47 offen sc1
    s_mov_b64 exec, -1
    k_nokey:
    """)
    stamp(A, 9)
    A(f"""
    v_lshlrev_b32 v9, 5, v0
    s_mov_b32 s47, {WS_KEY}
    s_mov_b64 s[54:55], -1
    """)
    for i in range(10):
        a, b = H + 2*i, H + 2*i + 1
        unpack_bf16(A, 30 + i, 70, 71)
        A(f"v_pk_add_f32 v[70:71], v[70:71], v[{a}:{b}]")
        A(f"v_cvt_pk_bf16_f32 v{10+i}, v70, v71")
    masked_poll(A, [dict(mask=54, loads=[f"buffer_load_dwordx4 v[90:93], v9, {WS}, s47 offen sc1", f"buffer_load_dwordx4 v[94:97], v9, {WS}, s47 offen offset:16 sc1"],
                         regs=list(range(90, 98)), tmp=98, sent="min")], 46, KSLEEP, "kpoll")
    cnt_stamp(A, 1, 46)
    stamp(A, 10)
    A(f"""
    s_mov_b32 s50, -1
    s_mov_b64 s[52:53], 0
    s_mov_b32 s51, 0
    k_own:
    v_cmp_gt_u32 vcc, s50, v86
    s_nop 1
    v_cndmask_b32 v98, 0, v86, vcc
    """)
    for pat in ("quad_perm:[1,0,3,2]", "quad_perm:[2,3,0,1]", "row_half_mirror"):
        A("s_nop 1")
        A(f"v_max_u32_dpp v98, v98, v98 {pat} {DPP}")
    A(f"""
    s_nop 0
    v_readfirstlane_b32 s54, v98
    s_nop 3
    s_cmp_eq_u32 s54, 0
    s_cbranch_scc1 k_own_done
    s_mov_b32 s55, 0
    """)
    for r in range(8):
        A(f"v_cmp_lt_u32 vcc, s54, v{90+r}")
        A(f"s_bcnt1_i32_b64 s56, vcc")
        A(f"s_add_u32 s55, s55, s56")
    A(f"""
    s_lshl_b32 s56, s51, 4
    s_lshl_b32 s57, s3, 2
    s_add_u32 s57, s57, s56
    s_add_u32 s57, s57, {L_CNT}
    v_mov_b32 v99, s57
    v_mov_b32 v100, s55
    s_add_u32 s56, s56, {L_CNT}
    v_mov_b32 v101, s56
    s_mov_b64 exec, 1
    ds_write_b32 v99, v100
    s_mov_b64 exec, -1
    s_waitcnt lgkmcnt(0)
    s_barrier
    ds_read_b128 v[102:105], v101
    s_waitcnt lgkmcnt(0)
    v_add_u32 v102, v102, v103
    v_add3_u32 v102, v102, v104, v105
    s_nop 0
    v_readfirstlane_b32 s55, v102
    s_nop 3
    s_cmp_ge_u32 s55, 8
    s_cbranch_scc1 k_own_done
    v_cmp_eq_u32 vcc, s54, v86
    s_or_b64 s[52:53], s[52:53], vcc
    s_and_saveexec_b64 s[48:49], vcc
    s_mul_i32 s56, s55, 1280
    s_add_u32 s57, s56, {WS_HS}
    s_add_u32 s56, s56, {WS_ZS}
    """)
    for i in range(5):
        A(f"buffer_store_dwordx2 v[{30+2*i}:{31+2*i}], v{VCH}, {WS}, s56 offen offset:{64*i} sc1")
    for i in range(10):
        A(f"v_cvt_pk_bf16_f32 v{106+i}, v{H+2*i}, v{H+2*i+1}")
    for i in range(5):
        A(f"buffer_store_dwordx2 v[{106+2*i}:{107+2*i}], v{VCH}, {WS}, s57 offen offset:{64*i} sc1")
    A(f"""
    s_cmp_lg_u32 s3, 0
    s_cbranch_scc1 k_own_nometa
    v_cmp_gt_u32 vcc, 8, v1
    s_and_b64 exec, exec, vcc
    v_mul_f32 v99, {hex(F_LOG2E)}, v87
    v_exp_f32 v99, -v99
    s_nop 0
    v_add_f32 v99, 1.0, v99
    v_rcp_f32 v99, v99
    s_nop 0
    v_cvt_pk_bf16_f32 v99, 0, v99
    s_lshl_b32 s56, s55, 2
    s_add_u32 s56, s56, {WS_META}
    v_mov_b32 v100, 0
    buffer_store_dword v79, v100, {WS}, s56 offen sc1
    buffer_store_dword v99, v100, {WS}, s56 offen offset:32 sc1
    k_own_nometa:
    s_mov_b64 exec, -1
    s_mov_b32 s50, s54
    s_xor_b32 s51, s51, 1
    s_branch k_own
    k_own_done:
    """)
    stamp(A, 11)
    A("s_andn2_b64 exec, exec, s[52:53]")
    for i in range(5):
        A(f"buffer_store_dwordx2 v[{10+2*i}:{11+2*i}], v{VROW}, s[{S_X}:{S_X+3}], 0 offen offset:{64*i}")
    A("s_mov_b64 exec, -1")
    A("s_cmp_lt_u32 s2, 160")
    A("s_cbranch_scc1 k_end")
    A(f"""
    v_lshrrev_b32 v7, 4, v1
    s_movk_i32 s46, 1280
    v_mul_lo_u32 v9, v{VTOK}, s46
    v_lshl_add_u32 v9, v7, 4, v9
    s_mul_i32 s47, s3, 320
    s_add_u32 s47, s47, {WS_ZS}
    v_lshlrev_b32 v10, 3, v7
    v_bfe_u32 v11, v1, 2, 2
    v_add_u32 v10, v10, v11
    v_lshlrev_b32 v10, 5, v10
    v_and_b32 v11, 3, v1
    v_lshl_add_u32 v10, v11, 3, v10
    s_mul_i32 s44, s3, {5*32*32}
    s_add_u32 s44, s44, {L_G}
    v_add_u32 v10, s44, v10
    """)
    for i in range(5):
        A(f"ds_read_b64_tr_b16 v[{120+4*i}:{121+4*i}], v10 offset:{1024*i}")
        A(f"ds_read_b64_tr_b16 v[{122+4*i}:{123+4*i}], v10 offset:{1024*i + 128}")
        A(f"ds_read_b64_tr_b16 v[{140+4*i}:{141+4*i}], v10 offset:{L_U - L_G + 1024*i}")
        A(f"ds_read_b64_tr_b16 v[{142+4*i}:{143+4*i}], v10 offset:{L_U - L_G + 1024*i + 128}")
        if i % 2 == 1: A("s_waitcnt lgkmcnt(0)")
    A("s_mov_b64 s[54:55], -1")
    masked_poll(A, [dict(mask=54, loads=[f"buffer_load_dwordx4 v[{40+4*i}:{43+4*i}], v9, {WS}, s47 offen offset:{64*i} sc1" for i in range(5)],
                         regs=list(range(40, 60)), tmp=60)], 46, 1, "zpoll")
    cnt_stamp(A, 3, 46)
    stamp(A, 12)
    A("s_waitcnt lgkmcnt(0)")
    for i in range(5):
        c = "0" if i == 0 else "v[80:83]"
        A(f"v_mfma_f32_16x16x32_bf16 v[80:83], v[{40+4*i}:{43+4*i}], v[{120+4*i}:{123+4*i}], {c}")
        c = "0" if i == 0 else "v[84:87]"
        A(f"v_mfma_f32_16x16x32_bf16 v[84:87], v[{40+4*i}:{43+4*i}], v[{140+4*i}:{143+4*i}], {c}")
    A(f"""
    v_lshlrev_b32 v11, 4, v1
    s_lshl_b32 s44, s3, 11
    v_add_u32 v12, s44, v11
    s_lshl_b32 s44, s3, 2
    v_add_u32 v11, s44, v11
    s_nop 5
    ds_write_b128 v12, v[80:83] offset:{L_RED}
    ds_write_b128 v12, v[84:87] offset:{L_RED+1024}
    s_waitcnt lgkmcnt(0)
    s_barrier
    """)
    for w in range(4):
        A(f"ds_read_b32 v{40+w}, v11 offset:{L_RED + 2048*w}")
        A(f"ds_read_b32 v{44+w}, v11 offset:{L_RED + 2048*w + 1024}")
    A(f"""
    v_and_b32 v13, 15, v1
    v_lshlrev_b32 v12, 1, v13
    v_lshrrev_b32 v7, 4, v1
    s_movk_i32 s46, {4*3072}
    v_mul_lo_u32 v14, v7, s46
    v_add_u32 v12, v12, v14
    s_lshl_b32 s44, s36, 5
    s_mul_i32 s45, s3, 3072
    s_add_u32 s44, s44, s45
    s_add_u32 s44, s44, {WS_HID}
    s_waitcnt lgkmcnt(0)
    v_add_f32 v40, v40, v41
    v_add_f32 v42, v42, v43
    v_add_f32 v44, v44, v45
    v_add_f32 v46, v46, v47
    v_add_f32 v40, v40, v42
    v_add_f32 v44, v44, v46
    v_cvt_pk_bf16_f32 v40, 0, v40
    v_cvt_pk_bf16_f32 v44, 0, v44
    v_mul_f32 v52, {hex(F_LOG2E)}, v40
    v_exp_f32 v52, -v52
    s_nop 0
    v_add_f32 v52, 1.0, v52
    v_rcp_f32 v52, v52
    s_nop 0
    v_mul_f32 v52, v52, v40
    v_cvt_pk_bf16_f32 v52, 0, v52
    v_mul_f32 v52, v52, v44
    v_cvt_pk_bf16_f32 v52, v52, v52
    s_mov_b32 s58, 0x05040100
    s_nop 0
    v_mov_b32_dpp v53, v52 quad_perm:[1,1,3,3] {DPP}
    v_perm_b32 v56, v53, v52, s58
    s_nop 1
    v_mov_b32_dpp v57, v56 row_shl:2 {DPP}
    v_mov_b32_dpp v58, v56 row_shl:4 {DPP}
    v_mov_b32_dpp v59, v56 row_shl:6 {DPP}
    v_and_b32 v11, 7, v1
    v_cmp_eq_u32 vcc, 0, v11
    v_cmp_gt_u32 s[48:49], 2, v7
    s_and_b64 vcc, vcc, s[48:49]
    s_and_saveexec_b64 s[48:49], vcc
    buffer_store_dwordx4 v[56:59], v12, {WS}, s44 offen sc1
    s_mov_b64 exec, -1
    """)
    stamp(A, 13)
    A("s_cmp_ge_u32 s38, 80")
    A("s_cbranch_scc1 k_end")
    A(f"""
    v_bfe_u32 v5, v1, 3, 1
    v_lshrrev_b32 v7, 4, v1
    s_movk_i32 s46, 3072
    v_mul_lo_u32 v9, v{VTOK}, s46
    s_movk_i32 s46, 1536
    v_mul_lo_u32 v10, v5, s46
    v_add_u32 v9, v9, v10
    v_lshl_add_u32 v9, v7, 4, v9
    s_mul_i32 s47, s3, {6*64}
    s_add_u32 s47, s47, {WS_HID}
    v_lshlrev_b32 v14, 3, v7
    v_bfe_u32 v15, v1, 2, 2
    v_add_u32 v14, v14, v15
    v_bfe_u32 v15, v1, 1, 1
    s_movk_i32 s46, 768
    v_mul_lo_u32 v15, v15, s46
    v_add_u32 v14, v14, v15
    v_lshlrev_b32 v14, 4, v14
    v_and_b32 v15, 1, v1
    v_lshl_add_u32 v14, v15, 3, v14
    s_mul_i32 s44, s3, {6*512}
    s_add_u32 s44, s44, {L_WD}
    v_add_u32 v14, s44, v14
    """)
    for i in range(6):
        A(f"ds_read_b64_tr_b16 v[{120+4*i}:{121+4*i}], v14 offset:{512*i}")
        A(f"ds_read_b64_tr_b16 v[{122+4*i}:{123+4*i}], v14 offset:{512*i + 64}")
    A(f"""
    v_lshrrev_b32 v20, 3, v1
    v_and_b32 v21, 7, v1
    s_movk_i32 s46, 1280
    v_mul_lo_u32 v35, v20, s46
    v_lshl_add_u32 v35, v21, 1, v35
    v_and_b32 v35, 0xfffffffc, v35
    s_lshl_b32 s44, s37, 4
    s_add_u32 s50, s44, {WS_ZS}
    s_add_u32 s51, s44, {WS_HS}
    v_lshlrev_b32 v32, 2, v20
    s_mov_b32 s45, {WS_META}
    s_mov_b64 s[54:55], -1
    s_mov_b64 s[56:57], 0
    s_cmp_lg_u32 s3, 0
    s_cbranch_scc1 k_g2_m
    s_mov_b64 s[56:57], -1
    k_g2_m:
    """)
    masked_poll(A, [dict(mask=54, loads=[f"buffer_load_dwordx4 v[{40+4*i}:{43+4*i}], v9, {WS}, s47 offen offset:{64*i} sc1" for i in range(6)],
                         regs=list(range(40, 64)), tmp=65),
                    dict(mask=56, loads=[f"buffer_load_dword v36, v35, {WS}, s50 offen sc1", f"buffer_load_dword v37, v35, {WS}, s51 offen sc1",
                                         f"buffer_load_dword v33, v32, {WS}, s45 offen sc1", f"buffer_load_dword v34, v32, {WS}, s45 offen offset:32 sc1"],
                         regs=[36, 37, 33, 34], tmp=64)], 46, 1, "hpoll")
    cnt_stamp(A, 4, 46)
    stamp(A, 14)
    A("s_waitcnt lgkmcnt(0)")
    for i in range(6):
        c = "0" if i == 0 else "v[88:91]"
        A(f"v_mfma_f32_16x16x32_bf16 v[88:91], v[{40+4*i}:{43+4*i}], v[{120+4*i}:{123+4*i}], {c}")
    A(f"""
    v_lshlrev_b32 v15, 4, v1
    s_lshl_b32 s44, s3, 10
    v_add_u32 v16, s44, v15
    s_barrier
    s_nop 4
    ds_write_b128 v16, v[88:91] offset:{L_RED}
    s_waitcnt lgkmcnt(0)
    s_barrier
    s_cmp_lg_u32 s3, 0
    s_cbranch_scc1 k_end
    v_lshrrev_b32 v22, 2, v20
    v_lshl_add_u32 v22, v22, 4, v21
    v_lshlrev_b32 v22, 4, v22
    v_and_b32 v23, 3, v20
    v_lshl_add_u32 v22, v23, 2, v22
    """)
    for w in range(4):
        A(f"ds_read_b32 v{24+2*w}, v22 offset:{L_RED + 1024*w}")
        A(f"ds_read_b32 v{25+2*w}, v22 offset:{L_RED + 1024*w + 640}")
    A(f"""
    v_and_b32 v38, 1, v21
    v_cmp_eq_u32 vcc, 1, v38
    v_lshlrev_b32 v38, 16, v36
    v_and_b32 v36, 0xffff0000, v36
    v_cndmask_b32 v36, v38, v36, vcc
    v_lshlrev_b32 v38, 16, v37
    v_and_b32 v37, 0xffff0000, v37
    v_cndmask_b32 v37, v38, v37, vcc
    s_movk_i32 s46, 1280
    v_mul_lo_u32 v35, v33, s46
    v_lshl_add_u32 v35, v21, 1, v35
    s_lshl_b32 s44, s37, 4
    s_waitcnt lgkmcnt(0)
    v_add_f32 v24, v24, v25
    v_add_f32 v26, v26, v27
    v_add_f32 v28, v28, v29
    v_add_f32 v30, v30, v31
    v_add_f32 v24, v24, v26
    v_add_f32 v28, v28, v30
    v_add_f32 v24, v24, v28
    v_cvt_pk_bf16_f32 v24, 0, v24
    v_mul_f32 v24, v24, v34
    v_cvt_pk_bf16_f32 v24, 0, v24
    v_add_f32 v24, v36, v24
    v_cvt_pk_bf16_f32 v24, 0, v24
    v_add_f32 v24, v37, v24
    v_cvt_pk_bf16_f32 v24, v24, v24
    buffer_store_short v24, v35, s[{S_X}:{S_X+3}], s44 offen
    k_end:
    """)
    stamp_flush(A)
    A("k_exit:")
    A("s_endpgm")
    A("k_code_end:")
    A("s_endpgm")
    return name

def main():
    global STAMP
    if "--stamp" in sys.argv:
        STAMP = True
        sys.argv.remove("--stamp")
    hdr = open("cdna_kernels/%s.s.ref" % NAME).read().split("; Override launch")[0]
    b = Asm(); name = gen_main(b)
    out = hdr + f"; @launch grid=(256,1,1) block=(256,1,1) lds={LDS_TOTAL}\n"
    out += '.amdgcn_target "amdgcn-amd-amdhsa--gfx950"\n.text\n'
    out += b.text()
    out += '.section .rodata,"a"\n.p2align 6\n' + gen.kernel_desc(name, 512, 100, 256)
    path = sys.argv[1] if len(sys.argv) > 1 else "cdna_kernels/%s.s" % NAME
    open(path, "w").write(out)
    print("wrote", path, len(out))

if __name__ == "__main__":
    main()
```

```python
import sys, os, struct
from gen import Asm as Asm0, srd, DPP, allreduce16, xor16, xor32, f32bits
from gen import F_INV640, F_LOG2E, F_INV2PI, F_EPS, ARG, NAME
import gen
from gen import Asm as Asm0

WS_UB = 0x000000
WS_AT = 0x280000
WS_KEY = 0x500000
WS_SM = 0x502000
WS_ZS = WS_SM
WS_HS = WS_SM + 10240
WS_META = WS_SM + 20480
WS_HID = WS_SM + 20736
WS_FL = 0x510000
WS_SIZE = 0x520000
WS_STAMP = 0x1000000

STAMP = False
KSTAMP = os.environ.get('KSTAMP', '0') == '1'
class Asm(Asm0):
    pass

def stamp(A, k):
    if STAMP:
        A("s_memrealtime s[98:99]")
        A("s_waitcnt lgkmcnt(0)")
        A(f"v_writelane_b32 v255, s98, {k}")

def cnt_stamp(A, k, sreg):
    if STAMP:
        A(f"v_writelane_b32 v254, s{sreg}, {k}")

def stamp_flush(A):
    if STAMP and DBGWG >= 0:
        A("s_waitcnt vmcnt(0) lgkmcnt(0)")
        stamp(A, 15)
        A(f"s_cmp_lg_u32 s2, {DBGWG}")
        A("s_cbranch_scc1 k_dbg_skip")
        A("s_cmp_lg_u32 s3, 0")
        A("s_cbranch_scc1 k_dbg_skip")
        A("v_readlane_b32 s90, v255, 0")
        A("s_nop 3")
        A("v_subrev_u32 v255, s90, v255")
        A("v_and_b32 v3, 63, v0")
        A("v_lshlrev_b32 v2, 2, v3")
        A("s_mov_b64 exec, 0xfffe")
        A(f"buffer_store_dword v255, v2, s[{S_DBG}:{S_DBG+3}], 0 offen")
        A("k_dbg_skip:")
        return
    if STAMP:
        A("s_waitcnt vmcnt(0) lgkmcnt(0)")
        stamp(A, 15)
        A(f"s_load_dwordx2 s[88:89], s[0:1], {ARG['ws']}")
        A("s_waitcnt lgkmcnt(0)")
        srd(A, 84, 88, 89, WS_STAMP, 0x40000)
        A("v_lshrrev_b32 v2, 6, v0")
        A("s_lshl_b32 s91, s2, 2")
        A("v_add_u32 v2, s91, v2")
        A("v_lshlrev_b32 v2, 6, v2")
        A("v_and_b32 v3, 63, v0")
        A("v_lshl_add_u32 v2, v3, 2, v2")
        A("s_mov_b64 exec, 0xffff")
        A("buffer_store_dword v255, v2, s[84:87], 0 offen")
        A("v_add_u32 v2, 0x20000, v2")
        A("buffer_store_dword v254, v2, s[84:87], 0 offen")

WAVE_LDS = 30432
CB = [0, 4160, 8320, 12480]
KOFF = 16640
TSTR = 1352
L_AT = 0
L_MISC = 10816
L_ST = L_MISC
L_RP = L_MISC + 256
L_CNT = L_MISC + 384
L_NON = L_MISC + 448
L_RED = L_MISC + 512
LBASE = 19712
L_G, L_U, L_WD = LBASE, LBASE + 20480, LBASE + 40960
LDS_TOTAL = LBASE + 4 * WAVE_LDS
POLL_LIMIT = 40000
OUTF = os.environ.get('OUTF', '')
DBGWG = int(os.environ.get('DBGWG', '-1'))
NONWG = int(os.environ.get('NONWG', '0'))
CDELAY = int(os.environ.get('CDELAY', '0'))
WPF = os.environ.get('WPF', '1') == '1'
CSLEEP = int(os.environ.get('CSLEEP', '8'))
CANARY = os.environ.get('CANARY', '1') == '1'
FSLEEP = int(os.environ.get('FSLEEP', '8'))
APLAIN = ' sc1' if os.environ.get('APLAIN', '0') == '0' else ''
AHOOK = int(os.environ.get('AHOOK', '-1'))
CODEPF = os.environ.get('CODEPF', '1') == '1'
NPF = int(os.environ.get('NPF', '6'))
KSLEEP = int(os.environ.get('KSLEEP', '8'))
ASLEEP = int(os.environ.get('ASLEEP', '2'))

S_WS, S_X, S_DBG, S_WR = 8, 12, 20, 16
S_TB, S_T0 = 40, 41
S_D, S_B, S_K, S_AO, S_F, S_DS, S_NON = 74, 75, 76, 77, 78, 79, 72
VXF = 220
VW = 240
VROW, VCH, VTOK = 250, 251, 252

lblc = [0]
def newlbl(p):
    lblc[0] += 1
    return f"{p}_{lblc[0]}"

def rnd(A, d, s):
    A(f"v_cvt_pk_bf16_f32 v{d}, 0, v{s}")

def unpack_bf16(A, src, dlo, dhi):
    A(f"v_lshlrev_b32 v{dlo}, 16, v{src}")
    A(f"v_and_b32 v{dhi}, 0xffff0000, v{src}")

def red8(A, x, t):
    A("s_nop 1")
    A(f"v_add_f32_dpp v{x}, v{x}, v{x} row_ror:8 {DPP}")
    xor16(A, "v_add_f32", x, t)
    xor32(A, "v_add_f32", x, t)

def ln_stats(A, H):
    A(f"v_pk_add_f32 v[72:73], v[{H}:{H+1}], v[{H+2}:{H+3}]")
    A(f"v_pk_add_f32 v[74:75], v[{H+4}:{H+5}], v[{H+6}:{H+7}]")
    for i in range(4, 10, 2):
        A(f"v_pk_add_f32 v[72:73], v[72:73], v[{H+2*i}:{H+2*i+1}]")
        A(f"v_pk_add_f32 v[74:75], v[74:75], v[{H+2*i+2}:{H+2*i+3}]")
    A("v_pk_add_f32 v[72:73], v[72:73], v[74:75]")
    A("v_add_f32 v72, v72, v73")
    red8(A, 72, 73)
    A(f"v_mul_f32 v72, {hex(f32bits(1/160))}, v72")
    for i in range(10):
        t = 70 if i % 2 == 0 else 76
        acc = 74 if i % 2 == 0 else 82
        A(f"v_pk_add_f32 v[{t}:{t+1}], v[{H+2*i}:{H+2*i+1}], v[72:73] op_sel_hi:[1,0] neg_lo:[0,1] neg_hi:[0,1]")
        if i < 2: A(f"v_pk_mul_f32 v[{acc}:{acc+1}], v[{t}:{t+1}], v[{t}:{t+1}]")
        else: A(f"v_pk_fma_f32 v[{acc}:{acc+1}], v[{t}:{t+1}], v[{t}:{t+1}], v[{acc}:{acc+1}]")
    A("v_pk_add_f32 v[74:75], v[74:75], v[82:83]")
    A("v_add_f32 v73, v74, v75")
    red8(A, 73, 74)
    A(f"""
    v_lshlrev_b32 v76, 3, v{VTOK}
    v_add_u32 v76, {L_ST}, v76
    s_lshl_b32 s47, s3, 6
    v_add_u32 v77, s47, v76
    v_cmp_gt_u32 vcc, 8, v1
    s_and_saveexec_b64 s[48:49], vcc
    ds_write_b64 v77, v[72:73]
    s_mov_b64 exec, s[48:49]
    s_waitcnt lgkmcnt(0)
    s_barrier
    ds_read_b64 v[78:79], v76
    ds_read_b64 v[80:81], v76 offset:64
    ds_read_b64 v[82:83], v76 offset:128
    ds_read_b64 v[84:85], v76 offset:192
    s_waitcnt lgkmcnt(0)
    v_add_f32 v72, v78, v80
    v_add_f32 v73, v82, v84
    v_add_f32 v72, v72, v73
    v_mul_f32 v72, 0.25, v72
    v_sub_f32 v78, v78, v72
    v_sub_f32 v80, v80, v72
    v_sub_f32 v82, v82, v72
    v_sub_f32 v84, v84, v72
    v_mul_f32 v73, v78, v78
    v_fmac_f32 v73, v80, v80
    v_fmac_f32 v73, v82, v82
    v_fmac_f32 v73, v84, v84
    v_add_f32 v79, v79, v81
    v_add_f32 v83, v83, v85
    v_add_f32 v79, v79, v83
    v_fmac_f32 v79, {hex(f32bits(160))}, v73
    v_mul_f32 v74, {hex(F_INV640)}, v79
    v_cvt_pk_bf16_f32 v78, 0, v72
    v_cvt_pk_bf16_f32 v75, 0, v74
    v_add_f32 v75, {hex(F_EPS)}, v75
    v_cvt_pk_bf16_f32 v75, 0, v75
    v_sqrt_f32 v75, v75
    s_nop 0
    v_cvt_pk_bf16_f32 v75, 0, v75
    v_rcp_f32 v80, v75
    s_nop 0
    """)

def cmul(A, z, x, y, t):
    A(f"v_pk_mul_f32 v[{t}:{t+1}], v[{x}:{x+1}], v[{y}:{y+1}] op_sel:[0,0] op_sel_hi:[1,0]")
    A(f"v_pk_fma_f32 v[{z}:{z+1}], v[{x}:{x+1}], v[{y}:{y+1}], v[{t}:{t+1}] op_sel:[1,1,0] op_sel_hi:[0,1,1] neg_lo:[1,0,0]")

class Poll:
    pass

def masked_poll(A, sets, cnt, sleep, tag, first=None):
    L = newlbl(tag)
    A(f"s_mov_b32 s{cnt}, 0")
    if first == "plain":
        for st in sets:
            for ld in st["loads"]: A(ld.replace(" sc1", ""))
        A("s_waitcnt vmcnt(0)")
        A(f"s_branch {L}_chk")
    elif first is not None:
        A(f"s_waitcnt vmcnt({first[1]})")
        A(f"s_branch {L}_chk")
    A(f"{L}:")
    for k, st in enumerate(sets):
        m = st["mask"]
        A(f"s_mov_b64 exec, s[{m}:{m+1}]")
        A(f"s_cbranch_execz {L}_sk{k}")
        for ld in st["loads"]: A(ld)
        A(f"{L}_sk{k}:")
    A("s_mov_b64 exec, -1")
    A("s_waitcnt vmcnt(0)")
    A(f"{L}_chk:")
    for k, st in enumerate(sets):
        m = st["mask"]; regs = st["regs"]; t = st["tmp"]
        op = "max" if st.get("sent", "max") == "max" else "min"
        r = list(regs)
        if len(r) == 1:
            src = r[0]
        else:
            if len(r) >= 3:
                A(f"v_{op}3_u32 v{t}, v{r[0]}, v{r[1]}, v{r[2]}"); r = r[3:]
            else:
                A(f"v_{op}_u32 v{t}, v{r[0]}, v{r[1]}"); r = r[2:]
            while len(r) >= 2:
                A(f"v_{op}3_u32 v{t}, v{t}, v{r[0]}, v{r[1]}"); r = r[2:]
            if r: A(f"v_{op}_u32 v{t}, v{t}, v{r[0]}")
            src = t
        sent = "-1" if op == "max" else "0"
        A(f"v_cmp_eq_u32 vcc, {sent}, v{src}")
        A(f"s_and_b64 s[{m}:{m+1}], s[{m}:{m+1}], vcc")
    m0 = sets[0]["mask"]
    if len(sets) == 1:
        A(f"s_cmp_eq_u64 s[{m0}:{m0+1}], 0")
    else:
        A(f"s_or_b64 vcc, s[{m0}:{m0+1}], s[{sets[1]['mask']}:{sets[1]['mask']+1}]")
        for st in sets[2:]:
            A(f"s_or_b64 vcc, vcc, s[{st['mask']}:{st['mask']+1}]")
        A("s_cmp_eq_u64 vcc, 0")
    A(f"s_cbranch_scc1 {L}_done")
    A(f"s_add_u32 s{cnt}, s{cnt}, 1")
    if sleep: A(f"s_sleep {sleep}")
    A(f"s_cmp_lt_u32 s{cnt}, {POLL_LIMIT}")
    A(f"s_cbranch_scc1 {L}")
    A(f"{L}_done:")

def kgen(A, mid_hook, tail_hook, hook0):
    TS = 272; TBUF = 14416; TT = 28832
    A(f"""
    s_bitcmp1_b32 s{S_D}, 0
    s_cbranch_scc1 kg_odd
    s_lshl_b32 s42, s42, 16
    s_lshl_b32 s{S_DS}, s{S_DS}, 16
    kg_odd:
    s_and_b32 s42, s42, 0xffff0000
    s_and_b32 s{S_DS}, s{S_DS}, 0xffff0000
    v_mov_b32 v14, {hex(F_LOG2E)}
    v_mul_f32 v15, s42, v14
    v_exp_f32 v15, v15
    s_mov_b32 s43, 0x7fff7fff
    v_and_b32 v112, s43, v112
    v_and_b32 v113, s43, v113
    v_and_b32 v114, s43, v114
    v_and_b32 v115, s43, v115
    v_cvt_pk_bf16_f32 v15, 0, v15
    v_pk_max_u16 v112, v112, v113
    v_pk_max_u16 v114, v114, v115
    v_pk_max_u16 v10, v112, v114
    v_lshrrev_b32 v11, 16, v10
    v_and_b32 v10, 0xffff, v10
    v_max_u32 v10, v10, v11
    """)
    E1, W8, E256, X2, X3, X4, X6, E512, XA, XB, CX, TX, C, CY, TY = 18, 20, 22, 24, 26, 28, 32, 34, 36, 38, 40, 42, 44, 116, 118
    PX, PY = [46, 47, 122, 123], [120, 121, 124, 125]
    WDELAY = int(os.environ.get('WDELAY', '1'))
    D = 48
    FR = 128
    def setup_a(p):
        L = []; a = L.append
        lar, aim = 100 + 4*p, 101 + 4*p
        a(f"v_lshlrev_b32 v{lar}, 16, v{lar}")
        a(f"v_lshlrev_b32 v{aim}, 16, v{aim}")
        a(f"v_mul_f32 v4, v14, v{lar}")
        a(f"v_exp_f32 v4, v4")
        a(f"v_mul_f32 v5, v{aim}, v15")
        a(f"v_mul_f32 v5, {hex(F_INV2PI)}, v5")
        a(f"v_cvt_pk_bf16_f32 v4, 0, v4")
        a(f"v_mul_f32 v4, v4, v15")
        a(f"v_mul_f32 v4, v4, v14")
        for k, (dst, pw) in enumerate(((E1, 1), (W8, 8), (E256, 256))):
            m, f = 6 + 2*(k % 2), 7 + 2*(k % 2)
            if pw == 1:
                a(f"v_exp_f32 v{m}, -v4")
                a(f"v_fract_f32 v{f}, v5")
            else:
                a(f"v_mul_f32 v{m}, {hex(f32bits(pw))}, v4")
                a(f"v_mul_f32 v{f}, {hex(f32bits(pw))}, v5")
                a(f"v_exp_f32 v{m}, -v{m}")
                a(f"v_fract_f32 v{f}, v{f}")
            a(f"v_cos_f32 v{dst}, v{f}")
            a(f"v_sin_f32 v{dst+1}, v{f}")
            a("s_nop 0")
            a(f"v_mul_f32 v{dst}, v{dst}, v{m}")
            a(f"v_mul_f32 v{dst+1}, v{dst+1}, v{m}")
        return L
    def setup_c(p):
        cre, cim = 102 + 4*p, 103 + 4*p
        return [f"v_lshlrev_b32 v{cre}, 16, v{cre}", f"v_lshlrev_b32 v{cim}, 16, v{cim}",
                f"v_mul_f32 v{C}, v{cre}, v11", f"v_mul_f32 v{C+1}, v{cim}, v11"]
    def cm(z, x, y, t):
        return [f"v_pk_mul_f32 v[{t}:{t+1}], v[{x}:{x+1}], v[{y}:{y+1}] op_sel:[0,0] op_sel_hi:[1,0]",
                f"v_pk_fma_f32 v[{z}:{z+1}], v[{x}:{x+1}], v[{y}:{y+1}], v[{t}:{t+1}] op_sel:[1,1,0] op_sel_hi:[0,1,1] neg_lo:[1,0,0]"]
    def tables():
        cnt = [0, 0]
        pendw = [[], []]
        def put(row, pair, neg, which, const=None):
            P = (PX, PY)[which]; r = P[cnt[which] % len(P)]; cnt[which] += 1
            L = [f"v_mov_b32 v{r}, {hex(const)}"] if const is not None else [f"v_cvt_pk_f16_f32 v{r}, v{pair}, {'-' if neg else ''}v{pair+1}"]
            pendw[which].append(f"ds_write_addtid_b32 v{r} offset:{row*TS}")
            if len(pendw[which]) > WDELAY:
                L.append(pendw[which].pop(0))
            return L
        X = []
        X += put(0, None, False, 0, const=0x3c00)
        X += put(1, E1, False, 0)
        X += cm(X2, E1, E1, TX) + put(2, X2, False, 0)
        X += put(8, E256, False, 0)
        X += cm(E512, E256, E256, TX) + put(12, E512, False, 0)
        X += cm(X3, X2, E1, TX) + put(3, X3, False, 0)
        X += cm(X4, X2, X2, TX) + put(4, X4, False, 0)
        X += cm(XA, E512, E256, TX) + put(14, XA, False, 0)
        X += cm(CX, X4, E1, TX) + put(5, CX, False, 0)
        X += cm(X6, X4, X2, TX) + put(6, X6, False, 0)
        X += cm(CX, X4, X3, TX) + put(7, CX, False, 0)
        X += cm(CX, E256, X2, TX) + put(9, CX, False, 0)
        X += cm(CX, E256, X4, TX) + put(10, CX, False, 0)
        X += cm(CX, E256, X6, TX) + put(11, CX, False, 0)
        X += cm(CX, E512, X4, TX) + put(13, CX, False, 0)
        X += cm(CX, XA, X4, TX) + put(15, CX, False, 0)
        X += cm(XA, E512, E512, TX) + put(16, XA, False, 0)
        X += cm(CX, XA, E256, TX) + put(17, CX, False, 0)
        X += cm(XB, XA, E512, TX) + put(18, XB, False, 0)
        X += cm(CX, XB, E256, TX) + put(19, CX, False, 0)
        X += cm(CX, XA, XA, TX) + put(20, CX, False, 0)
        Y = []
        Y += put(21, C, True, 1)
        Y += cm(CY, C, W8, TY) + put(22, CY, True, 1)
        for c in range(2, 32):
            Y += cm(CY, CY, W8, TY) + put(21 + c, CY, True, 1)
        X += pendw[0]; Y += pendw[1]
        out = []; i = j = 0
        while i < len(X) or j < len(Y):
            if j >= len(Y) or (i < len(X) and i * len(Y) <= j * len(X)):
                out.append(X[i]); i += 1
            else:
                out.append(Y[j]); j += 1
        return out
    sa = setup_a(0)
    red = []
    R_ = Asm0()
    allreduce16(R_, "v_max_u32", 10); xor16(R_, "v_max_u32", 10, 11); xor32(R_, "v_max_u32", 10, 11)
    R_(f"""
    v_lshlrev_b32 v10, 16, v10
    v_mul_f32 v10, v10, v15
    v_lshrrev_b32 v10, 23, v10
    v_max_u32 v10, 5, v10
    v_min_u32 v10, 0xfe, v10
    v_sub_u32 v11, 0x103, v10
    v_lshlrev_b32 v11, 23, v11
    v_subrev_u32 v30, 4, v10
    v_lshlrev_b32 v30, 23, v30
    v_mul_f32 v11, v11, v15
    v_lshrrev_b32 v13, 5, v1
    v_and_b32 v16, 31, v1
    v_mul_u32_u24 v16, {TS}, v16
    v_lshl_add_u32 v13, v13, 4, v16
    v_add_u32 v13, s{S_B}, v13
    """)
    for ins in R_.l: A(ins.strip())
    for ins in sa: A(ins)
    for ins in setup_c(0): A(ins)
    A(f"s_mov_b32 m0, s{S_B}")
    A("s_nop 0")
    for ins in tables(): A(ins)
    hook0()
    A(f"s_add_u32 s43, s{S_B}, 0")
    for p in range(3):
        buf = p % 2
        for s in range(8):
            A(f"ds_read_b128 v[{FR+8*s}:{FR+8*s+3}], v13 offset:{TBUF*buf + 32*s}")
            A(f"ds_read_b128 v[{FR+8*s+4}:{FR+8*s+7}], v13 offset:{TBUF*buf + 21*TS + 32*s}")
        if p < 2:
            A(f"s_add_u32 s43, s{S_B}, {TBUF*((p+1)%2)}")
            A("s_mov_b32 m0, s43")
            nxt = setup_a(p + 1) + setup_c(p + 1) + tables()
        else:
            mid_hook()
            nxt = []
            H_ = Asm0()
            H_(f"""
            v_and_b32 v14, 31, v1
            v_lshrrev_b32 v15, 5, v1
            v_lshlrev_b32 v16, 4, v14
            v_lshl_add_u32 v16, v15, 3, v16
            v_sub_u32 v17, {TT+504}, v16
            v_add_u32 v17, s{S_B}, v17
            v_add_u32 v16, {TT+1024}, v16
            v_add_u32 v16, s{S_B}, v16
            v_lshlrev_b32 v18, 3, v14
            v_add_u32 v18, {TT+512}, v18
            v_add_u32 v19, 4, v18
            v_lshlrev_b32 v20, 2, v14
            v_add_u32 v20, {TT+768}, v20
            v_add_u32 v21, 128, v20
            v_cmp_eq_u32 vcc, 0, v15
            s_nop 1
            v_cndmask_b32 v18, v20, v18, vcc
            v_cndmask_b32 v19, v21, v19, vcc
            v_add_u32 v18, s{S_B}, v18
            v_add_u32 v19, s{S_B}, v19
            s_add_u32 s43, s{S_B}, {TT}
            v_sub_u32 v4, 127, v1
            v_add_u32 v5, 1, v4
            v_and_b32 v6, 31, v4
            v_lshrrev_b32 v7, 5, v4
            v_lshlrev_b32 v6, 4, v6
            v_lshl_add_u32 v6, v7, 1, v6
            v_and_b32 v8, 31, v5
            v_lshrrev_b32 v7, 5, v5
            v_lshlrev_b32 v8, 4, v8
            v_lshl_add_u32 v8, v7, 1, v8
            v_add_u32 v6, s43, v6
            v_add_u32 v8, s43, v8
            v_sub_u32 v9, 63, v1
            v_lshlrev_b32 v10, 2, v9
            v_add_u32 v10, s43, v10
            v_sub_u32 v11, 31, v1
            v_and_b32 v11, 31, v11
            v_lshlrev_b32 v11, 3, v11
            v_add_u32 v11, s43, v11
            v_and_b32 v9, 31, v9
            v_lshlrev_b32 v9, 4, v9
            v_sub_u32 v9, 496, v9
            v_add_u32 v9, s43, v9
            v_lshlrev_b32 v3, 4, v1
            v_add_u32 v3, s{S_K}, v3
            """)
            nxt = [x.strip() for x in H_.l]
        nlds_after = 0
        per = (len(nxt) + 7) // 8 if nxt else 0
        lead = min(int(os.environ.get('LEAD', '30')) if p < 2 else 20, len(nxt))
        pos = 0
        for ins in nxt[:lead]:
            A(ins); pos += 1
            if ins.startswith("ds_"): nlds_after += 1
        rest = nxt[lead:]
        per = (len(rest) + 7) // 8 if rest else 0
        for s in range(8):
            need = 2 * (7 - s) + nlds_after
            if need <= 15: A(f"s_waitcnt lgkmcnt({need})")
            else: A("s_waitcnt lgkmcnt(15)") if False else A(f"s_waitcnt lgkmcnt({min(15, need)})")
            c = "0" if (s == 0 and p == 0) else f"v[{D}:{D+15}]"
            A(f"v_mfma_f32_32x32x16_f16 v[{D}:{D+15}], v[{FR+8*s}:{FR+8*s+3}], v[{FR+8*s+4}:{FR+8*s+7}], {c}")
            for ins in rest[s*per:(s+1)*per]:
                A(ins)
                if ins.startswith("ds_"): nlds_after += 1
    tail_hook()
    A(f"""
    s_nop 7
    s_nop 3
    v_cvt_pk_f16_f32 v22, v{D+3}, v{D+2}
    v_cvt_pk_f16_f32 v23, v{D+1}, v{D}
    ds_write_b64 v17, v[22:23]
    v_cvt_pk_f16_f32 v24, v{D+4}, v{D+5}
    v_cvt_pk_f16_f32 v25, v{D+6}, v{D+7}
    ds_write_b32 v18, v24
    ds_write_b32 v19, v25
    v_cvt_pk_f16_f32 v26, v{D+8}, v{D+9}
    v_cvt_pk_f16_f32 v27, v{D+10}, v{D+11}
    ds_write_b64 v16, v[26:27]
    s_mov_b32 s44, 0x05040100
    s_mov_b32 s45, 0x01000100
    s_mov_b32 s46, 0x03020302
    s_mov_b32 s47, 0x07060100
    s_mov_b32 s48, 0x03020504
    v_and_b32 v7, 1, v4
    v_cmp_eq_u32 vcc, 1, v7
    s_waitcnt lgkmcnt(0)
    ds_read_u16 v32, v6 offset:1024
    ds_read_u16 v33, v8 offset:1024
    ds_read_u16 v34, v6 offset:1020
    ds_read_u16 v35, v8 offset:1020
    ds_read2_b32 v[36:37], v10 offset0:192 offset1:193
    ds_read_b64 v[38:39], v11 offset:512
    ds_read_u16 v40, v11 offset:520
    ds_read_b128 v[44:47], v9
    s_waitcnt lgkmcnt(4)
    v_cndmask_b32 v41, v32, v33, vcc
    v_cndmask_b32 v42, v34, v35, vcc
    v_perm_b32 v48, v33, v33, s45
    v_perm_b32 v49, v41, v33, s44
    v_perm_b32 v50, v32, v32, s45
    v_mov_b32 v51, v50
    ds_write_b128 v3, v[48:51]
    v_perm_b32 v52, v35, v35, s45
    v_perm_b32 v53, v42, v35, s44
    v_perm_b32 v54, v34, v34, s45
    v_mov_b32 v55, v54
    ds_write_b128 v3, v[52:55] offset:1024
    s_waitcnt lgkmcnt(2)
    v_perm_b32 v56, v37, v37, s45
    v_perm_b32 v57, v36, v36, s46
    v_alignbit_b32 v58, v36, v36, 16
    v_perm_b32 v59, v36, v36, s45
    ds_write_b128 v3, v[56:59] offset:2048
    v_perm_b32 v60, v39, v40, s47
    v_perm_b32 v61, v39, v39, s45
    v_perm_b32 v62, v39, v38, s48
    v_perm_b32 v63, v38, v38, s45
    v_cmp_gt_u32 vcc, 32, v1
    s_nop 1
    v_cndmask_b32 v60, v44, v60, vcc
    v_cndmask_b32 v61, v45, v61, vcc
    v_cndmask_b32 v62, v46, v62, vcc
    v_cndmask_b32 v63, v47, v63, vcc
    ds_write_b128 v3, v[60:63] offset:3072
    v_mov_b32 v16, 0
    v_mov_b32 v17, 0
    v_mov_b32 v18, 0
    v_mov_b32 v19, 0
    v_cmp_gt_u32 vcc, 30, v1
    s_and_saveexec_b64 s[52:53], vcc
    ds_write_b128 v3, v[16:19] offset:4096
    s_mov_b64 exec, s[52:53]
    """)

def conv_main(A, hook_idx=None, hook=None):
    ACC, AR, NR, EP = 32, 64, 12, 112
    mf = [(q, al) for al in range(64) for q in range(al // 8, 8)]
    first_use = {}
    for i, (q, al) in enumerate(mf):
        first_use.setdefault(("A", al), i)
        first_use.setdefault(("B", 8*q - al), i)
    loads = sorted(first_use.items(), key=lambda kv: (kv[1], kv[0][0]))
    last_of_tile = {q: max(i for i, (qq, al) in enumerate(mf) if qq == q) for q in range(8)}
    lastuse_A = {al: max(i for i, (q, a2) in enumerate(mf) if a2 == al) for al in range(64)}
    def epi_instrs(q):
        a = ACC + 4 * q
        e = EP + 16 * (q % 2)
        U = e + 14
        L = [("lds", f"ds_read_b64 v[{U}:{U+1}], v27 offset:{512*q}")]
        for j in range(4): L.append(("v", f"v_cvt_pk_bf16_f32 v{e+j}, 0, v{a+j}"))
        L.append(("waitu", None))
        L.append(("v", f"v_fma_mix_f32 v{e+4}, v{U}, s{S_DS}, 0 op_sel_hi:[1,0,0]"))
        L.append(("v", f"v_fma_mix_f32 v{e+5}, v{U}, s{S_DS}, 0 op_sel:[1,0,0] op_sel_hi:[1,0,0]"))
        L.append(("v", f"v_fma_mix_f32 v{e+6}, v{U+1}, s{S_DS}, 0 op_sel_hi:[1,0,0]"))
        L.append(("v", f"v_fma_mix_f32 v{e+7}, v{U+1}, s{S_DS}, 0 op_sel:[1,0,0] op_sel_hi:[1,0,0]"))
        for j in range(4): L.append(("v", f"v_cvt_pk_bf16_f32 v{e+4+j}, 0, v{e+4+j}"))
        for j in range(4): L.append(("v", f"v_fmac_f32 v{e+4+j}, v30, v{e+j}"))
        L.append(("v", f"v_cvt_pk_bf16_f32 v{e}, v{e+4}, v{e+5}"))
        L.append(("v", f"v_cvt_pk_bf16_f32 v{e+1}, v{e+6}, v{e+7}"))
        L.append(("gap", None))
        L.append(("v", f"v_permlane16_swap_b32 v{e}, v{e+2}"))
        L.append(("v", f"v_permlane16_swap_b32 v{e+1}, v{e+3}"))
        L.append(("st", f"buffer_store_dwordx4 v[{e}:{e+3}], v26, s[{S_WS}:{S_WS+3}], s{S_AO} offen offset:{512*q} sc1"))
        return L
    ldsq = []
    cur = [0]
    LAT = 6
    def lds_wait_for(idset, extend=True):
        idxs = [i for i, n in enumerate(ldsq) if n[0] in idset]
        if not idxs: return False
        k = max(idxs)
        if extend:
            while k + 1 < len(ldsq) and ldsq[k+1][1] <= cur[0] - LAT: k += 1
        A(f"s_waitcnt lgkmcnt({len(ldsq) - 1 - k})")
        del ldsq[:k+1]
        return True
    def issue_load(key):
        kind, v = key
        if kind == "A":
            r = AR + 4 * (v % NR)
            A(f"ds_read_b64 v[{r}:{r+1}], v24 offset:{64*v}"); ldsq.append((key, cur[0]))
            A(f"ds_read_b64 v[{r+2}:{r+3}], v24 offset:{64*v+8}"); ldsq.append((key, cur[0]))
        else:
            r = 4 * (v + 7)
            A(f"ds_read_b128 a[{r}:{r+3}], v25 offset:{64*(56-v)}"); ldsq.append((key, cur[0]))
    li = 0
    epi_q = []
    stores_after = [0]
    WINDOW, MAXQ = 12, 14
    for i, (q, al) in enumerate(mf):
        cur[0] = i
        budget = 2 if i > 0 else 99
        need = {("A", al), ("B", 8*q - al)}
        if any(n[0] in need for n in ldsq): budget -= 1
        while li < len(loads):
            key, dl = loads[li]
            n = 2 if key[0] == "A" else 1
            must = dl <= i
            if not must:
                if dl - i > WINDOW or budget <= 0: break
                if len(ldsq) + n > MAXQ: break
                if key[0] == "A" and key[1] >= NR and lastuse_A[key[1] - NR] >= i: break
            else:
                if len(ldsq) + n > 15:
                    A(f"s_waitcnt lgkmcnt({15-n})"); del ldsq[:len(ldsq) - (15 - n)]
            issue_load(key)
            budget -= n
            li += 1
        while budget > 0 and epi_q and epi_q[0][0] <= i:
            _, kind, txt, eq = epi_q.pop(0)
            if kind == "lds":
                if len(ldsq) + 1 > 15:
                    A("s_waitcnt lgkmcnt(14)"); del ldsq[:len(ldsq) - 14]
                A(txt); ldsq.append((("EU", eq), i))
            elif kind == "waitu":
                if lds_wait_for({("EU", eq)}): budget -= 1
                continue
            elif kind == "gap":
                if epi_q: epi_q[0] = (i + 2,) + epi_q[0][1:]
                break
            else:
                A(txt)
                if kind == "st": stores_after[0] += 1
            budget -= 1
        if hook is not None and i == hook_idx:
            hook(); stores_after[0] = 0
        lds_wait_for(need)
        r = AR + 4 * (al % NR)
        g = 8 * q - al
        c = "0" if al == 0 else f"v[{ACC+4*q}:{ACC+4*q+3}]"
        A(f"v_mfma_f32_16x16x32_f16 v[{ACC+4*q}:{ACC+4*q+3}], v[{r}:{r+3}], a[{4*(g+7)}:{4*(g+7)+3}], {c}")
        if i == last_of_tile[q]:
            for kind, txt in epi_instrs(q):
                epi_q.append((i + (1 if kind == "lds" else 8), kind, txt, q))
    cur[0] = len(mf) + 100
    A("s_nop 7")
    for _, kind, txt, eq in epi_q:
        if kind == "lds":
            A(txt); ldsq.append((("EU", eq), 0))
        elif kind == "waitu":
            lds_wait_for({("EU", eq)}, extend=False)
        elif kind == "gap":
            A("s_nop 1")
        else:
            A(txt)
            if kind == "st": stores_after[0] += 1
    return stores_after[0]

def gen_main(A):
    name = NAME + "_kernel"
    A.l.append(f".globl {name}")
    A.l.append(".p2align 8")
    A.l.append(f".type {name},@function")
    A.l.append(f"{name}:")
    A("s_cmp_ge_u32 s2, 256")
    A("s_cbranch_scc1 k_exit")
    if STAMP: A("v_mov_b32 v255, 0")
    if STAMP: A("v_mov_b32 v254, 0")
    if CODEPF:
        A("""
        s_getpc_b64 s[90:91]
        k_pc:
        v_lshlrev_b32 v2, 4, v0
        v_mov_b32 v3, s91
        v_add_co_u32 v2, vcc, s90, v2
        v_addc_co_u32 v3, vcc, 0, v3, vcc
        """)
        for i in range(NPF):
            A(f"v_cmp_gt_u32 vcc, (k_code_end-k_pc-{4096*i})/16, v0")
            A("s_and_saveexec_b64 s[92:93], vcc")
            A(f"s_cbranch_execz k_pf_done")
            A("global_load_dwordx4 v[160:163], v[2:3], off")
            A("s_mov_b64 exec, s[92:93]")
            A("v_add_co_u32 v2, vcc, 0x1000, v2")
            A("v_addc_co_u32 v3, vcc, 0, v3, vcc")
        A("k_pf_done:")
        A("s_mov_b64 exec, -1")
    stamp(A, 0)
    WS = f"s[{S_WS}:{S_WS+3}]"
    A(f"""
    s_load_dwordx2 s[4:5], s[0:1], {ARG['x']}
    s_load_dwordx2 s[6:7], s[0:1], {ARG['ws']}
    s_load_dwordx4 s[44:47], s[0:1], {ARG['lar']}
    s_load_dwordx4 s[48:51], s[0:1], {ARG['cre']}
    s_load_dwordx4 s[56:59], s[0:1], {ARG['ldt']}
    s_load_dwordx4 s[60:63], s[0:1], {ARG['wr']}
    s_load_dwordx4 s[64:67], s[0:1], {ARG['wu']}
    s_load_dwordx4 s[68:71], s[0:1], {ARG['out']}
    s_and_b32 s52, s2, 7
    s_lshr_b32 s53, s2, 3
    s_mul_i32 s54, s52, 20
    s_add_u32 s{S_TB}, s54, s53
    s_cmp_lt_u32 s2, 160
    s_cbranch_scc1 k_tb_done
    s_mul_i32 s54, s52, 12
    s_add_u32 s54, s54, s53
    s_add_u32 s{S_TB}, s54, 140
    k_tb_done:
    s_lshl_b32 s{S_T0}, s{S_TB}, 3
    v_lshrrev_b32 v2, 6, v0
    v_and_b32 v1, 63, v0
    s_nop 0
    v_readfirstlane_b32 s3, v2
    v_and_b32 v{VTOK}, 7, v1
    v_lshrrev_b32 v5, 3, v1
    v_add_u32 v6, s{S_T0}, v{VTOK}
    s_movk_i32 s52, 1280
    v_mul_lo_u32 v6, v6, s52
    s_mul_i32 s53, s3, 320
    v_lshl_add_u32 v{VCH}, v5, 3, s53
    v_add_u32 v{VROW}, v6, v{VCH}
    s_waitcnt lgkmcnt(0)
    """)
    srd(A, S_WS, 6, 7, 0, WS_SIZE)
    srd(A, S_X, 4, 5, 0, 2621440)
    A(f"""
    v_mov_b32 v199, 0
    s_mov_b32 s52, {WS_FL}
    s_cmp_lg_u32 s2, {NONWG}
    s_cbranch_scc1 k_non0
    buffer_load_dword v197, v199, {WS}, s52 offen sc1
    k_non0:
    """)
    for i in range(5):
        A(f"buffer_load_dwordx2 v[{200+2*i}:{201+2*i}], v{VROW}, s[{S_X}:{S_X+3}], 0 offen offset:{64*i}")
    srd(A, S_DBG, 70, 71, 0, 256)
    srd(A, S_WR, 60, 61, 0, 1280)
    for i in range(5):
        A(f"buffer_load_dwordx2 v[{VW+2*i}:{VW+2*i+1}], v{VCH}, s[{S_WR}:{S_WR+3}], 0 offen offset:{64*i}")
    srd(A, S_X, 68, 69, 0, 2621440)
    def small_clears():
        A(f"""
        s_mov_b64 exec, 0xfff
        s_mul_i32 s52, s2, 192
        s_add_u32 s52, s52, {WS_SM}
        buffer_store_dwordx4 v[40:43], v44, {WS}, s52 offen sc1
        s_mov_b64 exec, 3
        v_mov_b32 v46, 0
        v_mov_b32 v47, 0
        v_mov_b32 v48, 0
        v_mov_b32 v49, 0
        s_lshl_b32 s52, s{S_TB}, 5
        s_add_u32 s52, s52, {WS_KEY}
        buffer_store_dwordx4 v[46:49], v44, {WS}, s52 offen sc1
        s_mov_b64 exec, -1
        """)
    def publish_flag(tag):
        A(f"""
        s_cmp_lg_u32 s3, 0
        s_cbranch_scc1 {tag}_w
        s_waitcnt vmcnt(0)
        v_cmp_eq_u32 vcc, 0, v198
        s_mov_b64 s[54:55], vcc
        s_cmp_eq_u64 vcc, 0
        s_cbranch_scc1 {tag}_have
        """)
        masked_poll(A, [dict(mask=54, loads=[f"buffer_load_dword v198, v199, s[{S_DBG}:{S_DBG+3}], 0 offen sc1"], regs=[198], tmp=197, sent="min")], 53, 1, tag + "non")
        A(f"""
        {tag}_have:
        v_mov_b32 v197, {L_NON}
        ds_write_b32 v197, v198
        s_waitcnt lgkmcnt(0)
        {tag}_w:
        s_waitcnt vmcnt(0)
        s_barrier
        s_cmp_lg_u32 s3, 0
        s_cbranch_scc1 {tag}_done
        v_lshlrev_b32 v197, 10, v1
        s_lshl_b32 s52, s2, 2
        s_add_u32 s52, s52, {WS_FL}
        s_mov_b64 exec, 0xff
        buffer_store_dword v198, v197, {WS}, s52 offen sc1
        s_mov_b64 exec, -1
        {tag}_done:
        v_mov_b32 v197, {L_NON}
        ds_read_b32 v199, v197
        """)
    A(f"""
    v_mov_b32 v40, -1
    v_mov_b32 v41, -1
    v_mov_b32 v42, -1
    v_mov_b32 v43, -1
    v_lshlrev_b32 v44, 4, v1
    s_cmp_ge_u32 s2, 160
    s_cbranch_scc1 k_p0_ffn
    """)
    srd(A, 24, 44, 45, 0, 245760)
    srd(A, 28, 46, 47, 0, 245760)
    srd(A, 32, 48, 49, 0, 245760)
    srd(A, 36, 50, 51, 0, 245760)
    A(f"""
    s_lshl_b32 s{S_D}, s2, 2
    s_add_u32 s{S_D}, s{S_D}, s3
    s_mul_i32 s{S_B}, s3, {WAVE_LDS}
    s_add_u32 s{S_B}, s{S_B}, {LBASE}
    s_add_u32 s{S_K}, s{S_B}, {KOFF}
    s_lshl_b32 s{S_AO}, s{S_D}, 12
    s_add_u32 s{S_AO}, s{S_AO}, {WS_AT}
    s_mul_i32 s52, s{S_D}, 384
    v_lshlrev_b32 v3, 1, v1
    s_and_b32 s53, s{S_D}, 0xfffffffe
    s_lshl_b32 s53, s53, 1
    s_load_dword s42, s[56:57], s53
    s_load_dword s{S_DS}, s[58:59], s53
    """)
    for p in range(3):
        for j in range(4):
            A(f"buffer_load_ushort v{100+4*p+j}, v3, s[{24+4*j}:{27+4*j}], s52 offen offset:{128*p}")
    A(f"""
    v_lshlrev_b32 v8, 3, v1
    v_mov_b32 v112, 0
    v_mov_b32 v113, 0
    v_mov_b32 v114, 0
    v_mov_b32 v115, 0
    v_cmp_gt_u32 vcc, 48, v1
    s_and_saveexec_b64 s[54:55], vcc
    buffer_load_dwordx2 v[112:113], v8, s[32:35], s52 offen
    buffer_load_dwordx2 v[114:115], v8, s[36:39], s52 offen
    s_mov_b64 exec, s[54:55]
    s_waitcnt vmcnt(19)
    """)
    for i in range(4):
        A(f"buffer_store_dwordx4 v[40:43], v44, {WS}, s{S_AO} offen offset:{1024*i} sc1")
    A("s_branch k_p0_join")
    A("k_p0_ffn:")
    A("s_sub_u32 s38, s2, 160")
    if WPF:
        srd(A, 24, 62, 63, 0, 640*3072)
        srd(A, 28, 64, 65, 0, 640*3072)
        srd(A, 32, 66, 67, 0, 1536*1280)
        A(f"""
        s_and_b32 s39, s38, 7
        s_lshr_b32 s42, s38, 3
        s_mul_i32 s52, s42, 160
        v_add_u32 v8, s52, v0
        v_mul_u32_u24 v9, 0x5556, v8
        v_lshrrev_b32 v9, 16, v9
        v_mul_u32_u24 v10, 3, v9
        v_sub_u32 v10, v8, v10
        v_mul_u32_u24 v9, 3072, v9
        v_lshl_add_u32 v9, v10, 7, v9
        s_mul_i32 s52, s39, 384
        v_mov_b32 v11, 0x7fffffff
        v_cmp_gt_u32 vcc, 160, v0
        s_lshl_b32 s53, s42, 8
        v_add_u32 v12, s53, v0
        v_cndmask_b32 v9, v11, v9, vcc
        buffer_load_dword v160, v9, s[24:27], s52 offen
        buffer_load_dword v161, v9, s[28:31], s52 offen
        v_lshrrev_b32 v10, 1, v12
        v_mul_u32_u24 v10, 1280, v10
        v_and_b32 v12, 1, v12
        v_lshl_add_u32 v10, v12, 7, v10
        s_mul_i32 s52, s39, 160
        s_and_b32 s52, s52, 0xffffff80
        buffer_load_dword v162, v10, s[32:35], s52 offen
        s_waitcnt vmcnt(8)
        """)
    else:
        A("s_waitcnt vmcnt(5)")
    A("k_p0_join:")
    A(f"""
    s_cmp_lg_u32 s2, {NONWG}
    s_cbranch_scc1 k_non1
    s_cmp_lg_u32 s3, 0
    s_cbranch_scc1 k_non1
    v_add_u32 v197, 1, v197
    v_max_u32 v197, 1, v197
    s_mov_b64 exec, 1
    buffer_store_dword v197, v199, s[{S_DBG}:{S_DBG+3}], 0 offen sc1
    s_mov_b64 exec, -1
    k_non1:
    """)
    stamp(A, 1)
    A("s_cmp_lg_u32 s3, 0")
    A("s_cbranch_scc1 k_p0_j2")
    small_clears()
    A("k_p0_j2:")
    for i in range(10):
        unpack_bf16(A, 200 + i, VXF + 2*i, VXF + 2*i + 1)
    ln_stats(A, VXF)
    for i in range(10):
        a_, b_ = VXF + 2*i, VXF + 2*i + 1
        t = 86 + 2 * (i % 2)
        A(f"v_pk_add_f32 v[{t}:{t+1}], v[{a_}:{b_}], v[78:79] op_sel_hi:[1,0] neg_lo:[0,1] neg_hi:[0,1]")
        rnd(A, t, t); rnd(A, t+1, t+1)
        A(f"v_pk_mul_f32 v[{t}:{t+1}], v[{t}:{t+1}], v[80:81] op_sel_hi:[1,0]")
        rnd(A, t, t); rnd(A, t+1, t+1)
        A(f"v_cvt_pk_f16_f32 v{30+i}, v{t}, v{t+1}")
    A(f"""
    s_movk_i32 s52, {TSTR}
    v_mul_lo_u32 v6, v{VTOK}, s52
    v_add_u32 v6, v6, v{VCH}
    """)
    for i in range(5):
        A(f"ds_write_b64 v6, v[{30+2*i}:{31+2*i}] offset:{L_AT + 64*i}")
    A(f"""
    v_bfe_u32 v3, v1, 2, 2
    v_mul_lo_u32 v3, v3, s52
    v_lshrrev_b32 v4, 4, v1
    v_lshl_add_u32 v3, v4, 5, v3
    v_and_b32 v4, 3, v1
    v_lshl_add_u32 v3, v4, 3, v3
    s_lshl_b32 s53, s3, 7
    v_add_u32 v3, s53, v3
    v_lshlrev_b32 v4, 4, v0
    s_mul_i32 s52, s{S_TB}, 10240
    s_add_u32 s52, s52, {WS_UB}
    s_add_u32 s53, s52, 4096
    s_add_u32 s54, s52, 8192
    s_waitcnt lgkmcnt(0)
    s_barrier
    ds_read_b64_tr_b16 v[8:9], v3 offset:{L_AT}
    ds_read_b64_tr_b16 v[10:11], v3 offset:{L_AT + 4*TSTR}
    ds_read_b64_tr_b16 v[12:13], v3 offset:{L_AT + 512}
    ds_read_b64_tr_b16 v[14:15], v3 offset:{L_AT + 4*TSTR + 512}
    ds_read_b64_tr_b16 v[16:17], v3 offset:{L_AT + 1024}
    ds_read_b64_tr_b16 v[18:19], v3 offset:{L_AT + 4*TSTR + 1024}
    s_waitcnt lgkmcnt(0)
    buffer_store_dwordx4 v[8:11], v4, {WS}, s52 offen sc1
    buffer_store_dwordx4 v[12:15], v4, {WS}, s53 offen sc1
    s_cmp_ge_u32 s3, 2
    s_cbranch_scc1 k_ln1_skip
    buffer_store_dwordx4 v[16:19], v4, {WS}, s54 offen sc1
    k_ln1_skip:
    s_cmp_lg_u32 s3, 0
    s_cbranch_scc1 k_non2
    buffer_load_dword v198, v199, s[{S_DBG}:{S_DBG+3}], 0 offen sc1
    k_non2:
    """)
    stamp(A, 2)
    A("s_cmp_lt_u32 s2, 160")
    A("s_cbranch_scc1 k_conv_role")
    publish_flag("ff")
    A("s_waitcnt lgkmcnt(0)")
    A(f"v_readfirstlane_b32 s{S_NON}, v199")
    stamp(A, 3)
    A("s_branch k_ffn_pre")
    A("k_conv_role:")
    A("s_waitcnt vmcnt(6)")
    def flag_poll(sleep, first_issued=False):
        L = newlbl("flg")
        if not first_issued:
            flag_setup()
        A(f"s_mov_b32 s53, 0")
        if first_issued:
            A(f"s_branch {L}_chk")
        A(f"{L}:")
        A(f"s_mov_b64 exec, s[54:55]")
        A(f"buffer_load_dwordx4 v[192:195], v196, {WS}, s51 offen sc1")
        A("s_mov_b64 exec, -1")
        A(f"{L}_chk:")
        A("s_waitcnt vmcnt(0)")
        A(f"v_xor_b32 v192, s{S_NON}, v192")
        A(f"v_xor_b32 v193, s{S_NON}, v193")
        A(f"v_xor_b32 v194, s{S_NON}, v194")
        A(f"v_xor_b32 v195, s{S_NON}, v195")
        A("v_or3_b32 v197, v192, v193, v194")
        A("v_or_b32 v197, v197, v195")
        A("v_cmp_ne_u32 vcc, 0, v197")
        A("s_and_b64 s[54:55], s[54:55], vcc")
        A("s_cmp_eq_u64 s[54:55], 0")
        A(f"s_cbranch_scc1 {L}_done")
        A("s_add_u32 s53, s53, 1")
        A(f"s_sleep {sleep}")
        A(f"s_cmp_lt_u32 s53, {POLL_LIMIT}")
        A(f"s_cbranch_scc1 {L}")
        A(f"{L}_done:")
    def flag_setup():
        A(f"""
        v_lshlrev_b32 v196, 4, v1
        s_and_b32 s51, s2, 7
        s_lshl_b32 s51, s51, 10
        s_add_u32 s51, s51, {WS_FL}
        s_mov_b64 s[54:55], -1
        """)
    def hook0():
        publish_flag("cf")
        stamp(A, 3)
    def mid_hook():
        A(f"v_readfirstlane_b32 s{S_NON}, v199")
        flag_setup()
        A(f"buffer_load_dwordx4 v[192:195], v196, {WS}, s51 offen sc1")
    G = 128
    def tail_hook():
        stamp(A, 4)
        flag_poll(1, first_issued=True)
        stamp(A, 5)
        A(f"""
        v_lshrrev_b32 v196, 2, v1
        s_movk_i32 s52, 10240
        v_mul_lo_u32 v197, v196, s52
        v_and_b32 v198, 3, v1
        v_lshl_add_u32 v197, v198, 4, v197
        s_mul_i32 s52, s3, {64*10240}
        s_lshl_b32 s53, s2, 6
        s_add_u32 s52, s52, s53
        s_add_u32 s52, s52, {WS_UB}
        """)
        for i in range(4):
            A(f"buffer_load_dwordx4 v[{G+4*i}:{G+4*i+3}], v197, {WS}, s52 offen sc1")
            if i < 3: A(f"s_add_u32 s52, s52, {16*10240}")
        A(f"""
        s_movk_i32 s52, {WAVE_LDS}
        v_mul_lo_u32 v198, v198, s52
        v_lshl_add_u32 v198, v196, 4, v198
        s_lshl_b32 s52, s3, 10
        s_add_u32 s52, s52, {LBASE + 32}
        v_add_u32 v198, s52, v198
        """)
    kgen(A, mid_hook, tail_hook, hook0)
    A(f"""
    v_lshlrev_b32 v9, 4, v1
    v_add_u32 v9, s{S_B}, v9
    v_add_u32 v10, 4096, v9
    v_cmp_gt_u32 vcc, 2, v1
    v_and_b32 v21, 15, v1
    v_lshrrev_b32 v22, 4, v1
    v_cndmask_b32 v10, v10, v9, vcc
    v_add_u32 v23, 1, v21
    v_and_b32 v24, 3, v23
    s_movk_i32 s53, 4160
    v_mul_lo_u32 v24, v24, s53
    v_lshrrev_b32 v23, 2, v23
    v_lshl_add_u32 v24, v23, 3, v24
    v_lshl_add_u32 v24, v22, 4, v24
    v_add_u32 v24, s{S_B}, v24
    v_lshlrev_b32 v25, 5, v21
    v_sub_u32 v25, {2*2032 - 64*56}, v25
    v_lshl_add_u32 v25, v22, 4, v25
    v_add_u32 v25, s{S_K}, v25
    v_lshlrev_b32 v26, 5, v21
    v_lshl_add_u32 v27, v22, 3, v26
    v_add_u32 v27, 32, v27
    v_add_u32 v27, s{S_B}, v27
    v_lshrrev_b32 v28, 1, v22
    v_lshl_add_u32 v26, v28, 4, v26
    v_and_b32 v28, 1, v22
    v_lshlrev_b32 v28, 30, v28
    v_or_b32 v26, v26, v28
    s_waitcnt lgkmcnt(0)
    s_barrier
    s_mov_b64 exec, 0xf
    ds_write_b128 v10, v[16:19]
    s_mov_b64 exec, -1
    """)
    for i in range(4):
        A(f"s_waitcnt vmcnt({3-i})")
        A(f"ds_write_b128 v198, v[{G+4*i}:{G+4*i+3}] offset:{256*i}")
    R = 128
    A(f"""
    v_mov_b32 v{R+32}, 0
    v_mov_b32 v{R+33}, 0
    v_mov_b32 v{R+34}, 0
    v_mov_b32 v{R+35}, 0
    s_waitcnt lgkmcnt(0)
    s_barrier
    """)
    stamp(A, 6)
    for i in range(4):
        A(f"ds_read_b128 v[{R+8*i}:{R+8*i+3}], v9 offset:{32 + 1024*i}")
        A(f"ds_read_b64 v[{R+8*i+4}:{R+8*i+5}], v9 offset:{48 + 1024*i}")
    A(f"ds_read_b64 v[{R+36}:{R+37}], v9 offset:16")
    nw = 0
    for i in range(5):
        r = R + 8*i
        reads_after = (2 * (3 - i) + 1) if i < 4 else 0
        A(f"s_waitcnt lgkmcnt({min(15, reads_after + nw)})")
        T1, T2, T3 = 176, 180, 184
        if i % 2: T1, T2, T3 = 188, 192, 196
        A(f"v_alignbit_b32 v{T1}, v{r+1}, v{r}, 16")
        A(f"v_alignbit_b32 v{T1+1}, v{r+2}, v{r+1}, 16")
        A(f"v_alignbit_b32 v{T1+2}, v{r+3}, v{r+2}, 16")
        A(f"v_alignbit_b32 v{T1+3}, v{r+4}, v{r+3}, 16")
        off = (32 + 1024*i) if i < 4 else 0
        if i == 4: A("s_mov_b64 exec, 3")
        A(f"ds_write_b128 v9, v[{T1}:{T1+3}] offset:{CB[1] + off}")
        A(f"v_mov_b32 v{T2}, v{r+1}")
        A(f"v_mov_b32 v{T2+1}, v{r+2}")
        A(f"v_mov_b32 v{T2+2}, v{r+3}")
        A(f"v_mov_b32 v{T2+3}, v{r+4}")
        A(f"ds_write_b128 v9, v[{T2}:{T2+3}] offset:{CB[2] + off}")
        A(f"v_mov_b32 v{T3}, v{T1+1}")
        A(f"v_mov_b32 v{T3+1}, v{T1+2}")
        A(f"v_mov_b32 v{T3+2}, v{T1+3}")
        A(f"v_alignbit_b32 v{T3+3}, v{r+5}, v{r+4}, 16")
        A(f"ds_write_b128 v9, v[{T3}:{T3+3}] offset:{CB[3] + off}")
        if i == 4: A("s_mov_b64 exec, -1")
        nw += 3
    A("s_waitcnt lgkmcnt(0)")
    stamp(A, 12)
    def a_setup():
        A(f"""
        v_lshlrev_b32 v3, 12, v0
        s_lshl_b32 s43, s{S_T0}, 1
        s_add_u32 s43, s43, {WS_AT}
        s_add_u32 s44, s43, {256*4096}
        s_add_u32 s45, s43, {512*4096}
        s_mov_b64 s[54:55], -1
        s_mov_b64 s[56:57], -1
        s_mov_b64 s[58:59], -1
        """)
    asets = [dict(mask=54, loads=[f"buffer_load_dwordx4 v[8:11], v3, {WS}, s43 offen sc1"], regs=[8,9,10,11], tmp=20),
             dict(mask=56, loads=[f"buffer_load_dwordx4 v[12:15], v3, {WS}, s44 offen sc1"], regs=[12,13,14,15], tmp=20),
             dict(mask=58, loads=[f"buffer_load_dwordx4 v[16:19], v3, {WS}, s45 offen sc1"], regs=[16,17,18,19], tmp=20)]
    def mask3():
        L = newlbl("m3")
        A(f"s_cmp_lt_u32 s3, 2")
        A(f"s_cbranch_scc1 {L}")
        A("s_mov_b64 s[58:59], 0")
        A(f"{L}:")
    a_setup()
    def a_hook():
        for st in asets:
            for ld in st["loads"]: A(ld.replace(" sc1", APLAIN))
    nst = conv_main(A, AHOOK, a_hook if AHOOK >= 0 else None)
    stamp(A, 7)
    if CDELAY: A(f"s_sleep {CDELAY}")
    mask3()
    masked_poll(A, asets, 46, ASLEEP, "apollc", first=(("issued", nst) if AHOOK >= 0 else None))
    cnt_stamp(A, 0, 46)
    A("s_branch k_ln2c")
    A("k_ffn_pre:")
    srd(A, 24, 62, 63, 0, 640*3072)
    srd(A, 28, 64, 65, 0, 640*3072)
    srd(A, 32, 66, 67, 0, 1536*1280)
    A(f"""
    s_sub_u32 s38, s2, 160
    s_and_b32 s39, s38, 7
    s_lshr_b32 s42, s38, 3
    s_mul_i32 s36, s39, 12
    s_add_u32 s36, s36, s42
    s_mul_i32 s37, s39, 10
    s_add_u32 s37, s37, s42
    v_lshrrev_b32 v3, 1, v0
    s_movk_i32 s46, 3072
    v_mul_lo_u32 v3, v3, s46
    v_and_b32 v4, 1, v0
    v_lshl_add_u32 v3, v4, 4, v3
    s_lshl_b32 s43, s36, 5
    s_lshl_b32 s44, s3, 10
    """)
    for it in range(5):
        A(f"s_add_u32 s45, s43, {it*128*3072}")
        A(f"s_add_u32 s47, s44, {L_G + it*4096}")
        A("s_mov_b32 m0, s47")
        A("s_nop 0")
        A("buffer_load_dwordx4 v3, s[24:27], s45 offen lds")
        A(f"s_add_u32 s47, s44, {L_U + it*4096}")
        A("s_mov_b32 m0, s47")
        A("s_nop 0")
        A("buffer_load_dwordx4 v3, s[28:31], s45 offen lds")
    A(f"""
    s_cmp_ge_u32 s38, 80
    s_cbranch_scc1 k_ffn_nowd
    s_movk_i32 s46, 1280
    v_mul_lo_u32 v3, v0, s46
    s_lshl_b32 s43, s37, 4
    """)
    for it in range(6):
        A(f"s_add_u32 s45, s43, {it*256*1280}")
        A(f"s_add_u32 s47, s44, {L_WD + it*4096}")
        A("s_mov_b32 m0, s47")
        A("s_nop 0")
        A("buffer_load_dwordx4 v3, s[32:35], s45 offen lds")
    A("k_ffn_nowd:")
    flag_poll(8)
    stamp(A, 5)
    if CANARY:
        A(f"""
        s_cmp_lg_u32 s3, 0
        s_cbranch_scc1 k_can_done
        v_lshlrev_b32 v3, 12, v0
        s_lshl_b32 s43, s{S_T0}, 1
        s_add_u32 s43, s43, {WS_AT}
        s_mov_b64 s[54:55], -1
        """)
        masked_poll(A, [dict(mask=54, loads=[f"buffer_load_dwordx4 v[8:11], v3, {WS}, s43 offen sc1"], regs=[8, 9, 10, 11], tmp=12)], 46, CSLEEP, "can")
        cnt_stamp(A, 2, 46)
        A("k_can_done:")
        A("s_barrier")
    stamp(A, 7)
    A("s_branch k_ln2b")
    A("k_ln2b:")
    a_setup()
    mask3()
    masked_poll(A, asets, 46, FSLEEP, "apoll", first=("plain" if (APLAIN == "" and CANARY) else None))
    cnt_stamp(A, 0, 46)
    A("k_ln2c:")
    A(f"""
    v_lshlrev_b32 v3, 4, v0
    ds_write_b128 v3, v[8:11] offset:{L_AT}
    ds_write_b128 v3, v[12:15] offset:{L_AT+4096}
    s_cmp_ge_u32 s3, 2
    s_cbranch_scc1 k_ln2_w3
    ds_write_b128 v3, v[16:19] offset:{L_AT+8192}
    k_ln2_w3:
    v_lshrrev_b32 v8, 4, v1
    v_lshlrev_b32 v8, 3, v8
    v_bfe_u32 v9, v1, 1, 1
    v_lshl_add_u32 v8, v9, 2, v8
    v_bfe_u32 v9, v1, 2, 2
    v_add_u32 v8, v8, v9
    s_mul_i32 s47, s3, 160
    v_add_u32 v8, s47, v8
    v_lshlrev_b32 v8, 4, v8
    v_and_b32 v9, 1, v1
    v_lshl_add_u32 v8, v9, 3, v8
    s_waitcnt lgkmcnt(0)
    s_barrier
    """)
    stamp(A, 8)
    for i in range(5):
        A(f"ds_read_b64_tr_b16 v[{30+2*i}:{31+2*i}], v8 offset:{L_AT+512*i}")
    H = 40
    for i in range(10):
        a, b = H + 2*i, H + 2*i + 1
        if i % 2 == 0: A(f"s_waitcnt lgkmcnt({4 - i//2})")
        unpack_bf16(A, 30 + i, a, b)
        A(f"v_pk_add_f32 v[{a}:{b}], v[{a}:{b}], v[{VXF+2*i}:{VXF+2*i+1}]")
        rnd(A, a, a); rnd(A, b, b)
    ln_stats(A, H)
    A("v_mov_b32 v82, 0")
    A("v_mov_b32 v83, 0")
    for i in range(10):
        a, b = H + 2*i, H + 2*i + 1
        t = 86 + 2 * (i % 2)
        A(f"v_pk_add_f32 v[{t}:{t+1}], v[{a}:{b}], v[78:79] op_sel_hi:[1,0] neg_lo:[0,1] neg_hi:[0,1]")
        rnd(A, t, t); rnd(A, t+1, t+1)
        A(f"v_pk_mul_f32 v[{t}:{t+1}], v[{t}:{t+1}], v[80:81] op_sel_hi:[1,0]")
        A(f"v_cvt_pk_bf16_f32 v{30+i}, v{t}, v{t+1}")
        A(f"v_dot2_f32_bf16 v{82 + i % 2}, v{30+i}, v{VW+i}, v{82 + i % 2}")
    A("s_nop 2")
    A("v_add_f32 v82, v82, v83")
    red8(A, 82, 83)
    A(f"""
    v_lshlrev_b32 v76, 2, v{VTOK}
    v_add_u32 v76, {L_RP}, v76
    s_lshl_b32 s47, s3, 5
    v_add_u32 v77, s47, v76
    v_cmp_gt_u32 vcc, 8, v1
    s_and_saveexec_b64 s[48:49], vcc
    ds_write_b32 v77, v82
    s_mov_b64 exec, s[48:49]
    s_waitcnt lgkmcnt(0)
    s_barrier
    ds_read_b32 v78, v76
    ds_read_b32 v79, v76 offset:32
    ds_read_b32 v80, v76 offset:64
    ds_read_b32 v81, v76 offset:96
    s_waitcnt lgkmcnt(0)
    v_add_f32 v78, v78, v79
    v_add_f32 v80, v80, v81
    v_add_f32 v78, v78, v80
    v_cvt_pk_bf16_f32 v78, v78, v78
    v_and_b32 v78, 0xffff, v78
    v_xor_b32 v79, 0xffff, v78
    v_or_b32 v80, 0x8000, v78
    v_cmp_lt_u32 vcc, 0x7fff, v78
    v_lshlrev_b32 v87, 16, v78
    s_nop 0
    v_cndmask_b32 v78, v80, v79, vcc
    v_lshlrev_b32 v78, 16, v78
    v_add_u32 v79, s{S_T0}, v{VTOK}
    v_sub_u32 v80, 0xffff, v79
    v_or_b32 v86, v78, v80
    s_cmp_lg_u32 s3, 0
    s_cbranch_scc1 k_nokey
    v_lshlrev_b32 v80, 2, v79
    s_mov_b32 s47, {WS_KEY}
    s_mov_b64 exec, 0xff
    buffer_store_dword v86, v80, {WS}, s47 offen sc1
    s_mov_b64 exec, -1
    k_nokey:
    """)
    stamp(A, 9)
    A(f"""
    v_lshlrev_b32 v9, 5, v0
    s_mov_b32 s47, {WS_KEY}
    s_mov_b64 s[54:55], -1
    """)
    for i in range(10):
        a, b = H + 2*i, H + 2*i + 1
        unpack_bf16(A, 30 + i, 70, 71)
        A(f"v_pk_add_f32 v[70:71], v[70:71], v[{a}:{b}]")
        A(f"v_cvt_pk_bf16_f32 v{10+i}, v70, v71")
    masked_poll(A, [dict(mask=54, loads=[f"buffer_load_dwordx4 v[90:93], v9, {WS}, s47 offen sc1", f"buffer_load_dwordx4 v[94:97], v9, {WS}, s47 offen offset:16 sc1"],
                         regs=list(range(90, 98)), tmp=98, sent="min")], 46, KSLEEP, "kpoll")
    cnt_stamp(A, 1, 46)
    stamp(A, 10)
    A(f"""
    s_mov_b32 s50, -1
    s_mov_b64 s[52:53], 0
    s_mov_b32 s51, 0
    k_own:
    v_cmp_gt_u32 vcc, s50, v86
    s_nop 1
    v_cndmask_b32 v98, 0, v86, vcc
    """)
    for pat in ("quad_perm:[1,0,3,2]", "quad_perm:[2,3,0,1]", "row_half_mirror"):
        A("s_nop 1")
        A(f"v_max_u32_dpp v98, v98, v98 {pat} {DPP}")
    A(f"""
    s_nop 0
    v_readfirstlane_b32 s54, v98
    s_nop 3
    s_cmp_eq_u32 s54, 0
    s_cbranch_scc1 k_own_done
    s_mov_b32 s55, 0
    """)
    for r in range(8):
        A(f"v_cmp_lt_u32 vcc, s54, v{90+r}")
        A(f"s_bcnt1_i32_b64 s56, vcc")
        A(f"s_add_u32 s55, s55, s56")
    A(f"""
    s_lshl_b32 s56, s51, 4
    s_lshl_b32 s57, s3, 2
    s_add_u32 s57, s57, s56
    s_add_u32 s57, s57, {L_CNT}
    v_mov_b32 v99, s57
    v_mov_b32 v100, s55
    s_add_u32 s56, s56, {L_CNT}
    v_mov_b32 v101, s56
    s_mov_b64 exec, 1
    ds_write_b32 v99, v100
    s_mov_b64 exec, -1
    s_waitcnt lgkmcnt(0)
    s_barrier
    ds_read_b128 v[102:105], v101
    s_waitcnt lgkmcnt(0)
    v_add_u32 v102, v102, v103
    v_add3_u32 v102, v102, v104, v105
    s_nop 0
    v_readfirstlane_b32 s55, v102
    s_nop 3
    s_cmp_ge_u32 s55, 8
    s_cbranch_scc1 k_own_done
    v_cmp_eq_u32 vcc, s54, v86
    s_or_b64 s[52:53], s[52:53], vcc
    s_and_saveexec_b64 s[48:49], vcc
    s_mul_i32 s56, s55, 1280
    s_add_u32 s57, s56, {WS_HS}
    s_add_u32 s56, s56, {WS_ZS}
    """)
    for i in range(5):
        A(f"buffer_store_dwordx2 v[{30+2*i}:{31+2*i}], v{VCH}, {WS}, s56 offen offset:{64*i} sc1")
    for i in range(10):
        A(f"v_cvt_pk_bf16_f32 v{106+i}, v{H+2*i}, v{H+2*i+1}")
    for i in range(5):
        A(f"buffer_store_dwordx2 v[{106+2*i}:{107+2*i}], v{VCH}, {WS}, s57 offen offset:{64*i} sc1")
    A(f"""
    s_cmp_lg_u32 s3, 0
    s_cbranch_scc1 k_own_nometa
    v_cmp_gt_u32 vcc, 8, v1
    s_and_b64 exec, exec, vcc
    v_mul_f32 v99, {hex(F_LOG2E)}, v87
    v_exp_f32 v99, -v99
    s_nop 0
    v_add_f32 v99, 1.0, v99
    v_rcp_f32 v99, v99
    s_nop 0
    v_cvt_pk_bf16_f32 v99, 0, v99
    s_lshl_b32 s56, s55, 2
    s_add_u32 s56, s56, {WS_META}
    v_mov_b32 v100, 0
    buffer_store_dword v79, v100, {WS}, s56 offen sc1
    buffer_store_dword v99, v100, {WS}, s56 offen offset:32 sc1
    k_own_nometa:
    s_mov_b64 exec, -1
    s_mov_b32 s50, s54
    s_xor_b32 s51, s51, 1
    s_branch k_own
    k_own_done:
    """)
    stamp(A, 11)
    A("s_andn2_b64 exec, exec, s[52:53]")
    for i in range(5):
        A(f"buffer_store_dwordx2 v[{10+2*i}:{11+2*i}], v{VROW}, s[{S_X}:{S_X+3}], 0 offen offset:{64*i} {OUTF}")
    A("s_mov_b64 exec, -1")
    A("s_cmp_lt_u32 s2, 160")
    A("s_cbranch_scc1 k_end")
    A(f"""
    v_lshrrev_b32 v7, 4, v1
    s_movk_i32 s46, 1280
    v_mul_lo_u32 v9, v{VTOK}, s46
    v_lshl_add_u32 v9, v7, 4, v9
    s_mul_i32 s47, s3, 320
    s_add_u32 s47, s47, {WS_ZS}
    v_lshlrev_b32 v10, 3, v7
    v_bfe_u32 v11, v1, 2, 2
    v_add_u32 v10, v10, v11
    v_lshlrev_b32 v10, 5, v10
    v_and_b32 v11, 3, v1
    v_lshl_add_u32 v10, v11, 3, v10
    s_mul_i32 s44, s3, {5*32*32}
    s_add_u32 s44, s44, {L_G}
    v_add_u32 v10, s44, v10
    """)
    for i in range(5):
        A(f"ds_read_b64_tr_b16 v[{120+4*i}:{121+4*i}], v10 offset:{1024*i}")
        A(f"ds_read_b64_tr_b16 v[{122+4*i}:{123+4*i}], v10 offset:{1024*i + 128}")
        A(f"ds_read_b64_tr_b16 v[{140+4*i}:{141+4*i}], v10 offset:{L_U - L_G + 1024*i}")
        A(f"ds_read_b64_tr_b16 v[{142+4*i}:{143+4*i}], v10 offset:{L_U - L_G + 1024*i + 128}")
        if i % 2 == 1: A("s_waitcnt lgkmcnt(0)")
    A("s_mov_b64 s[54:55], -1")
    masked_poll(A, [dict(mask=54, loads=[f"buffer_load_dwordx4 v[{40+4*i}:{43+4*i}], v9, {WS}, s47 offen offset:{64*i} sc1" for i in range(5)],
                         regs=list(range(40, 60)), tmp=60)], 46, 1, "zpoll")
    cnt_stamp(A, 3, 46)
    stamp(A, 12)
    A("s_waitcnt lgkmcnt(0)")
    for i in range(5):
        c = "0" if i == 0 else "v[80:83]"
        A(f"v_mfma_f32_16x16x32_bf16 v[80:83], v[{40+4*i}:{43+4*i}], v[{120+4*i}:{123+4*i}], {c}")
        c = "0" if i == 0 else "v[84:87]"
        A(f"v_mfma_f32_16x16x32_bf16 v[84:87], v[{40+4*i}:{43+4*i}], v[{140+4*i}:{143+4*i}], {c}")
    A(f"""
    v_lshlrev_b32 v11, 4, v1
    s_lshl_b32 s44, s3, 11
    v_add_u32 v12, s44, v11
    s_lshl_b32 s44, s3, 2
    v_add_u32 v11, s44, v11
    s_nop 5
    ds_write_b128 v12, v[80:83] offset:{L_RED}
    ds_write_b128 v12, v[84:87] offset:{L_RED+1024}
    s_waitcnt lgkmcnt(0)
    s_barrier
    """)
    for w in range(4):
        A(f"ds_read_b32 v{40+w}, v11 offset:{L_RED + 2048*w}")
        A(f"ds_read_b32 v{44+w}, v11 offset:{L_RED + 2048*w + 1024}")
    A(f"""
    v_and_b32 v13, 15, v1
    v_lshlrev_b32 v12, 1, v13
    v_lshrrev_b32 v7, 4, v1
    s_movk_i32 s46, {4*3072}
    v_mul_lo_u32 v14, v7, s46
    v_add_u32 v12, v12, v14
    s_lshl_b32 s44, s36, 5
    s_mul_i32 s45, s3, 3072
    s_add_u32 s44, s44, s45
    s_add_u32 s44, s44, {WS_HID}
    s_waitcnt lgkmcnt(0)
    v_add_f32 v40, v40, v41
    v_add_f32 v42, v42, v43
    v_add_f32 v44, v44, v45
    v_add_f32 v46, v46, v47
    v_add_f32 v40, v40, v42
    v_add_f32 v44, v44, v46
    v_cvt_pk_bf16_f32 v40, 0, v40
    v_cvt_pk_bf16_f32 v44, 0, v44
    v_mul_f32 v52, {hex(F_LOG2E)}, v40
    v_exp_f32 v52, -v52
    s_nop 0
    v_add_f32 v52, 1.0, v52
    v_rcp_f32 v52, v52
    s_nop 0
    v_mul_f32 v52, v52, v40
    v_cvt_pk_bf16_f32 v52, 0, v52
    v_mul_f32 v52, v52, v44
    v_cvt_pk_bf16_f32 v52, v52, v52
    s_mov_b32 s58, 0x05040100
    s_nop 0
    v_mov_b32_dpp v53, v52 quad_perm:[1,1,3,3] {DPP}
    v_perm_b32 v56, v53, v52, s58
    s_nop 1
    v_mov_b32_dpp v57, v56 row_shl:2 {DPP}
    v_mov_b32_dpp v58, v56 row_shl:4 {DPP}
    v_mov_b32_dpp v59, v56 row_shl:6 {DPP}
    v_and_b32 v11, 7, v1
    v_cmp_eq_u32 vcc, 0, v11
    v_cmp_gt_u32 s[48:49], 2, v7
    s_and_b64 vcc, vcc, s[48:49]
    s_and_saveexec_b64 s[48:49], vcc
    buffer_store_dwordx4 v[56:59], v12, {WS}, s44 offen sc1
    s_mov_b64 exec, -1
    """)
    stamp(A, 13)
    A("s_cmp_ge_u32 s38, 80")
    A("s_cbranch_scc1 k_end")
    A(f"""
    v_bfe_u32 v5, v1, 3, 1
    v_lshrrev_b32 v7, 4, v1
    s_movk_i32 s46, 3072
    v_mul_lo_u32 v9, v{VTOK}, s46
    s_movk_i32 s46, 1536
    v_mul_lo_u32 v10, v5, s46
    v_add_u32 v9, v9, v10
    v_lshl_add_u32 v9, v7, 4, v9
    s_mul_i32 s47, s3, {6*64}
    s_add_u32 s47, s47, {WS_HID}
    v_lshlrev_b32 v14, 3, v7
    v_bfe_u32 v15, v1, 2, 2
    v_add_u32 v14, v14, v15
    v_bfe_u32 v15, v1, 1, 1
    s_movk_i32 s46, 768
    v_mul_lo_u32 v15, v15, s46
    v_add_u32 v14, v14, v15
    v_lshlrev_b32 v14, 4, v14
    v_and_b32 v15, 1, v1
    v_lshl_add_u32 v14, v15, 3, v14
    s_mul_i32 s44, s3, {6*512}
    s_add_u32 s44, s44, {L_WD}
    v_add_u32 v14, s44, v14
    """)
    for i in range(6):
        A(f"ds_read_b64_tr_b16 v[{120+4*i}:{121+4*i}], v14 offset:{512*i}")
        A(f"ds_read_b64_tr_b16 v[{122+4*i}:{123+4*i}], v14 offset:{512*i + 64}")
    A(f"""
    v_lshrrev_b32 v20, 3, v1
    v_and_b32 v21, 7, v1
    s_movk_i32 s46, 1280
    v_mul_lo_u32 v35, v20, s46
    v_lshl_add_u32 v35, v21, 1, v35
    v_and_b32 v35, 0xfffffffc, v35
    s_lshl_b32 s44, s37, 4
    s_add_u32 s50, s44, {WS_ZS}
    s_add_u32 s51, s44, {WS_HS}
    v_lshlrev_b32 v32, 2, v20
    s_mov_b32 s45, {WS_META}
    s_mov_b64 s[54:55], -1
    s_mov_b64 s[56:57], 0
    s_cmp_lg_u32 s3, 0
    s_cbranch_scc1 k_g2_m
    s_mov_b64 s[56:57], -1
    k_g2_m:
    """)
    masked_poll(A, [dict(mask=54, loads=[f"buffer_load_dwordx4 v[{40+4*i}:{43+4*i}], v9, {WS}, s47 offen offset:{64*i} sc1" for i in range(6)],
                         regs=list(range(40, 64)), tmp=65),
                    dict(mask=56, loads=[f"buffer_load_dword v36, v35, {WS}, s50 offen sc1", f"buffer_load_dword v37, v35, {WS}, s51 offen sc1",
                                         f"buffer_load_dword v33, v32, {WS}, s45 offen sc1", f"buffer_load_dword v34, v32, {WS}, s45 offen offset:32 sc1"],
                         regs=[36, 37, 33, 34], tmp=64)], 46, 1, "hpoll")
    cnt_stamp(A, 4, 46)
    stamp(A, 14)
    A("s_waitcnt lgkmcnt(0)")
    for i in range(6):
        c = "0" if i == 0 else "v[88:91]"
        A(f"v_mfma_f32_16x16x32_bf16 v[88:91], v[{40+4*i}:{43+4*i}], v[{120+4*i}:{123+4*i}], {c}")
    A(f"""
    v_lshlrev_b32 v15, 4, v1
    s_lshl_b32 s44, s3, 10
    v_add_u32 v16, s44, v15
    s_barrier
    s_nop 4
    ds_write_b128 v16, v[88:91] offset:{L_RED}
    s_waitcnt lgkmcnt(0)
    s_barrier
    s_cmp_lg_u32 s3, 0
    s_cbranch_scc1 k_end
    v_lshrrev_b32 v22, 2, v20
    v_lshl_add_u32 v22, v22, 4, v21
    v_lshlrev_b32 v22, 4, v22
    v_and_b32 v23, 3, v20
    v_lshl_add_u32 v22, v23, 2, v22
    """)
    for w in range(4):
        A(f"ds_read_b32 v{24+2*w}, v22 offset:{L_RED + 1024*w}")
        A(f"ds_read_b32 v{25+2*w}, v22 offset:{L_RED + 1024*w + 640}")
    A(f"""
    v_and_b32 v38, 1, v21
    v_cmp_eq_u32 vcc, 1, v38
    v_lshlrev_b32 v38, 16, v36
    v_and_b32 v36, 0xffff0000, v36
    v_cndmask_b32 v36, v38, v36, vcc
    v_lshlrev_b32 v38, 16, v37
    v_and_b32 v37, 0xffff0000, v37
    v_cndmask_b32 v37, v38, v37, vcc
    s_movk_i32 s46, 1280
    v_mul_lo_u32 v35, v33, s46
    v_lshl_add_u32 v35, v21, 1, v35
    s_lshl_b32 s44, s37, 4
    s_waitcnt lgkmcnt(0)
    v_add_f32 v24, v24, v25
    v_add_f32 v26, v26, v27
    v_add_f32 v28, v28, v29
    v_add_f32 v30, v30, v31
    v_add_f32 v24, v24, v26
    v_add_f32 v28, v28, v30
    v_add_f32 v24, v24, v28
    v_cvt_pk_bf16_f32 v24, 0, v24
    v_mul_f32 v24, v24, v34
    v_cvt_pk_bf16_f32 v24, 0, v24
    v_add_f32 v24, v36, v24
    v_cvt_pk_bf16_f32 v24, 0, v24
    v_add_f32 v24, v37, v24
    v_cvt_pk_bf16_f32 v24, v24, v24
    buffer_store_short v24, v35, s[{S_X}:{S_X+3}], s44 offen
    k_end:
    """)
    stamp_flush(A)
    A("k_exit:")
    A("s_endpgm")
    A("k_code_end:")
    A("s_endpgm")
    return name

def main():
    global STAMP
    if "--stamp" in sys.argv:
        STAMP = True
        sys.argv.remove("--stamp")
    hdr = open("cdna_kernels/%s.s.ref" % NAME).read().split("; Override launch")[0]
    b = Asm(); name = gen_main(b)
    out = hdr + f"; @launch grid=(256,1,1) block=(256,1,1) lds={LDS_TOTAL}\n"
    out += '.amdgcn_target "amdgcn-amd-amdhsa--gfx950"\n.text\n'
    out += b.text()
    out += '.section .rodata,"a"\n.p2align 6\n' + gen.kernel_desc(name, 512, 100, 256)
    path = sys.argv[1] if len(sys.argv) > 1 else "cdna_kernels/%s.s" % NAME
    open(path, "w").write(out)
    print("wrote", path, len(out))

if __name__ == "__main__":
    main()
```

```python
import sys, os, struct
from gen import Asm as Asm0, srd, DPP, allreduce16, xor16, xor32, f32bits
from gen import F_INV640, F_LOG2E, F_INV2PI, F_EPS, ARG, NAME
import gen
from gen import Asm as Asm0

WS_UB = 0x000000
WS_AT = 0x280000
WS_KEY = 0x500000
WS_SM = 0x502000
WS_ZS = WS_SM
WS_HS = WS_SM + 10240
WS_META = WS_SM + 20480
WS_HID = WS_SM + 20736
WS_FL = 0x510000
WS_SIZE = 0x520000
WS_STAMP = 0x1000000

STAMP = False
KSTAMP = os.environ.get('KSTAMP', '0') == '1'
class Asm(Asm0):
    pass

def stamp(A, k):
    if STAMP:
        A("s_memrealtime s[98:99]")
        A("s_waitcnt lgkmcnt(0)")
        A(f"v_writelane_b32 v255, s98, {k}")

def cnt_stamp(A, k, sreg):
    if STAMP:
        A(f"v_writelane_b32 v254, s{sreg}, {k}")

def stamp_flush(A):
    if STAMP and DBGWG >= 0:
        A("s_waitcnt vmcnt(0) lgkmcnt(0)")
        stamp(A, 15)
        A(f"s_cmp_lg_u32 s2, {DBGWG}")
        A("s_cbranch_scc1 k_dbg_skip")
        A("s_cmp_lg_u32 s3, 0")
        A("s_cbranch_scc1 k_dbg_skip")
        A("v_readlane_b32 s90, v255, 0")
        A("s_nop 3")
        A("v_subrev_u32 v255, s90, v255")
        A("v_and_b32 v3, 63, v0")
        A("v_lshlrev_b32 v2, 2, v3")
        A("s_mov_b64 exec, 0xfffe")
        A(f"buffer_store_dword v255, v2, s[{S_DBG}:{S_DBG+3}], 0 offen")
        A("k_dbg_skip:")
        return
    if STAMP:
        A("s_waitcnt vmcnt(0) lgkmcnt(0)")
        stamp(A, 15)
        A(f"s_load_dwordx2 s[88:89], s[0:1], {ARG['ws']}")
        A("s_waitcnt lgkmcnt(0)")
        srd(A, 84, 88, 89, WS_STAMP, 0x40000)
        A("v_lshrrev_b32 v2, 6, v0")
        A("s_lshl_b32 s91, s2, 2")
        A("v_add_u32 v2, s91, v2")
        A("v_lshlrev_b32 v2, 6, v2")
        A("v_and_b32 v3, 63, v0")
        A("v_lshl_add_u32 v2, v3, 2, v2")
        A("s_mov_b64 exec, 0xffff")
        A("buffer_store_dword v255, v2, s[84:87], 0 offen")
        A("v_add_u32 v2, 0x20000, v2")
        A("buffer_store_dword v254, v2, s[84:87], 0 offen")

WAVE_LDS = 30432
CB = [0, 4160, 8320, 12480]
KOFF = 16640
TSTR = 1352
L_AT = 0
L_MISC = 10816
L_ST = L_MISC
L_RP = L_MISC + 256
L_CNT = L_MISC + 384
L_NON = L_MISC + 448
L_RED = L_MISC + 512
LBASE = 19712
L_G, L_U, L_WD = LBASE, LBASE + 20480, LBASE + 40960
LDS_TOTAL = LBASE + 4 * WAVE_LDS
POLL_LIMIT = 40000
CTILE = int(os.environ.get('CTILE', '3'))
EARLYG = os.environ.get('EARLYG', '1') == '1'
OUTF = os.environ.get('OUTF', '')
DBGWG = int(os.environ.get('DBGWG', '-1'))
NONWG = int(os.environ.get('NONWG', '0'))
CDELAY = int(os.environ.get('CDELAY', '0'))
WPF = os.environ.get('WPF', '1') == '1'
CSLEEP = int(os.environ.get('CSLEEP', '8'))
CANARY = os.environ.get('CANARY', '1') == '1'
FSLEEP = int(os.environ.get('FSLEEP', '2'))
APLAIN = ' sc1' if os.environ.get('APLAIN', '0') == '0' else ''
AHOOK = int(os.environ.get('AHOOK', '-1'))
CODEPF = os.environ.get('CODEPF', '1') == '1'
NPF = int(os.environ.get('NPF', '6'))
KSLEEP = int(os.environ.get('KSLEEP', '8'))
ASLEEP = int(os.environ.get('ASLEEP', '2'))

S_WS, S_X, S_DBG, S_WR = 8, 12, 20, 16
S_TB, S_T0 = 40, 41
S_D, S_B, S_K, S_AO, S_F, S_DS, S_NON = 74, 75, 76, 77, 78, 79, 72
VXF = 220
VW = 240
VROW, VCH, VTOK = 250, 251, 252

lblc = [0]
def newlbl(p):
    lblc[0] += 1
    return f"{p}_{lblc[0]}"

def rnd(A, d, s):
    A(f"v_cvt_pk_bf16_f32 v{d}, 0, v{s}")

def unpack_bf16(A, src, dlo, dhi):
    A(f"v_lshlrev_b32 v{dlo}, 16, v{src}")
    A(f"v_and_b32 v{dhi}, 0xffff0000, v{src}")

def red8(A, x, t):
    A("s_nop 1")
    A(f"v_add_f32_dpp v{x}, v{x}, v{x} row_ror:8 {DPP}")
    xor16(A, "v_add_f32", x, t)
    xor32(A, "v_add_f32", x, t)

def ln_stats(A, H):
    A(f"v_pk_add_f32 v[72:73], v[{H}:{H+1}], v[{H+2}:{H+3}]")
    A(f"v_pk_add_f32 v[74:75], v[{H+4}:{H+5}], v[{H+6}:{H+7}]")
    for i in range(4, 10, 2):
        A(f"v_pk_add_f32 v[72:73], v[72:73], v[{H+2*i}:{H+2*i+1}]")
        A(f"v_pk_add_f32 v[74:75], v[74:75], v[{H+2*i+2}:{H+2*i+3}]")
    A("v_pk_add_f32 v[72:73], v[72:73], v[74:75]")
    A("v_add_f32 v72, v72, v73")
    red8(A, 72, 73)
    A(f"v_mul_f32 v72, {hex(f32bits(1/160))}, v72")
    for i in range(10):
        t = 70 if i % 2 == 0 else 76
        acc = 74 if i % 2 == 0 else 82
        A(f"v_pk_add_f32 v[{t}:{t+1}], v[{H+2*i}:{H+2*i+1}], v[72:73] op_sel_hi:[1,0] neg_lo:[0,1] neg_hi:[0,1]")
        if i < 2: A(f"v_pk_mul_f32 v[{acc}:{acc+1}], v[{t}:{t+1}], v[{t}:{t+1}]")
        else: A(f"v_pk_fma_f32 v[{acc}:{acc+1}], v[{t}:{t+1}], v[{t}:{t+1}], v[{acc}:{acc+1}]")
    A("v_pk_add_f32 v[74:75], v[74:75], v[82:83]")
    A("v_add_f32 v73, v74, v75")
    red8(A, 73, 74)
    A(f"""
    v_lshlrev_b32 v76, 3, v{VTOK}
    v_add_u32 v76, {L_ST}, v76
    s_lshl_b32 s47, s3, 6
    v_add_u32 v77, s47, v76
    v_cmp_gt_u32 vcc, 8, v1
    s_and_saveexec_b64 s[48:49], vcc
    ds_write_b64 v77, v[72:73]
    s_mov_b64 exec, s[48:49]
    s_waitcnt lgkmcnt(0)
    s_barrier
    ds_read_b64 v[78:79], v76
    ds_read_b64 v[80:81], v76 offset:64
    ds_read_b64 v[82:83], v76 offset:128
    ds_read_b64 v[84:85], v76 offset:192
    s_waitcnt lgkmcnt(0)
    v_add_f32 v72, v78, v80
    v_add_f32 v73, v82, v84
    v_add_f32 v72, v72, v73
    v_mul_f32 v72, 0.25, v72
    v_sub_f32 v78, v78, v72
    v_sub_f32 v80, v80, v72
    v_sub_f32 v82, v82, v72
    v_sub_f32 v84, v84, v72
    v_mul_f32 v73, v78, v78
    v_fmac_f32 v73, v80, v80
    v_fmac_f32 v73, v82, v82
    v_fmac_f32 v73, v84, v84
    v_add_f32 v79, v79, v81
    v_add_f32 v83, v83, v85
    v_add_f32 v79, v79, v83
    v_fmac_f32 v79, {hex(f32bits(160))}, v73
    v_mul_f32 v74, {hex(F_INV640)}, v79
    v_cvt_pk_bf16_f32 v78, 0, v72
    v_cvt_pk_bf16_f32 v75, 0, v74
    v_add_f32 v75, {hex(F_EPS)}, v75
    v_cvt_pk_bf16_f32 v75, 0, v75
    v_sqrt_f32 v75, v75
    s_nop 0
    v_cvt_pk_bf16_f32 v75, 0, v75
    v_rcp_f32 v80, v75
    s_nop 0
    """)

def cmul(A, z, x, y, t):
    A(f"v_pk_mul_f32 v[{t}:{t+1}], v[{x}:{x+1}], v[{y}:{y+1}] op_sel:[0,0] op_sel_hi:[1,0]")
    A(f"v_pk_fma_f32 v[{z}:{z+1}], v[{x}:{x+1}], v[{y}:{y+1}], v[{t}:{t+1}] op_sel:[1,1,0] op_sel_hi:[0,1,1] neg_lo:[1,0,0]")

class Poll:
    pass

def masked_poll(A, sets, cnt, sleep, tag, first=None):
    L = newlbl(tag)
    A(f"s_mov_b32 s{cnt}, 0")
    if first == "plain":
        for st in sets:
            for ld in st["loads"]: A(ld.replace(" sc1", ""))
        A("s_waitcnt vmcnt(0)")
        A(f"s_branch {L}_chk")
    elif first is not None:
        A(f"s_waitcnt vmcnt({first[1]})")
        A(f"s_branch {L}_chk")
    A(f"{L}:")
    for k, st in enumerate(sets):
        m = st["mask"]
        A(f"s_mov_b64 exec, s[{m}:{m+1}]")
        A(f"s_cbranch_execz {L}_sk{k}")
        for ld in st["loads"]: A(ld)
        A(f"{L}_sk{k}:")
    A("s_mov_b64 exec, -1")
    A("s_waitcnt vmcnt(0)")
    A(f"{L}_chk:")
    for k, st in enumerate(sets):
        m = st["mask"]; regs = st["regs"]; t = st["tmp"]
        op = "max" if st.get("sent", "max") == "max" else "min"
        r = list(regs)
        if len(r) == 1:
            src = r[0]
        else:
            if len(r) >= 3:
                A(f"v_{op}3_u32 v{t}, v{r[0]}, v{r[1]}, v{r[2]}"); r = r[3:]
            else:
                A(f"v_{op}_u32 v{t}, v{r[0]}, v{r[1]}"); r = r[2:]
            while len(r) >= 2:
                A(f"v_{op}3_u32 v{t}, v{t}, v{r[0]}, v{r[1]}"); r = r[2:]
            if r: A(f"v_{op}_u32 v{t}, v{t}, v{r[0]}")
            src = t
        sent = "-1" if op == "max" else "0"
        A(f"v_cmp_eq_u32 vcc, {sent}, v{src}")
        A(f"s_and_b64 s[{m}:{m+1}], s[{m}:{m+1}], vcc")
    m0 = sets[0]["mask"]
    if len(sets) == 1:
        A(f"s_cmp_eq_u64 s[{m0}:{m0+1}], 0")
    else:
        A(f"s_or_b64 vcc, s[{m0}:{m0+1}], s[{sets[1]['mask']}:{sets[1]['mask']+1}]")
        for st in sets[2:]:
            A(f"s_or_b64 vcc, vcc, s[{st['mask']}:{st['mask']+1}]")
        A("s_cmp_eq_u64 vcc, 0")
    A(f"s_cbranch_scc1 {L}_done")
    A(f"s_add_u32 s{cnt}, s{cnt}, 1")
    if sleep: A(f"s_sleep {sleep}")
    A(f"s_cmp_lt_u32 s{cnt}, {POLL_LIMIT}")
    A(f"s_cbranch_scc1 {L}")
    A(f"{L}_done:")

def kgen(A, mid_hook, tail_hook, hook0, p1_hook=None):
    TS = 272; TBUF = 14416; TT = 28832
    A(f"""
    s_bitcmp1_b32 s{S_D}, 0
    s_cbranch_scc1 kg_odd
    s_lshl_b32 s42, s42, 16
    s_lshl_b32 s{S_DS}, s{S_DS}, 16
    kg_odd:
    s_and_b32 s42, s42, 0xffff0000
    s_and_b32 s{S_DS}, s{S_DS}, 0xffff0000
    v_mov_b32 v14, {hex(F_LOG2E)}
    v_mul_f32 v15, s42, v14
    v_exp_f32 v15, v15
    s_mov_b32 s43, 0x7fff7fff
    v_and_b32 v112, s43, v112
    v_and_b32 v113, s43, v113
    v_and_b32 v114, s43, v114
    v_and_b32 v115, s43, v115
    v_cvt_pk_bf16_f32 v15, 0, v15
    v_pk_max_u16 v112, v112, v113
    v_pk_max_u16 v114, v114, v115
    v_pk_max_u16 v10, v112, v114
    v_lshrrev_b32 v11, 16, v10
    v_and_b32 v10, 0xffff, v10
    v_max_u32 v10, v10, v11
    """)
    E1, W8, E256, X2, X3, X4, X6, E512, XA, XB, CX, TX, C, CY, TY = 18, 20, 22, 24, 26, 28, 32, 34, 36, 38, 40, 42, 44, 116, 118
    PX, PY = [46, 47, 122, 123], [120, 121, 124, 125]
    WDELAY = int(os.environ.get('WDELAY', '1'))
    D = 48
    FR = 128
    def setup_a(p):
        L = []; a = L.append
        lar, aim = 100 + 4*p, 101 + 4*p
        a(f"v_lshlrev_b32 v{lar}, 16, v{lar}")
        a(f"v_lshlrev_b32 v{aim}, 16, v{aim}")
        a(f"v_mul_f32 v4, v14, v{lar}")
        a(f"v_exp_f32 v4, v4")
        a(f"v_mul_f32 v5, v{aim}, v15")
        a(f"v_mul_f32 v5, {hex(F_INV2PI)}, v5")
        a(f"v_cvt_pk_bf16_f32 v4, 0, v4")
        a(f"v_mul_f32 v4, v4, v15")
        a(f"v_mul_f32 v4, v4, v14")
        for k, (dst, pw) in enumerate(((E1, 1), (W8, 8), (E256, 256))):
            m, f = 6 + 2*(k % 2), 7 + 2*(k % 2)
            if pw == 1:
                a(f"v_exp_f32 v{m}, -v4")
                a(f"v_fract_f32 v{f}, v5")
            else:
                a(f"v_mul_f32 v{m}, {hex(f32bits(pw))}, v4")
                a(f"v_mul_f32 v{f}, {hex(f32bits(pw))}, v5")
                a(f"v_exp_f32 v{m}, -v{m}")
                a(f"v_fract_f32 v{f}, v{f}")
            a(f"v_cos_f32 v{dst}, v{f}")
            a(f"v_sin_f32 v{dst+1}, v{f}")
            a("s_nop 0")
            a(f"v_mul_f32 v{dst}, v{dst}, v{m}")
            a(f"v_mul_f32 v{dst+1}, v{dst+1}, v{m}")
        return L
    def setup_c(p):
        cre, cim = 102 + 4*p, 103 + 4*p
        return [f"v_lshlrev_b32 v{cre}, 16, v{cre}", f"v_lshlrev_b32 v{cim}, 16, v{cim}",
                f"v_mul_f32 v{C}, v{cre}, v11", f"v_mul_f32 v{C+1}, v{cim}, v11"]
    def cm(z, x, y, t):
        return [f"v_pk_mul_f32 v[{t}:{t+1}], v[{x}:{x+1}], v[{y}:{y+1}] op_sel:[0,0] op_sel_hi:[1,0]",
                f"v_pk_fma_f32 v[{z}:{z+1}], v[{x}:{x+1}], v[{y}:{y+1}], v[{t}:{t+1}] op_sel:[1,1,0] op_sel_hi:[0,1,1] neg_lo:[1,0,0]"]
    def tables():
        cnt = [0, 0]
        pendw = [[], []]
        def put(row, pair, neg, which, const=None):
            P = (PX, PY)[which]; r = P[cnt[which] % len(P)]; cnt[which] += 1
            L = [f"v_mov_b32 v{r}, {hex(const)}"] if const is not None else [f"v_cvt_pk_f16_f32 v{r}, v{pair}, {'-' if neg else ''}v{pair+1}"]
            pendw[which].append(f"ds_write_addtid_b32 v{r} offset:{row*TS}")
            if len(pendw[which]) > WDELAY:
                L.append(pendw[which].pop(0))
            return L
        X = []
        X += put(0, None, False, 0, const=0x3c00)
        X += put(1, E1, False, 0)
        X += cm(X2, E1, E1, TX) + put(2, X2, False, 0)
        X += put(8, E256, False, 0)
        X += cm(E512, E256, E256, TX) + put(12, E512, False, 0)
        X += cm(X3, X2, E1, TX) + put(3, X3, False, 0)
        X += cm(X4, X2, X2, TX) + put(4, X4, False, 0)
        X += cm(XA, E512, E256, TX) + put(14, XA, False, 0)
        X += cm(CX, X4, E1, TX) + put(5, CX, False, 0)
        X += cm(X6, X4, X2, TX) + put(6, X6, False, 0)
        X += cm(CX, X4, X3, TX) + put(7, CX, False, 0)
        X += cm(CX, E256, X2, TX) + put(9, CX, False, 0)
        X += cm(CX, E256, X4, TX) + put(10, CX, False, 0)
        X += cm(CX, E256, X6, TX) + put(11, CX, False, 0)
        X += cm(CX, E512, X4, TX) + put(13, CX, False, 0)
        X += cm(CX, XA, X4, TX) + put(15, CX, False, 0)
        X += cm(XA, E512, E512, TX) + put(16, XA, False, 0)
        X += cm(CX, XA, E256, TX) + put(17, CX, False, 0)
        X += cm(XB, XA, E512, TX) + put(18, XB, False, 0)
        X += cm(CX, XB, E256, TX) + put(19, CX, False, 0)
        X += cm(CX, XA, XA, TX) + put(20, CX, False, 0)
        Y = []
        Y += put(21, C, True, 1)
        Y += cm(CY, C, W8, TY) + put(22, CY, True, 1)
        for c in range(2, 32):
            Y += cm(CY, CY, W8, TY) + put(21 + c, CY, True, 1)
        X += pendw[0]; Y += pendw[1]
        out = []; i = j = 0
        while i < len(X) or j < len(Y):
            if j >= len(Y) or (i < len(X) and i * len(Y) <= j * len(X)):
                out.append(X[i]); i += 1
            else:
                out.append(Y[j]); j += 1
        return out
    sa = setup_a(0)
    red = []
    R_ = Asm0()
    allreduce16(R_, "v_max_u32", 10); xor16(R_, "v_max_u32", 10, 11); xor32(R_, "v_max_u32", 10, 11)
    R_(f"""
    v_lshlrev_b32 v10, 16, v10
    v_mul_f32 v10, v10, v15
    v_lshrrev_b32 v10, 23, v10
    v_max_u32 v10, 5, v10
    v_min_u32 v10, 0xfe, v10
    v_sub_u32 v11, 0x103, v10
    v_lshlrev_b32 v11, 23, v11
    v_subrev_u32 v30, 4, v10
    v_lshlrev_b32 v30, 23, v30
    v_mul_f32 v11, v11, v15
    v_lshrrev_b32 v13, 5, v1
    v_and_b32 v16, 31, v1
    v_mul_u32_u24 v16, {TS}, v16
    v_lshl_add_u32 v13, v13, 4, v16
    v_add_u32 v13, s{S_B}, v13
    """)
    for ins in R_.l: A(ins.strip())
    for ins in sa: A(ins)
    for ins in setup_c(0): A(ins)
    A(f"s_mov_b32 m0, s{S_B}")
    A("s_nop 0")
    for ins in tables(): A(ins)
    hook0()
    A(f"s_add_u32 s43, s{S_B}, 0")
    for p in range(3):
        buf = p % 2
        for s in range(8):
            A(f"ds_read_b128 v[{FR+8*s}:{FR+8*s+3}], v13 offset:{TBUF*buf + 32*s}")
            A(f"ds_read_b128 v[{FR+8*s+4}:{FR+8*s+7}], v13 offset:{TBUF*buf + 21*TS + 32*s}")
        if p == 1 and p1_hook is not None:
            p1_hook()
        if p < 2:
            A(f"s_add_u32 s43, s{S_B}, {TBUF*((p+1)%2)}")
            A("s_mov_b32 m0, s43")
            nxt = setup_a(p + 1) + setup_c(p + 1) + tables()
        else:
            mid_hook()
            nxt = []
            H_ = Asm0()
            H_(f"""
            v_and_b32 v14, 31, v1
            v_lshrrev_b32 v15, 5, v1
            v_lshlrev_b32 v16, 4, v14
            v_lshl_add_u32 v16, v15, 3, v16
            v_sub_u32 v17, {TT+504}, v16
            v_add_u32 v17, s{S_B}, v17
            v_add_u32 v16, {TT+1024}, v16
            v_add_u32 v16, s{S_B}, v16
            v_lshlrev_b32 v18, 3, v14
            v_add_u32 v18, {TT+512}, v18
            v_add_u32 v19, 4, v18
            v_lshlrev_b32 v20, 2, v14
            v_add_u32 v20, {TT+768}, v20
            v_add_u32 v21, 128, v20
            v_cmp_eq_u32 vcc, 0, v15
            s_nop 1
            v_cndmask_b32 v18, v20, v18, vcc
            v_cndmask_b32 v19, v21, v19, vcc
            v_add_u32 v18, s{S_B}, v18
            v_add_u32 v19, s{S_B}, v19
            s_add_u32 s43, s{S_B}, {TT}
            v_sub_u32 v4, 127, v1
            v_add_u32 v5, 1, v4
            v_and_b32 v6, 31, v4
            v_lshrrev_b32 v7, 5, v4
            v_lshlrev_b32 v6, 4, v6
            v_lshl_add_u32 v6, v7, 1, v6
            v_and_b32 v8, 31, v5
            v_lshrrev_b32 v7, 5, v5
            v_lshlrev_b32 v8, 4, v8
            v_lshl_add_u32 v8, v7, 1, v8
            v_add_u32 v6, s43, v6
            v_add_u32 v8, s43, v8
            v_sub_u32 v9, 63, v1
            v_lshlrev_b32 v10, 2, v9
            v_add_u32 v10, s43, v10
            v_sub_u32 v11, 31, v1
            v_and_b32 v11, 31, v11
            v_lshlrev_b32 v11, 3, v11
            v_add_u32 v11, s43, v11
            v_and_b32 v9, 31, v9
            v_lshlrev_b32 v9, 4, v9
            v_sub_u32 v9, 496, v9
            v_add_u32 v9, s43, v9
            v_lshlrev_b32 v3, 4, v1
            v_add_u32 v3, s{S_K}, v3
            """)
            nxt = [x.strip() for x in H_.l]
        nlds_after = 0
        per = (len(nxt) + 7) // 8 if nxt else 0
        lead = min(int(os.environ.get('LEAD', '30')) if p < 2 else 20, len(nxt))
        pos = 0
        for ins in nxt[:lead]:
            A(ins); pos += 1
            if ins.startswith("ds_"): nlds_after += 1
        rest = nxt[lead:]
        per = (len(rest) + 7) // 8 if rest else 0
        for s in range(8):
            need = 2 * (7 - s) + nlds_after
            if need <= 15: A(f"s_waitcnt lgkmcnt({need})")
            else: A("s_waitcnt lgkmcnt(15)") if False else A(f"s_waitcnt lgkmcnt({min(15, need)})")
            c = "0" if (s == 0 and p == 0) else f"v[{D}:{D+15}]"
            A(f"v_mfma_f32_32x32x16_f16 v[{D}:{D+15}], v[{FR+8*s}:{FR+8*s+3}], v[{FR+8*s+4}:{FR+8*s+7}], {c}")
            for ins in rest[s*per:(s+1)*per]:
                A(ins)
                if ins.startswith("ds_"): nlds_after += 1
    tail_hook()
    A(f"""
    s_nop 7
    s_nop 3
    v_cvt_pk_f16_f32 v22, v{D+3}, v{D+2}
    v_cvt_pk_f16_f32 v23, v{D+1}, v{D}
    ds_write_b64 v17, v[22:23]
    v_cvt_pk_f16_f32 v24, v{D+4}, v{D+5}
    v_cvt_pk_f16_f32 v25, v{D+6}, v{D+7}
    ds_write_b32 v18, v24
    ds_write_b32 v19, v25
    v_cvt_pk_f16_f32 v26, v{D+8}, v{D+9}
    v_cvt_pk_f16_f32 v27, v{D+10}, v{D+11}
    ds_write_b64 v16, v[26:27]
    s_mov_b32 s44, 0x05040100
    s_mov_b32 s45, 0x01000100
    s_mov_b32 s46, 0x03020302
    s_mov_b32 s47, 0x07060100
    s_mov_b32 s48, 0x03020504
    v_and_b32 v7, 1, v4
    v_cmp_eq_u32 vcc, 1, v7
    s_waitcnt lgkmcnt(0)
    ds_read_u16 v32, v6 offset:1024
    ds_read_u16 v33, v8 offset:1024
    ds_read_u16 v34, v6 offset:1020
    ds_read_u16 v35, v8 offset:1020
    ds_read2_b32 v[36:37], v10 offset0:192 offset1:193
    ds_read_b64 v[38:39], v11 offset:512
    ds_read_u16 v40, v11 offset:520
    ds_read_b128 v[44:47], v9
    s_waitcnt lgkmcnt(4)
    v_cndmask_b32 v41, v32, v33, vcc
    v_cndmask_b32 v42, v34, v35, vcc
    v_perm_b32 v48, v33, v33, s45
    v_perm_b32 v49, v41, v33, s44
    v_perm_b32 v50, v32, v32, s45
    v_mov_b32 v51, v50
    ds_write_b128 v3, v[48:51]
    v_perm_b32 v52, v35, v35, s45
    v_perm_b32 v53, v42, v35, s44
    v_perm_b32 v54, v34, v34, s45
    v_mov_b32 v55, v54
    ds_write_b128 v3, v[52:55] offset:1024
    s_waitcnt lgkmcnt(2)
    v_perm_b32 v56, v37, v37, s45
    v_perm_b32 v57, v36, v36, s46
    v_alignbit_b32 v58, v36, v36, 16
    v_perm_b32 v59, v36, v36, s45
    ds_write_b128 v3, v[56:59] offset:2048
    v_perm_b32 v60, v39, v40, s47
    v_perm_b32 v61, v39, v39, s45
    v_perm_b32 v62, v39, v38, s48
    v_perm_b32 v63, v38, v38, s45
    v_cmp_gt_u32 vcc, 32, v1
    s_nop 1
    v_cndmask_b32 v60, v44, v60, vcc
    v_cndmask_b32 v61, v45, v61, vcc
    v_cndmask_b32 v62, v46, v62, vcc
    v_cndmask_b32 v63, v47, v63, vcc
    ds_write_b128 v3, v[60:63] offset:3072
    v_mov_b32 v16, 0
    v_mov_b32 v17, 0
    v_mov_b32 v18, 0
    v_mov_b32 v19, 0
    v_cmp_gt_u32 vcc, 30, v1
    s_and_saveexec_b64 s[52:53], vcc
    ds_write_b128 v3, v[16:19] offset:4096
    s_mov_b64 exec, s[52:53]
    """)

def conv_main(A, hook_idx=None, hook=None):
    ACC, AR, NR, EP = 32, 64, 12, 112
    mf = [(q, al) for al in range(64) for q in range(al // 8, 8)]
    first_use = {}
    for i, (q, al) in enumerate(mf):
        first_use.setdefault(("A", al), i)
        first_use.setdefault(("B", 8*q - al), i)
    loads = sorted(first_use.items(), key=lambda kv: (kv[1], kv[0][0]))
    last_of_tile = {q: max(i for i, (qq, al) in enumerate(mf) if qq == q) for q in range(8)}
    lastuse_A = {al: max(i for i, (q, a2) in enumerate(mf) if a2 == al) for al in range(64)}
    def epi_instrs(q):
        a = ACC + 4 * q
        e = EP + 16 * (q % 2)
        U = e + 14
        L = [("lds", f"ds_read_b64 v[{U}:{U+1}], v27 offset:{512*q}")]
        for j in range(4): L.append(("v", f"v_cvt_pk_bf16_f32 v{e+j}, 0, v{a+j}"))
        L.append(("waitu", None))
        L.append(("v", f"v_fma_mix_f32 v{e+4}, v{U}, s{S_DS}, 0 op_sel_hi:[1,0,0]"))
        L.append(("v", f"v_fma_mix_f32 v{e+5}, v{U}, s{S_DS}, 0 op_sel:[1,0,0] op_sel_hi:[1,0,0]"))
        L.append(("v", f"v_fma_mix_f32 v{e+6}, v{U+1}, s{S_DS}, 0 op_sel_hi:[1,0,0]"))
        L.append(("v", f"v_fma_mix_f32 v{e+7}, v{U+1}, s{S_DS}, 0 op_sel:[1,0,0] op_sel_hi:[1,0,0]"))
        for j in range(4): L.append(("v", f"v_cvt_pk_bf16_f32 v{e+4+j}, 0, v{e+4+j}"))
        for j in range(4): L.append(("v", f"v_fmac_f32 v{e+4+j}, v30, v{e+j}"))
        L.append(("v", f"v_cvt_pk_bf16_f32 v{e}, v{e+4}, v{e+5}"))
        L.append(("v", f"v_cvt_pk_bf16_f32 v{e+1}, v{e+6}, v{e+7}"))
        L.append(("gap", None))
        L.append(("v", f"v_permlane16_swap_b32 v{e}, v{e+2}"))
        L.append(("v", f"v_permlane16_swap_b32 v{e+1}, v{e+3}"))
        L.append(("st", f"buffer_store_dwordx4 v[{e}:{e+3}], v26, s[{S_WS}:{S_WS+3}], s{S_AO} offen offset:{512*q} sc1"))
        return L
    ldsq = []
    cur = [0]
    LAT = 6
    def lds_wait_for(idset, extend=True):
        idxs = [i for i, n in enumerate(ldsq) if n[0] in idset]
        if not idxs: return False
        k = max(idxs)
        if extend:
            while k + 1 < len(ldsq) and ldsq[k+1][1] <= cur[0] - LAT: k += 1
        A(f"s_waitcnt lgkmcnt({len(ldsq) - 1 - k})")
        del ldsq[:k+1]
        return True
    def issue_load(key):
        kind, v = key
        if kind == "A":
            r = AR + 4 * (v % NR)
            A(f"ds_read_b64 v[{r}:{r+1}], v24 offset:{64*v}"); ldsq.append((key, cur[0]))
            A(f"ds_read_b64 v[{r+2}:{r+3}], v24 offset:{64*v+8}"); ldsq.append((key, cur[0]))
        else:
            r = 4 * (v + 7)
            A(f"ds_read_b128 a[{r}:{r+3}], v25 offset:{64*(56-v)}"); ldsq.append((key, cur[0]))
    li = 0
    epi_q = []
    stores_after = [0]
    WINDOW, MAXQ = 12, 14
    for i, (q, al) in enumerate(mf):
        cur[0] = i
        budget = 2 if i > 0 else 99
        need = {("A", al), ("B", 8*q - al)}
        if any(n[0] in need for n in ldsq): budget -= 1
        while li < len(loads):
            key, dl = loads[li]
            n = 2 if key[0] == "A" else 1
            must = dl <= i
            if not must:
                if dl - i > WINDOW or budget <= 0: break
                if len(ldsq) + n > MAXQ: break
                if key[0] == "A" and key[1] >= NR and lastuse_A[key[1] - NR] >= i: break
            else:
                if len(ldsq) + n > 15:
                    A(f"s_waitcnt lgkmcnt({15-n})"); del ldsq[:len(ldsq) - (15 - n)]
            issue_load(key)
            budget -= n
            li += 1
        while budget > 0 and epi_q and epi_q[0][0] <= i:
            _, kind, txt, eq = epi_q.pop(0)
            if kind == "lds":
                if len(ldsq) + 1 > 15:
                    A("s_waitcnt lgkmcnt(14)"); del ldsq[:len(ldsq) - 14]
                A(txt); ldsq.append((("EU", eq), i))
            elif kind == "waitu":
                if lds_wait_for({("EU", eq)}): budget -= 1
                continue
            elif kind == "gap":
                if epi_q: epi_q[0] = (i + 2,) + epi_q[0][1:]
                break
            else:
                A(txt)
                if kind == "st": stores_after[0] += 1
            budget -= 1
        if hook is not None and i == hook_idx:
            hook(); stores_after[0] = 0
        lds_wait_for(need)
        r = AR + 4 * (al % NR)
        g = 8 * q - al
        c = "0" if al == 0 else f"v[{ACC+4*q}:{ACC+4*q+3}]"
        A(f"v_mfma_f32_16x16x32_f16 v[{ACC+4*q}:{ACC+4*q+3}], v[{r}:{r+3}], a[{4*(g+7)}:{4*(g+7)+3}], {c}")
        if i == last_of_tile[q]:
            for kind, txt in epi_instrs(q):
                epi_q.append((i + (1 if kind == "lds" else 8), kind, txt, q))
    cur[0] = len(mf) + 100
    A("s_nop 7")
    for _, kind, txt, eq in epi_q:
        if kind == "lds":
            A(txt); ldsq.append((("EU", eq), 0))
        elif kind == "waitu":
            lds_wait_for({("EU", eq)}, extend=False)
        elif kind == "gap":
            A("s_nop 1")
        else:
            A(txt)
            if kind == "st": stores_after[0] += 1
    return stores_after[0]

def gen_main(A):
    name = NAME + "_kernel"
    A.l.append(f".globl {name}")
    A.l.append(".p2align 8")
    A.l.append(f".type {name},@function")
    A.l.append(f"{name}:")
    A("s_cmp_ge_u32 s2, 256")
    A("s_cbranch_scc1 k_exit")
    if STAMP: A("v_mov_b32 v255, 0")
    if STAMP: A("v_mov_b32 v254, 0")
    if CODEPF:
        A("""
        s_getpc_b64 s[90:91]
        k_pc:
        v_lshlrev_b32 v2, 4, v0
        v_mov_b32 v3, s91
        v_add_co_u32 v2, vcc, s90, v2
        v_addc_co_u32 v3, vcc, 0, v3, vcc
        """)
        for i in range(NPF):
            A(f"v_cmp_gt_u32 vcc, (k_code_end-k_pc-{4096*i})/16, v0")
            A("s_and_saveexec_b64 s[92:93], vcc")
            A(f"s_cbranch_execz k_pf_done")
            A("global_load_dwordx4 v[160:163], v[2:3], off")
            A("s_mov_b64 exec, s[92:93]")
            A("v_add_co_u32 v2, vcc, 0x1000, v2")
            A("v_addc_co_u32 v3, vcc, 0, v3, vcc")
        A("k_pf_done:")
        A("s_mov_b64 exec, -1")
    stamp(A, 0)
    WS = f"s[{S_WS}:{S_WS+3}]"
    A(f"""
    s_load_dwordx2 s[4:5], s[0:1], {ARG['x']}
    s_load_dwordx2 s[6:7], s[0:1], {ARG['ws']}
    s_load_dwordx4 s[44:47], s[0:1], {ARG['lar']}
    s_load_dwordx4 s[48:51], s[0:1], {ARG['cre']}
    s_load_dwordx4 s[56:59], s[0:1], {ARG['ldt']}
    s_load_dwordx4 s[60:63], s[0:1], {ARG['wr']}
    s_load_dwordx4 s[64:67], s[0:1], {ARG['wu']}
    s_load_dwordx4 s[68:71], s[0:1], {ARG['out']}
    s_and_b32 s52, s2, 7
    s_lshr_b32 s53, s2, 3
    s_mul_i32 s54, s52, 20
    s_add_u32 s{S_TB}, s54, s53
    s_cmp_lt_u32 s2, 160
    s_cbranch_scc1 k_tb_done
    s_mul_i32 s54, s52, 12
    s_add_u32 s54, s54, s53
    s_add_u32 s{S_TB}, s54, 140
    k_tb_done:
    s_lshl_b32 s{S_T0}, s{S_TB}, 3
    v_lshrrev_b32 v2, 6, v0
    v_and_b32 v1, 63, v0
    s_nop 0
    v_readfirstlane_b32 s3, v2
    v_and_b32 v{VTOK}, 7, v1
    v_lshrrev_b32 v5, 3, v1
    v_add_u32 v6, s{S_T0}, v{VTOK}
    s_movk_i32 s52, 1280
    v_mul_lo_u32 v6, v6, s52
    s_mul_i32 s53, s3, 320
    v_lshl_add_u32 v{VCH}, v5, 3, s53
    v_add_u32 v{VROW}, v6, v{VCH}
    s_waitcnt lgkmcnt(0)
    """)
    srd(A, S_WS, 6, 7, 0, WS_SIZE)
    srd(A, S_X, 4, 5, 0, 2621440)
    A(f"""
    v_mov_b32 v199, 0
    s_mov_b32 s52, {WS_FL}
    s_cmp_lg_u32 s2, {NONWG}
    s_cbranch_scc1 k_non0
    buffer_load_dword v197, v199, {WS}, s52 offen sc1
    k_non0:
    """)
    for i in range(5):
        A(f"buffer_load_dwordx2 v[{200+2*i}:{201+2*i}], v{VROW}, s[{S_X}:{S_X+3}], 0 offen offset:{64*i}")
    srd(A, S_DBG, 70, 71, 0, 256)
    srd(A, S_WR, 60, 61, 0, 1280)
    for i in range(5):
        A(f"buffer_load_dwordx2 v[{VW+2*i}:{VW+2*i+1}], v{VCH}, s[{S_WR}:{S_WR+3}], 0 offen offset:{64*i}")
    srd(A, S_X, 68, 69, 0, 2621440)
    def small_clears():
        A(f"""
        s_mov_b64 exec, 0xfff
        s_mul_i32 s52, s2, 192
        s_add_u32 s52, s52, {WS_SM}
        buffer_store_dwordx4 v[40:43], v44, {WS}, s52 offen sc1
        s_mov_b64 exec, 3
        v_mov_b32 v46, 0
        v_mov_b32 v47, 0
        v_mov_b32 v48, 0
        v_mov_b32 v49, 0
        s_lshl_b32 s52, s{S_TB}, 5
        s_add_u32 s52, s52, {WS_KEY}
        buffer_store_dwordx4 v[46:49], v44, {WS}, s52 offen sc1
        s_mov_b64 exec, -1
        """)
    def publish_flag(tag):
        A(f"""
        s_cmp_lg_u32 s3, 0
        s_cbranch_scc1 {tag}_w
        s_waitcnt vmcnt(0)
        v_cmp_eq_u32 vcc, 0, v198
        s_mov_b64 s[54:55], vcc
        s_cmp_eq_u64 vcc, 0
        s_cbranch_scc1 {tag}_have
        """)
        masked_poll(A, [dict(mask=54, loads=[f"buffer_load_dword v198, v199, s[{S_DBG}:{S_DBG+3}], 0 offen sc1"], regs=[198], tmp=197, sent="min")], 53, 1, tag + "non")
        A(f"""
        {tag}_have:
        v_mov_b32 v197, {L_NON}
        ds_write_b32 v197, v198
        s_waitcnt lgkmcnt(0)
        {tag}_w:
        s_waitcnt vmcnt(0)
        s_barrier
        s_cmp_lg_u32 s3, 0
        s_cbranch_scc1 {tag}_done
        v_lshlrev_b32 v197, 10, v1
        s_lshl_b32 s52, s2, 2
        s_add_u32 s52, s52, {WS_FL}
        s_mov_b64 exec, 0xff
        buffer_store_dword v198, v197, {WS}, s52 offen sc1
        s_mov_b64 exec, -1
        {tag}_done:
        v_mov_b32 v197, {L_NON}
        ds_read_b32 v199, v197
        """)
    A(f"""
    v_mov_b32 v40, -1
    v_mov_b32 v41, -1
    v_mov_b32 v42, -1
    v_mov_b32 v43, -1
    v_lshlrev_b32 v44, 4, v1
    s_cmp_ge_u32 s2, 160
    s_cbranch_scc1 k_p0_ffn
    """)
    srd(A, 24, 44, 45, 0, 245760)
    srd(A, 28, 46, 47, 0, 245760)
    srd(A, 32, 48, 49, 0, 245760)
    srd(A, 36, 50, 51, 0, 245760)
    A(f"""
    s_lshl_b32 s{S_D}, s2, 2
    s_add_u32 s{S_D}, s{S_D}, s3
    s_mul_i32 s{S_B}, s3, {WAVE_LDS}
    s_add_u32 s{S_B}, s{S_B}, {LBASE}
    s_add_u32 s{S_K}, s{S_B}, {KOFF}
    s_lshl_b32 s{S_AO}, s{S_D}, 12
    s_add_u32 s{S_AO}, s{S_AO}, {WS_AT}
    s_mul_i32 s52, s{S_D}, 384
    v_lshlrev_b32 v3, 1, v1
    s_and_b32 s53, s{S_D}, 0xfffffffe
    s_lshl_b32 s53, s53, 1
    s_load_dword s42, s[56:57], s53
    s_load_dword s{S_DS}, s[58:59], s53
    """)
    for p in range(3):
        for j in range(4):
            A(f"buffer_load_ushort v{100+4*p+j}, v3, s[{24+4*j}:{27+4*j}], s52 offen offset:{128*p}")
    A(f"""
    v_lshlrev_b32 v8, 3, v1
    v_mov_b32 v112, 0
    v_mov_b32 v113, 0
    v_mov_b32 v114, 0
    v_mov_b32 v115, 0
    v_cmp_gt_u32 vcc, 48, v1
    s_and_saveexec_b64 s[54:55], vcc
    buffer_load_dwordx2 v[112:113], v8, s[32:35], s52 offen
    buffer_load_dwordx2 v[114:115], v8, s[36:39], s52 offen
    s_mov_b64 exec, s[54:55]
    s_waitcnt vmcnt(19)
    """)
    for i in range(4):
        A(f"buffer_store_dwordx4 v[40:43], v44, {WS}, s{S_AO} offen offset:{1024*i} sc1")
    A("s_branch k_p0_join")
    A("k_p0_ffn:")
    A("s_sub_u32 s38, s2, 160")
    if WPF:
        srd(A, 24, 62, 63, 0, 640*3072)
        srd(A, 28, 64, 65, 0, 640*3072)
        srd(A, 32, 66, 67, 0, 1536*1280)
        A(f"""
        s_and_b32 s39, s38, 7
        s_lshr_b32 s42, s38, 3
        s_mul_i32 s52, s42, 160
        v_add_u32 v8, s52, v0
        v_mul_u32_u24 v9, 0x5556, v8
        v_lshrrev_b32 v9, 16, v9
        v_mul_u32_u24 v10, 3, v9
        v_sub_u32 v10, v8, v10
        v_mul_u32_u24 v9, 3072, v9
        v_lshl_add_u32 v9, v10, 7, v9
        s_mul_i32 s52, s39, 384
        v_mov_b32 v11, 0x7fffffff
        v_cmp_gt_u32 vcc, 160, v0
        s_lshl_b32 s53, s42, 8
        v_add_u32 v12, s53, v0
        v_cndmask_b32 v9, v11, v9, vcc
        buffer_load_dword v160, v9, s[24:27], s52 offen
        buffer_load_dword v161, v9, s[28:31], s52 offen
        v_lshrrev_b32 v10, 1, v12
        v_mul_u32_u24 v10, 1280, v10
        v_and_b32 v12, 1, v12
        v_lshl_add_u32 v10, v12, 7, v10
        s_mul_i32 s52, s39, 160
        s_and_b32 s52, s52, 0xffffff80
        buffer_load_dword v162, v10, s[32:35], s52 offen
        s_waitcnt vmcnt(8)
        """)
    else:
        A("s_waitcnt vmcnt(5)")
    A("k_p0_join:")
    A(f"""
    s_cmp_lg_u32 s2, {NONWG}
    s_cbranch_scc1 k_non1
    s_cmp_lg_u32 s3, 0
    s_cbranch_scc1 k_non1
    v_add_u32 v197, 1, v197
    v_max_u32 v197, 1, v197
    s_mov_b64 exec, 1
    buffer_store_dword v197, v199, s[{S_DBG}:{S_DBG+3}], 0 offen sc1
    s_mov_b64 exec, -1
    k_non1:
    """)
    stamp(A, 1)
    A("s_cmp_lg_u32 s3, 0")
    A("s_cbranch_scc1 k_p0_j2")
    small_clears()
    A("k_p0_j2:")
    for i in range(10):
        unpack_bf16(A, 200 + i, VXF + 2*i, VXF + 2*i + 1)
    ln_stats(A, VXF)
    for i in range(10):
        a_, b_ = VXF + 2*i, VXF + 2*i + 1
        t = 86 + 2 * (i % 2)
        A(f"v_pk_add_f32 v[{t}:{t+1}], v[{a_}:{b_}], v[78:79] op_sel_hi:[1,0] neg_lo:[0,1] neg_hi:[0,1]")
        rnd(A, t, t); rnd(A, t+1, t+1)
        A(f"v_pk_mul_f32 v[{t}:{t+1}], v[{t}:{t+1}], v[80:81] op_sel_hi:[1,0]")
        rnd(A, t, t); rnd(A, t+1, t+1)
        A(f"v_cvt_pk_f16_f32 v{30+i}, v{t}, v{t+1}")
    A(f"""
    s_movk_i32 s52, {TSTR}
    v_mul_lo_u32 v6, v{VTOK}, s52
    v_add_u32 v6, v6, v{VCH}
    """)
    for i in range(5):
        A(f"ds_write_b64 v6, v[{30+2*i}:{31+2*i}] offset:{L_AT + 64*i}")
    A(f"""
    v_bfe_u32 v3, v1, 2, 2
    v_mul_lo_u32 v3, v3, s52
    v_lshrrev_b32 v4, 4, v1
    v_lshl_add_u32 v3, v4, 5, v3
    v_and_b32 v4, 3, v1
    v_lshl_add_u32 v3, v4, 3, v3
    s_lshl_b32 s53, s3, 7
    v_add_u32 v3, s53, v3
    v_lshlrev_b32 v4, 4, v0
    s_mul_i32 s52, s{S_TB}, 10240
    s_add_u32 s52, s52, {WS_UB}
    s_add_u32 s53, s52, 4096
    s_add_u32 s54, s52, 8192
    s_waitcnt lgkmcnt(0)
    s_barrier
    ds_read_b64_tr_b16 v[8:9], v3 offset:{L_AT}
    ds_read_b64_tr_b16 v[10:11], v3 offset:{L_AT + 4*TSTR}
    ds_read_b64_tr_b16 v[12:13], v3 offset:{L_AT + 512}
    ds_read_b64_tr_b16 v[14:15], v3 offset:{L_AT + 4*TSTR + 512}
    ds_read_b64_tr_b16 v[16:17], v3 offset:{L_AT + 1024}
    ds_read_b64_tr_b16 v[18:19], v3 offset:{L_AT + 4*TSTR + 1024}
    s_waitcnt lgkmcnt(0)
    buffer_store_dwordx4 v[8:11], v4, {WS}, s52 offen sc1
    buffer_store_dwordx4 v[12:15], v4, {WS}, s53 offen sc1
    s_cmp_ge_u32 s3, 2
    s_cbranch_scc1 k_ln1_skip
    buffer_store_dwordx4 v[16:19], v4, {WS}, s54 offen sc1
    k_ln1_skip:
    s_cmp_lg_u32 s3, 0
    s_cbranch_scc1 k_non2
    buffer_load_dword v198, v199, s[{S_DBG}:{S_DBG+3}], 0 offen sc1
    k_non2:
    """)
    stamp(A, 2)
    A("s_cmp_lt_u32 s2, 160")
    A("s_cbranch_scc1 k_conv_role")
    publish_flag("ff")
    A("s_waitcnt lgkmcnt(0)")
    A(f"v_readfirstlane_b32 s{S_NON}, v199")
    stamp(A, 3)
    A("s_branch k_ffn_pre")
    A("k_conv_role:")
    A("s_waitcnt vmcnt(6)")
    def flag_poll(sleep, first_issued=False):
        L = newlbl("flg")
        if not first_issued:
            flag_setup()
        A(f"s_mov_b32 s53, 0")
        if first_issued:
            A(f"s_branch {L}_chk")
        A(f"{L}:")
        A(f"s_mov_b64 exec, s[54:55]")
        A(f"buffer_load_dwordx4 v[192:195], v196, {WS}, s51 offen sc1")
        A("s_mov_b64 exec, -1")
        A(f"{L}_chk:")
        A("s_waitcnt vmcnt(0)")
        A(f"v_xor_b32 v192, s{S_NON}, v192")
        A(f"v_xor_b32 v193, s{S_NON}, v193")
        A(f"v_xor_b32 v194, s{S_NON}, v194")
        A(f"v_xor_b32 v195, s{S_NON}, v195")
        A("v_or3_b32 v197, v192, v193, v194")
        A("v_or_b32 v197, v197, v195")
        A("v_cmp_ne_u32 vcc, 0, v197")
        A("s_and_b64 s[54:55], s[54:55], vcc")
        A("s_cmp_eq_u64 s[54:55], 0")
        A(f"s_cbranch_scc1 {L}_done")
        A("s_add_u32 s53, s53, 1")
        A(f"s_sleep {sleep}")
        A(f"s_cmp_lt_u32 s53, {POLL_LIMIT}")
        A(f"s_cbranch_scc1 {L}")
        A(f"{L}_done:")
    def flag_setup():
        A(f"""
        v_lshlrev_b32 v196, 4, v1
        s_and_b32 s51, s2, 7
        s_lshl_b32 s51, s51, 10
        s_add_u32 s51, s51, {WS_FL}
        s_mov_b64 s[54:55], -1
        """)
    def hook0():
        publish_flag("cf")
        stamp(A, 3)
    G = 200
    def gather_issue():
        A(f"""
        v_lshrrev_b32 v216, 2, v1
        s_movk_i32 s52, 10240
        v_mul_lo_u32 v217, v216, s52
        v_and_b32 v218, 3, v1
        v_lshl_add_u32 v217, v218, 4, v217
        s_mul_i32 s52, s3, {64*10240}
        s_lshl_b32 s53, s2, 6
        s_add_u32 s52, s52, s53
        s_add_u32 s52, s52, {WS_UB}
        """)
        for i in range(4):
            A(f"buffer_load_dwordx4 v[{G+4*i}:{G+4*i+3}], v217, {WS}, s52 offen sc1")
            if i < 3: A(f"s_add_u32 s52, s52, {16*10240}")
        A(f"""
        s_movk_i32 s52, {WAVE_LDS}
        v_mul_lo_u32 v218, v218, s52
        v_lshl_add_u32 v218, v216, 4, v218
        s_lshl_b32 s52, s3, 10
        s_add_u32 s52, s52, {LBASE + 32}
        v_add_u32 v218, s52, v218
        """)
    def flag_check():
        A(f"v_xor_b32 v192, s{S_NON}, v192")
        A(f"v_xor_b32 v193, s{S_NON}, v193")
        A(f"v_xor_b32 v194, s{S_NON}, v194")
        A(f"v_xor_b32 v195, s{S_NON}, v195")
        A("v_or3_b32 v197, v192, v193, v194")
        A("v_or_b32 v197, v197, v195")
        A("v_cmp_ne_u32 vcc, 0, v197")
        A("s_and_b64 s[54:55], s[54:55], vcc")
    def p1_hook():
        A("s_waitcnt lgkmcnt(15)")
        A(f"v_readfirstlane_b32 s{S_NON}, v199")
        flag_setup()
        A(f"buffer_load_dwordx4 v[192:195], v196, {WS}, s51 offen sc1")
    def mid_hook():
        A("s_mov_b32 s50, 0")
        A("s_waitcnt vmcnt(0)")
        flag_check()
        A("s_cmp_eq_u64 s[54:55], 0")
        A("s_cbranch_scc0 kg_noearly")
        gather_issue()
        A("s_mov_b32 s50, 1")
        A("s_branch kg_early_done")
        A("kg_noearly:")
        A(f"s_mov_b64 exec, s[54:55]")
        A(f"buffer_load_dwordx4 v[192:195], v196, {WS}, s51 offen sc1")
        A("s_mov_b64 exec, -1")
        A("kg_early_done:")
    def tail_hook():
        stamp(A, 4)
        A("s_cmp_eq_u32 s50, 1")
        A("s_cbranch_scc1 kg_tail_done")
        flag_poll(1, first_issued=True)
        gather_issue()
        A("kg_tail_done:")
        stamp(A, 5)
    kgen(A, mid_hook, tail_hook, hook0, p1_hook)
    A(f"""
    v_lshlrev_b32 v9, 4, v1
    v_add_u32 v9, s{S_B}, v9
    v_add_u32 v10, 4096, v9
    v_cmp_gt_u32 vcc, 2, v1
    v_and_b32 v21, 15, v1
    v_lshrrev_b32 v22, 4, v1
    v_cndmask_b32 v10, v10, v9, vcc
    v_add_u32 v23, 1, v21
    v_and_b32 v24, 3, v23
    s_movk_i32 s53, 4160
    v_mul_lo_u32 v24, v24, s53
    v_lshrrev_b32 v23, 2, v23
    v_lshl_add_u32 v24, v23, 3, v24
    v_lshl_add_u32 v24, v22, 4, v24
    v_add_u32 v24, s{S_B}, v24
    v_lshlrev_b32 v25, 5, v21
    v_sub_u32 v25, {2*2032 - 64*56}, v25
    v_lshl_add_u32 v25, v22, 4, v25
    v_add_u32 v25, s{S_K}, v25
    v_lshlrev_b32 v26, 5, v21
    v_lshl_add_u32 v27, v22, 3, v26
    v_add_u32 v27, 32, v27
    v_add_u32 v27, s{S_B}, v27
    v_lshrrev_b32 v28, 1, v22
    v_lshl_add_u32 v26, v28, 4, v26
    v_and_b32 v28, 1, v22
    v_lshlrev_b32 v28, 30, v28
    v_or_b32 v26, v26, v28
    s_waitcnt lgkmcnt(0)
    s_barrier
    s_mov_b64 exec, 0xf
    ds_write_b128 v10, v[16:19]
    s_mov_b64 exec, -1
    """)
    for i in range(4):
        A(f"s_waitcnt vmcnt({3-i})")
        A(f"ds_write_b128 v218, v[{G+4*i}:{G+4*i+3}] offset:{256*i}")
    R = 128
    A(f"""
    v_mov_b32 v{R+32}, 0
    v_mov_b32 v{R+33}, 0
    v_mov_b32 v{R+34}, 0
    v_mov_b32 v{R+35}, 0
    s_waitcnt lgkmcnt(0)
    s_barrier
    """)
    stamp(A, 6)
    for i in range(4):
        A(f"ds_read_b128 v[{R+8*i}:{R+8*i+3}], v9 offset:{32 + 1024*i}")
        A(f"ds_read_b64 v[{R+8*i+4}:{R+8*i+5}], v9 offset:{48 + 1024*i}")
    A(f"ds_read_b64 v[{R+36}:{R+37}], v9 offset:16")
    nw = 0
    for i in range(5):
        r = R + 8*i
        reads_after = (2 * (3 - i) + 1) if i < 4 else 0
        A(f"s_waitcnt lgkmcnt({min(15, reads_after + nw)})")
        T1, T2, T3 = 176, 180, 184
        if i % 2: T1, T2, T3 = 188, 192, 196
        A(f"v_alignbit_b32 v{T1}, v{r+1}, v{r}, 16")
        A(f"v_alignbit_b32 v{T1+1}, v{r+2}, v{r+1}, 16")
        A(f"v_alignbit_b32 v{T1+2}, v{r+3}, v{r+2}, 16")
        A(f"v_alignbit_b32 v{T1+3}, v{r+4}, v{r+3}, 16")
        off = (32 + 1024*i) if i < 4 else 0
        if i == 4: A("s_mov_b64 exec, 3")
        A(f"ds_write_b128 v9, v[{T1}:{T1+3}] offset:{CB[1] + off}")
        A(f"v_mov_b32 v{T2}, v{r+1}")
        A(f"v_mov_b32 v{T2+1}, v{r+2}")
        A(f"v_mov_b32 v{T2+2}, v{r+3}")
        A(f"v_mov_b32 v{T2+3}, v{r+4}")
        A(f"ds_write_b128 v9, v[{T2}:{T2+3}] offset:{CB[2] + off}")
        A(f"v_mov_b32 v{T3}, v{T1+1}")
        A(f"v_mov_b32 v{T3+1}, v{T1+2}")
        A(f"v_mov_b32 v{T3+2}, v{T1+3}")
        A(f"v_alignbit_b32 v{T3+3}, v{r+5}, v{r+4}, 16")
        A(f"ds_write_b128 v9, v[{T3}:{T3+3}] offset:{CB[3] + off}")
        if i == 4: A("s_mov_b64 exec, -1")
        nw += 3
    A("s_waitcnt lgkmcnt(0)")
    stamp(A, 12)
    def a_setup():
        A(f"""
        v_lshlrev_b32 v3, 12, v0
        s_lshl_b32 s43, s{S_T0}, 1
        s_add_u32 s43, s43, {WS_AT}
        s_add_u32 s44, s43, {256*4096}
        s_add_u32 s45, s43, {512*4096}
        s_mov_b64 s[54:55], -1
        s_mov_b64 s[56:57], -1
        s_mov_b64 s[58:59], -1
        """)
    asets = [dict(mask=54, loads=[f"buffer_load_dwordx4 v[8:11], v3, {WS}, s43 offen sc1"], regs=[8,9,10,11], tmp=20),
             dict(mask=56, loads=[f"buffer_load_dwordx4 v[12:15], v3, {WS}, s44 offen sc1"], regs=[12,13,14,15], tmp=20),
             dict(mask=58, loads=[f"buffer_load_dwordx4 v[16:19], v3, {WS}, s45 offen sc1"], regs=[16,17,18,19], tmp=20)]
    def mask3():
        L = newlbl("m3")
        A(f"s_cmp_lt_u32 s3, 2")
        A(f"s_cbranch_scc1 {L}")
        A("s_mov_b64 s[58:59], 0")
        A(f"{L}:")
    a_setup()
    def a_hook():
        for st in asets:
            for ld in st["loads"]: A(ld.replace(" sc1", APLAIN))
    nst = conv_main(A, AHOOK, a_hook if AHOOK >= 0 else None)
    stamp(A, 7)
    if CDELAY: A(f"s_sleep {CDELAY}")
    mask3()
    masked_poll(A, asets, 46, ASLEEP, "apollc", first=(("issued", nst) if AHOOK >= 0 else None))
    cnt_stamp(A, 0, 46)
    A("s_branch k_ln2c")
    A("k_ffn_pre:")
    srd(A, 24, 62, 63, 0, 640*3072)
    srd(A, 28, 64, 65, 0, 640*3072)
    srd(A, 32, 66, 67, 0, 1536*1280)
    A(f"""
    s_sub_u32 s38, s2, 160
    s_and_b32 s39, s38, 7
    s_lshr_b32 s42, s38, 3
    s_mul_i32 s36, s39, 12
    s_add_u32 s36, s36, s42
    s_mul_i32 s37, s39, 10
    s_add_u32 s37, s37, s42
    v_lshrrev_b32 v3, 1, v0
    s_movk_i32 s46, 3072
    v_mul_lo_u32 v3, v3, s46
    v_and_b32 v4, 1, v0
    v_lshl_add_u32 v3, v4, 4, v3
    s_lshl_b32 s43, s36, 5
    s_lshl_b32 s44, s3, 10
    """)
    for it in range(5):
        A(f"s_add_u32 s45, s43, {it*128*3072}")
        A(f"s_add_u32 s47, s44, {L_G + it*4096}")
        A("s_mov_b32 m0, s47")
        A("s_nop 0")
        A("buffer_load_dwordx4 v3, s[24:27], s45 offen lds")
        A(f"s_add_u32 s47, s44, {L_U + it*4096}")
        A("s_mov_b32 m0, s47")
        A("s_nop 0")
        A("buffer_load_dwordx4 v3, s[28:31], s45 offen lds")
    A(f"""
    s_cmp_ge_u32 s38, 80
    s_cbranch_scc1 k_ffn_nowd
    s_movk_i32 s46, 1280
    v_mul_lo_u32 v3, v0, s46
    s_lshl_b32 s43, s37, 4
    """)
    for it in range(6):
        A(f"s_add_u32 s45, s43, {it*256*1280}")
        A(f"s_add_u32 s47, s44, {L_WD + it*4096}")
        A("s_mov_b32 m0, s47")
        A("s_nop 0")
        A("buffer_load_dwordx4 v3, s[32:35], s45 offen lds")
    A("k_ffn_nowd:")
    flag_poll(8)
    stamp(A, 5)
    if CANARY:
        A(f"""
        s_cmp_lg_u32 s3, 0
        s_cbranch_scc1 k_can_done
        v_lshlrev_b32 v3, 12, v0
        s_and_b32 s43, s{S_TB}, 31
        s_add_u32 s43, s43, {32*CTILE}
        s_lshl_b32 s43, s43, 4
        s_add_u32 s43, s43, {WS_AT}
        s_mov_b64 s[54:55], -1
        """)
        masked_poll(A, [dict(mask=54, loads=[f"buffer_load_dwordx4 v[8:11], v3, {WS}, s43 offen sc1"], regs=[8, 9, 10, 11], tmp=12)], 46, CSLEEP, "can")
        cnt_stamp(A, 2, 46)
        A("k_can_done:")
        A("s_barrier")
    stamp(A, 7)
    A("s_branch k_ln2b")
    A("k_ln2b:")
    a_setup()
    mask3()
    masked_poll(A, asets, 46, FSLEEP, "apoll", first=("plain" if (APLAIN == "" and CANARY) else None))
    cnt_stamp(A, 0, 46)
    A("k_ln2c:")
    A(f"""
    v_lshlrev_b32 v3, 4, v0
    ds_write_b128 v3, v[8:11] offset:{L_AT}
    ds_write_b128 v3, v[12:15] offset:{L_AT+4096}
    s_cmp_ge_u32 s3, 2
    s_cbranch_scc1 k_ln2_w3
    ds_write_b128 v3, v[16:19] offset:{L_AT+8192}
    k_ln2_w3:
    v_lshrrev_b32 v8, 4, v1
    v_lshlrev_b32 v8, 3, v8
    v_bfe_u32 v9, v1, 1, 1
    v_lshl_add_u32 v8, v9, 2, v8
    v_bfe_u32 v9, v1, 2, 2
    v_add_u32 v8, v8, v9
    s_mul_i32 s47, s3, 160
    v_add_u32 v8, s47, v8
    v_lshlrev_b32 v8, 4, v8
    v_and_b32 v9, 1, v1
    v_lshl_add_u32 v8, v9, 3, v8
    s_waitcnt lgkmcnt(0)
    s_barrier
    """)
    stamp(A, 8)
    for i in range(5):
        A(f"ds_read_b64_tr_b16 v[{30+2*i}:{31+2*i}], v8 offset:{L_AT+512*i}")
    H = 40
    for i in range(10):
        a, b = H + 2*i, H + 2*i + 1
        if i % 2 == 0: A(f"s_waitcnt lgkmcnt({4 - i//2})")
        unpack_bf16(A, 30 + i, a, b)
        A(f"v_pk_add_f32 v[{a}:{b}], v[{a}:{b}], v[{VXF+2*i}:{VXF+2*i+1}]")
        rnd(A, a, a); rnd(A, b, b)
    ln_stats(A, H)
    A("v_mov_b32 v82, 0")
    A("v_mov_b32 v83, 0")
    for i in range(10):
        a, b = H + 2*i, H + 2*i + 1
        t = 86 + 2 * (i % 2)
        A(f"v_pk_add_f32 v[{t}:{t+1}], v[{a}:{b}], v[78:79] op_sel_hi:[1,0] neg_lo:[0,1] neg_hi:[0,1]")
        rnd(A, t, t); rnd(A, t+1, t+1)
        A(f"v_pk_mul_f32 v[{t}:{t+1}], v[{t}:{t+1}], v[80:81] op_sel_hi:[1,0]")
        A(f"v_cvt_pk_bf16_f32 v{30+i}, v{t}, v{t+1}")
        A(f"v_dot2_f32_bf16 v{82 + i % 2}, v{30+i}, v{VW+i}, v{82 + i % 2}")
    A("s_nop 2")
    A("v_add_f32 v82, v82, v83")
    red8(A, 82, 83)
    A(f"""
    v_lshlrev_b32 v76, 2, v{VTOK}
    v_add_u32 v76, {L_RP}, v76
    s_lshl_b32 s47, s3, 5
    v_add_u32 v77, s47, v76
    v_cmp_gt_u32 vcc, 8, v1
    s_and_saveexec_b64 s[48:49], vcc
    ds_write_b32 v77, v82
    s_mov_b64 exec, s[48:49]
    s_waitcnt lgkmcnt(0)
    s_barrier
    ds_read_b32 v78, v76
    ds_read_b32 v79, v76 offset:32
    ds_read_b32 v80, v76 offset:64
    ds_read_b32 v81, v76 offset:96
    s_waitcnt lgkmcnt(0)
    v_add_f32 v78, v78, v79
    v_add_f32 v80, v80, v81
    v_add_f32 v78, v78, v80
    v_cvt_pk_bf16_f32 v78, v78, v78
    v_and_b32 v78, 0xffff, v78
    v_xor_b32 v79, 0xffff, v78
    v_or_b32 v80, 0x8000, v78
    v_cmp_lt_u32 vcc, 0x7fff, v78
    v_lshlrev_b32 v87, 16, v78
    s_nop 0
    v_cndmask_b32 v78, v80, v79, vcc
    v_lshlrev_b32 v78, 16, v78
    v_add_u32 v79, s{S_T0}, v{VTOK}
    v_sub_u32 v80, 0xffff, v79
    v_or_b32 v86, v78, v80
    s_cmp_lg_u32 s3, 0
    s_cbranch_scc1 k_nokey
    v_lshlrev_b32 v80, 2, v79
    s_mov_b32 s47, {WS_KEY}
    s_mov_b64 exec, 0xff
    buffer_store_dword v86, v80, {WS}, s47 offen sc1
    s_mov_b64 exec, -1
    k_nokey:
    """)
    stamp(A, 9)
    A(f"""
    v_lshlrev_b32 v9, 5, v0
    s_mov_b32 s47, {WS_KEY}
    s_mov_b64 s[54:55], -1
    """)
    for i in range(10):
        a, b = H + 2*i, H + 2*i + 1
        unpack_bf16(A, 30 + i, 70, 71)
        A(f"v_pk_add_f32 v[70:71], v[70:71], v[{a}:{b}]")
        A(f"v_cvt_pk_bf16_f32 v{10+i}, v70, v71")
    masked_poll(A, [dict(mask=54, loads=[f"buffer_load_dwordx4 v[90:93], v9, {WS}, s47 offen sc1", f"buffer_load_dwordx4 v[94:97], v9, {WS}, s47 offen offset:16 sc1"],
                         regs=list(range(90, 98)), tmp=98, sent="min")], 46, KSLEEP, "kpoll")
    cnt_stamp(A, 1, 46)
    stamp(A, 10)
    A(f"""
    s_mov_b32 s50, -1
    s_mov_b64 s[52:53], 0
    s_mov_b32 s51, 0
    k_own:
    v_cmp_gt_u32 vcc, s50, v86
    s_nop 1
    v_cndmask_b32 v98, 0, v86, vcc
    """)
    for pat in ("quad_perm:[1,0,3,2]", "quad_perm:[2,3,0,1]", "row_half_mirror"):
        A("s_nop 1")
        A(f"v_max_u32_dpp v98, v98, v98 {pat} {DPP}")
    A(f"""
    s_nop 0
    v_readfirstlane_b32 s54, v98
    s_nop 3
    s_cmp_eq_u32 s54, 0
    s_cbranch_scc1 k_own_done
    s_mov_b32 s55, 0
    """)
    for r in range(8):
        A(f"v_cmp_lt_u32 vcc, s54, v{90+r}")
        A(f"s_bcnt1_i32_b64 s56, vcc")
        A(f"s_add_u32 s55, s55, s56")
    A(f"""
    s_lshl_b32 s56, s51, 4
    s_lshl_b32 s57, s3, 2
    s_add_u32 s57, s57, s56
    s_add_u32 s57, s57, {L_CNT}
    v_mov_b32 v99, s57
    v_mov_b32 v100, s55
    s_add_u32 s56, s56, {L_CNT}
    v_mov_b32 v101, s56
    s_mov_b64 exec, 1
    ds_write_b32 v99, v100
    s_mov_b64 exec, -1
    s_waitcnt lgkmcnt(0)
    s_barrier
    ds_read_b128 v[102:105], v101
    s_waitcnt lgkmcnt(0)
    v_add_u32 v102, v102, v103
    v_add3_u32 v102, v102, v104, v105
    s_nop 0
    v_readfirstlane_b32 s55, v102
    s_nop 3
    s_cmp_ge_u32 s55, 8
    s_cbranch_scc1 k_own_done
    v_cmp_eq_u32 vcc, s54, v86
    s_or_b64 s[52:53], s[52:53], vcc
    s_and_saveexec_b64 s[48:49], vcc
    s_mul_i32 s56, s55, 1280
    s_add_u32 s57, s56, {WS_HS}
    s_add_u32 s56, s56, {WS_ZS}
    """)
    for i in range(5):
        A(f"buffer_store_dwordx2 v[{30+2*i}:{31+2*i}], v{VCH}, {WS}, s56 offen offset:{64*i} sc1")
    for i in range(10):
        A(f"v_cvt_pk_bf16_f32 v{106+i}, v{H+2*i}, v{H+2*i+1}")
    for i in range(5):
        A(f"buffer_store_dwordx2 v[{106+2*i}:{107+2*i}], v{VCH}, {WS}, s57 offen offset:{64*i} sc1")
    A(f"""
    s_cmp_lg_u32 s3, 0
    s_cbranch_scc1 k_own_nometa
    v_cmp_gt_u32 vcc, 8, v1
    s_and_b64 exec, exec, vcc
    v_mul_f32 v99, {hex(F_LOG2E)}, v87
    v_exp_f32 v99, -v99
    s_nop 0
    v_add_f32 v99, 1.0, v99
    v_rcp_f32 v99, v99
    s_nop 0
    v_cvt_pk_bf16_f32 v99, 0, v99
    s_lshl_b32 s56, s55, 2
    s_add_u32 s56, s56, {WS_META}
    v_mov_b32 v100, 0
    buffer_store_dword v79, v100, {WS}, s56 offen sc1
    buffer_store_dword v99, v100, {WS}, s56 offen offset:32 sc1
    k_own_nometa:
    s_mov_b64 exec, -1
    s_mov_b32 s50, s54
    s_xor_b32 s51, s51, 1
    s_branch k_own
    k_own_done:
    """)
    stamp(A, 11)
    A("s_andn2_b64 exec, exec, s[52:53]")
    for i in range(5):
        A(f"buffer_store_dwordx2 v[{10+2*i}:{11+2*i}], v{VROW}, s[{S_X}:{S_X+3}], 0 offen offset:{64*i} {OUTF}")
    A("s_mov_b64 exec, -1")
    A("s_cmp_lt_u32 s2, 160")
    A("s_cbranch_scc1 k_end")
    A(f"""
    v_lshrrev_b32 v7, 4, v1
    s_movk_i32 s46, 1280
    v_mul_lo_u32 v9, v{VTOK}, s46
    v_lshl_add_u32 v9, v7, 4, v9
    s_mul_i32 s47, s3, 320
    s_add_u32 s47, s47, {WS_ZS}
    v_lshlrev_b32 v10, 3, v7
    v_bfe_u32 v11, v1, 2, 2
    v_add_u32 v10, v10, v11
    v_lshlrev_b32 v10, 5, v10
    v_and_b32 v11, 3, v1
    v_lshl_add_u32 v10, v11, 3, v10
    s_mul_i32 s44, s3, {5*32*32}
    s_add_u32 s44, s44, {L_G}
    v_add_u32 v10, s44, v10
    """)
    for i in range(5):
        A(f"ds_read_b64_tr_b16 v[{120+4*i}:{121+4*i}], v10 offset:{1024*i}")
        A(f"ds_read_b64_tr_b16 v[{122+4*i}:{123+4*i}], v10 offset:{1024*i + 128}")
        A(f"ds_read_b64_tr_b16 v[{140+4*i}:{141+4*i}], v10 offset:{L_U - L_G + 1024*i}")
        A(f"ds_read_b64_tr_b16 v[{142+4*i}:{143+4*i}], v10 offset:{L_U - L_G + 1024*i + 128}")
        if i % 2 == 1: A("s_waitcnt lgkmcnt(0)")
    A("s_mov_b64 s[54:55], -1")
    masked_poll(A, [dict(mask=54, loads=[f"buffer_load_dwordx4 v[{40+4*i}:{43+4*i}], v9, {WS}, s47 offen offset:{64*i} sc1" for i in range(5)],
                         regs=list(range(40, 60)), tmp=60)], 46, 1, "zpoll")
    cnt_stamp(A, 3, 46)
    stamp(A, 12)
    A("s_waitcnt lgkmcnt(0)")
    for i in range(5):
        c = "0" if i == 0 else "v[80:83]"
        A(f"v_mfma_f32_16x16x32_bf16 v[80:83], v[{40+4*i}:{43+4*i}], v[{120+4*i}:{123+4*i}], {c}")
        c = "0" if i == 0 else "v[84:87]"
        A(f"v_mfma_f32_16x16x32_bf16 v[84:87], v[{40+4*i}:{43+4*i}], v[{140+4*i}:{143+4*i}], {c}")
    A(f"""
    v_lshlrev_b32 v11, 4, v1
    s_lshl_b32 s44, s3, 11
    v_add_u32 v12, s44, v11
    s_lshl_b32 s44, s3, 2
    v_add_u32 v11, s44, v11
    s_nop 5
    ds_write_b128 v12, v[80:83] offset:{L_RED}
    ds_write_b128 v12, v[84:87] offset:{L_RED+1024}
    s_waitcnt lgkmcnt(0)
    s_barrier
    """)
    for w in range(4):
        A(f"ds_read_b32 v{40+w}, v11 offset:{L_RED + 2048*w}")
        A(f"ds_read_b32 v{44+w}, v11 offset:{L_RED + 2048*w + 1024}")
    A(f"""
    v_and_b32 v13, 15, v1
    v_lshlrev_b32 v12, 1, v13
    v_lshrrev_b32 v7, 4, v1
    s_movk_i32 s46, {4*3072}
    v_mul_lo_u32 v14, v7, s46
    v_add_u32 v12, v12, v14
    s_lshl_b32 s44, s36, 5
    s_mul_i32 s45, s3, 3072
    s_add_u32 s44, s44, s45
    s_add_u32 s44, s44, {WS_HID}
    s_waitcnt lgkmcnt(0)
    v_add_f32 v40, v40, v41
    v_add_f32 v42, v42, v43
    v_add_f32 v44, v44, v45
    v_add_f32 v46, v46, v47
    v_add_f32 v40, v40, v42
    v_add_f32 v44, v44, v46
    v_cvt_pk_bf16_f32 v40, 0, v40
    v_cvt_pk_bf16_f32 v44, 0, v44
    v_mul_f32 v52, {hex(F_LOG2E)}, v40
    v_exp_f32 v52, -v52
    s_nop 0
    v_add_f32 v52, 1.0, v52
    v_rcp_f32 v52, v52
    s_nop 0
    v_mul_f32 v52, v52, v40
    v_cvt_pk_bf16_f32 v52, 0, v52
    v_mul_f32 v52, v52, v44
    v_cvt_pk_bf16_f32 v52, v52, v52
    s_mov_b32 s58, 0x05040100
    s_nop 0
    v_mov_b32_dpp v53, v52 quad_perm:[1,1,3,3] {DPP}
    v_perm_b32 v56, v53, v52, s58
    s_nop 1
    v_mov_b32_dpp v57, v56 row_shl:2 {DPP}
    v_mov_b32_dpp v58, v56 row_shl:4 {DPP}
    v_mov_b32_dpp v59, v56 row_shl:6 {DPP}
    v_and_b32 v11, 7, v1
    v_cmp_eq_u32 vcc, 0, v11
    v_cmp_gt_u32 s[48:49], 2, v7
    s_and_b64 vcc, vcc, s[48:49]
    s_and_saveexec_b64 s[48:49], vcc
    buffer_store_dwordx4 v[56:59], v12, {WS}, s44 offen sc1
    s_mov_b64 exec, -1
    """)
    stamp(A, 13)
    A("s_cmp_ge_u32 s38, 80")
    A("s_cbranch_scc1 k_end")
    A(f"""
    v_bfe_u32 v5, v1, 3, 1
    v_lshrrev_b32 v7, 4, v1
    s_movk_i32 s46, 3072
    v_mul_lo_u32 v9, v{VTOK}, s46
    s_movk_i32 s46, 1536
    v_mul_lo_u32 v10, v5, s46
    v_add_u32 v9, v9, v10
    v_lshl_add_u32 v9, v7, 4, v9
    s_mul_i32 s47, s3, {6*64}
    s_add_u32 s47, s47, {WS_HID}
    v_lshlrev_b32 v14, 3, v7
    v_bfe_u32 v15, v1, 2, 2
    v_add_u32 v14, v14, v15
    v_bfe_u32 v15, v1, 1, 1
    s_movk_i32 s46, 768
    v_mul_lo_u32 v15, v15, s46
    v_add_u32 v14, v14, v15
    v_lshlrev_b32 v14, 4, v14
    v_and_b32 v15, 1, v1
    v_lshl_add_u32 v14, v15, 3, v14
    s_mul_i32 s44, s3, {6*512}
    s_add_u32 s44, s44, {L_WD}
    v_add_u32 v14, s44, v14
    """)
    for i in range(6):
        A(f"ds_read_b64_tr_b16 v[{120+4*i}:{121+4*i}], v14 offset:{512*i}")
        A(f"ds_read_b64_tr_b16 v[{122+4*i}:{123+4*i}], v14 offset:{512*i + 64}")
    A(f"""
    v_lshrrev_b32 v20, 3, v1
    v_and_b32 v21, 7, v1
    s_movk_i32 s46, 1280
    v_mul_lo_u32 v35, v20, s46
    v_lshl_add_u32 v35, v21, 1, v35
    v_and_b32 v35, 0xfffffffc, v35
    s_lshl_b32 s44, s37, 4
    s_add_u32 s50, s44, {WS_ZS}
    s_add_u32 s51, s44, {WS_HS}
    v_lshlrev_b32 v32, 2, v20
    s_mov_b32 s45, {WS_META}
    s_mov_b64 s[54:55], -1
    s_mov_b64 s[56:57], 0
    s_cmp_lg_u32 s3, 0
    s_cbranch_scc1 k_g2_m
    s_mov_b64 s[56:57], -1
    k_g2_m:
    """)
    masked_poll(A, [dict(mask=54, loads=[f"buffer_load_dwordx4 v[{40+4*i}:{43+4*i}], v9, {WS}, s47 offen offset:{64*i} sc1" for i in range(6)],
                         regs=list(range(40, 64)), tmp=65),
                    dict(mask=56, loads=[f"buffer_load_dword v36, v35, {WS}, s50 offen sc1", f"buffer_load_dword v37, v35, {WS}, s51 offen sc1",
                                         f"buffer_load_dword v33, v32, {WS}, s45 offen sc1", f"buffer_load_dword v34, v32, {WS}, s45 offen offset:32 sc1"],
                         regs=[36, 37, 33, 34], tmp=64)], 46, 1, "hpoll")
    cnt_stamp(A, 4, 46)
    stamp(A, 14)
    A("s_waitcnt lgkmcnt(0)")
    for i in range(6):
        c = "0" if i == 0 else "v[88:91]"
        A(f"v_mfma_f32_16x16x32_bf16 v[88:91], v[{40+4*i}:{43+4*i}], v[{120+4*i}:{123+4*i}], {c}")
    A(f"""
    v_lshlrev_b32 v15, 4, v1
    s_lshl_b32 s44, s3, 10
    v_add_u32 v16, s44, v15
    s_barrier
    s_nop 4
    ds_write_b128 v16, v[88:91] offset:{L_RED}
    s_waitcnt lgkmcnt(0)
    s_barrier
    s_cmp_lg_u32 s3, 0
    s_cbranch_scc1 k_end
    v_lshrrev_b32 v22, 2, v20
    v_lshl_add_u32 v22, v22, 4, v21
    v_lshlrev_b32 v22, 4, v22
    v_and_b32 v23, 3, v20
    v_lshl_add_u32 v22, v23, 2, v22
    """)
    for w in range(4):
        A(f"ds_read_b32 v{24+2*w}, v22 offset:{L_RED + 1024*w}")
        A(f"ds_read_b32 v{25+2*w}, v22 offset:{L_RED + 1024*w + 640}")
    A(f"""
    v_and_b32 v38, 1, v21
    v_cmp_eq_u32 vcc, 1, v38
    v_lshlrev_b32 v38, 16, v36
    v_and_b32 v36, 0xffff0000, v36
    v_cndmask_b32 v36, v38, v36, vcc
    v_lshlrev_b32 v38, 16, v37
    v_and_b32 v37, 0xffff0000, v37
    v_cndmask_b32 v37, v38, v37, vcc
    s_movk_i32 s46, 1280
    v_mul_lo_u32 v35, v33, s46
    v_lshl_add_u32 v35, v21, 1, v35
    s_lshl_b32 s44, s37, 4
    s_waitcnt lgkmcnt(0)
    v_add_f32 v24, v24, v25
    v_add_f32 v26, v26, v27
    v_add_f32 v28, v28, v29
    v_add_f32 v30, v30, v31
    v_add_f32 v24, v24, v26
    v_add_f32 v28, v28, v30
    v_add_f32 v24, v24, v28
    v_cvt_pk_bf16_f32 v24, 0, v24
    v_mul_f32 v24, v24, v34
    v_cvt_pk_bf16_f32 v24, 0, v24
    v_add_f32 v24, v36, v24
    v_cvt_pk_bf16_f32 v24, 0, v24
    v_add_f32 v24, v37, v24
    v_cvt_pk_bf16_f32 v24, v24, v24
    buffer_store_short v24, v35, s[{S_X}:{S_X+3}], s44 offen
    k_end:
    """)
    stamp_flush(A)
    A("k_exit:")
    A("s_endpgm")
    A("k_code_end:")
    A("s_endpgm")
    return name

def main():
    global STAMP
    if "--stamp" in sys.argv:
        STAMP = True
        sys.argv.remove("--stamp")
    hdr = open("cdna_kernels/%s.s.ref" % NAME).read().split("; Override launch")[0]
    b = Asm(); name = gen_main(b)
    out = hdr + f"; @launch grid=(256,1,1) block=(256,1,1) lds={LDS_TOTAL}\n"
    out += '.amdgcn_target "amdgcn-amd-amdhsa--gfx950"\n.text\n'
    out += b.text()
    out += '.section .rodata,"a"\n.p2align 6\n' + gen.kernel_desc(name, 512, 100, 256)
    path = sys.argv[1] if len(sys.argv) > 1 else "cdna_kernels/%s.s" % NAME
    open(path, "w").write(out)
    print("wrote", path, len(out))

if __name__ == "__main__":
    main()
```

```python
import sys, os, struct
from gen import Asm as Asm0, srd, DPP, allreduce16, xor16, xor32, f32bits
from gen import F_INV640, F_LOG2E, F_INV2PI, F_EPS, ARG, NAME
import gen
from gen import Asm as Asm0

WS_UB = 0x000000
WS_AT = 0x280000
WS_KEY = 0x500000
WS_SM = 0x510000
WS_ZS = WS_SM
WS_HS = WS_SM + 10240
WS_META = WS_SM + 20480
WS_HID = WS_SM + 20736
WS_FL = 0x530000
WS_SIZE = 0x540000
WS_STAMP = 0x1000000

STAMP = False
KSTAMP = os.environ.get('KSTAMP', '0') == '1'
class Asm(Asm0):
    pass

def stamp(A, k):
    if STAMP:
        A("s_memrealtime s[98:99]")
        A("s_waitcnt lgkmcnt(0)")
        A(f"v_writelane_b32 v255, s98, {k}")

def cnt_stamp(A, k, sreg):
    if STAMP:
        A(f"v_writelane_b32 v254, s{sreg}, {k}")

def stamp_flush(A):
    if STAMP and DBGWG >= 0:
        A("s_waitcnt vmcnt(0) lgkmcnt(0)")
        stamp(A, 15)
        A(f"s_cmp_lg_u32 s2, {DBGWG}")
        A("s_cbranch_scc1 k_dbg_skip")
        A("s_cmp_lg_u32 s3, 0")
        A("s_cbranch_scc1 k_dbg_skip")
        A("v_readlane_b32 s90, v255, 0")
        A("s_nop 3")
        A("v_subrev_u32 v255, s90, v255")
        A("v_and_b32 v3, 63, v0")
        A("v_lshlrev_b32 v2, 2, v3")
        A("s_mov_b64 exec, 0xfffe")
        A(f"buffer_store_dword v255, v2, s[{S_DBG}:{S_DBG+3}], 0 offen")
        A("k_dbg_skip:")
        return
    if STAMP:
        A("s_waitcnt vmcnt(0) lgkmcnt(0)")
        stamp(A, 15)
        A(f"s_load_dwordx2 s[88:89], s[0:1], {ARG['ws']}")
        A("s_waitcnt lgkmcnt(0)")
        srd(A, 84, 88, 89, WS_STAMP, 0x40000)
        A("v_lshrrev_b32 v2, 6, v0")
        A("s_lshl_b32 s91, s2, 2")
        A("v_add_u32 v2, s91, v2")
        A("v_lshlrev_b32 v2, 6, v2")
        A("v_and_b32 v3, 63, v0")
        A("v_lshl_add_u32 v2, v3, 2, v2")
        A("s_mov_b64 exec, 0xffff")
        A("buffer_store_dword v255, v2, s[84:87], 0 offen")
        A("v_add_u32 v2, 0x20000, v2")
        A("buffer_store_dword v254, v2, s[84:87], 0 offen")

WAVE_LDS = 30432
CB = [0, 4160, 8320, 12480]
KOFF = 16640
TSTR = 1352
L_AT = 0
L_MISC = 10816
L_ST = L_MISC
L_RP = L_MISC + 256
L_CNT = L_MISC + 384
L_NON = L_MISC + 448
L_RED = L_MISC + 512
LBASE = 19712
L_G, L_U, L_WD = LBASE, LBASE + 20480, LBASE + 40960
LDS_TOTAL = LBASE + 4 * WAVE_LDS
POLL_LIMIT = 40000
KREP = int(os.environ.get('KREP', '8'))
HREP = int(os.environ.get('HREP', '4'))
VERB = True
PFFIRST = int(os.environ.get('PFFIRST', '0'))
CTILE = int(os.environ.get('CTILE', '3'))
EARLYG = os.environ.get('EARLYG', '1') == '1'
OUTF = os.environ.get('OUTF', '')
DBGWG = int(os.environ.get('DBGWG', '-1'))
NONWG = int(os.environ.get('NONWG', '0'))
CDELAY = int(os.environ.get('CDELAY', '0'))
WPF = os.environ.get('WPF', '1') == '1'
CSLEEP = int(os.environ.get('CSLEEP', '8'))
CANARY = os.environ.get('CANARY', '1') == '1'
FSLEEP = int(os.environ.get('FSLEEP', '2'))
APLAIN = ' sc1' if os.environ.get('APLAIN', '0') == '0' else ''
AHOOK = int(os.environ.get('AHOOK', '-1'))
CODEPF = os.environ.get('CODEPF', '1') == '1'
NPF = int(os.environ.get('NPF', '6'))
KSLEEP = int(os.environ.get('KSLEEP', '3'))
ASLEEP = int(os.environ.get('ASLEEP', '2'))

S_WS, S_X, S_DBG, S_WR = 8, 12, 20, 16
S_TB, S_T0 = 40, 41
S_D, S_B, S_K, S_AO, S_F, S_DS, S_NON = 74, 75, 76, 77, 78, 79, 72
VXF = 220
VW = 240
VROW, VCH, VTOK = 250, 251, 252

lblc = [0]
def newlbl(p):
    lblc[0] += 1
    return f"{p}_{lblc[0]}"

def rnd(A, d, s):
    A(f"v_cvt_pk_bf16_f32 v{d}, 0, v{s}")

def unpack_bf16(A, src, dlo, dhi):
    A(f"v_lshlrev_b32 v{dlo}, 16, v{src}")
    A(f"v_and_b32 v{dhi}, 0xffff0000, v{src}")

def red8(A, x, t):
    A("s_nop 1")
    A(f"v_add_f32_dpp v{x}, v{x}, v{x} row_ror:8 {DPP}")
    xor16(A, "v_add_f32", x, t)
    xor32(A, "v_add_f32", x, t)

def ln_stats(A, H):
    A(f"v_pk_add_f32 v[72:73], v[{H}:{H+1}], v[{H+2}:{H+3}]")
    A(f"v_pk_add_f32 v[74:75], v[{H+4}:{H+5}], v[{H+6}:{H+7}]")
    for i in range(4, 10, 2):
        A(f"v_pk_add_f32 v[72:73], v[72:73], v[{H+2*i}:{H+2*i+1}]")
        A(f"v_pk_add_f32 v[74:75], v[74:75], v[{H+2*i+2}:{H+2*i+3}]")
    A("v_pk_add_f32 v[72:73], v[72:73], v[74:75]")
    A("v_add_f32 v72, v72, v73")
    red8(A, 72, 73)
    A(f"v_mul_f32 v72, {hex(f32bits(1/160))}, v72")
    for i in range(10):
        t = 70 if i % 2 == 0 else 76
        acc = 74 if i % 2 == 0 else 82
        A(f"v_pk_add_f32 v[{t}:{t+1}], v[{H+2*i}:{H+2*i+1}], v[72:73] op_sel_hi:[1,0] neg_lo:[0,1] neg_hi:[0,1]")
        if i < 2: A(f"v_pk_mul_f32 v[{acc}:{acc+1}], v[{t}:{t+1}], v[{t}:{t+1}]")
        else: A(f"v_pk_fma_f32 v[{acc}:{acc+1}], v[{t}:{t+1}], v[{t}:{t+1}], v[{acc}:{acc+1}]")
    A("v_pk_add_f32 v[74:75], v[74:75], v[82:83]")
    A("v_add_f32 v73, v74, v75")
    red8(A, 73, 74)
    A(f"""
    v_lshlrev_b32 v76, 3, v{VTOK}
    v_add_u32 v76, {L_ST}, v76
    s_lshl_b32 s47, s3, 6
    v_add_u32 v77, s47, v76
    v_cmp_gt_u32 vcc, 8, v1
    s_and_saveexec_b64 s[48:49], vcc
    ds_write_b64 v77, v[72:73]
    s_mov_b64 exec, s[48:49]
    s_waitcnt lgkmcnt(0)
    s_barrier
    ds_read_b64 v[78:79], v76
    ds_read_b64 v[80:81], v76 offset:64
    ds_read_b64 v[82:83], v76 offset:128
    ds_read_b64 v[84:85], v76 offset:192
    s_waitcnt lgkmcnt(0)
    v_add_f32 v72, v78, v80
    v_add_f32 v73, v82, v84
    v_add_f32 v72, v72, v73
    v_mul_f32 v72, 0.25, v72
    v_sub_f32 v78, v78, v72
    v_sub_f32 v80, v80, v72
    v_sub_f32 v82, v82, v72
    v_sub_f32 v84, v84, v72
    v_mul_f32 v73, v78, v78
    v_fmac_f32 v73, v80, v80
    v_fmac_f32 v73, v82, v82
    v_fmac_f32 v73, v84, v84
    v_add_f32 v79, v79, v81
    v_add_f32 v83, v83, v85
    v_add_f32 v79, v79, v83
    v_fmac_f32 v79, {hex(f32bits(160))}, v73
    v_mul_f32 v74, {hex(F_INV640)}, v79
    v_cvt_pk_bf16_f32 v78, 0, v72
    v_cvt_pk_bf16_f32 v75, 0, v74
    v_add_f32 v75, {hex(F_EPS)}, v75
    v_cvt_pk_bf16_f32 v75, 0, v75
    v_sqrt_f32 v75, v75
    s_nop 0
    v_cvt_pk_bf16_f32 v75, 0, v75
    v_rcp_f32 v80, v75
    s_nop 0
    """)

def cmul(A, z, x, y, t):
    A(f"v_pk_mul_f32 v[{t}:{t+1}], v[{x}:{x+1}], v[{y}:{y+1}] op_sel:[0,0] op_sel_hi:[1,0]")
    A(f"v_pk_fma_f32 v[{z}:{z+1}], v[{x}:{x+1}], v[{y}:{y+1}], v[{t}:{t+1}] op_sel:[1,1,0] op_sel_hi:[0,1,1] neg_lo:[1,0,0]")

class Poll:
    pass

def masked_poll(A, sets, cnt, sleep, tag, first=None):
    L = newlbl(tag)
    A(f"s_mov_b32 s{cnt}, 0")
    if first == "plain":
        for st in sets:
            for ld in st["loads"]: A(ld.replace(" sc1", ""))
        A("s_waitcnt vmcnt(0)")
        A(f"s_branch {L}_chk")
    elif first is not None:
        A(f"s_waitcnt vmcnt({first[1]})")
        A(f"s_branch {L}_chk")
    A(f"{L}:")
    for k, st in enumerate(sets):
        m = st["mask"]
        A(f"s_mov_b64 exec, s[{m}:{m+1}]")
        A(f"s_cbranch_execz {L}_sk{k}")
        for ld in st["loads"]: A(ld)
        A(f"{L}_sk{k}:")
    A("s_mov_b64 exec, -1")
    A("s_waitcnt vmcnt(0)")
    A(f"{L}_chk:")
    for k, st in enumerate(sets):
        m = st["mask"]; regs = st["regs"]; t = st["tmp"]
        op = "max" if st.get("sent", "max") == "max" else "min"
        r = list(regs)
        if len(r) == 1:
            src = r[0]
        else:
            if len(r) >= 3:
                A(f"v_{op}3_u32 v{t}, v{r[0]}, v{r[1]}, v{r[2]}"); r = r[3:]
            else:
                A(f"v_{op}_u32 v{t}, v{r[0]}, v{r[1]}"); r = r[2:]
            while len(r) >= 2:
                A(f"v_{op}3_u32 v{t}, v{t}, v{r[0]}, v{r[1]}"); r = r[2:]
            if r: A(f"v_{op}_u32 v{t}, v{t}, v{r[0]}")
            src = t
        sent = "-1" if op == "max" else "0"
        A(f"v_cmp_eq_u32 vcc, {sent}, v{src}")
        A(f"s_and_b64 s[{m}:{m+1}], s[{m}:{m+1}], vcc")
    m0 = sets[0]["mask"]
    if len(sets) == 1:
        A(f"s_cmp_eq_u64 s[{m0}:{m0+1}], 0")
    else:
        A(f"s_or_b64 vcc, s[{m0}:{m0+1}], s[{sets[1]['mask']}:{sets[1]['mask']+1}]")
        for st in sets[2:]:
            A(f"s_or_b64 vcc, vcc, s[{st['mask']}:{st['mask']+1}]")
        A("s_cmp_eq_u64 vcc, 0")
    A(f"s_cbranch_scc1 {L}_done")
    A(f"s_add_u32 s{cnt}, s{cnt}, 1")
    if sleep: A(f"s_sleep {sleep}")
    A(f"s_cmp_lt_u32 s{cnt}, {POLL_LIMIT}")
    A(f"s_cbranch_scc1 {L}")
    A(f"{L}_done:")

def kgen(A, mid_hook, tail_hook, hook0, p1_hook=None):
    TS = 272; TBUF = 14416; TT = 28832
    A(f"""
    s_bitcmp1_b32 s{S_D}, 0
    s_cbranch_scc1 kg_odd
    s_lshl_b32 s42, s42, 16
    s_lshl_b32 s{S_DS}, s{S_DS}, 16
    kg_odd:
    s_and_b32 s42, s42, 0xffff0000
    s_and_b32 s{S_DS}, s{S_DS}, 0xffff0000
    v_mov_b32 v14, {hex(F_LOG2E)}
    v_mul_f32 v15, s42, v14
    v_exp_f32 v15, v15
    s_mov_b32 s43, 0x7fff7fff
    v_and_b32 v112, s43, v112
    v_and_b32 v113, s43, v113
    v_and_b32 v114, s43, v114
    v_and_b32 v115, s43, v115
    v_cvt_pk_bf16_f32 v15, 0, v15
    v_pk_max_u16 v112, v112, v113
    v_pk_max_u16 v114, v114, v115
    v_pk_max_u16 v10, v112, v114
    v_lshrrev_b32 v11, 16, v10
    v_and_b32 v10, 0xffff, v10
    v_max_u32 v10, v10, v11
    """)
    E1, W8, E256, X2, X3, X4, X6, E512, XA, XB, CX, TX, C, CY, TY = 18, 20, 22, 24, 26, 28, 32, 34, 36, 38, 40, 42, 44, 116, 118
    PX, PY = [46, 47, 122, 123], [120, 121, 124, 125]
    WDELAY = int(os.environ.get('WDELAY', '1'))
    D = 48
    FR = 128
    def setup_a(p):
        L = []; a = L.append
        lar, aim = 100 + 4*p, 101 + 4*p
        a(f"v_lshlrev_b32 v{lar}, 16, v{lar}")
        a(f"v_lshlrev_b32 v{aim}, 16, v{aim}")
        a(f"v_mul_f32 v4, v14, v{lar}")
        a(f"v_exp_f32 v4, v4")
        a(f"v_mul_f32 v5, v{aim}, v15")
        a(f"v_mul_f32 v5, {hex(F_INV2PI)}, v5")
        a(f"v_cvt_pk_bf16_f32 v4, 0, v4")
        a(f"v_mul_f32 v4, v4, v15")
        a(f"v_mul_f32 v4, v4, v14")
        for k, (dst, pw) in enumerate(((E1, 1), (W8, 8), (E256, 256))):
            m, f = 6 + 2*(k % 2), 7 + 2*(k % 2)
            if pw == 1:
                a(f"v_exp_f32 v{m}, -v4")
                a(f"v_fract_f32 v{f}, v5")
            else:
                a(f"v_mul_f32 v{m}, {hex(f32bits(pw))}, v4")
                a(f"v_mul_f32 v{f}, {hex(f32bits(pw))}, v5")
                a(f"v_exp_f32 v{m}, -v{m}")
                a(f"v_fract_f32 v{f}, v{f}")
            a(f"v_cos_f32 v{dst}, v{f}")
            a(f"v_sin_f32 v{dst+1}, v{f}")
            a("s_nop 0")
            a(f"v_mul_f32 v{dst}, v{dst}, v{m}")
            a(f"v_mul_f32 v{dst+1}, v{dst+1}, v{m}")
        return L
    def setup_c(p):
        cre, cim = 102 + 4*p, 103 + 4*p
        return [f"v_lshlrev_b32 v{cre}, 16, v{cre}", f"v_lshlrev_b32 v{cim}, 16, v{cim}",
                f"v_mul_f32 v{C}, v{cre}, v11", f"v_mul_f32 v{C+1}, v{cim}, v11"]
    def cm(z, x, y, t):
        return [f"v_pk_mul_f32 v[{t}:{t+1}], v[{x}:{x+1}], v[{y}:{y+1}] op_sel:[0,0] op_sel_hi:[1,0]",
                f"v_pk_fma_f32 v[{z}:{z+1}], v[{x}:{x+1}], v[{y}:{y+1}], v[{t}:{t+1}] op_sel:[1,1,0] op_sel_hi:[0,1,1] neg_lo:[1,0,0]"]
    def tables():
        cnt = [0, 0]
        pendw = [[], []]
        def put(row, pair, neg, which, const=None):
            P = (PX, PY)[which]; r = P[cnt[which] % len(P)]; cnt[which] += 1
            L = [f"v_mov_b32 v{r}, {hex(const)}"] if const is not None else [f"v_cvt_pk_f16_f32 v{r}, v{pair}, {'-' if neg else ''}v{pair+1}"]
            pendw[which].append(f"ds_write_addtid_b32 v{r} offset:{row*TS}")
            if len(pendw[which]) > WDELAY:
                L.append(pendw[which].pop(0))
            return L
        X = []
        X += put(0, None, False, 0, const=0x3c00)
        X += put(1, E1, False, 0)
        X += cm(X2, E1, E1, TX) + put(2, X2, False, 0)
        X += put(8, E256, False, 0)
        X += cm(E512, E256, E256, TX) + put(12, E512, False, 0)
        X += cm(X3, X2, E1, TX) + put(3, X3, False, 0)
        X += cm(X4, X2, X2, TX) + put(4, X4, False, 0)
        X += cm(XA, E512, E256, TX) + put(14, XA, False, 0)
        X += cm(CX, X4, E1, TX) + put(5, CX, False, 0)
        X += cm(X6, X4, X2, TX) + put(6, X6, False, 0)
        X += cm(CX, X4, X3, TX) + put(7, CX, False, 0)
        X += cm(CX, E256, X2, TX) + put(9, CX, False, 0)
        X += cm(CX, E256, X4, TX) + put(10, CX, False, 0)
        X += cm(CX, E256, X6, TX) + put(11, CX, False, 0)
        X += cm(CX, E512, X4, TX) + put(13, CX, False, 0)
        X += cm(CX, XA, X4, TX) + put(15, CX, False, 0)
        X += cm(XA, E512, E512, TX) + put(16, XA, False, 0)
        X += cm(CX, XA, E256, TX) + put(17, CX, False, 0)
        X += cm(XB, XA, E512, TX) + put(18, XB, False, 0)
        X += cm(CX, XB, E256, TX) + put(19, CX, False, 0)
        X += cm(CX, XA, XA, TX) + put(20, CX, False, 0)
        Y = []
        Y += put(21, C, True, 1)
        Y += cm(CY, C, W8, TY) + put(22, CY, True, 1)
        for c in range(2, 32):
            Y += cm(CY, CY, W8, TY) + put(21 + c, CY, True, 1)
        X += pendw[0]; Y += pendw[1]
        out = []; i = j = 0
        while i < len(X) or j < len(Y):
            if j >= len(Y) or (i < len(X) and i * len(Y) <= j * len(X)):
                out.append(X[i]); i += 1
            else:
                out.append(Y[j]); j += 1
        return out
    sa = setup_a(0)
    red = []
    R_ = Asm0()
    allreduce16(R_, "v_max_u32", 10); xor16(R_, "v_max_u32", 10, 11); xor32(R_, "v_max_u32", 10, 11)
    R_(f"""
    v_lshlrev_b32 v10, 16, v10
    v_mul_f32 v10, v10, v15
    v_lshrrev_b32 v10, 23, v10
    v_max_u32 v10, 5, v10
    v_min_u32 v10, 0xfe, v10
    v_sub_u32 v11, 0x103, v10
    v_lshlrev_b32 v11, 23, v11
    v_subrev_u32 v30, 4, v10
    v_lshlrev_b32 v30, 23, v30
    v_mul_f32 v11, v11, v15
    v_lshrrev_b32 v13, 5, v1
    v_and_b32 v16, 31, v1
    v_mul_u32_u24 v16, {TS}, v16
    v_lshl_add_u32 v13, v13, 4, v16
    v_add_u32 v13, s{S_B}, v13
    """)
    for ins in R_.l: A(ins.strip())
    for ins in sa: A(ins)
    for ins in setup_c(0): A(ins)
    A(f"s_mov_b32 m0, s{S_B}")
    A("s_nop 0")
    for ins in tables(): A(ins)
    hook0()
    A(f"s_add_u32 s43, s{S_B}, 0")
    for p in range(3):
        buf = p % 2
        for s in range(8):
            A(f"ds_read_b128 v[{FR+8*s}:{FR+8*s+3}], v13 offset:{TBUF*buf + 32*s}")
            A(f"ds_read_b128 v[{FR+8*s+4}:{FR+8*s+7}], v13 offset:{TBUF*buf + 21*TS + 32*s}")
        if p == 1 and p1_hook is not None:
            p1_hook()
        if p < 2:
            A(f"s_add_u32 s43, s{S_B}, {TBUF*((p+1)%2)}")
            A("s_mov_b32 m0, s43")
            nxt = setup_a(p + 1) + setup_c(p + 1) + tables()
        else:
            mid_hook()
            nxt = []
            H_ = Asm0()
            H_(f"""
            v_and_b32 v14, 31, v1
            v_lshrrev_b32 v15, 5, v1
            v_lshlrev_b32 v16, 4, v14
            v_lshl_add_u32 v16, v15, 3, v16
            v_sub_u32 v17, {TT+504}, v16
            v_add_u32 v17, s{S_B}, v17
            v_add_u32 v16, {TT+1024}, v16
            v_add_u32 v16, s{S_B}, v16
            v_lshlrev_b32 v18, 3, v14
            v_add_u32 v18, {TT+512}, v18
            v_add_u32 v19, 4, v18
            v_lshlrev_b32 v20, 2, v14
            v_add_u32 v20, {TT+768}, v20
            v_add_u32 v21, 128, v20
            v_cmp_eq_u32 vcc, 0, v15
            s_nop 1
            v_cndmask_b32 v18, v20, v18, vcc
            v_cndmask_b32 v19, v21, v19, vcc
            v_add_u32 v18, s{S_B}, v18
            v_add_u32 v19, s{S_B}, v19
            s_add_u32 s43, s{S_B}, {TT}
            v_sub_u32 v4, 127, v1
            v_add_u32 v5, 1, v4
            v_and_b32 v6, 31, v4
            v_lshrrev_b32 v7, 5, v4
            v_lshlrev_b32 v6, 4, v6
            v_lshl_add_u32 v6, v7, 1, v6
            v_and_b32 v8, 31, v5
            v_lshrrev_b32 v7, 5, v5
            v_lshlrev_b32 v8, 4, v8
            v_lshl_add_u32 v8, v7, 1, v8
            v_add_u32 v6, s43, v6
            v_add_u32 v8, s43, v8
            v_sub_u32 v9, 63, v1
            v_lshlrev_b32 v10, 2, v9
            v_add_u32 v10, s43, v10
            v_sub_u32 v11, 31, v1
            v_and_b32 v11, 31, v11
            v_lshlrev_b32 v11, 3, v11
            v_add_u32 v11, s43, v11
            v_and_b32 v9, 31, v9
            v_lshlrev_b32 v9, 4, v9
            v_sub_u32 v9, 496, v9
            v_add_u32 v9, s43, v9
            v_lshlrev_b32 v3, 4, v1
            v_add_u32 v3, s{S_K}, v3
            """)
            nxt = [x.strip() for x in H_.l]
        nlds_after = 0
        per = (len(nxt) + 7) // 8 if nxt else 0
        lead = min(int(os.environ.get('LEAD', '30')) if p < 2 else 20, len(nxt))
        pos = 0
        for ins in nxt[:lead]:
            A(ins); pos += 1
            if ins.startswith("ds_"): nlds_after += 1
        rest = nxt[lead:]
        per = (len(rest) + 7) // 8 if rest else 0
        for s in range(8):
            need = 2 * (7 - s) + nlds_after
            if need <= 15: A(f"s_waitcnt lgkmcnt({need})")
            else: A("s_waitcnt lgkmcnt(15)") if False else A(f"s_waitcnt lgkmcnt({min(15, need)})")
            c = "0" if (s == 0 and p == 0) else f"v[{D}:{D+15}]"
            A(f"v_mfma_f32_32x32x16_f16 v[{D}:{D+15}], v[{FR+8*s}:{FR+8*s+3}], v[{FR+8*s+4}:{FR+8*s+7}], {c}")
            for ins in rest[s*per:(s+1)*per]:
                A(ins)
                if ins.startswith("ds_"): nlds_after += 1
    tail_hook()
    A(f"""
    s_nop 7
    s_nop 3
    v_cvt_pk_f16_f32 v22, v{D+3}, v{D+2}
    v_cvt_pk_f16_f32 v23, v{D+1}, v{D}
    ds_write_b64 v17, v[22:23]
    v_cvt_pk_f16_f32 v24, v{D+4}, v{D+5}
    v_cvt_pk_f16_f32 v25, v{D+6}, v{D+7}
    ds_write_b32 v18, v24
    ds_write_b32 v19, v25
    v_cvt_pk_f16_f32 v26, v{D+8}, v{D+9}
    v_cvt_pk_f16_f32 v27, v{D+10}, v{D+11}
    ds_write_b64 v16, v[26:27]
    s_mov_b32 s44, 0x05040100
    s_mov_b32 s45, 0x01000100
    s_mov_b32 s46, 0x03020302
    s_mov_b32 s47, 0x07060100
    s_mov_b32 s48, 0x03020504
    v_and_b32 v7, 1, v4
    v_cmp_eq_u32 vcc, 1, v7
    s_waitcnt lgkmcnt(0)
    ds_read_u16 v32, v6 offset:1024
    ds_read_u16 v33, v8 offset:1024
    ds_read_u16 v34, v6 offset:1020
    ds_read_u16 v35, v8 offset:1020
    ds_read2_b32 v[36:37], v10 offset0:192 offset1:193
    ds_read_b64 v[38:39], v11 offset:512
    ds_read_u16 v40, v11 offset:520
    ds_read_b128 v[44:47], v9
    s_waitcnt lgkmcnt(4)
    v_cndmask_b32 v41, v32, v33, vcc
    v_cndmask_b32 v42, v34, v35, vcc
    v_perm_b32 v48, v33, v33, s45
    v_perm_b32 v49, v41, v33, s44
    v_perm_b32 v50, v32, v32, s45
    v_mov_b32 v51, v50
    ds_write_b128 v3, v[48:51]
    v_perm_b32 v52, v35, v35, s45
    v_perm_b32 v53, v42, v35, s44
    v_perm_b32 v54, v34, v34, s45
    v_mov_b32 v55, v54
    ds_write_b128 v3, v[52:55] offset:1024
    s_waitcnt lgkmcnt(2)
    v_perm_b32 v56, v37, v37, s45
    v_perm_b32 v57, v36, v36, s46
    v_alignbit_b32 v58, v36, v36, 16
    v_perm_b32 v59, v36, v36, s45
    ds_write_b128 v3, v[56:59] offset:2048
    v_perm_b32 v60, v39, v40, s47
    v_perm_b32 v61, v39, v39, s45
    v_perm_b32 v62, v39, v38, s48
    v_perm_b32 v63, v38, v38, s45
    v_cmp_gt_u32 vcc, 32, v1
    s_nop 1
    v_cndmask_b32 v60, v44, v60, vcc
    v_cndmask_b32 v61, v45, v61, vcc
    v_cndmask_b32 v62, v46, v62, vcc
    v_cndmask_b32 v63, v47, v63, vcc
    ds_write_b128 v3, v[60:63] offset:3072
    v_mov_b32 v16, 0
    v_mov_b32 v17, 0
    v_mov_b32 v18, 0
    v_mov_b32 v19, 0
    v_cmp_gt_u32 vcc, 30, v1
    s_and_saveexec_b64 s[52:53], vcc
    ds_write_b128 v3, v[16:19] offset:4096
    s_mov_b64 exec, s[52:53]
    """)

def conv_main(A, hook_idx=None, hook=None):
    ACC, AR, NR, EP = 32, 64, 12, 112
    mf = [(q, al) for al in range(64) for q in range(al // 8, 8)]
    first_use = {}
    for i, (q, al) in enumerate(mf):
        first_use.setdefault(("A", al), i)
        first_use.setdefault(("B", 8*q - al), i)
    loads = sorted(first_use.items(), key=lambda kv: (kv[1], kv[0][0]))
    last_of_tile = {q: max(i for i, (qq, al) in enumerate(mf) if qq == q) for q in range(8)}
    lastuse_A = {al: max(i for i, (q, a2) in enumerate(mf) if a2 == al) for al in range(64)}
    def epi_instrs(q):
        a = ACC + 4 * q
        e = EP + 16 * (q % 2)
        U = e + 14
        L = [("lds", f"ds_read_b64 v[{U}:{U+1}], v27 offset:{512*q}")]
        for j in range(4): L.append(("v", f"v_cvt_pk_bf16_f32 v{e+j}, 0, v{a+j}"))
        L.append(("waitu", None))
        L.append(("v", f"v_fma_mix_f32 v{e+4}, v{U}, s{S_DS}, 0 op_sel_hi:[1,0,0]"))
        L.append(("v", f"v_fma_mix_f32 v{e+5}, v{U}, s{S_DS}, 0 op_sel:[1,0,0] op_sel_hi:[1,0,0]"))
        L.append(("v", f"v_fma_mix_f32 v{e+6}, v{U+1}, s{S_DS}, 0 op_sel_hi:[1,0,0]"))
        L.append(("v", f"v_fma_mix_f32 v{e+7}, v{U+1}, s{S_DS}, 0 op_sel:[1,0,0] op_sel_hi:[1,0,0]"))
        for j in range(4): L.append(("v", f"v_cvt_pk_bf16_f32 v{e+4+j}, 0, v{e+4+j}"))
        for j in range(4): L.append(("v", f"v_fmac_f32 v{e+4+j}, v30, v{e+j}"))
        L.append(("v", f"v_cvt_pk_bf16_f32 v{e}, v{e+4}, v{e+5}"))
        L.append(("v", f"v_cvt_pk_bf16_f32 v{e+1}, v{e+6}, v{e+7}"))
        L.append(("gap", None))
        L.append(("v", f"v_permlane16_swap_b32 v{e}, v{e+2}"))
        L.append(("v", f"v_permlane16_swap_b32 v{e+1}, v{e+3}"))
        L.append(("st", f"buffer_store_dwordx4 v[{e}:{e+3}], v26, s[{S_WS}:{S_WS+3}], s{S_AO} offen offset:{512*q} sc1"))
        return L
    ldsq = []
    cur = [0]
    LAT = 6
    def lds_wait_for(idset, extend=True):
        idxs = [i for i, n in enumerate(ldsq) if n[0] in idset]
        if not idxs: return False
        k = max(idxs)
        if extend:
            while k + 1 < len(ldsq) and ldsq[k+1][1] <= cur[0] - LAT: k += 1
        A(f"s_waitcnt lgkmcnt({len(ldsq) - 1 - k})")
        del ldsq[:k+1]
        return True
    def issue_load(key):
        kind, v = key
        if kind == "A":
            r = AR + 4 * (v % NR)
            A(f"ds_read_b64 v[{r}:{r+1}], v24 offset:{64*v}"); ldsq.append((key, cur[0]))
            A(f"ds_read_b64 v[{r+2}:{r+3}], v24 offset:{64*v+8}"); ldsq.append((key, cur[0]))
        else:
            r = 4 * (v + 7)
            A(f"ds_read_b128 a[{r}:{r+3}], v25 offset:{64*(56-v)}"); ldsq.append((key, cur[0]))
    li = 0
    epi_q = []
    stores_after = [0]
    WINDOW, MAXQ = 12, 14
    for i, (q, al) in enumerate(mf):
        cur[0] = i
        budget = 2 if i > 0 else 99
        need = {("A", al), ("B", 8*q - al)}
        if any(n[0] in need for n in ldsq): budget -= 1
        while li < len(loads):
            key, dl = loads[li]
            n = 2 if key[0] == "A" else 1
            must = dl <= i
            if not must:
                if dl - i > WINDOW or budget <= 0: break
                if len(ldsq) + n > MAXQ: break
                if key[0] == "A" and key[1] >= NR and lastuse_A[key[1] - NR] >= i: break
            else:
                if len(ldsq) + n > 15:
                    A(f"s_waitcnt lgkmcnt({15-n})"); del ldsq[:len(ldsq) - (15 - n)]
            issue_load(key)
            budget -= n
            li += 1
        while budget > 0 and epi_q and epi_q[0][0] <= i:
            _, kind, txt, eq = epi_q.pop(0)
            if kind == "lds":
                if len(ldsq) + 1 > 15:
                    A("s_waitcnt lgkmcnt(14)"); del ldsq[:len(ldsq) - 14]
                A(txt); ldsq.append((("EU", eq), i))
            elif kind == "waitu":
                if lds_wait_for({("EU", eq)}): budget -= 1
                continue
            elif kind == "gap":
                if epi_q: epi_q[0] = (i + 2,) + epi_q[0][1:]
                break
            else:
                A(txt)
                if kind == "st": stores_after[0] += 1
            budget -= 1
        if hook is not None and i == hook_idx:
            hook(); stores_after[0] = 0
        lds_wait_for(need)
        r = AR + 4 * (al % NR)
        g = 8 * q - al
        c = "0" if al == 0 else f"v[{ACC+4*q}:{ACC+4*q+3}]"
        A(f"v_mfma_f32_16x16x32_f16 v[{ACC+4*q}:{ACC+4*q+3}], v[{r}:{r+3}], a[{4*(g+7)}:{4*(g+7)+3}], {c}")
        if i == last_of_tile[q]:
            for kind, txt in epi_instrs(q):
                epi_q.append((i + (1 if kind == "lds" else 8), kind, txt, q))
    cur[0] = len(mf) + 100
    A("s_nop 7")
    for _, kind, txt, eq in epi_q:
        if kind == "lds":
            A(txt); ldsq.append((("EU", eq), 0))
        elif kind == "waitu":
            lds_wait_for({("EU", eq)}, extend=False)
        elif kind == "gap":
            A("s_nop 1")
        else:
            A(txt)
            if kind == "st": stores_after[0] += 1
    return stores_after[0]

def gen_main(A):
    name = NAME + "_kernel"
    A.l.append(f".globl {name}")
    A.l.append(".p2align 8")
    A.l.append(f".type {name},@function")
    A.l.append(f"{name}:")
    A("s_cmp_ge_u32 s2, 256")
    A("s_cbranch_scc1 k_exit")
    if STAMP: A("v_mov_b32 v255, 0")
    if STAMP: A("v_mov_b32 v254, 0")
    def emit_pf():
        if CODEPF:
            A("""
            s_getpc_b64 s[90:91]
            k_pc:
            v_lshlrev_b32 v2, 4, v0
            v_mov_b32 v3, s91
            v_add_co_u32 v2, vcc, s90, v2
            v_addc_co_u32 v3, vcc, 0, v3, vcc
            """)
            for i in range(NPF):
                A(f"v_cmp_gt_u32 vcc, (k_code_end-k_pc-{4096*i})/16, v0")
                A("s_and_saveexec_b64 s[92:93], vcc")
                A(f"s_cbranch_execz k_pf_done")
                A("global_load_dwordx4 v[160:163], v[2:3], off")
                A("s_mov_b64 exec, s[92:93]")
                A("v_add_co_u32 v2, vcc, 0x1000, v2")
                A("v_addc_co_u32 v3, vcc, 0, v3, vcc")
            A("k_pf_done:")
            A("s_mov_b64 exec, -1")
    stamp(A, 0)
    if PFFIRST: emit_pf()
    WS = f"s[{S_WS}:{S_WS+3}]"
    A(f"""
    s_load_dwordx2 s[4:5], s[0:1], {ARG['x']}
    s_load_dwordx2 s[6:7], s[0:1], {ARG['ws']}
    s_load_dwordx4 s[44:47], s[0:1], {ARG['lar']}
    s_load_dwordx4 s[48:51], s[0:1], {ARG['cre']}
    s_load_dwordx4 s[56:59], s[0:1], {ARG['ldt']}
    s_load_dwordx4 s[60:63], s[0:1], {ARG['wr']}
    s_load_dwordx4 s[64:67], s[0:1], {ARG['wu']}
    s_load_dwordx4 s[68:71], s[0:1], {ARG['out']}
    """)
    if PFFIRST == 0:
        emit_pf()
    A(f"""
    s_and_b32 s52, s2, 7
    s_lshr_b32 s53, s2, 3
    s_mul_i32 s54, s52, 20
    s_add_u32 s{S_TB}, s54, s53
    s_cmp_lt_u32 s2, 160
    s_cbranch_scc1 k_tb_done
    s_mul_i32 s54, s52, 12
    s_add_u32 s54, s54, s53
    s_add_u32 s{S_TB}, s54, 140
    k_tb_done:
    s_lshl_b32 s{S_T0}, s{S_TB}, 3
    v_lshrrev_b32 v2, 6, v0
    v_and_b32 v1, 63, v0
    s_nop 0
    v_readfirstlane_b32 s3, v2
    v_and_b32 v{VTOK}, 7, v1
    v_lshrrev_b32 v5, 3, v1
    v_add_u32 v6, s{S_T0}, v{VTOK}
    s_movk_i32 s52, 1280
    v_mul_lo_u32 v6, v6, s52
    s_mul_i32 s53, s3, 320
    v_lshl_add_u32 v{VCH}, v5, 3, s53
    v_add_u32 v{VROW}, v6, v{VCH}
    s_waitcnt lgkmcnt(0)
    """)
    srd(A, S_WS, 6, 7, 0, WS_SIZE)
    srd(A, S_X, 4, 5, 0, 2621440)
    A(f"""
    v_mov_b32 v199, 0
    s_mov_b32 s52, {WS_FL}
    s_cmp_lg_u32 s2, {NONWG}
    s_cbranch_scc1 k_non0
    buffer_load_dword v197, v199, {WS}, s52 offen sc1
    k_non0:
    """)
    for i in range(5):
        A(f"buffer_load_dwordx2 v[{200+2*i}:{201+2*i}], v{VROW}, s[{S_X}:{S_X+3}], 0 offen offset:{64*i}")
    srd(A, S_DBG, 70, 71, 0, 256)
    srd(A, S_WR, 60, 61, 0, 1280)
    for i in range(5):
        A(f"buffer_load_dwordx2 v[{VW+2*i}:{VW+2*i+1}], v{VCH}, s[{S_WR}:{S_WR+3}], 0 offen offset:{64*i}")
    srd(A, S_X, 68, 69, 0, 2621440)
    def small_clears():
        A(f"""
        s_mov_b64 exec, 0x3fffffff
        s_mul_i32 s52, s2, 480
        s_add_u32 s52, s52, {WS_SM}
        buffer_store_dwordx4 v[40:43], v44, {WS}, s52 offen sc1
        s_mov_b64 exec, 0xffff
        v_mov_b32 v46, 0
        v_mov_b32 v47, 0
        v_mov_b32 v48, 0
        v_mov_b32 v49, 0
        v_lshrrev_b32 v45, 1, v1
        v_lshlrev_b32 v45, 13, v45
        v_and_b32 v50, 1, v1
        v_lshl_add_u32 v45, v50, 4, v45
        s_lshl_b32 s52, s{S_TB}, 5
        s_add_u32 s52, s52, {WS_KEY}
        buffer_store_dwordx4 v[46:49], v45, {WS}, s52 offen sc1
        s_mov_b64 exec, -1
        """)
    def publish_flag(tag):
        A(f"""
        s_cmp_lg_u32 s3, 0
        s_cbranch_scc1 {tag}_w
        s_waitcnt vmcnt(0)
        v_cmp_eq_u32 vcc, 0, v198
        s_mov_b64 s[54:55], vcc
        s_cmp_eq_u64 vcc, 0
        s_cbranch_scc1 {tag}_have
        """)
        masked_poll(A, [dict(mask=54, loads=[f"buffer_load_dword v198, v199, s[{S_DBG}:{S_DBG+3}], 0 offen sc1"], regs=[198], tmp=197, sent="min")], 53, 1, tag + "non")
        A(f"""
        {tag}_have:
        v_mov_b32 v197, {L_NON}
        ds_write_b32 v197, v198
        s_waitcnt lgkmcnt(0)
        {tag}_w:
        s_waitcnt vmcnt(0)
        s_barrier
        s_cmp_lg_u32 s3, 0
        s_cbranch_scc1 {tag}_done
        v_lshlrev_b32 v197, 10, v1
        s_lshl_b32 s52, s2, 2
        s_add_u32 s52, s52, {WS_FL}
        s_mov_b64 exec, 0xff
        buffer_store_dword v198, v197, {WS}, s52 offen sc1
        s_mov_b64 exec, -1
        {tag}_done:
        v_mov_b32 v197, {L_NON}
        ds_read_b32 v199, v197
        """)
    A(f"""
    v_mov_b32 v40, -1
    v_mov_b32 v41, -1
    v_mov_b32 v42, -1
    v_mov_b32 v43, -1
    v_lshlrev_b32 v44, 4, v1
    s_cmp_ge_u32 s2, 160
    s_cbranch_scc1 k_p0_ffn
    """)
    srd(A, 24, 44, 45, 0, 245760)
    srd(A, 28, 46, 47, 0, 245760)
    srd(A, 32, 48, 49, 0, 245760)
    srd(A, 36, 50, 51, 0, 245760)
    A(f"""
    s_lshl_b32 s{S_D}, s2, 2
    s_add_u32 s{S_D}, s{S_D}, s3
    s_mul_i32 s{S_B}, s3, {WAVE_LDS}
    s_add_u32 s{S_B}, s{S_B}, {LBASE}
    s_add_u32 s{S_K}, s{S_B}, {KOFF}
    s_lshl_b32 s{S_AO}, s{S_D}, 12
    s_add_u32 s{S_AO}, s{S_AO}, {WS_AT}
    s_mul_i32 s52, s{S_D}, 384
    v_lshlrev_b32 v3, 1, v1
    s_and_b32 s53, s{S_D}, 0xfffffffe
    s_lshl_b32 s53, s53, 1
    s_load_dword s42, s[56:57], s53
    s_load_dword s{S_DS}, s[58:59], s53
    """)
    for p in range(3):
        for j in range(4):
            A(f"buffer_load_ushort v{100+4*p+j}, v3, s[{24+4*j}:{27+4*j}], s52 offen offset:{128*p}")
    A(f"""
    v_lshlrev_b32 v8, 3, v1
    v_mov_b32 v112, 0
    v_mov_b32 v113, 0
    v_mov_b32 v114, 0
    v_mov_b32 v115, 0
    v_cmp_gt_u32 vcc, 48, v1
    s_and_saveexec_b64 s[54:55], vcc
    buffer_load_dwordx2 v[112:113], v8, s[32:35], s52 offen
    buffer_load_dwordx2 v[114:115], v8, s[36:39], s52 offen
    s_mov_b64 exec, s[54:55]
    s_waitcnt vmcnt(19)
    """)
    for i in range(4):
        A(f"buffer_store_dwordx4 v[40:43], v44, {WS}, s{S_AO} offen offset:{1024*i} sc1")
    A("s_branch k_p0_join")
    A("k_p0_ffn:")
    A("s_sub_u32 s38, s2, 160")
    A("s_waitcnt vmcnt(5)")
    A("k_p0_join:")
    A(f"""
    s_cmp_lg_u32 s2, {NONWG}
    s_cbranch_scc1 k_non1
    s_cmp_lg_u32 s3, 0
    s_cbranch_scc1 k_non1
    v_add_u32 v197, 1, v197
    v_max_u32 v197, 1, v197
    s_mov_b64 exec, 1
    buffer_store_dword v197, v199, s[{S_DBG}:{S_DBG+3}], 0 offen sc1
    s_mov_b64 exec, -1
    k_non1:
    """)
    stamp(A, 1)
    A("s_cmp_lg_u32 s3, 0")
    A("s_cbranch_scc1 k_p0_j2")
    small_clears()
    A("k_p0_j2:")
    for i in range(10):
        unpack_bf16(A, 200 + i, VXF + 2*i, VXF + 2*i + 1)
    ln_stats(A, VXF)
    for i in range(10):
        a_, b_ = VXF + 2*i, VXF + 2*i + 1
        t = 86 + 2 * (i % 2)
        A(f"v_pk_add_f32 v[{t}:{t+1}], v[{a_}:{b_}], v[78:79] op_sel_hi:[1,0] neg_lo:[0,1] neg_hi:[0,1]")
        rnd(A, t, t); rnd(A, t+1, t+1)
        A(f"v_pk_mul_f32 v[{t}:{t+1}], v[{t}:{t+1}], v[80:81] op_sel_hi:[1,0]")
        rnd(A, t, t); rnd(A, t+1, t+1)
        A(f"v_cvt_pk_f16_f32 v{30+i}, v{t}, v{t+1}")
    A(f"""
    s_movk_i32 s52, {TSTR}
    v_mul_lo_u32 v6, v{VTOK}, s52
    v_add_u32 v6, v6, v{VCH}
    """)
    for i in range(5):
        A(f"ds_write_b64 v6, v[{30+2*i}:{31+2*i}] offset:{L_AT + 64*i}")
    A(f"""
    v_bfe_u32 v3, v1, 2, 2
    v_mul_lo_u32 v3, v3, s52
    v_lshrrev_b32 v4, 4, v1
    v_lshl_add_u32 v3, v4, 5, v3
    v_and_b32 v4, 3, v1
    v_lshl_add_u32 v3, v4, 3, v3
    s_lshl_b32 s53, s3, 7
    v_add_u32 v3, s53, v3
    v_lshlrev_b32 v4, 4, v0
    s_mul_i32 s52, s{S_TB}, 10240
    s_add_u32 s52, s52, {WS_UB}
    s_add_u32 s53, s52, 4096
    s_add_u32 s54, s52, 8192
    s_waitcnt lgkmcnt(0)
    s_barrier
    ds_read_b64_tr_b16 v[8:9], v3 offset:{L_AT}
    ds_read_b64_tr_b16 v[10:11], v3 offset:{L_AT + 4*TSTR}
    ds_read_b64_tr_b16 v[12:13], v3 offset:{L_AT + 512}
    ds_read_b64_tr_b16 v[14:15], v3 offset:{L_AT + 4*TSTR + 512}
    ds_read_b64_tr_b16 v[16:17], v3 offset:{L_AT + 1024}
    ds_read_b64_tr_b16 v[18:19], v3 offset:{L_AT + 4*TSTR + 1024}
    s_waitcnt lgkmcnt(0)
    buffer_store_dwordx4 v[8:11], v4, {WS}, s52 offen sc1
    buffer_store_dwordx4 v[12:15], v4, {WS}, s53 offen sc1
    s_cmp_ge_u32 s3, 2
    s_cbranch_scc1 k_ln1_skip
    buffer_store_dwordx4 v[16:19], v4, {WS}, s54 offen sc1
    k_ln1_skip:
    s_cmp_lg_u32 s3, 0
    s_cbranch_scc1 k_non2
    buffer_load_dword v198, v199, s[{S_DBG}:{S_DBG+3}], 0 offen sc1
    k_non2:
    """)
    stamp(A, 2)
    A("s_cmp_lt_u32 s2, 160")
    A("s_cbranch_scc1 k_conv_role")
    publish_flag("ff")
    A("s_waitcnt lgkmcnt(0)")
    A(f"v_readfirstlane_b32 s{S_NON}, v199")
    stamp(A, 3)
    A("s_branch k_ffn_pre")
    A("k_conv_role:")
    A("s_waitcnt vmcnt(6)")
    def flag_poll(sleep, first_issued=False):
        L = newlbl("flg")
        if not first_issued:
            flag_setup()
        A(f"s_mov_b32 s53, 0")
        if first_issued:
            A(f"s_branch {L}_chk")
        A(f"{L}:")
        A(f"s_mov_b64 exec, s[54:55]")
        A(f"buffer_load_dwordx4 v[192:195], v196, {WS}, s51 offen sc1")
        A("s_mov_b64 exec, -1")
        A(f"{L}_chk:")
        A("s_waitcnt vmcnt(0)")
        A(f"v_xor_b32 v192, s{S_NON}, v192")
        A(f"v_xor_b32 v193, s{S_NON}, v193")
        A(f"v_xor_b32 v194, s{S_NON}, v194")
        A(f"v_xor_b32 v195, s{S_NON}, v195")
        A("v_or3_b32 v197, v192, v193, v194")
        A("v_or_b32 v197, v197, v195")
        A("v_cmp_ne_u32 vcc, 0, v197")
        A("s_and_b64 s[54:55], s[54:55], vcc")
        A("s_cmp_eq_u64 s[54:55], 0")
        A(f"s_cbranch_scc1 {L}_done")
        A("s_add_u32 s53, s53, 1")
        A(f"s_sleep {sleep}")
        A(f"s_cmp_lt_u32 s53, {POLL_LIMIT}")
        A(f"s_cbranch_scc1 {L}")
        A(f"{L}_done:")
    def flag_setup():
        A(f"""
        v_lshlrev_b32 v196, 4, v1
        s_and_b32 s51, s2, 7
        s_lshl_b32 s51, s51, 10
        s_add_u32 s51, s51, {WS_FL}
        s_mov_b64 s[54:55], -1
        """)
    def hook0():
        publish_flag("cf")
        stamp(A, 3)
    G = 200
    def gather_issue():
        A(f"""
        v_lshrrev_b32 v216, 2, v1
        s_movk_i32 s52, 10240
        v_mul_lo_u32 v217, v216, s52
        v_and_b32 v218, 3, v1
        v_lshl_add_u32 v217, v218, 4, v217
        s_mul_i32 s52, s3, {64*10240}
        s_lshl_b32 s53, s2, 6
        s_add_u32 s52, s52, s53
        s_add_u32 s52, s52, {WS_UB}
        """)
        for i in range(4):
            A(f"buffer_load_dwordx4 v[{G+4*i}:{G+4*i+3}], v217, {WS}, s52 offen sc1")
            if i < 3: A(f"s_add_u32 s52, s52, {16*10240}")
        A(f"""
        s_movk_i32 s52, {WAVE_LDS}
        v_mul_lo_u32 v218, v218, s52
        v_lshl_add_u32 v218, v216, 4, v218
        s_lshl_b32 s52, s3, 10
        s_add_u32 s52, s52, {LBASE + 32}
        v_add_u32 v218, s52, v218
        """)
    def flag_check():
        A(f"v_xor_b32 v192, s{S_NON}, v192")
        A(f"v_xor_b32 v193, s{S_NON}, v193")
        A(f"v_xor_b32 v194, s{S_NON}, v194")
        A(f"v_xor_b32 v195, s{S_NON}, v195")
        A("v_or3_b32 v197, v192, v193, v194")
        A("v_or_b32 v197, v197, v195")
        A("v_cmp_ne_u32 vcc, 0, v197")
        A("s_and_b64 s[54:55], s[54:55], vcc")
    def p1_hook():
        A("s_waitcnt lgkmcnt(15)")
        A(f"v_readfirstlane_b32 s{S_NON}, v199")
        flag_setup()
        A(f"buffer_load_dwordx4 v[192:195], v196, {WS}, s51 offen sc1")
    def mid_hook():
        A("s_mov_b32 s50, 0")
        A("s_waitcnt vmcnt(0)")
        flag_check()
        A("s_cmp_eq_u64 s[54:55], 0")
        A("s_cbranch_scc0 kg_noearly")
        gather_issue()
        A("s_mov_b32 s50, 1")
        A("s_branch kg_early_done")
        A("kg_noearly:")
        A(f"s_mov_b64 exec, s[54:55]")
        A(f"buffer_load_dwordx4 v[192:195], v196, {WS}, s51 offen sc1")
        A("s_mov_b64 exec, -1")
        A("kg_early_done:")
    def tail_hook():
        stamp(A, 4)
        A("s_cmp_eq_u32 s50, 1")
        A("s_cbranch_scc1 kg_tail_done")
        flag_poll(1, first_issued=True)
        gather_issue()
        A("kg_tail_done:")
        stamp(A, 5)
    kgen(A, mid_hook, tail_hook, hook0, p1_hook)
    A(f"""
    v_lshlrev_b32 v9, 4, v1
    v_add_u32 v9, s{S_B}, v9
    v_add_u32 v10, 4096, v9
    v_cmp_gt_u32 vcc, 2, v1
    v_and_b32 v21, 15, v1
    v_lshrrev_b32 v22, 4, v1
    v_cndmask_b32 v10, v10, v9, vcc
    v_add_u32 v23, 1, v21
    v_and_b32 v24, 3, v23
    s_movk_i32 s53, 4160
    v_mul_lo_u32 v24, v24, s53
    v_lshrrev_b32 v23, 2, v23
    v_lshl_add_u32 v24, v23, 3, v24
    v_lshl_add_u32 v24, v22, 4, v24
    v_add_u32 v24, s{S_B}, v24
    v_lshlrev_b32 v25, 5, v21
    v_sub_u32 v25, {2*2032 - 64*56}, v25
    v_lshl_add_u32 v25, v22, 4, v25
    v_add_u32 v25, s{S_K}, v25
    v_lshlrev_b32 v26, 5, v21
    v_lshl_add_u32 v27, v22, 3, v26
    v_add_u32 v27, 32, v27
    v_add_u32 v27, s{S_B}, v27
    v_lshrrev_b32 v28, 1, v22
    v_lshl_add_u32 v26, v28, 4, v26
    v_and_b32 v28, 1, v22
    v_lshlrev_b32 v28, 30, v28
    v_or_b32 v26, v26, v28
    s_waitcnt lgkmcnt(0)
    s_barrier
    s_mov_b64 exec, 0xf
    ds_write_b128 v10, v[16:19]
    s_mov_b64 exec, -1
    """)
    for i in range(4):
        A(f"s_waitcnt vmcnt({3-i})")
        A(f"ds_write_b128 v218, v[{G+4*i}:{G+4*i+3}] offset:{256*i}")
    R = 128
    A(f"""
    v_mov_b32 v{R+32}, 0
    v_mov_b32 v{R+33}, 0
    v_mov_b32 v{R+34}, 0
    v_mov_b32 v{R+35}, 0
    s_waitcnt lgkmcnt(0)
    s_barrier
    """)
    stamp(A, 6)
    for i in range(4):
        A(f"ds_read_b128 v[{R+8*i}:{R+8*i+3}], v9 offset:{32 + 1024*i}")
        A(f"ds_read_b64 v[{R+8*i+4}:{R+8*i+5}], v9 offset:{48 + 1024*i}")
    A(f"ds_read_b64 v[{R+36}:{R+37}], v9 offset:16")
    nw = 0
    for i in range(5):
        r = R + 8*i
        reads_after = (2 * (3 - i) + 1) if i < 4 else 0
        A(f"s_waitcnt lgkmcnt({min(15, reads_after + nw)})")
        T1, T2, T3 = 176, 180, 184
        if i % 2: T1, T2, T3 = 188, 192, 196
        A(f"v_alignbit_b32 v{T1}, v{r+1}, v{r}, 16")
        A(f"v_alignbit_b32 v{T1+1}, v{r+2}, v{r+1}, 16")
        A(f"v_alignbit_b32 v{T1+2}, v{r+3}, v{r+2}, 16")
        A(f"v_alignbit_b32 v{T1+3}, v{r+4}, v{r+3}, 16")
        off = (32 + 1024*i) if i < 4 else 0
        if i == 4: A("s_mov_b64 exec, 3")
        A(f"ds_write_b128 v9, v[{T1}:{T1+3}] offset:{CB[1] + off}")
        A(f"v_mov_b32 v{T2}, v{r+1}")
        A(f"v_mov_b32 v{T2+1}, v{r+2}")
        A(f"v_mov_b32 v{T2+2}, v{r+3}")
        A(f"v_mov_b32 v{T2+3}, v{r+4}")
        A(f"ds_write_b128 v9, v[{T2}:{T2+3}] offset:{CB[2] + off}")
        A(f"v_mov_b32 v{T3}, v{T1+1}")
        A(f"v_mov_b32 v{T3+1}, v{T1+2}")
        A(f"v_mov_b32 v{T3+2}, v{T1+3}")
        A(f"v_alignbit_b32 v{T3+3}, v{r+5}, v{r+4}, 16")
        A(f"ds_write_b128 v9, v[{T3}:{T3+3}] offset:{CB[3] + off}")
        if i == 4: A("s_mov_b64 exec, -1")
        nw += 3
    A("s_waitcnt lgkmcnt(0)")
    stamp(A, 12)
    def a_setup():
        A(f"""
        v_lshlrev_b32 v3, 12, v0
        s_lshl_b32 s43, s{S_T0}, 1
        s_add_u32 s43, s43, {WS_AT}
        s_add_u32 s44, s43, {256*4096}
        s_add_u32 s45, s43, {512*4096}
        s_mov_b64 s[54:55], -1
        s_mov_b64 s[56:57], -1
        s_mov_b64 s[58:59], -1
        """)
    asets = [dict(mask=54, loads=[f"buffer_load_dwordx4 v[8:11], v3, {WS}, s43 offen sc1"], regs=[8,9,10,11], tmp=20),
             dict(mask=56, loads=[f"buffer_load_dwordx4 v[12:15], v3, {WS}, s44 offen sc1"], regs=[12,13,14,15], tmp=20),
             dict(mask=58, loads=[f"buffer_load_dwordx4 v[16:19], v3, {WS}, s45 offen sc1"], regs=[16,17,18,19], tmp=20)]
    def mask3():
        L = newlbl("m3")
        A(f"s_cmp_lt_u32 s3, 2")
        A(f"s_cbranch_scc1 {L}")
        A("s_mov_b64 s[58:59], 0")
        A(f"{L}:")
    a_setup()
    def a_hook():
        for st in asets:
            for ld in st["loads"]: A(ld.replace(" sc1", APLAIN))
    nst = conv_main(A, AHOOK, a_hook if AHOOK >= 0 else None)
    stamp(A, 7)
    if CDELAY: A(f"s_sleep {CDELAY}")
    mask3()
    masked_poll(A, asets, 46, ASLEEP, "apollc", first=(("issued", nst) if AHOOK >= 0 else None))
    cnt_stamp(A, 0, 46)
    A("s_branch k_ln2c")
    A("k_ffn_pre:")
    srd(A, 24, 62, 63, 0, 640*3072)
    srd(A, 28, 64, 65, 0, 640*3072)
    srd(A, 32, 66, 67, 0, 1536*1280)
    if WPF:
        A(f"""
        s_and_b32 s39, s38, 7
        s_lshr_b32 s42, s38, 3
        s_mul_i32 s52, s42, 160
        v_add_u32 v8, s52, v0
        v_mul_u32_u24 v9, 0x5556, v8
        v_lshrrev_b32 v9, 16, v9
        v_mul_u32_u24 v10, 3, v9
        v_sub_u32 v10, v8, v10
        v_mul_u32_u24 v9, 3072, v9
        v_lshl_add_u32 v9, v10, 7, v9
        s_mul_i32 s52, s39, 384
        v_mov_b32 v11, 0x7fffffff
        v_cmp_gt_u32 vcc, 160, v0
        s_lshl_b32 s53, s42, 8
        v_add_u32 v12, s53, v0
        v_cndmask_b32 v9, v11, v9, vcc
        buffer_load_dword v160, v9, s[24:27], s52 offen
        buffer_load_dword v161, v9, s[28:31], s52 offen
        v_lshrrev_b32 v10, 1, v12
        v_mul_u32_u24 v10, 1280, v10
        v_and_b32 v12, 1, v12
        v_lshl_add_u32 v10, v12, 7, v10
        s_mul_i32 s52, s39, 160
        s_and_b32 s52, s52, 0xffffff80
        buffer_load_dword v162, v10, s[32:35], s52 offen
        """)
    A(f"""
    s_sub_u32 s38, s2, 160
    s_and_b32 s39, s38, 7
    s_lshr_b32 s42, s38, 3
    s_mul_i32 s36, s39, 12
    s_add_u32 s36, s36, s42
    s_mul_i32 s37, s39, 10
    s_add_u32 s37, s37, s42
    v_lshrrev_b32 v3, 1, v0
    s_movk_i32 s46, 3072
    v_mul_lo_u32 v3, v3, s46
    v_and_b32 v4, 1, v0
    v_lshl_add_u32 v3, v4, 4, v3
    s_lshl_b32 s43, s36, 5
    s_lshl_b32 s44, s3, 10
    """)
    for it in range(5):
        A(f"s_add_u32 s45, s43, {it*128*3072}")
        A(f"s_add_u32 s47, s44, {L_G + it*4096}")
        A("s_mov_b32 m0, s47")
        A("s_nop 0")
        A("buffer_load_dwordx4 v3, s[24:27], s45 offen lds")
        A(f"s_add_u32 s47, s44, {L_U + it*4096}")
        A("s_mov_b32 m0, s47")
        A("s_nop 0")
        A("buffer_load_dwordx4 v3, s[28:31], s45 offen lds")
    A(f"""
    s_cmp_ge_u32 s38, 80
    s_cbranch_scc1 k_ffn_nowd
    s_movk_i32 s46, 1280
    v_mul_lo_u32 v3, v0, s46
    s_lshl_b32 s43, s37, 4
    """)
    for it in range(6):
        A(f"s_add_u32 s45, s43, {it*256*1280}")
        A(f"s_add_u32 s47, s44, {L_WD + it*4096}")
        A("s_mov_b32 m0, s47")
        A("s_nop 0")
        A("buffer_load_dwordx4 v3, s[32:35], s45 offen lds")
    A("k_ffn_nowd:")
    flag_poll(8)
    stamp(A, 5)
    if CANARY:
        A(f"""
        s_cmp_lg_u32 s3, 0
        s_cbranch_scc1 k_can_done
        v_lshlrev_b32 v3, 12, v0
        s_and_b32 s43, s{S_TB}, 31
        s_add_u32 s43, s43, {32*CTILE}
        s_lshl_b32 s43, s43, 4
        s_add_u32 s43, s43, {WS_AT}
        s_mov_b64 s[54:55], -1
        """)
        masked_poll(A, [dict(mask=54, loads=[f"buffer_load_dwordx4 v[8:11], v3, {WS}, s43 offen sc1"], regs=[8, 9, 10, 11], tmp=12)], 46, CSLEEP, "can")
        cnt_stamp(A, 2, 46)
        A("k_can_done:")
        A("s_barrier")
    stamp(A, 7)
    A("s_branch k_ln2b")
    A("k_ln2b:")
    a_setup()
    mask3()
    masked_poll(A, asets, 46, FSLEEP, "apoll", first=("plain" if (APLAIN == "" and CANARY) else None))
    cnt_stamp(A, 0, 46)
    A("k_ln2c:")
    A(f"""
    v_lshlrev_b32 v3, 4, v0
    ds_write_b128 v3, v[8:11] offset:{L_AT}
    ds_write_b128 v3, v[12:15] offset:{L_AT+4096}
    s_cmp_ge_u32 s3, 2
    s_cbranch_scc1 k_ln2_w3
    ds_write_b128 v3, v[16:19] offset:{L_AT+8192}
    k_ln2_w3:
    v_lshrrev_b32 v8, 4, v1
    v_lshlrev_b32 v8, 3, v8
    v_bfe_u32 v9, v1, 1, 1
    v_lshl_add_u32 v8, v9, 2, v8
    v_bfe_u32 v9, v1, 2, 2
    v_add_u32 v8, v8, v9
    s_mul_i32 s47, s3, 160
    v_add_u32 v8, s47, v8
    v_lshlrev_b32 v8, 4, v8
    v_and_b32 v9, 1, v1
    v_lshl_add_u32 v8, v9, 3, v8
    s_waitcnt lgkmcnt(0)
    s_barrier
    """)
    stamp(A, 8)
    for i in range(5):
        A(f"ds_read_b64_tr_b16 v[{30+2*i}:{31+2*i}], v8 offset:{L_AT+512*i}")
    H = 40
    for i in range(10):
        a, b = H + 2*i, H + 2*i + 1
        if i % 2 == 0: A(f"s_waitcnt lgkmcnt({4 - i//2})")
        unpack_bf16(A, 30 + i, a, b)
        A(f"v_pk_add_f32 v[{a}:{b}], v[{a}:{b}], v[{VXF+2*i}:{VXF+2*i+1}]")
        rnd(A, a, a); rnd(A, b, b)
    ln_stats(A, H)
    A("v_mov_b32 v82, 0")
    A("v_mov_b32 v83, 0")
    for i in range(10):
        a, b = H + 2*i, H + 2*i + 1
        t = 86 + 2 * (i % 2)
        A(f"v_pk_add_f32 v[{t}:{t+1}], v[{a}:{b}], v[78:79] op_sel_hi:[1,0] neg_lo:[0,1] neg_hi:[0,1]")
        rnd(A, t, t); rnd(A, t+1, t+1)
        A(f"v_pk_mul_f32 v[{t}:{t+1}], v[{t}:{t+1}], v[80:81] op_sel_hi:[1,0]")
        A(f"v_cvt_pk_bf16_f32 v{30+i}, v{t}, v{t+1}")
        A(f"v_dot2_f32_bf16 v{82 + i % 2}, v{30+i}, v{VW+i}, v{82 + i % 2}")
    A("s_nop 2")
    A("v_add_f32 v82, v82, v83")
    red8(A, 82, 83)
    A(f"""
    v_lshlrev_b32 v76, 2, v{VTOK}
    v_add_u32 v76, {L_RP}, v76
    s_lshl_b32 s47, s3, 5
    v_add_u32 v77, s47, v76
    v_cmp_gt_u32 vcc, 8, v1
    s_and_saveexec_b64 s[48:49], vcc
    ds_write_b32 v77, v82
    s_mov_b64 exec, s[48:49]
    s_waitcnt lgkmcnt(0)
    s_barrier
    ds_read_b32 v78, v76
    ds_read_b32 v79, v76 offset:32
    ds_read_b32 v80, v76 offset:64
    ds_read_b32 v81, v76 offset:96
    s_waitcnt lgkmcnt(0)
    v_add_f32 v78, v78, v79
    v_add_f32 v80, v80, v81
    v_add_f32 v78, v78, v80
    v_cvt_pk_bf16_f32 v78, v78, v78
    v_and_b32 v78, 0xffff, v78
    v_xor_b32 v79, 0xffff, v78
    v_or_b32 v80, 0x8000, v78
    v_cmp_lt_u32 vcc, 0x7fff, v78
    v_lshlrev_b32 v87, 16, v78
    s_nop 0
    v_cndmask_b32 v78, v80, v79, vcc
    v_lshlrev_b32 v78, 16, v78
    v_add_u32 v79, s{S_T0}, v{VTOK}
    v_sub_u32 v80, 0xffff, v79
    v_or_b32 v86, v78, v80
    s_cmp_lg_u32 s3, 0
    s_cbranch_scc1 k_nokey
    v_lshlrev_b32 v80, 2, v79
    v_lshrrev_b32 v81, 3, v1
    v_lshl_add_u32 v80, v81, 13, v80
    s_mov_b32 s47, {WS_KEY}
    buffer_store_dword v86, v80, {WS}, s47 offen sc1
    k_nokey:
    """)
    stamp(A, 9)
    A(f"""
    v_lshlrev_b32 v9, 5, v0
    s_and_b32 s47, s2, {KREP-1}
    s_lshl_b32 s47, s47, 13
    s_add_u32 s47, s47, {WS_KEY}
    s_mov_b64 s[54:55], -1
    """)
    for i in range(10):
        a, b = H + 2*i, H + 2*i + 1
        unpack_bf16(A, 30 + i, 70, 71)
        A(f"v_pk_add_f32 v[70:71], v[70:71], v[{a}:{b}]")
        A(f"v_cvt_pk_bf16_f32 v{10+i}, v70, v71")
    masked_poll(A, [dict(mask=54, loads=[f"buffer_load_dwordx4 v[90:93], v9, {WS}, s47 offen sc1", f"buffer_load_dwordx4 v[94:97], v9, {WS}, s47 offen offset:16 sc1"],
                         regs=list(range(90, 98)), tmp=98, sent="min")], 46, KSLEEP, "kpoll")
    cnt_stamp(A, 1, 46)
    stamp(A, 10)
    A(f"""
    s_mov_b32 s50, -1
    s_mov_b64 s[52:53], 0
    s_mov_b32 s51, 0
    k_own:
    v_cmp_gt_u32 vcc, s50, v86
    s_nop 1
    v_cndmask_b32 v98, 0, v86, vcc
    """)
    for pat in ("quad_perm:[1,0,3,2]", "quad_perm:[2,3,0,1]", "row_half_mirror"):
        A("s_nop 1")
        A(f"v_max_u32_dpp v98, v98, v98 {pat} {DPP}")
    A(f"""
    s_nop 0
    v_readfirstlane_b32 s54, v98
    s_nop 3
    s_cmp_eq_u32 s54, 0
    s_cbranch_scc1 k_own_done
    s_mov_b32 s55, 0
    """)
    for r in range(8):
        A(f"v_cmp_lt_u32 vcc, s54, v{90+r}")
        A(f"s_bcnt1_i32_b64 s56, vcc")
        A(f"s_add_u32 s55, s55, s56")
    A(f"""
    s_lshl_b32 s56, s51, 4
    s_lshl_b32 s57, s3, 2
    s_add_u32 s57, s57, s56
    s_add_u32 s57, s57, {L_CNT}
    v_mov_b32 v99, s57
    v_mov_b32 v100, s55
    s_add_u32 s56, s56, {L_CNT}
    v_mov_b32 v101, s56
    s_mov_b64 exec, 1
    ds_write_b32 v99, v100
    s_mov_b64 exec, -1
    s_waitcnt lgkmcnt(0)
    s_barrier
    ds_read_b128 v[102:105], v101
    s_waitcnt lgkmcnt(0)
    v_add_u32 v102, v102, v103
    v_add3_u32 v102, v102, v104, v105
    s_nop 0
    v_readfirstlane_b32 s55, v102
    s_nop 3
    s_cmp_ge_u32 s55, 8
    s_cbranch_scc1 k_own_done
    v_cmp_eq_u32 vcc, s54, v86
    s_or_b64 s[52:53], s[52:53], vcc
    s_and_saveexec_b64 s[48:49], vcc
    s_mul_i32 s56, s55, 1280
    s_add_u32 s57, s56, {WS_HS}
    s_add_u32 s56, s56, {WS_ZS}
    """)
    for i in range(5):
        A(f"buffer_store_dwordx2 v[{30+2*i}:{31+2*i}], v{VCH}, {WS}, s56 offen offset:{64*i} sc1")
    for i in range(10):
        A(f"v_cvt_pk_bf16_f32 v{106+i}, v{H+2*i}, v{H+2*i+1}")
    for i in range(5):
        A(f"buffer_store_dwordx2 v[{106+2*i}:{107+2*i}], v{VCH}, {WS}, s57 offen offset:{64*i} sc1")
    A(f"""
    s_cmp_lg_u32 s3, 0
    s_cbranch_scc1 k_own_nometa
    v_cmp_gt_u32 vcc, 8, v1
    s_and_b64 exec, exec, vcc
    v_mul_f32 v99, {hex(F_LOG2E)}, v87
    v_exp_f32 v99, -v99
    s_nop 0
    v_add_f32 v99, 1.0, v99
    v_rcp_f32 v99, v99
    s_nop 0
    v_cvt_pk_bf16_f32 v99, 0, v99
    s_lshl_b32 s56, s55, 2
    s_add_u32 s56, s56, {WS_META}
    v_mov_b32 v100, 0
    buffer_store_dword v79, v100, {WS}, s56 offen sc1
    buffer_store_dword v99, v100, {WS}, s56 offen offset:32 sc1
    k_own_nometa:
    s_mov_b64 exec, -1
    s_mov_b32 s50, s54
    s_xor_b32 s51, s51, 1
    s_branch k_own
    k_own_done:
    """)
    stamp(A, 11)
    A("s_andn2_b64 exec, exec, s[52:53]")
    for i in range(5):
        A(f"buffer_store_dwordx2 v[{10+2*i}:{11+2*i}], v{VROW}, s[{S_X}:{S_X+3}], 0 offen offset:{64*i} {OUTF}")
    A("s_mov_b64 exec, -1")
    A("s_cmp_lt_u32 s2, 160")
    A("s_cbranch_scc1 k_end")
    A(f"""
    v_lshrrev_b32 v7, 4, v1
    s_movk_i32 s46, 1280
    v_mul_lo_u32 v9, v{VTOK}, s46
    v_lshl_add_u32 v9, v7, 4, v9
    s_mul_i32 s47, s3, 320
    s_add_u32 s47, s47, {WS_ZS}
    v_lshlrev_b32 v10, 3, v7
    v_bfe_u32 v11, v1, 2, 2
    v_add_u32 v10, v10, v11
    v_lshlrev_b32 v10, 5, v10
    v_and_b32 v11, 3, v1
    v_lshl_add_u32 v10, v11, 3, v10
    s_mul_i32 s44, s3, {5*32*32}
    s_add_u32 s44, s44, {L_G}
    v_add_u32 v10, s44, v10
    """)
    for i in range(5):
        A(f"ds_read_b64_tr_b16 v[{120+4*i}:{121+4*i}], v10 offset:{1024*i}")
        A(f"ds_read_b64_tr_b16 v[{122+4*i}:{123+4*i}], v10 offset:{1024*i + 128}")
        A(f"ds_read_b64_tr_b16 v[{140+4*i}:{141+4*i}], v10 offset:{L_U - L_G + 1024*i}")
        A(f"ds_read_b64_tr_b16 v[{142+4*i}:{143+4*i}], v10 offset:{L_U - L_G + 1024*i + 128}")
        if i % 2 == 1: A("s_waitcnt lgkmcnt(0)")
    A("s_mov_b64 s[54:55], -1")
    masked_poll(A, [dict(mask=54, loads=[f"buffer_load_dwordx4 v[{40+4*i}:{43+4*i}], v9, {WS}, s47 offen offset:{64*i} sc1" for i in range(5)],
                         regs=list(range(40, 60)), tmp=60)], 46, 1, "zpoll")
    cnt_stamp(A, 3, 46)
    stamp(A, 12)
    A("s_waitcnt lgkmcnt(0)")
    for i in range(5):
        c = "0" if i == 0 else "v[80:83]"
        A(f"v_mfma_f32_16x16x32_bf16 v[80:83], v[{40+4*i}:{43+4*i}], v[{120+4*i}:{123+4*i}], {c}")
        c = "0" if i == 0 else "v[84:87]"
        A(f"v_mfma_f32_16x16x32_bf16 v[84:87], v[{40+4*i}:{43+4*i}], v[{140+4*i}:{143+4*i}], {c}")
    A(f"""
    v_lshlrev_b32 v11, 4, v1
    s_lshl_b32 s44, s3, 11
    v_add_u32 v12, s44, v11
    s_lshl_b32 s44, s3, 2
    v_add_u32 v11, s44, v11
    s_nop 5
    ds_write_b128 v12, v[80:83] offset:{L_RED}
    ds_write_b128 v12, v[84:87] offset:{L_RED+1024}
    s_waitcnt lgkmcnt(0)
    s_barrier
    """)
    for w in range(4):
        A(f"ds_read_b32 v{40+w}, v11 offset:{L_RED + 2048*w}")
        A(f"ds_read_b32 v{44+w}, v11 offset:{L_RED + 2048*w + 1024}")
    A(f"""
    v_and_b32 v13, 15, v1
    v_lshlrev_b32 v12, 1, v13
    v_lshrrev_b32 v7, 4, v1
    s_movk_i32 s46, {4*3072}
    v_mul_lo_u32 v14, v7, s46
    v_add_u32 v12, v12, v14
    s_lshl_b32 s44, s36, 5
    s_mul_i32 s45, s3, 3072
    s_add_u32 s44, s44, s45
    s_add_u32 s44, s44, {WS_HID}
    s_waitcnt lgkmcnt(0)
    v_add_f32 v40, v40, v41
    v_add_f32 v42, v42, v43
    v_add_f32 v44, v44, v45
    v_add_f32 v46, v46, v47
    v_add_f32 v40, v40, v42
    v_add_f32 v44, v44, v46
    v_cvt_pk_bf16_f32 v40, 0, v40
    v_cvt_pk_bf16_f32 v44, 0, v44
    v_mul_f32 v52, {hex(F_LOG2E)}, v40
    v_exp_f32 v52, -v52
    s_nop 0
    v_add_f32 v52, 1.0, v52
    v_rcp_f32 v52, v52
    s_nop 0
    v_mul_f32 v52, v52, v40
    v_cvt_pk_bf16_f32 v52, 0, v52
    v_mul_f32 v52, v52, v44
    v_cvt_pk_bf16_f32 v52, v52, v52
    s_mov_b32 s58, 0x05040100
    s_nop 0
    v_mov_b32_dpp v53, v52 quad_perm:[1,1,3,3] {DPP}
    v_perm_b32 v56, v53, v52, s58
    s_nop 1
    v_mov_b32_dpp v57, v56 row_shl:2 {DPP}
    v_mov_b32_dpp v58, v56 row_shl:4 {DPP}
    v_mov_b32_dpp v59, v56 row_shl:6 {DPP}
    v_and_b32 v11, 7, v1
    v_cmp_eq_u32 vcc, 0, v11
    v_cmp_gt_u32 s[48:49], 2, v7
    s_and_b64 vcc, vcc, s[48:49]
    s_and_saveexec_b64 s[48:49], vcc
    buffer_store_dwordx4 v[56:59], v12, {WS}, s44 offen sc1
    s_add_u32 s45, s44, 24576
    buffer_store_dwordx4 v[56:59], v12, {WS}, s45 offen sc1
    s_add_u32 s45, s44, 49152
    buffer_store_dwordx4 v[56:59], v12, {WS}, s45 offen sc1
    s_add_u32 s45, s44, 73728
    buffer_store_dwordx4 v[56:59], v12, {WS}, s45 offen sc1
    s_mov_b64 exec, -1
    """)
    stamp(A, 13)
    A("s_cmp_ge_u32 s38, 80")
    A("s_cbranch_scc1 k_end")
    A(f"""
    v_bfe_u32 v5, v1, 3, 1
    v_lshrrev_b32 v7, 4, v1
    s_movk_i32 s46, 3072
    v_mul_lo_u32 v9, v{VTOK}, s46
    s_movk_i32 s46, 1536
    v_mul_lo_u32 v10, v5, s46
    v_add_u32 v9, v9, v10
    v_lshl_add_u32 v9, v7, 4, v9
    s_mul_i32 s47, s3, {6*64}
    s_and_b32 s46, s2, {HREP-1}
    s_mul_i32 s46, s46, 24576
    s_add_u32 s47, s47, s46
    s_add_u32 s47, s47, {WS_HID}
    v_lshlrev_b32 v14, 3, v7
    v_bfe_u32 v15, v1, 2, 2
    v_add_u32 v14, v14, v15
    v_bfe_u32 v15, v1, 1, 1
    s_movk_i32 s46, 768
    v_mul_lo_u32 v15, v15, s46
    v_add_u32 v14, v14, v15
    v_lshlrev_b32 v14, 4, v14
    v_and_b32 v15, 1, v1
    v_lshl_add_u32 v14, v15, 3, v14
    s_mul_i32 s44, s3, {6*512}
    s_add_u32 s44, s44, {L_WD}
    v_add_u32 v14, s44, v14
    """)
    for i in range(6):
        A(f"ds_read_b64_tr_b16 v[{120+4*i}:{121+4*i}], v14 offset:{512*i}")
        A(f"ds_read_b64_tr_b16 v[{122+4*i}:{123+4*i}], v14 offset:{512*i + 64}")
    A(f"""
    v_lshrrev_b32 v20, 3, v1
    v_and_b32 v21, 7, v1
    s_movk_i32 s46, 1280
    v_mul_lo_u32 v35, v20, s46
    v_lshl_add_u32 v35, v21, 1, v35
    v_and_b32 v35, 0xfffffffc, v35
    s_lshl_b32 s44, s37, 4
    s_add_u32 s50, s44, {WS_ZS}
    s_add_u32 s51, s44, {WS_HS}
    v_lshlrev_b32 v32, 2, v20
    s_mov_b32 s45, {WS_META}
    s_mov_b64 s[54:55], -1
    s_mov_b64 s[56:57], 0
    s_cmp_lg_u32 s3, 0
    s_cbranch_scc1 k_g2_m
    s_mov_b64 s[56:57], -1
    k_g2_m:
    """)
    masked_poll(A, [dict(mask=54, loads=[f"buffer_load_dwordx4 v[{40+4*i}:{43+4*i}], v9, {WS}, s47 offen offset:{64*i} sc1" for i in range(6)],
                         regs=list(range(40, 64)), tmp=65),
                    dict(mask=56, loads=[f"buffer_load_dword v36, v35, {WS}, s50 offen sc1", f"buffer_load_dword v37, v35, {WS}, s51 offen sc1",
                                         f"buffer_load_dword v33, v32, {WS}, s45 offen sc1", f"buffer_load_dword v34, v32, {WS}, s45 offen offset:32 sc1"],
                         regs=[36, 37, 33, 34], tmp=64)], 46, 1, "hpoll")
    cnt_stamp(A, 4, 46)
    stamp(A, 14)
    A("s_waitcnt lgkmcnt(0)")
    for i in range(6):
        c = "0" if i == 0 else "v[88:91]"
        A(f"v_mfma_f32_16x16x32_bf16 v[88:91], v[{40+4*i}:{43+4*i}], v[{120+4*i}:{123+4*i}], {c}")
    A(f"""
    v_lshlrev_b32 v15, 4, v1
    s_lshl_b32 s44, s3, 10
    v_add_u32 v16, s44, v15
    s_barrier
    s_nop 4
    ds_write_b128 v16, v[88:91] offset:{L_RED}
    s_waitcnt lgkmcnt(0)
    s_barrier
    s_cmp_lg_u32 s3, 0
    s_cbranch_scc1 k_end
    v_lshrrev_b32 v22, 2, v20
    v_lshl_add_u32 v22, v22, 4, v21
    v_lshlrev_b32 v22, 4, v22
    v_and_b32 v23, 3, v20
    v_lshl_add_u32 v22, v23, 2, v22
    """)
    for w in range(4):
        A(f"ds_read_b32 v{24+2*w}, v22 offset:{L_RED + 1024*w}")
        A(f"ds_read_b32 v{25+2*w}, v22 offset:{L_RED + 1024*w + 640}")
    A(f"""
    v_and_b32 v38, 1, v21
    v_cmp_eq_u32 vcc, 1, v38
    v_lshlrev_b32 v38, 16, v36
    v_and_b32 v36, 0xffff0000, v36
    v_cndmask_b32 v36, v38, v36, vcc
    v_lshlrev_b32 v38, 16, v37
    v_and_b32 v37, 0xffff0000, v37
    v_cndmask_b32 v37, v38, v37, vcc
    s_movk_i32 s46, 1280
    v_mul_lo_u32 v35, v33, s46
    v_lshl_add_u32 v35, v21, 1, v35
    s_lshl_b32 s44, s37, 4
    s_waitcnt lgkmcnt(0)
    v_add_f32 v24, v24, v25
    v_add_f32 v26, v26, v27
    v_add_f32 v28, v28, v29
    v_add_f32 v30, v30, v31
    v_add_f32 v24, v24, v26
    v_add_f32 v28, v28, v30
    v_add_f32 v24, v24, v28
    v_cvt_pk_bf16_f32 v24, 0, v24
    v_mul_f32 v24, v24, v34
    v_cvt_pk_bf16_f32 v24, 0, v24
    v_add_f32 v24, v36, v24
    v_cvt_pk_bf16_f32 v24, 0, v24
    v_add_f32 v24, v37, v24
    v_cvt_pk_bf16_f32 v24, v24, v24
    buffer_store_short v24, v35, s[{S_X}:{S_X+3}], s44 offen
    k_end:
    """)
    stamp_flush(A)
    A("k_exit:")
    A("s_endpgm")
    A("k_code_end:")
    A("s_endpgm")
    return name

def main():
    global STAMP
    if "--stamp" in sys.argv:
        STAMP = True
        sys.argv.remove("--stamp")
    hdr = open("cdna_kernels/%s.s.ref" % NAME).read().split("; Override launch")[0]
    b = Asm(); name = gen_main(b)
    out = hdr + f"; @launch grid=(256,1,1) block=(256,1,1) lds={LDS_TOTAL}\n"
    out += '.amdgcn_target "amdgcn-amd-amdhsa--gfx950"\n.text\n'
    out += b.text()
    out += '.section .rodata,"a"\n.p2align 6\n' + gen.kernel_desc(name, 512, 100, 256)
    path = sys.argv[1] if len(sys.argv) > 1 else "cdna_kernels/%s.s" % NAME
    open(path, "w").write(out)
    print("wrote", path, len(out))

if __name__ == "__main__":
    main()
```

```python
import sys, os, struct
from gen import Asm as Asm0, srd, DPP, allreduce16, xor16, xor32, f32bits
from gen import F_INV640, F_LOG2E, F_INV2PI, F_EPS, ARG, NAME
import gen
from gen import Asm as Asm0

WS_UB = 0x000000
WS_AT = 0x280000
WS_KEY = 0x500000
WS_SM = 0x510000
WS_ZS = WS_SM
WS_HS = WS_SM + 10240
WS_META = WS_SM + 20480
WS_HID = WS_SM + 20736
WS_FL = 0x530000
WS_SIZE = 0x540000
WS_STAMP = 0x1000000

STAMP = False
KSTAMP = os.environ.get('KSTAMP', '0') == '1'
class Asm(Asm0):
    pass

def stamp(A, k):
    if STAMP:
        A("s_memrealtime s[98:99]")
        A("s_waitcnt lgkmcnt(0)")
        A(f"v_writelane_b32 v255, s98, {k}")

def cnt_stamp(A, k, sreg):
    if STAMP:
        A(f"v_writelane_b32 v254, s{sreg}, {k}")

def stamp_flush(A):
    if STAMP and DBGWG >= 0:
        A("s_waitcnt vmcnt(0) lgkmcnt(0)")
        stamp(A, 15)
        A(f"s_cmp_lg_u32 s2, {DBGWG}")
        A("s_cbranch_scc1 k_dbg_skip")
        A("s_cmp_lg_u32 s3, 0")
        A("s_cbranch_scc1 k_dbg_skip")
        A("v_readlane_b32 s90, v255, 0")
        A("s_nop 3")
        A("v_subrev_u32 v255, s90, v255")
        A("v_and_b32 v3, 63, v0")
        A("v_lshlrev_b32 v2, 2, v3")
        A("s_mov_b64 exec, 0xfffe")
        A(f"buffer_store_dword v255, v2, s[{S_DBG}:{S_DBG+3}], 0 offen")
        A("k_dbg_skip:")
        return
    if STAMP:
        A("s_waitcnt vmcnt(0) lgkmcnt(0)")
        stamp(A, 15)
        A(f"s_load_dwordx2 s[88:89], s[0:1], {ARG['ws']}")
        A("s_waitcnt lgkmcnt(0)")
        srd(A, 84, 88, 89, WS_STAMP, 0x40000)
        A("v_lshrrev_b32 v2, 6, v0")
        A("s_lshl_b32 s91, s2, 2")
        A("v_add_u32 v2, s91, v2")
        A("v_lshlrev_b32 v2, 6, v2")
        A("v_and_b32 v3, 63, v0")
        A("v_lshl_add_u32 v2, v3, 2, v2")
        A("s_mov_b64 exec, 0xffff")
        A("buffer_store_dword v255, v2, s[84:87], 0 offen")
        A("v_add_u32 v2, 0x20000, v2")
        A("buffer_store_dword v254, v2, s[84:87], 0 offen")

WAVE_LDS = 30432
CB = [0, 4160, 8320, 12480]
KOFF = 16640
TSTR = 1352
L_AT = 0
L_MISC = 10816
L_ST = L_MISC
L_RP = L_MISC + 256
L_CNT = L_MISC + 384
L_NON = L_MISC + 448
L_RED = L_MISC + 512
LBASE = 19712
L_G, L_U, L_WD = LBASE, LBASE + 20480, LBASE + 40960
LDS_TOTAL = LBASE + 4 * WAVE_LDS
POLL_LIMIT = 40000
ZDELAY = int(os.environ.get('ZDELAY', '0'))
HDELAY = int(os.environ.get('HDELAY', '0'))
KDELAY = int(os.environ.get('KDELAY', '40'))
PIPE = os.environ.get('PIPE', '0') == '1'
PK_A = int(os.environ.get('PK_A', '3'))
PK_K = int(os.environ.get('PK_K', '3'))
PSTAG = int(os.environ.get('PSTAG', '8'))
PSTAG2 = int(os.environ.get('PSTAG2', '12'))
KREP = int(os.environ.get('KREP', '8'))
HREP = int(os.environ.get('HREP', '4'))
VERB = True
PFFIRST = int(os.environ.get('PFFIRST', '0'))
CTILE = int(os.environ.get('CTILE', '3'))
EARLYG = os.environ.get('EARLYG', '1') == '1'
OUTF = os.environ.get('OUTF', '')
DBGWG = int(os.environ.get('DBGWG', '-1'))
NONWG = int(os.environ.get('NONWG', '0'))
CDELAY = int(os.environ.get('CDELAY', '0'))
WPF = os.environ.get('WPF', '1') == '1'
CSLEEP = int(os.environ.get('CSLEEP', '8'))
CANARY = os.environ.get('CANARY', '1') == '1'
FSLEEP = int(os.environ.get('FSLEEP', '2'))
APLAIN = ' sc1' if os.environ.get('APLAIN', '0') == '0' else ''
AHOOK = int(os.environ.get('AHOOK', '-1'))
CODEPF = os.environ.get('CODEPF', '1') == '1'
NPF = int(os.environ.get('NPF', '8'))
KSLEEP = int(os.environ.get('KSLEEP', '3'))
ASLEEP = int(os.environ.get('ASLEEP', '2'))

S_WS, S_X, S_DBG, S_WR = 8, 12, 20, 16
S_TB, S_T0 = 40, 41
S_D, S_B, S_K, S_AO, S_F, S_DS, S_NON = 74, 75, 76, 77, 78, 79, 72
VXF = 220
VW = 240
VROW, VCH, VTOK = 250, 251, 252

lblc = [0]
def newlbl(p):
    lblc[0] += 1
    return f"{p}_{lblc[0]}"

def rnd(A, d, s):
    A(f"v_cvt_pk_bf16_f32 v{d}, 0, v{s}")

def unpack_bf16(A, src, dlo, dhi):
    A(f"v_lshlrev_b32 v{dlo}, 16, v{src}")
    A(f"v_and_b32 v{dhi}, 0xffff0000, v{src}")

def red8(A, x, t):
    A("s_nop 1")
    A(f"v_add_f32_dpp v{x}, v{x}, v{x} row_ror:8 {DPP}")
    xor16(A, "v_add_f32", x, t)
    xor32(A, "v_add_f32", x, t)

def ln_stats(A, H):
    A(f"v_pk_add_f32 v[72:73], v[{H}:{H+1}], v[{H+2}:{H+3}]")
    A(f"v_pk_add_f32 v[74:75], v[{H+4}:{H+5}], v[{H+6}:{H+7}]")
    for i in range(4, 10, 2):
        A(f"v_pk_add_f32 v[72:73], v[72:73], v[{H+2*i}:{H+2*i+1}]")
        A(f"v_pk_add_f32 v[74:75], v[74:75], v[{H+2*i+2}:{H+2*i+3}]")
    A("v_pk_add_f32 v[72:73], v[72:73], v[74:75]")
    A("v_add_f32 v72, v72, v73")
    red8(A, 72, 73)
    A(f"v_mul_f32 v72, {hex(f32bits(1/160))}, v72")
    for i in range(10):
        t = 70 if i % 2 == 0 else 76
        acc = 74 if i % 2 == 0 else 82
        A(f"v_pk_add_f32 v[{t}:{t+1}], v[{H+2*i}:{H+2*i+1}], v[72:73] op_sel_hi:[1,0] neg_lo:[0,1] neg_hi:[0,1]")
        if i < 2: A(f"v_pk_mul_f32 v[{acc}:{acc+1}], v[{t}:{t+1}], v[{t}:{t+1}]")
        else: A(f"v_pk_fma_f32 v[{acc}:{acc+1}], v[{t}:{t+1}], v[{t}:{t+1}], v[{acc}:{acc+1}]")
    A("v_pk_add_f32 v[74:75], v[74:75], v[82:83]")
    A("v_add_f32 v73, v74, v75")
    red8(A, 73, 74)
    A(f"""
    v_lshlrev_b32 v76, 3, v{VTOK}
    v_add_u32 v76, {L_ST}, v76
    s_lshl_b32 s47, s3, 6
    v_add_u32 v77, s47, v76
    v_cmp_gt_u32 vcc, 8, v1
    s_and_saveexec_b64 s[48:49], vcc
    ds_write_b64 v77, v[72:73]
    s_mov_b64 exec, s[48:49]
    s_waitcnt lgkmcnt(0)
    s_barrier
    ds_read_b64 v[78:79], v76
    ds_read_b64 v[80:81], v76 offset:64
    ds_read_b64 v[82:83], v76 offset:128
    ds_read_b64 v[84:85], v76 offset:192
    s_waitcnt lgkmcnt(0)
    v_add_f32 v72, v78, v80
    v_add_f32 v73, v82, v84
    v_add_f32 v72, v72, v73
    v_mul_f32 v72, 0.25, v72
    v_sub_f32 v78, v78, v72
    v_sub_f32 v80, v80, v72
    v_sub_f32 v82, v82, v72
    v_sub_f32 v84, v84, v72
    v_mul_f32 v73, v78, v78
    v_fmac_f32 v73, v80, v80
    v_fmac_f32 v73, v82, v82
    v_fmac_f32 v73, v84, v84
    v_add_f32 v79, v79, v81
    v_add_f32 v83, v83, v85
    v_add_f32 v79, v79, v83
    v_fmac_f32 v79, {hex(f32bits(160))}, v73
    v_mul_f32 v74, {hex(F_INV640)}, v79
    v_cvt_pk_bf16_f32 v78, 0, v72
    v_cvt_pk_bf16_f32 v75, 0, v74
    v_add_f32 v75, {hex(F_EPS)}, v75
    v_cvt_pk_bf16_f32 v75, 0, v75
    v_sqrt_f32 v75, v75
    s_nop 0
    v_cvt_pk_bf16_f32 v75, 0, v75
    v_rcp_f32 v80, v75
    s_nop 0
    """)

def cmul(A, z, x, y, t):
    A(f"v_pk_mul_f32 v[{t}:{t+1}], v[{x}:{x+1}], v[{y}:{y+1}] op_sel:[0,0] op_sel_hi:[1,0]")
    A(f"v_pk_fma_f32 v[{z}:{z+1}], v[{x}:{x+1}], v[{y}:{y+1}], v[{t}:{t+1}] op_sel:[1,1,0] op_sel_hi:[0,1,1] neg_lo:[1,0,0]")

class Poll:
    pass

def masked_poll(A, sets, cnt, sleep, tag, first=None):
    L = newlbl(tag)
    A(f"s_mov_b32 s{cnt}, 0")
    if first == "plain":
        for st in sets:
            for ld in st["loads"]: A(ld.replace(" sc1", ""))
        A("s_waitcnt vmcnt(0)")
        A(f"s_branch {L}_chk")
    elif first is not None:
        A(f"s_waitcnt vmcnt({first[1]})")
        A(f"s_branch {L}_chk")
    A(f"{L}:")
    for k, st in enumerate(sets):
        m = st["mask"]
        A(f"s_mov_b64 exec, s[{m}:{m+1}]")
        A(f"s_cbranch_execz {L}_sk{k}")
        for ld in st["loads"]: A(ld)
        A(f"{L}_sk{k}:")
    A("s_mov_b64 exec, -1")
    A("s_waitcnt vmcnt(0)")
    A(f"{L}_chk:")
    for k, st in enumerate(sets):
        m = st["mask"]; regs = st["regs"]; t = st["tmp"]
        op = "max" if st.get("sent", "max") == "max" else "min"
        r = list(regs)
        if len(r) == 1:
            src = r[0]
        else:
            if len(r) >= 3:
                A(f"v_{op}3_u32 v{t}, v{r[0]}, v{r[1]}, v{r[2]}"); r = r[3:]
            else:
                A(f"v_{op}_u32 v{t}, v{r[0]}, v{r[1]}"); r = r[2:]
            while len(r) >= 2:
                A(f"v_{op}3_u32 v{t}, v{t}, v{r[0]}, v{r[1]}"); r = r[2:]
            if r: A(f"v_{op}_u32 v{t}, v{t}, v{r[0]}")
            src = t
        sent = "-1" if op == "max" else "0"
        A(f"v_cmp_eq_u32 vcc, {sent}, v{src}")
        A(f"s_and_b64 s[{m}:{m+1}], s[{m}:{m+1}], vcc")
    m0 = sets[0]["mask"]
    if len(sets) == 1:
        A(f"s_cmp_eq_u64 s[{m0}:{m0+1}], 0")
    else:
        A(f"s_or_b64 vcc, s[{m0}:{m0+1}], s[{sets[1]['mask']}:{sets[1]['mask']+1}]")
        for st in sets[2:]:
            A(f"s_or_b64 vcc, vcc, s[{st['mask']}:{st['mask']+1}]")
        A("s_cmp_eq_u64 vcc, 0")
    A(f"s_cbranch_scc1 {L}_done")
    A(f"s_add_u32 s{cnt}, s{cnt}, 1")
    if sleep: A(f"s_sleep {sleep}")
    A(f"s_cmp_lt_u32 s{cnt}, {POLL_LIMIT}")
    A(f"s_cbranch_scc1 {L}")
    A(f"{L}_done:")


def pipe_poll(A, groups, cnt, tag, K, SB, stag, sleep=0, NEW=92):
    L = newlbl(tag)
    tot = sum(w for g in groups for (_, w, _) in g["loads"])
    n = sum(len(g["loads"]) for g in groups)
    def stage(j):
        out = []; r = SB + j * tot
        for g in groups:
            lst = []
            for (fmt, w, fin) in g["loads"]:
                lst.append((fmt, w, fin, r)); r += w
            out.append(lst)
        return out
    def issue(j):
        for g, lst in zip(groups, stage(j)):
            m = g["mask"]
            A(f"s_or_b64 exec, s[{m}:{m+1}], 1")
            for (fmt, w, fin, r) in lst:
                dst = f"v{r}" if w == 1 else f"v[{r}:{r+w-1}]"
                A(fmt.format(dst=dst))
        A("s_mov_b64 exec, -1")
    A(f"s_mov_b32 s{cnt}, 0")
    for j in range(K):
        issue(j)
        if j < K - 1 and stag: A(f"s_sleep {stag}")
    A(f"{L}:")
    for j in range(K):
        A(f"s_waitcnt vmcnt({(K-1)*n})")
        for gi, (g, lst) in enumerate(zip(groups, stage(j))):
            m = g["mask"]; t = g["tmp"]
            op = "max" if g.get("sent", "max") == "max" else "min"
            regs = [r + i for (_, w, _, r) in lst for i in range(w)]
            r = list(regs)
            if len(r) == 1: src = r[0]
            else:
                if len(r) >= 3:
                    A(f"v_{op}3_u32 v{t}, v{r[0]}, v{r[1]}, v{r[2]}"); r = r[3:]
                else:
                    A(f"v_{op}_u32 v{t}, v{r[0]}, v{r[1]}"); r = r[2:]
                while len(r) >= 2:
                    A(f"v_{op}3_u32 v{t}, v{t}, v{r[0]}, v{r[1]}"); r = r[2:]
                if r: A(f"v_{op}_u32 v{t}, v{t}, v{r[0]}")
                src = t
            sent = "-1" if op == "max" else "0"
            A(f"v_cmp_ne_u32 vcc, {sent}, v{src}")
            A(f"s_and_b64 s[{NEW}:{NEW+1}], vcc, s[{m}:{m+1}]")
            A(f"s_cbranch_scc0 {L}_s{j}_{gi}")
            A(f"s_mov_b64 exec, s[{NEW}:{NEW+1}]")
            for (_, w, fin, rr) in lst:
                for i in range(w): A(f"v_mov_b32 v{fin+i}, v{rr+i}")
            A("s_mov_b64 exec, -1")
            A(f"s_andn2_b64 s[{m}:{m+1}], s[{m}:{m+1}], s[{NEW}:{NEW+1}]")
            A(f"{L}_s{j}_{gi}:")
        m0 = groups[0]["mask"]
        if len(groups) == 1:
            A(f"s_cmp_eq_u64 s[{m0}:{m0+1}], 0")
        else:
            A(f"s_or_b64 vcc, s[{m0}:{m0+1}], s[{groups[1]['mask']}:{groups[1]['mask']+1}]")
            for g in groups[2:]:
                A(f"s_or_b64 vcc, vcc, s[{g['mask']}:{g['mask']+1}]")
            A("s_cmp_eq_u64 vcc, 0")
        A(f"s_cbranch_scc1 {L}_done")
        issue(j)
        if sleep: A(f"s_sleep {sleep}")
    A(f"s_add_u32 s{cnt}, s{cnt}, 1")
    A(f"s_cmp_lt_u32 s{cnt}, {POLL_LIMIT}")
    A(f"s_cbranch_scc1 {L}")
    A(f"{L}_done:")

def kgen(A, mid_hook, tail_hook, hook0, p1_hook=None):
    TS = 272; TBUF = 14416; TT = 28832
    A(f"""
    s_bitcmp1_b32 s{S_D}, 0
    s_cbranch_scc1 kg_odd
    s_lshl_b32 s42, s42, 16
    s_lshl_b32 s{S_DS}, s{S_DS}, 16
    kg_odd:
    s_and_b32 s42, s42, 0xffff0000
    s_and_b32 s{S_DS}, s{S_DS}, 0xffff0000
    v_mov_b32 v14, {hex(F_LOG2E)}
    v_mul_f32 v15, s42, v14
    v_exp_f32 v15, v15
    s_mov_b32 s43, 0x7fff7fff
    v_and_b32 v112, s43, v112
    v_and_b32 v113, s43, v113
    v_and_b32 v114, s43, v114
    v_and_b32 v115, s43, v115
    v_cvt_pk_bf16_f32 v15, 0, v15
    v_pk_max_u16 v112, v112, v113
    v_pk_max_u16 v114, v114, v115
    v_pk_max_u16 v10, v112, v114
    v_lshrrev_b32 v11, 16, v10
    v_and_b32 v10, 0xffff, v10
    v_max_u32 v10, v10, v11
    """)
    E1, W8, E256, X2, X3, X4, X6, E512, XA, XB, CX, TX, C, CY, TY = 18, 20, 22, 24, 26, 28, 32, 34, 36, 38, 40, 42, 44, 116, 118
    PX, PY = [46, 47, 122, 123], [120, 121, 124, 125]
    WDELAY = int(os.environ.get('WDELAY', '1'))
    D = 48
    FR = 128
    def setup_a(p):
        L = []; a = L.append
        lar, aim = 100 + 4*p, 101 + 4*p
        a(f"v_lshlrev_b32 v{lar}, 16, v{lar}")
        a(f"v_lshlrev_b32 v{aim}, 16, v{aim}")
        a(f"v_mul_f32 v4, v14, v{lar}")
        a(f"v_exp_f32 v4, v4")
        a(f"v_mul_f32 v5, v{aim}, v15")
        a(f"v_mul_f32 v5, {hex(F_INV2PI)}, v5")
        a(f"v_cvt_pk_bf16_f32 v4, 0, v4")
        a(f"v_mul_f32 v4, v4, v15")
        a(f"v_mul_f32 v4, v4, v14")
        for k, (dst, pw) in enumerate(((E1, 1), (W8, 8), (E256, 256))):
            m, f = 6 + 2*(k % 2), 7 + 2*(k % 2)
            if pw == 1:
                a(f"v_exp_f32 v{m}, -v4")
                a(f"v_fract_f32 v{f}, v5")
            else:
                a(f"v_mul_f32 v{m}, {hex(f32bits(pw))}, v4")
                a(f"v_mul_f32 v{f}, {hex(f32bits(pw))}, v5")
                a(f"v_exp_f32 v{m}, -v{m}")
                a(f"v_fract_f32 v{f}, v{f}")
            a(f"v_cos_f32 v{dst}, v{f}")
            a(f"v_sin_f32 v{dst+1}, v{f}")
            a("s_nop 0")
            a(f"v_mul_f32 v{dst}, v{dst}, v{m}")
            a(f"v_mul_f32 v{dst+1}, v{dst+1}, v{m}")
        return L
    def setup_c(p):
        cre, cim = 102 + 4*p, 103 + 4*p
        return [f"v_lshlrev_b32 v{cre}, 16, v{cre}", f"v_lshlrev_b32 v{cim}, 16, v{cim}",
                f"v_mul_f32 v{C}, v{cre}, v11", f"v_mul_f32 v{C+1}, v{cim}, v11"]
    def cm(z, x, y, t):
        return [f"v_pk_mul_f32 v[{t}:{t+1}], v[{x}:{x+1}], v[{y}:{y+1}] op_sel:[0,0] op_sel_hi:[1,0]",
                f"v_pk_fma_f32 v[{z}:{z+1}], v[{x}:{x+1}], v[{y}:{y+1}], v[{t}:{t+1}] op_sel:[1,1,0] op_sel_hi:[0,1,1] neg_lo:[1,0,0]"]
    def tables():
        cnt = [0, 0]
        pendw = [[], []]
        def put(row, pair, neg, which, const=None):
            P = (PX, PY)[which]; r = P[cnt[which] % len(P)]; cnt[which] += 1
            L = [f"v_mov_b32 v{r}, {hex(const)}"] if const is not None else [f"v_cvt_pk_f16_f32 v{r}, v{pair}, {'-' if neg else ''}v{pair+1}"]
            pendw[which].append(f"ds_write_addtid_b32 v{r} offset:{row*TS}")
            if len(pendw[which]) > WDELAY:
                L.append(pendw[which].pop(0))
            return L
        X = []
        X += put(0, None, False, 0, const=0x3c00)
        X += put(1, E1, False, 0)
        X += cm(X2, E1, E1, TX) + put(2, X2, False, 0)
        X += put(8, E256, False, 0)
        X += cm(E512, E256, E256, TX) + put(12, E512, False, 0)
        X += cm(X3, X2, E1, TX) + put(3, X3, False, 0)
        X += cm(X4, X2, X2, TX) + put(4, X4, False, 0)
        X += cm(XA, E512, E256, TX) + put(14, XA, False, 0)
        X += cm(CX, X4, E1, TX) + put(5, CX, False, 0)
        X += cm(X6, X4, X2, TX) + put(6, X6, False, 0)
        X += cm(CX, X4, X3, TX) + put(7, CX, False, 0)
        X += cm(CX, E256, X2, TX) + put(9, CX, False, 0)
        X += cm(CX, E256, X4, TX) + put(10, CX, False, 0)
        X += cm(CX, E256, X6, TX) + put(11, CX, False, 0)
        X += cm(CX, E512, X4, TX) + put(13, CX, False, 0)
        X += cm(CX, XA, X4, TX) + put(15, CX, False, 0)
        X += cm(XA, E512, E512, TX) + put(16, XA, False, 0)
        X += cm(CX, XA, E256, TX) + put(17, CX, False, 0)
        X += cm(XB, XA, E512, TX) + put(18, XB, False, 0)
        X += cm(CX, XB, E256, TX) + put(19, CX, False, 0)
        X += cm(CX, XA, XA, TX) + put(20, CX, False, 0)
        Y = []
        Y += put(21, C, True, 1)
        Y += cm(CY, C, W8, TY) + put(22, CY, True, 1)
        for c in range(2, 32):
            Y += cm(CY, CY, W8, TY) + put(21 + c, CY, True, 1)
        X += pendw[0]; Y += pendw[1]
        out = []; i = j = 0
        while i < len(X) or j < len(Y):
            if j >= len(Y) or (i < len(X) and i * len(Y) <= j * len(X)):
                out.append(X[i]); i += 1
            else:
                out.append(Y[j]); j += 1
        return out
    sa = setup_a(0)
    red = []
    R_ = Asm0()
    allreduce16(R_, "v_max_u32", 10); xor16(R_, "v_max_u32", 10, 11); xor32(R_, "v_max_u32", 10, 11)
    R_(f"""
    v_lshlrev_b32 v10, 16, v10
    v_mul_f32 v10, v10, v15
    v_lshrrev_b32 v10, 23, v10
    v_max_u32 v10, 5, v10
    v_min_u32 v10, 0xfe, v10
    v_sub_u32 v11, 0x103, v10
    v_lshlrev_b32 v11, 23, v11
    v_subrev_u32 v30, 4, v10
    v_lshlrev_b32 v30, 23, v30
    v_mul_f32 v11, v11, v15
    v_lshrrev_b32 v13, 5, v1
    v_and_b32 v16, 31, v1
    v_mul_u32_u24 v16, {TS}, v16
    v_lshl_add_u32 v13, v13, 4, v16
    v_add_u32 v13, s{S_B}, v13
    """)
    for ins in R_.l: A(ins.strip())
    for ins in sa: A(ins)
    for ins in setup_c(0): A(ins)
    A(f"s_mov_b32 m0, s{S_B}")
    A("s_nop 0")
    for ins in tables(): A(ins)
    hook0()
    A(f"s_add_u32 s43, s{S_B}, 0")
    for p in range(3):
        buf = p % 2
        for s in range(8):
            A(f"ds_read_b128 v[{FR+8*s}:{FR+8*s+3}], v13 offset:{TBUF*buf + 32*s}")
            A(f"ds_read_b128 v[{FR+8*s+4}:{FR+8*s+7}], v13 offset:{TBUF*buf + 21*TS + 32*s}")
        if p == 1 and p1_hook is not None:
            p1_hook()
        if p < 2:
            A(f"s_add_u32 s43, s{S_B}, {TBUF*((p+1)%2)}")
            A("s_mov_b32 m0, s43")
            nxt = setup_a(p + 1) + setup_c(p + 1) + tables()
        else:
            mid_hook()
            nxt = []
            H_ = Asm0()
            H_(f"""
            v_and_b32 v14, 31, v1
            v_lshrrev_b32 v15, 5, v1
            v_lshlrev_b32 v16, 4, v14
            v_lshl_add_u32 v16, v15, 3, v16
            v_sub_u32 v17, {TT+504}, v16
            v_add_u32 v17, s{S_B}, v17
            v_add_u32 v16, {TT+1024}, v16
            v_add_u32 v16, s{S_B}, v16
            v_lshlrev_b32 v18, 3, v14
            v_add_u32 v18, {TT+512}, v18
            v_add_u32 v19, 4, v18
            v_lshlrev_b32 v20, 2, v14
            v_add_u32 v20, {TT+768}, v20
            v_add_u32 v21, 128, v20
            v_cmp_eq_u32 vcc, 0, v15
            s_nop 1
            v_cndmask_b32 v18, v20, v18, vcc
            v_cndmask_b32 v19, v21, v19, vcc
            v_add_u32 v18, s{S_B}, v18
            v_add_u32 v19, s{S_B}, v19
            s_add_u32 s43, s{S_B}, {TT}
            v_sub_u32 v4, 127, v1
            v_add_u32 v5, 1, v4
            v_and_b32 v6, 31, v4
            v_lshrrev_b32 v7, 5, v4
            v_lshlrev_b32 v6, 4, v6
            v_lshl_add_u32 v6, v7, 1, v6
            v_and_b32 v8, 31, v5
            v_lshrrev_b32 v7, 5, v5
            v_lshlrev_b32 v8, 4, v8
            v_lshl_add_u32 v8, v7, 1, v8
            v_add_u32 v6, s43, v6
            v_add_u32 v8, s43, v8
            v_sub_u32 v9, 63, v1
            v_lshlrev_b32 v10, 2, v9
            v_add_u32 v10, s43, v10
            v_sub_u32 v11, 31, v1
            v_and_b32 v11, 31, v11
            v_lshlrev_b32 v11, 3, v11
            v_add_u32 v11, s43, v11
            v_and_b32 v9, 31, v9
            v_lshlrev_b32 v9, 4, v9
            v_sub_u32 v9, 496, v9
            v_add_u32 v9, s43, v9
            v_lshlrev_b32 v3, 4, v1
            v_add_u32 v3, s{S_K}, v3
            """)
            nxt = [x.strip() for x in H_.l]
        nlds_after = 0
        per = (len(nxt) + 7) // 8 if nxt else 0
        lead = min(int(os.environ.get('LEAD', '30')) if p < 2 else 20, len(nxt))
        pos = 0
        for ins in nxt[:lead]:
            A(ins); pos += 1
            if ins.startswith("ds_"): nlds_after += 1
        rest = nxt[lead:]
        per = (len(rest) + 7) // 8 if rest else 0
        for s in range(8):
            need = 2 * (7 - s) + nlds_after
            if need <= 15: A(f"s_waitcnt lgkmcnt({need})")
            else: A("s_waitcnt lgkmcnt(15)") if False else A(f"s_waitcnt lgkmcnt({min(15, need)})")
            c = "0" if (s == 0 and p == 0) else f"v[{D}:{D+15}]"
            A(f"v_mfma_f32_32x32x16_f16 v[{D}:{D+15}], v[{FR+8*s}:{FR+8*s+3}], v[{FR+8*s+4}:{FR+8*s+7}], {c}")
            for ins in rest[s*per:(s+1)*per]:
                A(ins)
                if ins.startswith("ds_"): nlds_after += 1
    tail_hook()
    A(f"""
    s_nop 7
    s_nop 3
    v_cvt_pk_f16_f32 v22, v{D+3}, v{D+2}
    v_cvt_pk_f16_f32 v23, v{D+1}, v{D}
    ds_write_b64 v17, v[22:23]
    v_cvt_pk_f16_f32 v24, v{D+4}, v{D+5}
    v_cvt_pk_f16_f32 v25, v{D+6}, v{D+7}
    ds_write_b32 v18, v24
    ds_write_b32 v19, v25
    v_cvt_pk_f16_f32 v26, v{D+8}, v{D+9}
    v_cvt_pk_f16_f32 v27, v{D+10}, v{D+11}
    ds_write_b64 v16, v[26:27]
    s_mov_b32 s44, 0x05040100
    s_mov_b32 s45, 0x01000100
    s_mov_b32 s46, 0x03020302
    s_mov_b32 s47, 0x07060100
    s_mov_b32 s48, 0x03020504
    v_and_b32 v7, 1, v4
    v_cmp_eq_u32 vcc, 1, v7
    s_waitcnt lgkmcnt(0)
    ds_read_u16 v32, v6 offset:1024
    ds_read_u16 v33, v8 offset:1024
    ds_read_u16 v34, v6 offset:1020
    ds_read_u16 v35, v8 offset:1020
    ds_read2_b32 v[36:37], v10 offset0:192 offset1:193
    ds_read_b64 v[38:39], v11 offset:512
    ds_read_u16 v40, v11 offset:520
    ds_read_b128 v[44:47], v9
    s_waitcnt lgkmcnt(4)
    v_cndmask_b32 v41, v32, v33, vcc
    v_cndmask_b32 v42, v34, v35, vcc
    v_perm_b32 v48, v33, v33, s45
    v_perm_b32 v49, v41, v33, s44
    v_perm_b32 v50, v32, v32, s45
    v_mov_b32 v51, v50
    ds_write_b128 v3, v[48:51]
    v_perm_b32 v52, v35, v35, s45
    v_perm_b32 v53, v42, v35, s44
    v_perm_b32 v54, v34, v34, s45
    v_mov_b32 v55, v54
    ds_write_b128 v3, v[52:55] offset:1024
    s_waitcnt lgkmcnt(2)
    v_perm_b32 v56, v37, v37, s45
    v_perm_b32 v57, v36, v36, s46
    v_alignbit_b32 v58, v36, v36, 16
    v_perm_b32 v59, v36, v36, s45
    ds_write_b128 v3, v[56:59] offset:2048
    v_perm_b32 v60, v39, v40, s47
    v_perm_b32 v61, v39, v39, s45
    v_perm_b32 v62, v39, v38, s48
    v_perm_b32 v63, v38, v38, s45
    v_cmp_gt_u32 vcc, 32, v1
    s_nop 1
    v_cndmask_b32 v60, v44, v60, vcc
    v_cndmask_b32 v61, v45, v61, vcc
    v_cndmask_b32 v62, v46, v62, vcc
    v_cndmask_b32 v63, v47, v63, vcc
    ds_write_b128 v3, v[60:63] offset:3072
    v_mov_b32 v16, 0
    v_mov_b32 v17, 0
    v_mov_b32 v18, 0
    v_mov_b32 v19, 0
    v_cmp_gt_u32 vcc, 30, v1
    s_and_saveexec_b64 s[52:53], vcc
    ds_write_b128 v3, v[16:19] offset:4096
    s_mov_b64 exec, s[52:53]
    """)

def conv_main(A, hook_idx=None, hook=None):
    ACC, AR, NR, EP = 32, 64, 12, 112
    mf = [(q, al) for al in range(64) for q in range(al // 8, 8)]
    first_use = {}
    for i, (q, al) in enumerate(mf):
        first_use.setdefault(("A", al), i)
        first_use.setdefault(("B", 8*q - al), i)
    loads = sorted(first_use.items(), key=lambda kv: (kv[1], kv[0][0]))
    last_of_tile = {q: max(i for i, (qq, al) in enumerate(mf) if qq == q) for q in range(8)}
    lastuse_A = {al: max(i for i, (q, a2) in enumerate(mf) if a2 == al) for al in range(64)}
    def epi_instrs(q):
        a = ACC + 4 * q
        e = EP + 16 * (q % 2)
        U = e + 14
        L = [("lds", f"ds_read_b64 v[{U}:{U+1}], v27 offset:{512*q}")]
        for j in range(4): L.append(("v", f"v_cvt_pk_bf16_f32 v{e+j}, 0, v{a+j}"))
        L.append(("waitu", None))
        L.append(("v", f"v_fma_mix_f32 v{e+4}, v{U}, s{S_DS}, 0 op_sel_hi:[1,0,0]"))
        L.append(("v", f"v_fma_mix_f32 v{e+5}, v{U}, s{S_DS}, 0 op_sel:[1,0,0] op_sel_hi:[1,0,0]"))
        L.append(("v", f"v_fma_mix_f32 v{e+6}, v{U+1}, s{S_DS}, 0 op_sel_hi:[1,0,0]"))
        L.append(("v", f"v_fma_mix_f32 v{e+7}, v{U+1}, s{S_DS}, 0 op_sel:[1,0,0] op_sel_hi:[1,0,0]"))
        for j in range(4): L.append(("v", f"v_cvt_pk_bf16_f32 v{e+4+j}, 0, v{e+4+j}"))
        for j in range(4): L.append(("v", f"v_fmac_f32 v{e+4+j}, v30, v{e+j}"))
        L.append(("v", f"v_cvt_pk_bf16_f32 v{e}, v{e+4}, v{e+5}"))
        L.append(("v", f"v_cvt_pk_bf16_f32 v{e+1}, v{e+6}, v{e+7}"))
        L.append(("gap", None))
        L.append(("v", f"v_permlane16_swap_b32 v{e}, v{e+2}"))
        L.append(("v", f"v_permlane16_swap_b32 v{e+1}, v{e+3}"))
        L.append(("st", f"buffer_store_dwordx4 v[{e}:{e+3}], v26, s[{S_WS}:{S_WS+3}], s{S_AO} offen offset:{512*q} sc1"))
        return L
    ldsq = []
    cur = [0]
    LAT = 6
    def lds_wait_for(idset, extend=True):
        idxs = [i for i, n in enumerate(ldsq) if n[0] in idset]
        if not idxs: return False
        k = max(idxs)
        if extend:
            while k + 1 < len(ldsq) and ldsq[k+1][1] <= cur[0] - LAT: k += 1
        A(f"s_waitcnt lgkmcnt({len(ldsq) - 1 - k})")
        del ldsq[:k+1]
        return True
    def issue_load(key):
        kind, v = key
        if kind == "A":
            r = AR + 4 * (v % NR)
            A(f"ds_read_b64 v[{r}:{r+1}], v24 offset:{64*v}"); ldsq.append((key, cur[0]))
            A(f"ds_read_b64 v[{r+2}:{r+3}], v24 offset:{64*v+8}"); ldsq.append((key, cur[0]))
        else:
            r = 4 * (v + 7)
            A(f"ds_read_b128 a[{r}:{r+3}], v25 offset:{64*(56-v)}"); ldsq.append((key, cur[0]))
    li = 0
    epi_q = []
    stores_after = [0]
    WINDOW, MAXQ = 12, 14
    for i, (q, al) in enumerate(mf):
        cur[0] = i
        budget = 2 if i > 0 else 99
        need = {("A", al), ("B", 8*q - al)}
        if any(n[0] in need for n in ldsq): budget -= 1
        while li < len(loads):
            key, dl = loads[li]
            n = 2 if key[0] == "A" else 1
            must = dl <= i
            if not must:
                if dl - i > WINDOW or budget <= 0: break
                if len(ldsq) + n > MAXQ: break
                if key[0] == "A" and key[1] >= NR and lastuse_A[key[1] - NR] >= i: break
            else:
                if len(ldsq) + n > 15:
                    A(f"s_waitcnt lgkmcnt({15-n})"); del ldsq[:len(ldsq) - (15 - n)]
            issue_load(key)
            budget -= n
            li += 1
        while budget > 0 and epi_q and epi_q[0][0] <= i:
            _, kind, txt, eq = epi_q.pop(0)
            if kind == "lds":
                if len(ldsq) + 1 > 15:
                    A("s_waitcnt lgkmcnt(14)"); del ldsq[:len(ldsq) - 14]
                A(txt); ldsq.append((("EU", eq), i))
            elif kind == "waitu":
                if lds_wait_for({("EU", eq)}): budget -= 1
                continue
            elif kind == "gap":
                if epi_q: epi_q[0] = (i + 2,) + epi_q[0][1:]
                break
            else:
                A(txt)
                if kind == "st": stores_after[0] += 1
            budget -= 1
        if hook is not None and i == hook_idx:
            hook(); stores_after[0] = 0
        lds_wait_for(need)
        r = AR + 4 * (al % NR)
        g = 8 * q - al
        c = "0" if al == 0 else f"v[{ACC+4*q}:{ACC+4*q+3}]"
        A(f"v_mfma_f32_16x16x32_f16 v[{ACC+4*q}:{ACC+4*q+3}], v[{r}:{r+3}], a[{4*(g+7)}:{4*(g+7)+3}], {c}")
        if i == last_of_tile[q]:
            for kind, txt in epi_instrs(q):
                epi_q.append((i + (1 if kind == "lds" else 8), kind, txt, q))
    cur[0] = len(mf) + 100
    A("s_nop 7")
    for _, kind, txt, eq in epi_q:
        if kind == "lds":
            A(txt); ldsq.append((("EU", eq), 0))
        elif kind == "waitu":
            lds_wait_for({("EU", eq)}, extend=False)
        elif kind == "gap":
            A("s_nop 1")
        else:
            A(txt)
            if kind == "st": stores_after[0] += 1
    return stores_after[0]

def gen_main(A):
    name = NAME + "_kernel"
    A.l.append(f".globl {name}")
    A.l.append(".p2align 8")
    A.l.append(f".type {name},@function")
    A.l.append(f"{name}:")
    A("s_cmp_ge_u32 s2, 256")
    A("s_cbranch_scc1 k_exit")
    if STAMP: A("v_mov_b32 v255, 0")
    if STAMP: A("v_mov_b32 v254, 0")
    def emit_pf():
        if CODEPF:
            A("""
            s_getpc_b64 s[90:91]
            k_pc:
            v_lshlrev_b32 v2, 4, v0
            v_mov_b32 v3, s91
            v_add_co_u32 v2, vcc, s90, v2
            v_addc_co_u32 v3, vcc, 0, v3, vcc
            """)
            for i in range(NPF):
                A(f"v_cmp_gt_i32 vcc, (k_code_end-k_pc-{4096*i})/16, v0")
                A("s_and_saveexec_b64 s[92:93], vcc")
                A(f"s_cbranch_execz k_pf_done")
                A("global_load_dwordx4 v[160:163], v[2:3], off")
                A("s_mov_b64 exec, s[92:93]")
                A("v_add_co_u32 v2, vcc, 0x1000, v2")
                A("v_addc_co_u32 v3, vcc, 0, v3, vcc")
            A("k_pf_done:")
            A("s_mov_b64 exec, -1")
    stamp(A, 0)
    if PFFIRST: emit_pf()
    WS = f"s[{S_WS}:{S_WS+3}]"
    A(f"""
    s_load_dwordx2 s[4:5], s[0:1], {ARG['x']}
    s_load_dwordx2 s[6:7], s[0:1], {ARG['ws']}
    s_load_dwordx4 s[44:47], s[0:1], {ARG['lar']}
    s_load_dwordx4 s[48:51], s[0:1], {ARG['cre']}
    s_load_dwordx4 s[56:59], s[0:1], {ARG['ldt']}
    s_load_dwordx4 s[60:63], s[0:1], {ARG['wr']}
    s_load_dwordx4 s[64:67], s[0:1], {ARG['wu']}
    s_load_dwordx4 s[68:71], s[0:1], {ARG['out']}
    """)
    if PFFIRST == 0:
        emit_pf()
    A(f"""
    s_and_b32 s52, s2, 7
    s_lshr_b32 s53, s2, 3
    s_mul_i32 s54, s52, 20
    s_add_u32 s{S_TB}, s54, s53
    s_cmp_lt_u32 s2, 160
    s_cbranch_scc1 k_tb_done
    s_mul_i32 s54, s52, 12
    s_add_u32 s54, s54, s53
    s_add_u32 s{S_TB}, s54, 140
    k_tb_done:
    s_lshl_b32 s{S_T0}, s{S_TB}, 3
    v_lshrrev_b32 v2, 6, v0
    v_and_b32 v1, 63, v0
    s_nop 0
    v_readfirstlane_b32 s3, v2
    v_and_b32 v{VTOK}, 7, v1
    v_lshrrev_b32 v5, 3, v1
    v_add_u32 v6, s{S_T0}, v{VTOK}
    s_movk_i32 s52, 1280
    v_mul_lo_u32 v6, v6, s52
    s_mul_i32 s53, s3, 320
    v_lshl_add_u32 v{VCH}, v5, 3, s53
    v_add_u32 v{VROW}, v6, v{VCH}
    s_waitcnt lgkmcnt(0)
    """)
    srd(A, S_WS, 6, 7, 0, WS_SIZE)
    srd(A, S_X, 4, 5, 0, 2621440)
    A(f"""
    v_mov_b32 v199, 0
    s_mov_b32 s52, {WS_FL}
    s_cmp_lg_u32 s2, {NONWG}
    s_cbranch_scc1 k_non0
    buffer_load_dword v197, v199, {WS}, s52 offen sc1
    k_non0:
    """)
    for i in range(5):
        A(f"buffer_load_dwordx2 v[{200+2*i}:{201+2*i}], v{VROW}, s[{S_X}:{S_X+3}], 0 offen offset:{64*i}")
    srd(A, S_DBG, 70, 71, 0, 256)
    srd(A, S_WR, 60, 61, 0, 1280)
    for i in range(5):
        A(f"buffer_load_dwordx2 v[{VW+2*i}:{VW+2*i+1}], v{VCH}, s[{S_WR}:{S_WR+3}], 0 offen offset:{64*i}")
    srd(A, S_X, 68, 69, 0, 2621440)
    def small_clears():
        A(f"""
        s_mov_b64 exec, 0x3fffffff
        s_mul_i32 s52, s2, 480
        s_add_u32 s52, s52, {WS_SM}
        buffer_store_dwordx4 v[40:43], v44, {WS}, s52 offen sc1
        s_mov_b64 exec, 0xffff
        v_mov_b32 v46, 0
        v_mov_b32 v47, 0
        v_mov_b32 v48, 0
        v_mov_b32 v49, 0
        v_lshrrev_b32 v45, 1, v1
        v_lshlrev_b32 v45, 13, v45
        v_and_b32 v50, 1, v1
        v_lshl_add_u32 v45, v50, 4, v45
        s_lshl_b32 s52, s{S_TB}, 5
        s_add_u32 s52, s52, {WS_KEY}
        buffer_store_dwordx4 v[46:49], v45, {WS}, s52 offen sc1
        s_mov_b64 exec, -1
        """)
    def publish_flag(tag):
        A(f"""
        s_cmp_lg_u32 s3, 0
        s_cbranch_scc1 {tag}_w
        s_waitcnt vmcnt(0)
        v_cmp_eq_u32 vcc, 0, v198
        s_mov_b64 s[54:55], vcc
        s_cmp_eq_u64 vcc, 0
        s_cbranch_scc1 {tag}_have
        """)
        masked_poll(A, [dict(mask=54, loads=[f"buffer_load_dword v198, v199, s[{S_DBG}:{S_DBG+3}], 0 offen sc1"], regs=[198], tmp=197, sent="min")], 53, 1, tag + "non")
        A(f"""
        {tag}_have:
        v_mov_b32 v197, {L_NON}
        ds_write_b32 v197, v198
        s_waitcnt lgkmcnt(0)
        {tag}_w:
        s_waitcnt vmcnt(0)
        s_barrier
        s_cmp_lg_u32 s3, 0
        s_cbranch_scc1 {tag}_done
        v_lshlrev_b32 v197, 10, v1
        s_lshl_b32 s52, s2, 2
        s_add_u32 s52, s52, {WS_FL}
        s_mov_b64 exec, 0xff
        buffer_store_dword v198, v197, {WS}, s52 offen sc1
        s_mov_b64 exec, -1
        {tag}_done:
        v_mov_b32 v197, {L_NON}
        ds_read_b32 v199, v197
        """)
    A(f"""
    v_mov_b32 v40, -1
    v_mov_b32 v41, -1
    v_mov_b32 v42, -1
    v_mov_b32 v43, -1
    v_lshlrev_b32 v44, 4, v1
    s_cmp_ge_u32 s2, 160
    s_cbranch_scc1 k_p0_ffn
    """)
    srd(A, 24, 44, 45, 0, 245760)
    srd(A, 28, 46, 47, 0, 245760)
    srd(A, 32, 48, 49, 0, 245760)
    srd(A, 36, 50, 51, 0, 245760)
    A(f"""
    s_lshl_b32 s{S_D}, s2, 2
    s_add_u32 s{S_D}, s{S_D}, s3
    s_mul_i32 s{S_B}, s3, {WAVE_LDS}
    s_add_u32 s{S_B}, s{S_B}, {LBASE}
    s_add_u32 s{S_K}, s{S_B}, {KOFF}
    s_lshl_b32 s{S_AO}, s{S_D}, 12
    s_add_u32 s{S_AO}, s{S_AO}, {WS_AT}
    s_mul_i32 s52, s{S_D}, 384
    v_lshlrev_b32 v3, 1, v1
    s_and_b32 s53, s{S_D}, 0xfffffffe
    s_lshl_b32 s53, s53, 1
    s_load_dword s42, s[56:57], s53
    s_load_dword s{S_DS}, s[58:59], s53
    """)
    for p in range(3):
        for j in range(4):
            A(f"buffer_load_ushort v{100+4*p+j}, v3, s[{24+4*j}:{27+4*j}], s52 offen offset:{128*p}")
    A(f"""
    v_lshlrev_b32 v8, 3, v1
    v_mov_b32 v112, 0
    v_mov_b32 v113, 0
    v_mov_b32 v114, 0
    v_mov_b32 v115, 0
    v_cmp_gt_u32 vcc, 48, v1
    s_and_saveexec_b64 s[54:55], vcc
    buffer_load_dwordx2 v[112:113], v8, s[32:35], s52 offen
    buffer_load_dwordx2 v[114:115], v8, s[36:39], s52 offen
    s_mov_b64 exec, s[54:55]
    s_waitcnt vmcnt(19)
    """)
    for i in range(4):
        A(f"buffer_store_dwordx4 v[40:43], v44, {WS}, s{S_AO} offen offset:{1024*i} sc1")
    A("s_branch k_p0_join")
    A("k_p0_ffn:")
    A("s_sub_u32 s38, s2, 160")
    A("s_waitcnt vmcnt(5)")
    A("k_p0_join:")
    A(f"""
    s_cmp_lg_u32 s2, {NONWG}
    s_cbranch_scc1 k_non1
    s_cmp_lg_u32 s3, 0
    s_cbranch_scc1 k_non1
    v_add_u32 v197, 1, v197
    v_max_u32 v197, 1, v197
    s_mov_b64 exec, 1
    buffer_store_dword v197, v199, s[{S_DBG}:{S_DBG+3}], 0 offen sc1
    s_mov_b64 exec, -1
    k_non1:
    """)
    stamp(A, 1)
    A("s_cmp_lg_u32 s3, 0")
    A("s_cbranch_scc1 k_p0_j2")
    small_clears()
    A("k_p0_j2:")
    for i in range(10):
        unpack_bf16(A, 200 + i, VXF + 2*i, VXF + 2*i + 1)
    ln_stats(A, VXF)
    for i in range(10):
        a_, b_ = VXF + 2*i, VXF + 2*i + 1
        t = 86 + 2 * (i % 2)
        A(f"v_pk_add_f32 v[{t}:{t+1}], v[{a_}:{b_}], v[78:79] op_sel_hi:[1,0] neg_lo:[0,1] neg_hi:[0,1]")
        rnd(A, t, t); rnd(A, t+1, t+1)
        A(f"v_pk_mul_f32 v[{t}:{t+1}], v[{t}:{t+1}], v[80:81] op_sel_hi:[1,0]")
        rnd(A, t, t); rnd(A, t+1, t+1)
        A(f"v_cvt_pk_f16_f32 v{30+i}, v{t}, v{t+1}")
    A(f"""
    s_movk_i32 s52, {TSTR}
    v_mul_lo_u32 v6, v{VTOK}, s52
    v_add_u32 v6, v6, v{VCH}
    """)
    for i in range(5):
        A(f"ds_write_b64 v6, v[{30+2*i}:{31+2*i}] offset:{L_AT + 64*i}")
    A(f"""
    v_bfe_u32 v3, v1, 2, 2
    v_mul_lo_u32 v3, v3, s52
    v_lshrrev_b32 v4, 4, v1
    v_lshl_add_u32 v3, v4, 5, v3
    v_and_b32 v4, 3, v1
    v_lshl_add_u32 v3, v4, 3, v3
    s_lshl_b32 s53, s3, 7
    v_add_u32 v3, s53, v3
    v_lshlrev_b32 v4, 4, v0
    s_mul_i32 s52, s{S_TB}, 10240
    s_add_u32 s52, s52, {WS_UB}
    s_add_u32 s53, s52, 4096
    s_add_u32 s54, s52, 8192
    s_waitcnt lgkmcnt(0)
    s_barrier
    ds_read_b64_tr_b16 v[8:9], v3 offset:{L_AT}
    ds_read_b64_tr_b16 v[10:11], v3 offset:{L_AT + 4*TSTR}
    ds_read_b64_tr_b16 v[12:13], v3 offset:{L_AT + 512}
    ds_read_b64_tr_b16 v[14:15], v3 offset:{L_AT + 4*TSTR + 512}
    ds_read_b64_tr_b16 v[16:17], v3 offset:{L_AT + 1024}
    ds_read_b64_tr_b16 v[18:19], v3 offset:{L_AT + 4*TSTR + 1024}
    s_waitcnt lgkmcnt(0)
    buffer_store_dwordx4 v[8:11], v4, {WS}, s52 offen sc1
    buffer_store_dwordx4 v[12:15], v4, {WS}, s53 offen sc1
    s_cmp_ge_u32 s3, 2
    s_cbranch_scc1 k_ln1_skip
    buffer_store_dwordx4 v[16:19], v4, {WS}, s54 offen sc1
    k_ln1_skip:
    s_cmp_lg_u32 s3, 0
    s_cbranch_scc1 k_non2
    buffer_load_dword v198, v199, s[{S_DBG}:{S_DBG+3}], 0 offen sc1
    k_non2:
    """)
    stamp(A, 2)
    A("s_cmp_lt_u32 s2, 160")
    A("s_cbranch_scc1 k_conv_role")
    publish_flag("ff")
    A("s_waitcnt lgkmcnt(0)")
    A(f"v_readfirstlane_b32 s{S_NON}, v199")
    stamp(A, 3)
    A("s_branch k_ffn_pre")
    A("k_conv_role:")
    A("s_waitcnt vmcnt(6)")
    def flag_poll(sleep, first_issued=False):
        L = newlbl("flg")
        if not first_issued:
            flag_setup()
        A(f"s_mov_b32 s53, 0")
        if first_issued:
            A(f"s_branch {L}_chk")
        A(f"{L}:")
        A(f"s_mov_b64 exec, s[54:55]")
        A(f"buffer_load_dwordx4 v[192:195], v196, {WS}, s51 offen sc1")
        A("s_mov_b64 exec, -1")
        A(f"{L}_chk:")
        A("s_waitcnt vmcnt(0)")
        A(f"v_xor_b32 v192, s{S_NON}, v192")
        A(f"v_xor_b32 v193, s{S_NON}, v193")
        A(f"v_xor_b32 v194, s{S_NON}, v194")
        A(f"v_xor_b32 v195, s{S_NON}, v195")
        A("v_or3_b32 v197, v192, v193, v194")
        A("v_or_b32 v197, v197, v195")
        A("v_cmp_ne_u32 vcc, 0, v197")
        A("s_and_b64 s[54:55], s[54:55], vcc")
        A("s_cmp_eq_u64 s[54:55], 0")
        A(f"s_cbranch_scc1 {L}_done")
        A("s_add_u32 s53, s53, 1")
        A(f"s_sleep {sleep}")
        A(f"s_cmp_lt_u32 s53, {POLL_LIMIT}")
        A(f"s_cbranch_scc1 {L}")
        A(f"{L}_done:")
    def flag_setup():
        A(f"""
        v_lshlrev_b32 v196, 4, v1
        s_and_b32 s51, s2, 7
        s_lshl_b32 s51, s51, 10
        s_add_u32 s51, s51, {WS_FL}
        s_mov_b64 s[54:55], -1
        """)
    def hook0():
        publish_flag("cf")
        stamp(A, 3)
    G = 200
    def gather_issue():
        A(f"""
        v_lshrrev_b32 v216, 2, v1
        s_movk_i32 s52, 10240
        v_mul_lo_u32 v217, v216, s52
        v_and_b32 v218, 3, v1
        v_lshl_add_u32 v217, v218, 4, v217
        s_mul_i32 s52, s3, {64*10240}
        s_lshl_b32 s53, s2, 6
        s_add_u32 s52, s52, s53
        s_add_u32 s52, s52, {WS_UB}
        """)
        for i in range(4):
            A(f"buffer_load_dwordx4 v[{G+4*i}:{G+4*i+3}], v217, {WS}, s52 offen sc1")
            if i < 3: A(f"s_add_u32 s52, s52, {16*10240}")
        A(f"""
        s_movk_i32 s52, {WAVE_LDS}
        v_mul_lo_u32 v218, v218, s52
        v_lshl_add_u32 v218, v216, 4, v218
        s_lshl_b32 s52, s3, 10
        s_add_u32 s52, s52, {LBASE + 32}
        v_add_u32 v218, s52, v218
        """)
    def flag_check():
        A(f"v_xor_b32 v192, s{S_NON}, v192")
        A(f"v_xor_b32 v193, s{S_NON}, v193")
        A(f"v_xor_b32 v194, s{S_NON}, v194")
        A(f"v_xor_b32 v195, s{S_NON}, v195")
        A("v_or3_b32 v197, v192, v193, v194")
        A("v_or_b32 v197, v197, v195")
        A("v_cmp_ne_u32 vcc, 0, v197")
        A("s_and_b64 s[54:55], s[54:55], vcc")
    def p1_hook():
        A("s_waitcnt lgkmcnt(15)")
        A(f"v_readfirstlane_b32 s{S_NON}, v199")
        flag_setup()
        A(f"buffer_load_dwordx4 v[192:195], v196, {WS}, s51 offen sc1")
    def mid_hook():
        A("s_mov_b32 s50, 0")
        A("s_waitcnt vmcnt(0)")
        flag_check()
        A("s_cmp_eq_u64 s[54:55], 0")
        A("s_cbranch_scc0 kg_noearly")
        gather_issue()
        A("s_mov_b32 s50, 1")
        A("s_branch kg_early_done")
        A("kg_noearly:")
        A(f"s_mov_b64 exec, s[54:55]")
        A(f"buffer_load_dwordx4 v[192:195], v196, {WS}, s51 offen sc1")
        A("s_mov_b64 exec, -1")
        A("kg_early_done:")
    def tail_hook():
        stamp(A, 4)
        A("s_cmp_eq_u32 s50, 1")
        A("s_cbranch_scc1 kg_tail_done")
        flag_poll(1, first_issued=True)
        gather_issue()
        A("kg_tail_done:")
        stamp(A, 5)
    kgen(A, mid_hook, tail_hook, hook0, p1_hook)
    A(f"""
    v_lshlrev_b32 v9, 4, v1
    v_add_u32 v9, s{S_B}, v9
    v_add_u32 v10, 4096, v9
    v_cmp_gt_u32 vcc, 2, v1
    v_and_b32 v21, 15, v1
    v_lshrrev_b32 v22, 4, v1
    v_cndmask_b32 v10, v10, v9, vcc
    v_add_u32 v23, 1, v21
    v_and_b32 v24, 3, v23
    s_movk_i32 s53, 4160
    v_mul_lo_u32 v24, v24, s53
    v_lshrrev_b32 v23, 2, v23
    v_lshl_add_u32 v24, v23, 3, v24
    v_lshl_add_u32 v24, v22, 4, v24
    v_add_u32 v24, s{S_B}, v24
    v_lshlrev_b32 v25, 5, v21
    v_sub_u32 v25, {2*2032 - 64*56}, v25
    v_lshl_add_u32 v25, v22, 4, v25
    v_add_u32 v25, s{S_K}, v25
    v_lshlrev_b32 v26, 5, v21
    v_lshl_add_u32 v27, v22, 3, v26
    v_add_u32 v27, 32, v27
    v_add_u32 v27, s{S_B}, v27
    v_lshrrev_b32 v28, 1, v22
    v_lshl_add_u32 v26, v28, 4, v26
    v_and_b32 v28, 1, v22
    v_lshlrev_b32 v28, 30, v28
    v_or_b32 v26, v26, v28
    s_waitcnt lgkmcnt(0)
    s_barrier
    s_mov_b64 exec, 0xf
    ds_write_b128 v10, v[16:19]
    s_mov_b64 exec, -1
    """)
    for i in range(4):
        A(f"s_waitcnt vmcnt({3-i})")
        A(f"ds_write_b128 v218, v[{G+4*i}:{G+4*i+3}] offset:{256*i}")
    R = 128
    A(f"""
    v_mov_b32 v{R+32}, 0
    v_mov_b32 v{R+33}, 0
    v_mov_b32 v{R+34}, 0
    v_mov_b32 v{R+35}, 0
    s_waitcnt lgkmcnt(0)
    s_barrier
    """)
    stamp(A, 6)
    for i in range(4):
        A(f"ds_read_b128 v[{R+8*i}:{R+8*i+3}], v9 offset:{32 + 1024*i}")
        A(f"ds_read_b64 v[{R+8*i+4}:{R+8*i+5}], v9 offset:{48 + 1024*i}")
    A(f"ds_read_b64 v[{R+36}:{R+37}], v9 offset:16")
    nw = 0
    for i in range(5):
        r = R + 8*i
        reads_after = (2 * (3 - i) + 1) if i < 4 else 0
        A(f"s_waitcnt lgkmcnt({min(15, reads_after + nw)})")
        T1, T2, T3 = 176, 180, 184
        if i % 2: T1, T2, T3 = 188, 192, 196
        A(f"v_alignbit_b32 v{T1}, v{r+1}, v{r}, 16")
        A(f"v_alignbit_b32 v{T1+1}, v{r+2}, v{r+1}, 16")
        A(f"v_alignbit_b32 v{T1+2}, v{r+3}, v{r+2}, 16")
        A(f"v_alignbit_b32 v{T1+3}, v{r+4}, v{r+3}, 16")
        off = (32 + 1024*i) if i < 4 else 0
        if i == 4: A("s_mov_b64 exec, 3")
        A(f"ds_write_b128 v9, v[{T1}:{T1+3}] offset:{CB[1] + off}")
        A(f"v_mov_b32 v{T2}, v{r+1}")
        A(f"v_mov_b32 v{T2+1}, v{r+2}")
        A(f"v_mov_b32 v{T2+2}, v{r+3}")
        A(f"v_mov_b32 v{T2+3}, v{r+4}")
        A(f"ds_write_b128 v9, v[{T2}:{T2+3}] offset:{CB[2] + off}")
        A(f"v_mov_b32 v{T3}, v{T1+1}")
        A(f"v_mov_b32 v{T3+1}, v{T1+2}")
        A(f"v_mov_b32 v{T3+2}, v{T1+3}")
        A(f"v_alignbit_b32 v{T3+3}, v{r+5}, v{r+4}, 16")
        A(f"ds_write_b128 v9, v[{T3}:{T3+3}] offset:{CB[3] + off}")
        if i == 4: A("s_mov_b64 exec, -1")
        nw += 3
    A("s_waitcnt lgkmcnt(0)")
    stamp(A, 12)
    def a_setup():
        A(f"""
        v_lshlrev_b32 v3, 12, v0
        s_lshl_b32 s43, s{S_T0}, 1
        s_add_u32 s43, s43, {WS_AT}
        s_add_u32 s44, s43, {256*4096}
        s_add_u32 s45, s43, {512*4096}
        s_mov_b64 s[54:55], -1
        s_mov_b64 s[56:57], -1
        s_mov_b64 s[58:59], -1
        """)
    asets = [dict(mask=54, loads=[f"buffer_load_dwordx4 v[8:11], v3, {WS}, s43 offen sc1"], regs=[8,9,10,11], tmp=20),
             dict(mask=56, loads=[f"buffer_load_dwordx4 v[12:15], v3, {WS}, s44 offen sc1"], regs=[12,13,14,15], tmp=20),
             dict(mask=58, loads=[f"buffer_load_dwordx4 v[16:19], v3, {WS}, s45 offen sc1"], regs=[16,17,18,19], tmp=20)]
    agroups = [dict(mask=54, loads=[(f"buffer_load_dwordx4 {{dst}}, v3, {WS}, s43 offen sc1", 4, 8)], tmp=20),
               dict(mask=56, loads=[(f"buffer_load_dwordx4 {{dst}}, v3, {WS}, s44 offen sc1", 4, 12)], tmp=20),
               dict(mask=58, loads=[(f"buffer_load_dwordx4 {{dst}}, v3, {WS}, s45 offen sc1", 4, 16)], tmp=20)]
    def mask3():
        L = newlbl("m3")
        A(f"s_cmp_lt_u32 s3, 2")
        A(f"s_cbranch_scc1 {L}")
        A("s_mov_b64 s[58:59], 0")
        A(f"{L}:")
    a_setup()
    def a_hook():
        for st in asets:
            for ld in st["loads"]: A(ld.replace(" sc1", APLAIN))
    nst = conv_main(A, AHOOK, a_hook if AHOOK >= 0 else None)
    stamp(A, 7)
    if CDELAY: A(f"s_sleep {CDELAY}")
    mask3()
    if PIPE:
        pipe_poll(A, agroups, 46, "apollc", PK_A, 164, PSTAG)
    else:
        masked_poll(A, asets, 46, ASLEEP, "apollc", first=(("issued", nst) if AHOOK >= 0 else None))
    cnt_stamp(A, 0, 46)
    A("s_branch k_ln2c")
    A("k_ffn_pre:")
    srd(A, 24, 62, 63, 0, 640*3072)
    srd(A, 28, 64, 65, 0, 640*3072)
    srd(A, 32, 66, 67, 0, 1536*1280)
    if WPF:
        A(f"""
        s_and_b32 s39, s38, 7
        s_lshr_b32 s42, s38, 3
        s_mul_i32 s52, s42, 160
        v_add_u32 v8, s52, v0
        v_mul_u32_u24 v9, 0x5556, v8
        v_lshrrev_b32 v9, 16, v9
        v_mul_u32_u24 v10, 3, v9
        v_sub_u32 v10, v8, v10
        v_mul_u32_u24 v9, 3072, v9
        v_lshl_add_u32 v9, v10, 7, v9
        s_mul_i32 s52, s39, 384
        v_mov_b32 v11, 0x7fffffff
        v_cmp_gt_u32 vcc, 160, v0
        s_lshl_b32 s53, s42, 8
        v_add_u32 v12, s53, v0
        v_cndmask_b32 v9, v11, v9, vcc
        buffer_load_dword v160, v9, s[24:27], s52 offen
        buffer_load_dword v161, v9, s[28:31], s52 offen
        v_lshrrev_b32 v10, 1, v12
        v_mul_u32_u24 v10, 1280, v10
        v_and_b32 v12, 1, v12
        v_lshl_add_u32 v10, v12, 7, v10
        s_mul_i32 s52, s39, 160
        s_and_b32 s52, s52, 0xffffff80
        buffer_load_dword v162, v10, s[32:35], s52 offen
        """)
    A(f"""
    s_sub_u32 s38, s2, 160
    s_and_b32 s39, s38, 7
    s_lshr_b32 s42, s38, 3
    s_mul_i32 s36, s39, 12
    s_add_u32 s36, s36, s42
    s_mul_i32 s37, s39, 10
    s_add_u32 s37, s37, s42
    v_lshrrev_b32 v3, 1, v0
    s_movk_i32 s46, 3072
    v_mul_lo_u32 v3, v3, s46
    v_and_b32 v4, 1, v0
    v_lshl_add_u32 v3, v4, 4, v3
    s_lshl_b32 s43, s36, 5
    s_lshl_b32 s44, s3, 10
    """)
    for it in range(5):
        A(f"s_add_u32 s45, s43, {it*128*3072}")
        A(f"s_add_u32 s47, s44, {L_G + it*4096}")
        A("s_mov_b32 m0, s47")
        A("s_nop 0")
        A("buffer_load_dwordx4 v3, s[24:27], s45 offen lds")
        A(f"s_add_u32 s47, s44, {L_U + it*4096}")
        A("s_mov_b32 m0, s47")
        A("s_nop 0")
        A("buffer_load_dwordx4 v3, s[28:31], s45 offen lds")
    A(f"""
    s_cmp_ge_u32 s38, 80
    s_cbranch_scc1 k_ffn_nowd
    s_movk_i32 s46, 1280
    v_mul_lo_u32 v3, v0, s46
    s_lshl_b32 s43, s37, 4
    """)
    for it in range(6):
        A(f"s_add_u32 s45, s43, {it*256*1280}")
        A(f"s_add_u32 s47, s44, {L_WD + it*4096}")
        A("s_mov_b32 m0, s47")
        A("s_nop 0")
        A("buffer_load_dwordx4 v3, s[32:35], s45 offen lds")
    A("k_ffn_nowd:")
    flag_poll(8)
    stamp(A, 5)
    if CANARY:
        A(f"""
        s_cmp_lg_u32 s3, 0
        s_cbranch_scc1 k_can_done
        v_lshlrev_b32 v3, 12, v0
        s_and_b32 s43, s{S_TB}, 31
        s_add_u32 s43, s43, {32*CTILE}
        s_lshl_b32 s43, s43, 4
        s_add_u32 s43, s43, {WS_AT}
        s_mov_b64 s[54:55], -1
        """)
        masked_poll(A, [dict(mask=54, loads=[f"buffer_load_dwordx4 v[8:11], v3, {WS}, s43 offen sc1"], regs=[8, 9, 10, 11], tmp=12)], 46, CSLEEP, "can")
        cnt_stamp(A, 2, 46)
        A("k_can_done:")
        A("s_barrier")
    stamp(A, 7)
    A("s_branch k_ln2b")
    A("k_ln2b:")
    a_setup()
    mask3()
    if PIPE:
        pipe_poll(A, agroups, 46, "apoll", PK_A, 164, PSTAG)
    else:
        masked_poll(A, asets, 46, FSLEEP, "apoll", first=("plain" if (APLAIN == "" and CANARY) else None))
    cnt_stamp(A, 0, 46)
    A("k_ln2c:")
    A(f"""
    v_lshlrev_b32 v3, 4, v0
    ds_write_b128 v3, v[8:11] offset:{L_AT}
    ds_write_b128 v3, v[12:15] offset:{L_AT+4096}
    s_cmp_ge_u32 s3, 2
    s_cbranch_scc1 k_ln2_w3
    ds_write_b128 v3, v[16:19] offset:{L_AT+8192}
    k_ln2_w3:
    v_lshrrev_b32 v8, 4, v1
    v_lshlrev_b32 v8, 3, v8
    v_bfe_u32 v9, v1, 1, 1
    v_lshl_add_u32 v8, v9, 2, v8
    v_bfe_u32 v9, v1, 2, 2
    v_add_u32 v8, v8, v9
    s_mul_i32 s47, s3, 160
    v_add_u32 v8, s47, v8
    v_lshlrev_b32 v8, 4, v8
    v_and_b32 v9, 1, v1
    v_lshl_add_u32 v8, v9, 3, v8
    s_waitcnt lgkmcnt(0)
    s_barrier
    """)
    stamp(A, 8)
    for i in range(5):
        A(f"ds_read_b64_tr_b16 v[{30+2*i}:{31+2*i}], v8 offset:{L_AT+512*i}")
    H = 40
    for i in range(10):
        a, b = H + 2*i, H + 2*i + 1
        if i % 2 == 0: A(f"s_waitcnt lgkmcnt({4 - i//2})")
        unpack_bf16(A, 30 + i, a, b)
        A(f"v_pk_add_f32 v[{a}:{b}], v[{a}:{b}], v[{VXF+2*i}:{VXF+2*i+1}]")
        rnd(A, a, a); rnd(A, b, b)
    ln_stats(A, H)
    A("v_mov_b32 v82, 0")
    A("v_mov_b32 v83, 0")
    for i in range(10):
        a, b = H + 2*i, H + 2*i + 1
        t = 86 + 2 * (i % 2)
        A(f"v_pk_add_f32 v[{t}:{t+1}], v[{a}:{b}], v[78:79] op_sel_hi:[1,0] neg_lo:[0,1] neg_hi:[0,1]")
        rnd(A, t, t); rnd(A, t+1, t+1)
        A(f"v_pk_mul_f32 v[{t}:{t+1}], v[{t}:{t+1}], v[80:81] op_sel_hi:[1,0]")
        A(f"v_cvt_pk_bf16_f32 v{30+i}, v{t}, v{t+1}")
        A(f"v_dot2_f32_bf16 v{82 + i % 2}, v{30+i}, v{VW+i}, v{82 + i % 2}")
    A("s_nop 2")
    A("v_add_f32 v82, v82, v83")
    red8(A, 82, 83)
    A(f"""
    v_lshlrev_b32 v76, 2, v{VTOK}
    v_add_u32 v76, {L_RP}, v76
    s_lshl_b32 s47, s3, 5
    v_add_u32 v77, s47, v76
    v_cmp_gt_u32 vcc, 8, v1
    s_and_saveexec_b64 s[48:49], vcc
    ds_write_b32 v77, v82
    s_mov_b64 exec, s[48:49]
    s_waitcnt lgkmcnt(0)
    s_barrier
    ds_read_b32 v78, v76
    ds_read_b32 v79, v76 offset:32
    ds_read_b32 v80, v76 offset:64
    ds_read_b32 v81, v76 offset:96
    s_waitcnt lgkmcnt(0)
    v_add_f32 v78, v78, v79
    v_add_f32 v80, v80, v81
    v_add_f32 v78, v78, v80
    v_cvt_pk_bf16_f32 v78, v78, v78
    v_and_b32 v78, 0xffff, v78
    v_xor_b32 v79, 0xffff, v78
    v_or_b32 v80, 0x8000, v78
    v_cmp_lt_u32 vcc, 0x7fff, v78
    v_lshlrev_b32 v87, 16, v78
    s_nop 0
    v_cndmask_b32 v78, v80, v79, vcc
    v_lshlrev_b32 v78, 16, v78
    v_add_u32 v79, s{S_T0}, v{VTOK}
    v_sub_u32 v80, 0xffff, v79
    v_or_b32 v86, v78, v80
    s_cmp_lg_u32 s3, 0
    s_cbranch_scc1 k_nokey
    v_lshlrev_b32 v80, 2, v79
    v_lshrrev_b32 v81, 3, v1
    v_lshl_add_u32 v80, v81, 13, v80
    s_mov_b32 s47, {WS_KEY}
    buffer_store_dword v86, v80, {WS}, s47 offen sc1
    k_nokey:
    """)
    stamp(A, 9)
    A(f"""
    v_lshlrev_b32 v9, 5, v0
    s_and_b32 s47, s2, {KREP-1}
    s_lshl_b32 s47, s47, 13
    s_add_u32 s47, s47, {WS_KEY}
    s_mov_b64 s[54:55], -1
    """)
    for i in range(10):
        a, b = H + 2*i, H + 2*i + 1
        unpack_bf16(A, 30 + i, 70, 71)
        A(f"v_pk_add_f32 v[70:71], v[70:71], v[{a}:{b}]")
        A(f"v_cvt_pk_bf16_f32 v{10+i}, v70, v71")
    if KDELAY:
        A("s_cmp_ge_u32 s2, 160")
        A("s_cbranch_scc1 k_kd")
        A(f"s_sleep {KDELAY}")
        A("k_kd:")
    if PIPE:
        pipe_poll(A, [dict(mask=54, loads=[(f"buffer_load_dwordx4 {{dst}}, v9, {WS}, s47 offen sc1", 4, 90), (f"buffer_load_dwordx4 {{dst}}, v9, {WS}, s47 offen offset:16 sc1", 4, 94)],
                           sent="min", tmp=98)], 46, "kpoll", PK_K, 164, PSTAG)
    else:
        masked_poll(A, [dict(mask=54, loads=[f"buffer_load_dwordx4 v[90:93], v9, {WS}, s47 offen sc1", f"buffer_load_dwordx4 v[94:97], v9, {WS}, s47 offen offset:16 sc1"],
                             regs=list(range(90, 98)), tmp=98, sent="min")], 46, KSLEEP, "kpoll")
    cnt_stamp(A, 1, 46)
    stamp(A, 10)
    A(f"""
    s_mov_b32 s50, -1
    s_mov_b64 s[52:53], 0
    s_mov_b32 s51, 0
    k_own:
    v_cmp_gt_u32 vcc, s50, v86
    s_nop 1
    v_cndmask_b32 v98, 0, v86, vcc
    """)
    for pat in ("quad_perm:[1,0,3,2]", "quad_perm:[2,3,0,1]", "row_half_mirror"):
        A("s_nop 1")
        A(f"v_max_u32_dpp v98, v98, v98 {pat} {DPP}")
    A(f"""
    s_nop 0
    v_readfirstlane_b32 s54, v98
    s_nop 3
    s_cmp_eq_u32 s54, 0
    s_cbranch_scc1 k_own_done
    s_mov_b32 s55, 0
    """)
    for r in range(8):
        A(f"v_cmp_lt_u32 vcc, s54, v{90+r}")
        A(f"s_bcnt1_i32_b64 s56, vcc")
        A(f"s_add_u32 s55, s55, s56")
    A(f"""
    s_lshl_b32 s56, s51, 4
    s_lshl_b32 s57, s3, 2
    s_add_u32 s57, s57, s56
    s_add_u32 s57, s57, {L_CNT}
    v_mov_b32 v99, s57
    v_mov_b32 v100, s55
    s_add_u32 s56, s56, {L_CNT}
    v_mov_b32 v101, s56
    s_mov_b64 exec, 1
    ds_write_b32 v99, v100
    s_mov_b64 exec, -1
    s_waitcnt lgkmcnt(0)
    s_barrier
    ds_read_b128 v[102:105], v101
    s_waitcnt lgkmcnt(0)
    v_add_u32 v102, v102, v103
    v_add3_u32 v102, v102, v104, v105
    s_nop 0
    v_readfirstlane_b32 s55, v102
    s_nop 3
    s_cmp_ge_u32 s55, 8
    s_cbranch_scc1 k_own_done
    v_cmp_eq_u32 vcc, s54, v86
    s_or_b64 s[52:53], s[52:53], vcc
    s_and_saveexec_b64 s[48:49], vcc
    s_mul_i32 s56, s55, 1280
    s_add_u32 s57, s56, {WS_HS}
    s_add_u32 s56, s56, {WS_ZS}
    """)
    for i in range(5):
        A(f"buffer_store_dwordx2 v[{30+2*i}:{31+2*i}], v{VCH}, {WS}, s56 offen offset:{64*i} sc1")
    for i in range(10):
        A(f"v_cvt_pk_bf16_f32 v{106+i}, v{H+2*i}, v{H+2*i+1}")
    for i in range(5):
        A(f"buffer_store_dwordx2 v[{106+2*i}:{107+2*i}], v{VCH}, {WS}, s57 offen offset:{64*i} sc1")
    A(f"""
    s_cmp_lg_u32 s3, 0
    s_cbranch_scc1 k_own_nometa
    v_cmp_gt_u32 vcc, 8, v1
    s_and_b64 exec, exec, vcc
    v_mul_f32 v99, {hex(F_LOG2E)}, v87
    v_exp_f32 v99, -v99
    s_nop 0
    v_add_f32 v99, 1.0, v99
    v_rcp_f32 v99, v99
    s_nop 0
    v_cvt_pk_bf16_f32 v99, 0, v99
    s_lshl_b32 s56, s55, 2
    s_add_u32 s56, s56, {WS_META}
    v_mov_b32 v100, 0
    buffer_store_dword v79, v100, {WS}, s56 offen sc1
    buffer_store_dword v99, v100, {WS}, s56 offen offset:32 sc1
    k_own_nometa:
    s_mov_b64 exec, -1
    s_mov_b32 s50, s54
    s_xor_b32 s51, s51, 1
    s_branch k_own
    k_own_done:
    """)
    stamp(A, 11)
    A("s_andn2_b64 exec, exec, s[52:53]")
    for i in range(5):
        A(f"buffer_store_dwordx2 v[{10+2*i}:{11+2*i}], v{VROW}, s[{S_X}:{S_X+3}], 0 offen offset:{64*i} {OUTF}")
    A("s_mov_b64 exec, -1")
    A("s_cmp_lt_u32 s2, 160")
    A("s_cbranch_scc1 k_end")
    A(f"""
    v_lshrrev_b32 v7, 4, v1
    s_movk_i32 s46, 1280
    v_mul_lo_u32 v9, v{VTOK}, s46
    v_lshl_add_u32 v9, v7, 4, v9
    s_mul_i32 s47, s3, 320
    s_add_u32 s47, s47, {WS_ZS}
    v_lshlrev_b32 v10, 3, v7
    v_bfe_u32 v11, v1, 2, 2
    v_add_u32 v10, v10, v11
    v_lshlrev_b32 v10, 5, v10
    v_and_b32 v11, 3, v1
    v_lshl_add_u32 v10, v11, 3, v10
    s_mul_i32 s44, s3, {5*32*32}
    s_add_u32 s44, s44, {L_G}
    v_add_u32 v10, s44, v10
    """)
    for i in range(5):
        A(f"ds_read_b64_tr_b16 v[{120+4*i}:{121+4*i}], v10 offset:{1024*i}")
        A(f"ds_read_b64_tr_b16 v[{122+4*i}:{123+4*i}], v10 offset:{1024*i + 128}")
        A(f"ds_read_b64_tr_b16 v[{140+4*i}:{141+4*i}], v10 offset:{L_U - L_G + 1024*i}")
        A(f"ds_read_b64_tr_b16 v[{142+4*i}:{143+4*i}], v10 offset:{L_U - L_G + 1024*i + 128}")
        if i % 2 == 1: A("s_waitcnt lgkmcnt(0)")
    A("s_mov_b64 s[54:55], -1")
    if ZDELAY: A(f"s_sleep {ZDELAY}")
    if PIPE:
        pipe_poll(A, [dict(mask=54, loads=[(f"buffer_load_dwordx4 {{dst}}, v9, {WS}, s47 offen offset:{64*i} sc1", 4, 40+4*i) for i in range(5)], tmp=60)], 46, "zpoll", 2, 164, PSTAG2)
    else:
        masked_poll(A, [dict(mask=54, loads=[f"buffer_load_dwordx4 v[{40+4*i}:{43+4*i}], v9, {WS}, s47 offen offset:{64*i} sc1" for i in range(5)],
                             regs=list(range(40, 60)), tmp=60)], 46, 1, "zpoll")
    cnt_stamp(A, 3, 46)
    stamp(A, 12)
    A("s_waitcnt lgkmcnt(0)")
    for i in range(5):
        c = "0" if i == 0 else "v[80:83]"
        A(f"v_mfma_f32_16x16x32_bf16 v[80:83], v[{40+4*i}:{43+4*i}], v[{120+4*i}:{123+4*i}], {c}")
        c = "0" if i == 0 else "v[84:87]"
        A(f"v_mfma_f32_16x16x32_bf16 v[84:87], v[{40+4*i}:{43+4*i}], v[{140+4*i}:{143+4*i}], {c}")
    A(f"""
    v_lshlrev_b32 v11, 4, v1
    s_lshl_b32 s44, s3, 11
    v_add_u32 v12, s44, v11
    s_lshl_b32 s44, s3, 2
    v_add_u32 v11, s44, v11
    s_nop 5
    ds_write_b128 v12, v[80:83] offset:{L_RED}
    ds_write_b128 v12, v[84:87] offset:{L_RED+1024}
    s_waitcnt lgkmcnt(0)
    s_barrier
    """)
    for w in range(4):
        A(f"ds_read_b32 v{40+w}, v11 offset:{L_RED + 2048*w}")
        A(f"ds_read_b32 v{44+w}, v11 offset:{L_RED + 2048*w + 1024}")
    A(f"""
    v_and_b32 v13, 15, v1
    v_lshlrev_b32 v12, 1, v13
    v_lshrrev_b32 v7, 4, v1
    s_movk_i32 s46, {4*3072}
    v_mul_lo_u32 v14, v7, s46
    v_add_u32 v12, v12, v14
    s_lshl_b32 s44, s36, 5
    s_mul_i32 s45, s3, 3072
    s_add_u32 s44, s44, s45
    s_add_u32 s44, s44, {WS_HID}
    s_waitcnt lgkmcnt(0)
    v_add_f32 v40, v40, v41
    v_add_f32 v42, v42, v43
    v_add_f32 v44, v44, v45
    v_add_f32 v46, v46, v47
    v_add_f32 v40, v40, v42
    v_add_f32 v44, v44, v46
    v_cvt_pk_bf16_f32 v40, 0, v40
    v_cvt_pk_bf16_f32 v44, 0, v44
    v_mul_f32 v52, {hex(F_LOG2E)}, v40
    v_exp_f32 v52, -v52
    s_nop 0
    v_add_f32 v52, 1.0, v52
    v_rcp_f32 v52, v52
    s_nop 0
    v_mul_f32 v52, v52, v40
    v_cvt_pk_bf16_f32 v52, 0, v52
    v_mul_f32 v52, v52, v44
    v_cvt_pk_bf16_f32 v52, v52, v52
    s_mov_b32 s58, 0x05040100
    s_nop 0
    v_mov_b32_dpp v53, v52 quad_perm:[1,1,3,3] {DPP}
    v_perm_b32 v56, v53, v52, s58
    s_nop 1
    v_mov_b32_dpp v57, v56 row_shl:2 {DPP}
    v_mov_b32_dpp v58, v56 row_shl:4 {DPP}
    v_mov_b32_dpp v59, v56 row_shl:6 {DPP}
    v_and_b32 v11, 7, v1
    v_cmp_eq_u32 vcc, 0, v11
    v_cmp_gt_u32 s[48:49], 2, v7
    s_and_b64 vcc, vcc, s[48:49]
    s_and_saveexec_b64 s[48:49], vcc
    buffer_store_dwordx4 v[56:59], v12, {WS}, s44 offen sc1
    s_add_u32 s45, s44, 24576
    buffer_store_dwordx4 v[56:59], v12, {WS}, s45 offen sc1
    s_add_u32 s45, s44, 49152
    buffer_store_dwordx4 v[56:59], v12, {WS}, s45 offen sc1
    s_add_u32 s45, s44, 73728
    buffer_store_dwordx4 v[56:59], v12, {WS}, s45 offen sc1
    s_mov_b64 exec, -1
    """)
    stamp(A, 13)
    A("s_cmp_ge_u32 s38, 80")
    A("s_cbranch_scc1 k_end")
    A(f"""
    v_bfe_u32 v5, v1, 3, 1
    v_lshrrev_b32 v7, 4, v1
    s_movk_i32 s46, 3072
    v_mul_lo_u32 v9, v{VTOK}, s46
    s_movk_i32 s46, 1536
    v_mul_lo_u32 v10, v5, s46
    v_add_u32 v9, v9, v10
    v_lshl_add_u32 v9, v7, 4, v9
    s_mul_i32 s47, s3, {6*64}
    s_and_b32 s46, s2, {HREP-1}
    s_mul_i32 s46, s46, 24576
    s_add_u32 s47, s47, s46
    s_add_u32 s47, s47, {WS_HID}
    v_lshlrev_b32 v14, 3, v7
    v_bfe_u32 v15, v1, 2, 2
    v_add_u32 v14, v14, v15
    v_bfe_u32 v15, v1, 1, 1
    s_movk_i32 s46, 768
    v_mul_lo_u32 v15, v15, s46
    v_add_u32 v14, v14, v15
    v_lshlrev_b32 v14, 4, v14
    v_and_b32 v15, 1, v1
    v_lshl_add_u32 v14, v15, 3, v14
    s_mul_i32 s44, s3, {6*512}
    s_add_u32 s44, s44, {L_WD}
    v_add_u32 v14, s44, v14
    """)
    for i in range(6):
        A(f"ds_read_b64_tr_b16 v[{120+4*i}:{121+4*i}], v14 offset:{512*i}")
        A(f"ds_read_b64_tr_b16 v[{122+4*i}:{123+4*i}], v14 offset:{512*i + 64}")
    A(f"""
    v_lshrrev_b32 v20, 3, v1
    v_and_b32 v21, 7, v1
    s_movk_i32 s46, 1280
    v_mul_lo_u32 v35, v20, s46
    v_lshl_add_u32 v35, v21, 1, v35
    v_and_b32 v35, 0xfffffffc, v35
    s_lshl_b32 s44, s37, 4
    s_add_u32 s50, s44, {WS_ZS}
    s_add_u32 s51, s44, {WS_HS}
    v_lshlrev_b32 v32, 2, v20
    s_mov_b32 s45, {WS_META}
    s_mov_b64 s[54:55], -1
    s_mov_b64 s[56:57], 0
    s_cmp_lg_u32 s3, 0
    s_cbranch_scc1 k_g2_m
    s_mov_b64 s[56:57], -1
    k_g2_m:
    """)
    if HDELAY: A(f"s_sleep {HDELAY}")
    if PIPE:
        pipe_poll(A, [dict(mask=54, loads=[(f"buffer_load_dwordx4 {{dst}}, v9, {WS}, s47 offen offset:{64*i} sc1", 4, 40+4*i) for i in range(6)], tmp=65),
                      dict(mask=56, loads=[(f"buffer_load_dword {{dst}}, v35, {WS}, s50 offen sc1", 1, 36), (f"buffer_load_dword {{dst}}, v35, {WS}, s51 offen sc1", 1, 37),
                                           (f"buffer_load_dword {{dst}}, v32, {WS}, s45 offen sc1", 1, 33), (f"buffer_load_dword {{dst}}, v32, {WS}, s45 offen offset:32 sc1", 1, 34)], tmp=64)],
                  46, "hpoll", 2, 164, PSTAG2)
    else:
        masked_poll(A, [dict(mask=54, loads=[f"buffer_load_dwordx4 v[{40+4*i}:{43+4*i}], v9, {WS}, s47 offen offset:{64*i} sc1" for i in range(6)],
                             regs=list(range(40, 64)), tmp=65),
                        dict(mask=56, loads=[f"buffer_load_dword v36, v35, {WS}, s50 offen sc1", f"buffer_load_dword v37, v35, {WS}, s51 offen sc1",
                                             f"buffer_load_dword v33, v32, {WS}, s45 offen sc1", f"buffer_load_dword v34, v32, {WS}, s45 offen offset:32 sc1"],
                             regs=[36, 37, 33, 34], tmp=64)], 46, 1, "hpoll")
    cnt_stamp(A, 4, 46)
    stamp(A, 14)
    A("s_waitcnt lgkmcnt(0)")
    for i in range(6):
        c = "0" if i == 0 else "v[88:91]"
        A(f"v_mfma_f32_16x16x32_bf16 v[88:91], v[{40+4*i}:{43+4*i}], v[{120+4*i}:{123+4*i}], {c}")
    A(f"""
    v_lshlrev_b32 v15, 4, v1
    s_lshl_b32 s44, s3, 10
    v_add_u32 v16, s44, v15
    s_barrier
    s_nop 4
    ds_write_b128 v16, v[88:91] offset:{L_RED}
    s_waitcnt lgkmcnt(0)
    s_barrier
    s_cmp_lg_u32 s3, 0
    s_cbranch_scc1 k_end
    v_lshrrev_b32 v22, 2, v20
    v_lshl_add_u32 v22, v22, 4, v21
    v_lshlrev_b32 v22, 4, v22
    v_and_b32 v23, 3, v20
    v_lshl_add_u32 v22, v23, 2, v22
    """)
    for w in range(4):
        A(f"ds_read_b32 v{24+2*w}, v22 offset:{L_RED + 1024*w}")
        A(f"ds_read_b32 v{25+2*w}, v22 offset:{L_RED + 1024*w + 640}")
    A(f"""
    v_and_b32 v38, 1, v21
    v_cmp_eq_u32 vcc, 1, v38
    v_lshlrev_b32 v38, 16, v36
    v_and_b32 v36, 0xffff0000, v36
    v_cndmask_b32 v36, v38, v36, vcc
    v_lshlrev_b32 v38, 16, v37
    v_and_b32 v37, 0xffff0000, v37
    v_cndmask_b32 v37, v38, v37, vcc
    s_movk_i32 s46, 1280
    v_mul_lo_u32 v35, v33, s46
    v_lshl_add_u32 v35, v21, 1, v35
    s_lshl_b32 s44, s37, 4
    s_waitcnt lgkmcnt(0)
    v_add_f32 v24, v24, v25
    v_add_f32 v26, v26, v27
    v_add_f32 v28, v28, v29
    v_add_f32 v30, v30, v31
    v_add_f32 v24, v24, v26
    v_add_f32 v28, v28, v30
    v_add_f32 v24, v24, v28
    v_cvt_pk_bf16_f32 v24, 0, v24
    v_mul_f32 v24, v24, v34
    v_cvt_pk_bf16_f32 v24, 0, v24
    v_add_f32 v24, v36, v24
    v_cvt_pk_bf16_f32 v24, 0, v24
    v_add_f32 v24, v37, v24
    v_cvt_pk_bf16_f32 v24, v24, v24
    buffer_store_short v24, v35, s[{S_X}:{S_X+3}], s44 offen
    k_end:
    """)
    stamp_flush(A)
    A("k_exit:")
    A("s_endpgm")
    A("k_code_end:")
    A("s_endpgm")
    return name

def main():
    global STAMP
    if "--stamp" in sys.argv:
        STAMP = True
        sys.argv.remove("--stamp")
    hdr = open("cdna_kernels/%s.s.ref" % NAME).read().split("; Override launch")[0]
    b = Asm(); name = gen_main(b)
    out = hdr + f"; @launch grid=(256,1,1) block=(256,1,1) lds={LDS_TOTAL}\n"
    out += '.amdgcn_target "amdgcn-amd-amdhsa--gfx950"\n.text\n'
    out += b.text()
    out += '.section .rodata,"a"\n.p2align 6\n' + gen.kernel_desc(name, 512, 100, 256)
    path = sys.argv[1] if len(sys.argv) > 1 else "cdna_kernels/%s.s" % NAME
    open(path, "w").write(out)
    print("wrote", path, len(out))

if __name__ == "__main__":
    main()
```

```python
import sys, os, struct
from gen import Asm as Asm0, srd, DPP, allreduce16, xor16, xor32, f32bits
from gen import F_INV640, F_LOG2E, F_INV2PI, F_EPS, ARG, NAME
import gen
from gen import Asm as Asm0

WS_UB = 0x000000
WS_AT = 0x280000
WS_KEY = 0x500000
WS_SM = 0x510000
WS_ZS = WS_SM
WS_HS = WS_SM + 10240
WS_META = WS_SM + 20480
WS_HID = WS_SM + 20736
WS_FL = 0x530000
WS_SIZE = 0x540000
WS_STAMP = 0x1000000

STAMP = False
KSTAMP = os.environ.get('KSTAMP', '0') == '1'
class Asm(Asm0):
    pass

def stamp(A, k):
    if STAMP:
        A("s_memrealtime s[98:99]")
        A("s_waitcnt lgkmcnt(0)")
        A(f"v_writelane_b32 v255, s98, {k}")

def cnt_stamp(A, k, sreg):
    if STAMP:
        A(f"v_writelane_b32 v254, s{sreg}, {k}")

def stamp_flush(A):
    if STAMP and DBGWG >= 0:
        A("s_waitcnt vmcnt(0) lgkmcnt(0)")
        stamp(A, 15)
        A(f"s_cmp_lg_u32 s2, {DBGWG}")
        A("s_cbranch_scc1 k_dbg_skip")
        A("s_cmp_lg_u32 s3, 0")
        A("s_cbranch_scc1 k_dbg_skip")
        A("v_readlane_b32 s90, v255, 0")
        A("s_nop 3")
        A("v_subrev_u32 v255, s90, v255")
        A("v_and_b32 v3, 63, v0")
        A("v_lshlrev_b32 v2, 2, v3")
        A("s_mov_b64 exec, 0xfffe")
        A(f"buffer_store_dword v255, v2, s[{S_DBG}:{S_DBG+3}], 0 offen")
        A("k_dbg_skip:")
        return
    if STAMP:
        A("s_waitcnt vmcnt(0) lgkmcnt(0)")
        stamp(A, 15)
        A(f"s_load_dwordx2 s[88:89], s[0:1], {ARG['ws']}")
        A("s_waitcnt lgkmcnt(0)")
        srd(A, 84, 88, 89, WS_STAMP, 0x40000)
        A("v_lshrrev_b32 v2, 6, v0")
        A("s_lshl_b32 s91, s2, 2")
        A("v_add_u32 v2, s91, v2")
        A("v_lshlrev_b32 v2, 6, v2")
        A("v_and_b32 v3, 63, v0")
        A("v_lshl_add_u32 v2, v3, 2, v2")
        A("s_mov_b64 exec, 0xffff")
        A("buffer_store_dword v255, v2, s[84:87], 0 offen")
        A("v_add_u32 v2, 0x20000, v2")
        A("buffer_store_dword v254, v2, s[84:87], 0 offen")

WAVE_LDS = 30432
CB = [0, 4160, 8320, 12480]
KOFF = 16640
TSTR = 1352
L_AT = 0
L_MISC = 10816
L_ST = L_MISC
L_RP = L_MISC + 256
L_CNT = L_MISC + 384
L_NON = L_MISC + 448
L_RED = L_MISC + 512
LBASE = 19712
L_G, L_U, L_WD = LBASE, LBASE + 20480, LBASE + 40960
LDS_TOTAL = LBASE + 4 * WAVE_LDS
POLL_LIMIT = 40000
ZDELAY = int(os.environ.get('ZDELAY', '8'))
HDELAY = int(os.environ.get('HDELAY', '6'))
KDELAY = int(os.environ.get('KDELAY', '32'))
PIPE = os.environ.get('PIPE', '0') == '1'
PK_A = int(os.environ.get('PK_A', '3'))
PK_K = int(os.environ.get('PK_K', '3'))
PSTAG = int(os.environ.get('PSTAG', '8'))
PSTAG2 = int(os.environ.get('PSTAG2', '12'))
KREP = int(os.environ.get('KREP', '8'))
HREP = int(os.environ.get('HREP', '4'))
VERB = True
PFFIRST = int(os.environ.get('PFFIRST', '0'))
CTILE = int(os.environ.get('CTILE', '3'))
EARLYG = os.environ.get('EARLYG', '1') == '1'
OUTF = os.environ.get('OUTF', '')
DBGWG = int(os.environ.get('DBGWG', '-1'))
NONWG = int(os.environ.get('NONWG', '0'))
CDELAY = int(os.environ.get('CDELAY', '0'))
WPF = os.environ.get('WPF', '1') == '1'
CSLEEP = int(os.environ.get('CSLEEP', '8'))
CANARY = os.environ.get('CANARY', '1') == '1'
FSLEEP = int(os.environ.get('FSLEEP', '2'))
APLAIN = ' sc1' if os.environ.get('APLAIN', '0') == '0' else ''
AHOOK = int(os.environ.get('AHOOK', '-1'))
CODEPF = os.environ.get('CODEPF', '1') == '1'
NPF = int(os.environ.get('NPF', '8'))
KSLEEP = int(os.environ.get('KSLEEP', '3'))
ASLEEP = int(os.environ.get('ASLEEP', '2'))

S_WS, S_X, S_DBG, S_WR = 8, 12, 20, 16
S_TB, S_T0 = 40, 41
S_D, S_B, S_K, S_AO, S_F, S_DS, S_NON = 74, 75, 76, 77, 78, 79, 72
VXF = 220
VW = 240
VROW, VCH, VTOK = 250, 251, 252
VSW = 253

lblc = [0]
def newlbl(p):
    lblc[0] += 1
    return f"{p}_{lblc[0]}"

def rnd(A, d, s):
    A(f"v_cvt_pk_bf16_f32 v{d}, 0, v{s}")

def unpack_bf16(A, src, dlo, dhi):
    A(f"v_lshlrev_b32 v{dlo}, 16, v{src}")
    A(f"v_and_b32 v{dhi}, 0xffff0000, v{src}")

def red8(A, x, t):
    A("s_nop 1")
    A(f"v_add_f32_dpp v{x}, v{x}, v{x} row_ror:8 {DPP}")
    xor16(A, "v_add_f32", x, t)
    xor32(A, "v_add_f32", x, t)

def ln_stats(A, H):
    A(f"v_pk_add_f32 v[72:73], v[{H}:{H+1}], v[{H+2}:{H+3}]")
    A(f"v_pk_add_f32 v[74:75], v[{H+4}:{H+5}], v[{H+6}:{H+7}]")
    for i in range(4, 10, 2):
        A(f"v_pk_add_f32 v[72:73], v[72:73], v[{H+2*i}:{H+2*i+1}]")
        A(f"v_pk_add_f32 v[74:75], v[74:75], v[{H+2*i+2}:{H+2*i+3}]")
    A("v_pk_add_f32 v[72:73], v[72:73], v[74:75]")
    A("v_add_f32 v72, v72, v73")
    red8(A, 72, 73)
    A(f"v_mul_f32 v72, {hex(f32bits(1/160))}, v72")
    for i in range(10):
        t = 70 if i % 2 == 0 else 76
        acc = 74 if i % 2 == 0 else 82
        A(f"v_pk_add_f32 v[{t}:{t+1}], v[{H+2*i}:{H+2*i+1}], v[72:73] op_sel_hi:[1,0] neg_lo:[0,1] neg_hi:[0,1]")
        if i < 2: A(f"v_pk_mul_f32 v[{acc}:{acc+1}], v[{t}:{t+1}], v[{t}:{t+1}]")
        else: A(f"v_pk_fma_f32 v[{acc}:{acc+1}], v[{t}:{t+1}], v[{t}:{t+1}], v[{acc}:{acc+1}]")
    A("v_pk_add_f32 v[74:75], v[74:75], v[82:83]")
    A("v_add_f32 v73, v74, v75")
    red8(A, 73, 74)
    A(f"""
    v_lshlrev_b32 v76, 3, v{VTOK}
    v_add_u32 v76, {L_ST}, v76
    s_lshl_b32 s47, s3, 6
    v_add_u32 v77, s47, v76
    v_cmp_gt_u32 vcc, 8, v1
    s_and_saveexec_b64 s[48:49], vcc
    ds_write_b64 v77, v[72:73]
    s_mov_b64 exec, s[48:49]
    s_waitcnt lgkmcnt(0)
    s_barrier
    ds_read_b64 v[78:79], v76
    ds_read_b64 v[80:81], v76 offset:64
    ds_read_b64 v[82:83], v76 offset:128
    ds_read_b64 v[84:85], v76 offset:192
    s_waitcnt lgkmcnt(0)
    v_add_f32 v72, v78, v80
    v_add_f32 v73, v82, v84
    v_add_f32 v72, v72, v73
    v_mul_f32 v72, 0.25, v72
    v_sub_f32 v78, v78, v72
    v_sub_f32 v80, v80, v72
    v_sub_f32 v82, v82, v72
    v_sub_f32 v84, v84, v72
    v_mul_f32 v73, v78, v78
    v_fmac_f32 v73, v80, v80
    v_fmac_f32 v73, v82, v82
    v_fmac_f32 v73, v84, v84
    v_add_f32 v79, v79, v81
    v_add_f32 v83, v83, v85
    v_add_f32 v79, v79, v83
    v_fmac_f32 v79, {hex(f32bits(160))}, v73
    v_mul_f32 v74, {hex(F_INV640)}, v79
    v_cvt_pk_bf16_f32 v78, 0, v72
    v_cvt_pk_bf16_f32 v75, 0, v74
    v_add_f32 v75, {hex(F_EPS)}, v75
    v_cvt_pk_bf16_f32 v75, 0, v75
    v_sqrt_f32 v75, v75
    s_nop 0
    v_cvt_pk_bf16_f32 v75, 0, v75
    v_rcp_f32 v80, v75
    s_nop 0
    """)


def red8_multi(A, xs, ts):
    A("s_nop 1")
    for x in xs: A(f"v_add_f32_dpp v{x}, v{x}, v{x} row_ror:8 {DPP}")
    for ins in ("v_permlane16_swap_b32", "v_permlane32_swap_b32"):
        for x, t in zip(xs, ts): A(f"v_mov_b32 v{t}, v{x}")
        if len(xs) < 3: A("s_nop 1")
        for x, t in zip(xs, ts): A(f"{ins} v{x}, v{t}")
        if len(xs) < 3: A("s_nop 1")
        for x, t in zip(xs, ts): A(f"v_add_f32 v{x}, v{x}, v{t}")

def ln_stats_r(A, H):
    A(f"v_pk_add_f32 v[72:73], v[{H}:{H+1}], v[{H+2}:{H+3}]")
    A(f"v_pk_add_f32 v[74:75], v[{H+4}:{H+5}], v[{H+6}:{H+7}]")
    for i in range(4, 10, 2):
        A(f"v_pk_add_f32 v[72:73], v[72:73], v[{H+2*i}:{H+2*i+1}]")
        A(f"v_pk_add_f32 v[74:75], v[74:75], v[{H+2*i+2}:{H+2*i+3}]")
    A("v_mov_b32 v92, 0")
    A("v_mov_b32 v93, 0")
    for i in range(10):
        A(f"v_cvt_pk_bf16_f32 v{60+i}, v{H+2*i}, v{H+2*i+1}")
    A("v_pk_add_f32 v[72:73], v[72:73], v[74:75]")
    for i in range(10):
        A(f"v_dot2_f32_bf16 v{92 + i % 2}, v{60+i}, v{VW+i}, v{92 + i % 2}")
    A("v_add_f32 v72, v72, v73")
    A(f"v_mov_b32 v94, v{VSW}")
    A("s_nop 0")
    A("v_add_f32 v92, v92, v93")
    red8_multi(A, [72, 92, 94], [73, 93, 95])
    A(f"v_mul_f32 v72, {hex(f32bits(1/160))}, v72")
    for i in range(10):
        t = 70 if i % 2 == 0 else 76
        acc = 74 if i % 2 == 0 else 82
        A(f"v_pk_add_f32 v[{t}:{t+1}], v[{H+2*i}:{H+2*i+1}], v[72:73] op_sel_hi:[1,0] neg_lo:[0,1] neg_hi:[0,1]")
        if i < 2: A(f"v_pk_mul_f32 v[{acc}:{acc+1}], v[{t}:{t+1}], v[{t}:{t+1}]")
        else: A(f"v_pk_fma_f32 v[{acc}:{acc+1}], v[{t}:{t+1}], v[{t}:{t+1}], v[{acc}:{acc+1}]")
    A("v_pk_add_f32 v[74:75], v[74:75], v[82:83]")
    A("v_add_f32 v73, v74, v75")
    red8(A, 73, 74)
    A(f"""
    v_mov_b32 v74, v92
    v_mov_b32 v75, v94
    v_lshlrev_b32 v76, 4, v{VTOK}
    v_add_u32 v76, {L_RED}, v76
    s_lshl_b32 s47, s3, 7
    v_add_u32 v77, s47, v76
    v_cmp_gt_u32 vcc, 8, v1
    s_and_saveexec_b64 s[48:49], vcc
    ds_write_b128 v77, v[72:75]
    s_mov_b64 exec, s[48:49]
    s_waitcnt lgkmcnt(0)
    s_barrier
    ds_read_b128 v[84:87], v76
    ds_read_b128 v[88:91], v76 offset:128
    ds_read_b128 v[92:95], v76 offset:256
    ds_read_b128 v[96:99], v76 offset:384
    s_waitcnt lgkmcnt(0)
    v_add_f32 v72, v84, v88
    v_add_f32 v73, v92, v96
    v_add_f32 v72, v72, v73
    v_mul_f32 v72, 0.25, v72
    v_sub_f32 v84, v84, v72
    v_sub_f32 v88, v88, v72
    v_sub_f32 v92, v92, v72
    v_sub_f32 v96, v96, v72
    v_mul_f32 v73, v84, v84
    v_fmac_f32 v73, v88, v88
    v_fmac_f32 v73, v92, v92
    v_fmac_f32 v73, v96, v96
    v_add_f32 v85, v85, v89
    v_add_f32 v93, v93, v97
    v_add_f32 v85, v85, v93
    v_fmac_f32 v85, {hex(f32bits(160))}, v73
    v_mul_f32 v74, {hex(F_INV640)}, v85
    v_cvt_pk_bf16_f32 v78, 0, v72
    v_cvt_pk_bf16_f32 v75, 0, v74
    v_add_f32 v75, {hex(F_EPS)}, v75
    v_cvt_pk_bf16_f32 v75, 0, v75
    v_sqrt_f32 v75, v75
    v_add_f32 v86, v86, v90
    v_add_f32 v94, v94, v98
    v_cvt_pk_bf16_f32 v75, 0, v75
    v_add_f32 v87, v87, v91
    v_rcp_f32 v80, v75
    v_add_f32 v95, v95, v99
    v_add_f32 v86, v86, v94
    v_add_f32 v87, v87, v95
    v_fma_f32 v86, -v78, v87, v86
    v_mul_f32 v90, v86, v80
    """)

def cmul(A, z, x, y, t):
    A(f"v_pk_mul_f32 v[{t}:{t+1}], v[{x}:{x+1}], v[{y}:{y+1}] op_sel:[0,0] op_sel_hi:[1,0]")
    A(f"v_pk_fma_f32 v[{z}:{z+1}], v[{x}:{x+1}], v[{y}:{y+1}], v[{t}:{t+1}] op_sel:[1,1,0] op_sel_hi:[0,1,1] neg_lo:[1,0,0]")

class Poll:
    pass

def masked_poll(A, sets, cnt, sleep, tag, first=None):
    L = newlbl(tag)
    A(f"s_mov_b32 s{cnt}, 0")
    if first == "plain":
        for st in sets:
            for ld in st["loads"]: A(ld.replace(" sc1", ""))
        A("s_waitcnt vmcnt(0)")
        A(f"s_branch {L}_chk")
    elif first is not None:
        A(f"s_waitcnt vmcnt({first[1]})")
        A(f"s_branch {L}_chk")
    A(f"{L}:")
    for k, st in enumerate(sets):
        m = st["mask"]
        A(f"s_mov_b64 exec, s[{m}:{m+1}]")
        A(f"s_cbranch_execz {L}_sk{k}")
        for ld in st["loads"]: A(ld)
        A(f"{L}_sk{k}:")
    A("s_mov_b64 exec, -1")
    A("s_waitcnt vmcnt(0)")
    A(f"{L}_chk:")
    for k, st in enumerate(sets):
        m = st["mask"]; regs = st["regs"]; t = st["tmp"]
        op = "max" if st.get("sent", "max") == "max" else "min"
        r = list(regs)
        if len(r) == 1:
            src = r[0]
        else:
            if len(r) >= 3:
                A(f"v_{op}3_u32 v{t}, v{r[0]}, v{r[1]}, v{r[2]}"); r = r[3:]
            else:
                A(f"v_{op}_u32 v{t}, v{r[0]}, v{r[1]}"); r = r[2:]
            while len(r) >= 2:
                A(f"v_{op}3_u32 v{t}, v{t}, v{r[0]}, v{r[1]}"); r = r[2:]
            if r: A(f"v_{op}_u32 v{t}, v{t}, v{r[0]}")
            src = t
        sent = "-1" if op == "max" else "0"
        A(f"v_cmp_eq_u32 vcc, {sent}, v{src}")
        A(f"s_and_b64 s[{m}:{m+1}], s[{m}:{m+1}], vcc")
    m0 = sets[0]["mask"]
    if len(sets) == 1:
        A(f"s_cmp_eq_u64 s[{m0}:{m0+1}], 0")
    else:
        A(f"s_or_b64 vcc, s[{m0}:{m0+1}], s[{sets[1]['mask']}:{sets[1]['mask']+1}]")
        for st in sets[2:]:
            A(f"s_or_b64 vcc, vcc, s[{st['mask']}:{st['mask']+1}]")
        A("s_cmp_eq_u64 vcc, 0")
    A(f"s_cbranch_scc1 {L}_done")
    A(f"s_add_u32 s{cnt}, s{cnt}, 1")
    if sleep: A(f"s_sleep {sleep}")
    A(f"s_cmp_lt_u32 s{cnt}, {POLL_LIMIT}")
    A(f"s_cbranch_scc1 {L}")
    A(f"{L}_done:")


def pipe_poll(A, groups, cnt, tag, K, SB, stag, sleep=0, NEW=92):
    L = newlbl(tag)
    tot = sum(w for g in groups for (_, w, _) in g["loads"])
    n = sum(len(g["loads"]) for g in groups)
    def stage(j):
        out = []; r = SB + j * tot
        for g in groups:
            lst = []
            for (fmt, w, fin) in g["loads"]:
                lst.append((fmt, w, fin, r)); r += w
            out.append(lst)
        return out
    def issue(j):
        for g, lst in zip(groups, stage(j)):
            m = g["mask"]
            A(f"s_or_b64 exec, s[{m}:{m+1}], 1")
            for (fmt, w, fin, r) in lst:
                dst = f"v{r}" if w == 1 else f"v[{r}:{r+w-1}]"
                A(fmt.format(dst=dst))
        A("s_mov_b64 exec, -1")
    A(f"s_mov_b32 s{cnt}, 0")
    for j in range(K):
        issue(j)
        if j < K - 1 and stag: A(f"s_sleep {stag}")
    A(f"{L}:")
    for j in range(K):
        A(f"s_waitcnt vmcnt({(K-1)*n})")
        for gi, (g, lst) in enumerate(zip(groups, stage(j))):
            m = g["mask"]; t = g["tmp"]
            op = "max" if g.get("sent", "max") == "max" else "min"
            regs = [r + i for (_, w, _, r) in lst for i in range(w)]
            r = list(regs)
            if len(r) == 1: src = r[0]
            else:
                if len(r) >= 3:
                    A(f"v_{op}3_u32 v{t}, v{r[0]}, v{r[1]}, v{r[2]}"); r = r[3:]
                else:
                    A(f"v_{op}_u32 v{t}, v{r[0]}, v{r[1]}"); r = r[2:]
                while len(r) >= 2:
                    A(f"v_{op}3_u32 v{t}, v{t}, v{r[0]}, v{r[1]}"); r = r[2:]
                if r: A(f"v_{op}_u32 v{t}, v{t}, v{r[0]}")
                src = t
            sent = "-1" if op == "max" else "0"
            A(f"v_cmp_ne_u32 vcc, {sent}, v{src}")
            A(f"s_and_b64 s[{NEW}:{NEW+1}], vcc, s[{m}:{m+1}]")
            A(f"s_cbranch_scc0 {L}_s{j}_{gi}")
            A(f"s_mov_b64 exec, s[{NEW}:{NEW+1}]")
            for (_, w, fin, rr) in lst:
                for i in range(w): A(f"v_mov_b32 v{fin+i}, v{rr+i}")
            A("s_mov_b64 exec, -1")
            A(f"s_andn2_b64 s[{m}:{m+1}], s[{m}:{m+1}], s[{NEW}:{NEW+1}]")
            A(f"{L}_s{j}_{gi}:")
        m0 = groups[0]["mask"]
        if len(groups) == 1:
            A(f"s_cmp_eq_u64 s[{m0}:{m0+1}], 0")
        else:
            A(f"s_or_b64 vcc, s[{m0}:{m0+1}], s[{groups[1]['mask']}:{groups[1]['mask']+1}]")
            for g in groups[2:]:
                A(f"s_or_b64 vcc, vcc, s[{g['mask']}:{g['mask']+1}]")
            A("s_cmp_eq_u64 vcc, 0")
        A(f"s_cbranch_scc1 {L}_done")
        issue(j)
        if sleep: A(f"s_sleep {sleep}")
    A(f"s_add_u32 s{cnt}, s{cnt}, 1")
    A(f"s_cmp_lt_u32 s{cnt}, {POLL_LIMIT}")
    A(f"s_cbranch_scc1 {L}")
    A(f"{L}_done:")

def kgen(A, mid_hook, tail_hook, hook0, p1_hook=None):
    TS = 272; TBUF = 14416; TT = 28832
    A(f"""
    s_bitcmp1_b32 s{S_D}, 0
    s_cbranch_scc1 kg_odd
    s_lshl_b32 s42, s42, 16
    s_lshl_b32 s{S_DS}, s{S_DS}, 16
    kg_odd:
    s_and_b32 s42, s42, 0xffff0000
    s_and_b32 s{S_DS}, s{S_DS}, 0xffff0000
    v_mov_b32 v14, {hex(F_LOG2E)}
    v_mul_f32 v15, s42, v14
    v_exp_f32 v15, v15
    s_mov_b32 s43, 0x7fff7fff
    v_and_b32 v112, s43, v112
    v_and_b32 v113, s43, v113
    v_and_b32 v114, s43, v114
    v_and_b32 v115, s43, v115
    v_cvt_pk_bf16_f32 v15, 0, v15
    v_pk_max_u16 v112, v112, v113
    v_pk_max_u16 v114, v114, v115
    v_pk_max_u16 v10, v112, v114
    v_lshrrev_b32 v11, 16, v10
    v_and_b32 v10, 0xffff, v10
    v_max_u32 v10, v10, v11
    """)
    E1, W8, E256, X2, X3, X4, X6, E512, XA, XB, CX, TX, C, CY, TY = 18, 20, 22, 24, 26, 28, 32, 34, 36, 38, 40, 42, 44, 116, 118
    PX, PY = [46, 47, 122, 123], [120, 121, 124, 125]
    WDELAY = int(os.environ.get('WDELAY', '1'))
    D = 48
    FR = 128
    def setup_a(p):
        L = []; a = L.append
        lar, aim = 100 + 4*p, 101 + 4*p
        a(f"v_lshlrev_b32 v{lar}, 16, v{lar}")
        a(f"v_lshlrev_b32 v{aim}, 16, v{aim}")
        a(f"v_mul_f32 v4, v14, v{lar}")
        a(f"v_exp_f32 v4, v4")
        a(f"v_mul_f32 v5, v{aim}, v15")
        a(f"v_mul_f32 v5, {hex(F_INV2PI)}, v5")
        a(f"v_cvt_pk_bf16_f32 v4, 0, v4")
        a(f"v_mul_f32 v4, v4, v15")
        a(f"v_mul_f32 v4, v4, v14")
        for k, (dst, pw) in enumerate(((E1, 1), (W8, 8), (E256, 256))):
            m, f = 6 + 2*(k % 2), 7 + 2*(k % 2)
            if pw == 1:
                a(f"v_exp_f32 v{m}, -v4")
                a(f"v_fract_f32 v{f}, v5")
            else:
                a(f"v_mul_f32 v{m}, {hex(f32bits(pw))}, v4")
                a(f"v_mul_f32 v{f}, {hex(f32bits(pw))}, v5")
                a(f"v_exp_f32 v{m}, -v{m}")
                a(f"v_fract_f32 v{f}, v{f}")
            a(f"v_cos_f32 v{dst}, v{f}")
            a(f"v_sin_f32 v{dst+1}, v{f}")
            a("s_nop 0")
            a(f"v_mul_f32 v{dst}, v{dst}, v{m}")
            a(f"v_mul_f32 v{dst+1}, v{dst+1}, v{m}")
        return L
    def setup_c(p):
        cre, cim = 102 + 4*p, 103 + 4*p
        return [f"v_lshlrev_b32 v{cre}, 16, v{cre}", f"v_lshlrev_b32 v{cim}, 16, v{cim}",
                f"v_mul_f32 v{C}, v{cre}, v11", f"v_mul_f32 v{C+1}, v{cim}, v11"]
    def cm(z, x, y, t):
        return [f"v_pk_mul_f32 v[{t}:{t+1}], v[{x}:{x+1}], v[{y}:{y+1}] op_sel:[0,0] op_sel_hi:[1,0]",
                f"v_pk_fma_f32 v[{z}:{z+1}], v[{x}:{x+1}], v[{y}:{y+1}], v[{t}:{t+1}] op_sel:[1,1,0] op_sel_hi:[0,1,1] neg_lo:[1,0,0]"]
    def tables():
        cnt = [0, 0]
        pendw = [[], []]
        def put(row, pair, neg, which, const=None):
            P = (PX, PY)[which]; r = P[cnt[which] % len(P)]; cnt[which] += 1
            L = [f"v_mov_b32 v{r}, {hex(const)}"] if const is not None else [f"v_cvt_pk_f16_f32 v{r}, v{pair}, {'-' if neg else ''}v{pair+1}"]
            pendw[which].append(f"ds_write_addtid_b32 v{r} offset:{row*TS}")
            if len(pendw[which]) > WDELAY:
                L.append(pendw[which].pop(0))
            return L
        X = []
        X += put(0, None, False, 0, const=0x3c00)
        X += put(1, E1, False, 0)
        X += cm(X2, E1, E1, TX) + put(2, X2, False, 0)
        X += put(8, E256, False, 0)
        X += cm(E512, E256, E256, TX) + put(12, E512, False, 0)
        X += cm(X3, X2, E1, TX) + put(3, X3, False, 0)
        X += cm(X4, X2, X2, TX) + put(4, X4, False, 0)
        X += cm(XA, E512, E256, TX) + put(14, XA, False, 0)
        X += cm(CX, X4, E1, TX) + put(5, CX, False, 0)
        X += cm(X6, X4, X2, TX) + put(6, X6, False, 0)
        X += cm(CX, X4, X3, TX) + put(7, CX, False, 0)
        X += cm(CX, E256, X2, TX) + put(9, CX, False, 0)
        X += cm(CX, E256, X4, TX) + put(10, CX, False, 0)
        X += cm(CX, E256, X6, TX) + put(11, CX, False, 0)
        X += cm(CX, E512, X4, TX) + put(13, CX, False, 0)
        X += cm(CX, XA, X4, TX) + put(15, CX, False, 0)
        X += cm(XA, E512, E512, TX) + put(16, XA, False, 0)
        X += cm(CX, XA, E256, TX) + put(17, CX, False, 0)
        X += cm(XB, XA, E512, TX) + put(18, XB, False, 0)
        X += cm(CX, XB, E256, TX) + put(19, CX, False, 0)
        X += cm(CX, XA, XA, TX) + put(20, CX, False, 0)
        Y = []
        Y += put(21, C, True, 1)
        Y += cm(CY, C, W8, TY) + put(22, CY, True, 1)
        for c in range(2, 32):
            Y += cm(CY, CY, W8, TY) + put(21 + c, CY, True, 1)
        X += pendw[0]; Y += pendw[1]
        out = []; i = j = 0
        while i < len(X) or j < len(Y):
            if j >= len(Y) or (i < len(X) and i * len(Y) <= j * len(X)):
                out.append(X[i]); i += 1
            else:
                out.append(Y[j]); j += 1
        return out
    sa = setup_a(0)
    red = []
    R_ = Asm0()
    allreduce16(R_, "v_max_u32", 10); xor16(R_, "v_max_u32", 10, 11); xor32(R_, "v_max_u32", 10, 11)
    R_(f"""
    v_lshlrev_b32 v10, 16, v10
    v_mul_f32 v10, v10, v15
    v_lshrrev_b32 v10, 23, v10
    v_max_u32 v10, 5, v10
    v_min_u32 v10, 0xfe, v10
    v_sub_u32 v11, 0x103, v10
    v_lshlrev_b32 v11, 23, v11
    v_subrev_u32 v30, 4, v10
    v_lshlrev_b32 v30, 23, v30
    v_mul_f32 v11, v11, v15
    v_lshrrev_b32 v13, 5, v1
    v_and_b32 v16, 31, v1
    v_mul_u32_u24 v16, {TS}, v16
    v_lshl_add_u32 v13, v13, 4, v16
    v_add_u32 v13, s{S_B}, v13
    """)
    for ins in R_.l: A(ins.strip())
    for ins in sa: A(ins)
    for ins in setup_c(0): A(ins)
    A(f"s_mov_b32 m0, s{S_B}")
    A("s_nop 0")
    for ins in tables(): A(ins)
    hook0()
    A(f"s_add_u32 s43, s{S_B}, 0")
    for p in range(3):
        buf = p % 2
        for s in range(8):
            A(f"ds_read_b128 v[{FR+8*s}:{FR+8*s+3}], v13 offset:{TBUF*buf + 32*s}")
            A(f"ds_read_b128 v[{FR+8*s+4}:{FR+8*s+7}], v13 offset:{TBUF*buf + 21*TS + 32*s}")
        if p == 1 and p1_hook is not None:
            p1_hook()
        if p < 2:
            A(f"s_add_u32 s43, s{S_B}, {TBUF*((p+1)%2)}")
            A("s_mov_b32 m0, s43")
            nxt = setup_a(p + 1) + setup_c(p + 1) + tables()
        else:
            mid_hook()
            nxt = []
            H_ = Asm0()
            H_(f"""
            v_and_b32 v14, 31, v1
            v_lshrrev_b32 v15, 5, v1
            v_lshlrev_b32 v16, 4, v14
            v_lshl_add_u32 v16, v15, 3, v16
            v_sub_u32 v17, {TT+504}, v16
            v_add_u32 v17, s{S_B}, v17
            v_add_u32 v16, {TT+1024}, v16
            v_add_u32 v16, s{S_B}, v16
            v_lshlrev_b32 v18, 3, v14
            v_add_u32 v18, {TT+512}, v18
            v_add_u32 v19, 4, v18
            v_lshlrev_b32 v20, 2, v14
            v_add_u32 v20, {TT+768}, v20
            v_add_u32 v21, 128, v20
            v_cmp_eq_u32 vcc, 0, v15
            s_nop 1
            v_cndmask_b32 v18, v20, v18, vcc
            v_cndmask_b32 v19, v21, v19, vcc
            v_add_u32 v18, s{S_B}, v18
            v_add_u32 v19, s{S_B}, v19
            s_add_u32 s43, s{S_B}, {TT}
            v_sub_u32 v4, 127, v1
            v_add_u32 v5, 1, v4
            v_and_b32 v6, 31, v4
            v_lshrrev_b32 v7, 5, v4
            v_lshlrev_b32 v6, 4, v6
            v_lshl_add_u32 v6, v7, 1, v6
            v_and_b32 v8, 31, v5
            v_lshrrev_b32 v7, 5, v5
            v_lshlrev_b32 v8, 4, v8
            v_lshl_add_u32 v8, v7, 1, v8
            v_add_u32 v6, s43, v6
            v_add_u32 v8, s43, v8
            v_sub_u32 v9, 63, v1
            v_lshlrev_b32 v10, 2, v9
            v_add_u32 v10, s43, v10
            v_sub_u32 v11, 31, v1
            v_and_b32 v11, 31, v11
            v_lshlrev_b32 v11, 3, v11
            v_add_u32 v11, s43, v11
            v_and_b32 v9, 31, v9
            v_lshlrev_b32 v9, 4, v9
            v_sub_u32 v9, 496, v9
            v_add_u32 v9, s43, v9
            v_lshlrev_b32 v3, 4, v1
            v_add_u32 v3, s{S_K}, v3
            """)
            nxt = [x.strip() for x in H_.l]
        nlds_after = 0
        per = (len(nxt) + 7) // 8 if nxt else 0
        lead = min(int(os.environ.get('LEAD', '30')) if p < 2 else 20, len(nxt))
        pos = 0
        for ins in nxt[:lead]:
            A(ins); pos += 1
            if ins.startswith("ds_"): nlds_after += 1
        rest = nxt[lead:]
        per = (len(rest) + 7) // 8 if rest else 0
        for s in range(8):
            need = 2 * (7 - s) + nlds_after
            if need <= 15: A(f"s_waitcnt lgkmcnt({need})")
            else: A("s_waitcnt lgkmcnt(15)") if False else A(f"s_waitcnt lgkmcnt({min(15, need)})")
            c = "0" if (s == 0 and p == 0) else f"v[{D}:{D+15}]"
            A(f"v_mfma_f32_32x32x16_f16 v[{D}:{D+15}], v[{FR+8*s}:{FR+8*s+3}], v[{FR+8*s+4}:{FR+8*s+7}], {c}")
            for ins in rest[s*per:(s+1)*per]:
                A(ins)
                if ins.startswith("ds_"): nlds_after += 1
    tail_hook()
    A(f"""
    s_nop 7
    s_nop 3
    v_cvt_pk_f16_f32 v22, v{D+3}, v{D+2}
    v_cvt_pk_f16_f32 v23, v{D+1}, v{D}
    ds_write_b64 v17, v[22:23]
    v_cvt_pk_f16_f32 v24, v{D+4}, v{D+5}
    v_cvt_pk_f16_f32 v25, v{D+6}, v{D+7}
    ds_write_b32 v18, v24
    ds_write_b32 v19, v25
    v_cvt_pk_f16_f32 v26, v{D+8}, v{D+9}
    v_cvt_pk_f16_f32 v27, v{D+10}, v{D+11}
    ds_write_b64 v16, v[26:27]
    s_mov_b32 s44, 0x05040100
    s_mov_b32 s45, 0x01000100
    s_mov_b32 s46, 0x03020302
    s_mov_b32 s47, 0x07060100
    s_mov_b32 s48, 0x03020504
    v_and_b32 v7, 1, v4
    v_cmp_eq_u32 vcc, 1, v7
    s_waitcnt lgkmcnt(0)
    ds_read_u16 v32, v6 offset:1024
    ds_read_u16 v33, v8 offset:1024
    ds_read_u16 v34, v6 offset:1020
    ds_read_u16 v35, v8 offset:1020
    ds_read2_b32 v[36:37], v10 offset0:192 offset1:193
    ds_read_b64 v[38:39], v11 offset:512
    ds_read_u16 v40, v11 offset:520
    ds_read_b128 v[44:47], v9
    s_waitcnt lgkmcnt(4)
    v_cndmask_b32 v41, v32, v33, vcc
    v_cndmask_b32 v42, v34, v35, vcc
    v_perm_b32 v48, v33, v33, s45
    v_perm_b32 v49, v41, v33, s44
    v_perm_b32 v50, v32, v32, s45
    v_mov_b32 v51, v50
    ds_write_b128 v3, v[48:51]
    v_perm_b32 v52, v35, v35, s45
    v_perm_b32 v53, v42, v35, s44
    v_perm_b32 v54, v34, v34, s45
    v_mov_b32 v55, v54
    ds_write_b128 v3, v[52:55] offset:1024
    s_waitcnt lgkmcnt(2)
    v_perm_b32 v56, v37, v37, s45
    v_perm_b32 v57, v36, v36, s46
    v_alignbit_b32 v58, v36, v36, 16
    v_perm_b32 v59, v36, v36, s45
    ds_write_b128 v3, v[56:59] offset:2048
    v_perm_b32 v60, v39, v40, s47
    v_perm_b32 v61, v39, v39, s45
    v_perm_b32 v62, v39, v38, s48
    v_perm_b32 v63, v38, v38, s45
    v_cmp_gt_u32 vcc, 32, v1
    s_nop 1
    v_cndmask_b32 v60, v44, v60, vcc
    v_cndmask_b32 v61, v45, v61, vcc
    v_cndmask_b32 v62, v46, v62, vcc
    v_cndmask_b32 v63, v47, v63, vcc
    ds_write_b128 v3, v[60:63] offset:3072
    v_mov_b32 v16, 0
    v_mov_b32 v17, 0
    v_mov_b32 v18, 0
    v_mov_b32 v19, 0
    v_cmp_gt_u32 vcc, 30, v1
    s_and_saveexec_b64 s[52:53], vcc
    ds_write_b128 v3, v[16:19] offset:4096
    s_mov_b64 exec, s[52:53]
    """)

def conv_main(A, hook_idx=None, hook=None):
    ACC, AR, NR, EP = 32, 64, 12, 112
    mf = [(q, al) for al in range(64) for q in range(al // 8, 8)]
    first_use = {}
    for i, (q, al) in enumerate(mf):
        first_use.setdefault(("A", al), i)
        first_use.setdefault(("B", 8*q - al), i)
    loads = sorted(first_use.items(), key=lambda kv: (kv[1], kv[0][0]))
    last_of_tile = {q: max(i for i, (qq, al) in enumerate(mf) if qq == q) for q in range(8)}
    lastuse_A = {al: max(i for i, (q, a2) in enumerate(mf) if a2 == al) for al in range(64)}
    def epi_instrs(q):
        a = ACC + 4 * q
        e = EP + 16 * (q % 2)
        U = e + 14
        L = [("lds", f"ds_read_b64 v[{U}:{U+1}], v27 offset:{512*q}")]
        for j in range(4): L.append(("v", f"v_cvt_pk_bf16_f32 v{e+j}, 0, v{a+j}"))
        L.append(("waitu", None))
        L.append(("v", f"v_fma_mix_f32 v{e+4}, v{U}, s{S_DS}, 0 op_sel_hi:[1,0,0]"))
        L.append(("v", f"v_fma_mix_f32 v{e+5}, v{U}, s{S_DS}, 0 op_sel:[1,0,0] op_sel_hi:[1,0,0]"))
        L.append(("v", f"v_fma_mix_f32 v{e+6}, v{U+1}, s{S_DS}, 0 op_sel_hi:[1,0,0]"))
        L.append(("v", f"v_fma_mix_f32 v{e+7}, v{U+1}, s{S_DS}, 0 op_sel:[1,0,0] op_sel_hi:[1,0,0]"))
        for j in range(4): L.append(("v", f"v_cvt_pk_bf16_f32 v{e+4+j}, 0, v{e+4+j}"))
        for j in range(4): L.append(("v", f"v_fmac_f32 v{e+4+j}, v30, v{e+j}"))
        L.append(("v", f"v_cvt_pk_bf16_f32 v{e}, v{e+4}, v{e+5}"))
        L.append(("v", f"v_cvt_pk_bf16_f32 v{e+1}, v{e+6}, v{e+7}"))
        L.append(("gap", None))
        L.append(("v", f"v_permlane16_swap_b32 v{e}, v{e+2}"))
        L.append(("v", f"v_permlane16_swap_b32 v{e+1}, v{e+3}"))
        L.append(("st", f"buffer_store_dwordx4 v[{e}:{e+3}], v26, s[{S_WS}:{S_WS+3}], s{S_AO} offen offset:{512*q} sc1"))
        return L
    ldsq = []
    cur = [0]
    LAT = 6
    def lds_wait_for(idset, extend=True):
        idxs = [i for i, n in enumerate(ldsq) if n[0] in idset]
        if not idxs: return False
        k = max(idxs)
        if extend:
            while k + 1 < len(ldsq) and ldsq[k+1][1] <= cur[0] - LAT: k += 1
        A(f"s_waitcnt lgkmcnt({len(ldsq) - 1 - k})")
        del ldsq[:k+1]
        return True
    def issue_load(key):
        kind, v = key
        if kind == "A":
            r = AR + 4 * (v % NR)
            A(f"ds_read_b64 v[{r}:{r+1}], v24 offset:{64*v}"); ldsq.append((key, cur[0]))
            A(f"ds_read_b64 v[{r+2}:{r+3}], v24 offset:{64*v+8}"); ldsq.append((key, cur[0]))
        else:
            r = 4 * (v + 7)
            A(f"ds_read_b128 a[{r}:{r+3}], v25 offset:{64*(56-v)}"); ldsq.append((key, cur[0]))
    li = 0
    epi_q = []
    stores_after = [0]
    WINDOW, MAXQ = 12, 14
    for i, (q, al) in enumerate(mf):
        cur[0] = i
        budget = 2 if i > 0 else 99
        need = {("A", al), ("B", 8*q - al)}
        if any(n[0] in need for n in ldsq): budget -= 1
        while li < len(loads):
            key, dl = loads[li]
            n = 2 if key[0] == "A" else 1
            must = dl <= i
            if not must:
                if dl - i > WINDOW or budget <= 0: break
                if len(ldsq) + n > MAXQ: break
                if key[0] == "A" and key[1] >= NR and lastuse_A[key[1] - NR] >= i: break
            else:
                if len(ldsq) + n > 15:
                    A(f"s_waitcnt lgkmcnt({15-n})"); del ldsq[:len(ldsq) - (15 - n)]
            issue_load(key)
            budget -= n
            li += 1
        while budget > 0 and epi_q and epi_q[0][0] <= i:
            _, kind, txt, eq = epi_q.pop(0)
            if kind == "lds":
                if len(ldsq) + 1 > 15:
                    A("s_waitcnt lgkmcnt(14)"); del ldsq[:len(ldsq) - 14]
                A(txt); ldsq.append((("EU", eq), i))
            elif kind == "waitu":
                if lds_wait_for({("EU", eq)}): budget -= 1
                continue
            elif kind == "gap":
                if epi_q: epi_q[0] = (i + 2,) + epi_q[0][1:]
                break
            else:
                A(txt)
                if kind == "st": stores_after[0] += 1
            budget -= 1
        if hook is not None and i == hook_idx:
            hook(); stores_after[0] = 0
        lds_wait_for(need)
        r = AR + 4 * (al % NR)
        g = 8 * q - al
        c = "0" if al == 0 else f"v[{ACC+4*q}:{ACC+4*q+3}]"
        A(f"v_mfma_f32_16x16x32_f16 v[{ACC+4*q}:{ACC+4*q+3}], v[{r}:{r+3}], a[{4*(g+7)}:{4*(g+7)+3}], {c}")
        if i == last_of_tile[q]:
            for kind, txt in epi_instrs(q):
                epi_q.append((i + (1 if kind == "lds" else 8), kind, txt, q))
    cur[0] = len(mf) + 100
    A("s_nop 7")
    for _, kind, txt, eq in epi_q:
        if kind == "lds":
            A(txt); ldsq.append((("EU", eq), 0))
        elif kind == "waitu":
            lds_wait_for({("EU", eq)}, extend=False)
        elif kind == "gap":
            A("s_nop 1")
        else:
            A(txt)
            if kind == "st": stores_after[0] += 1
    return stores_after[0]

def gen_main(A):
    name = NAME + "_kernel"
    A.l.append(f".globl {name}")
    A.l.append(".p2align 8")
    A.l.append(f".type {name},@function")
    A.l.append(f"{name}:")
    A("s_cmp_ge_u32 s2, 256")
    A("s_cbranch_scc1 k_exit")
    if STAMP: A("v_mov_b32 v255, 0")
    if STAMP: A("v_mov_b32 v254, 0")
    def emit_pf():
        if CODEPF:
            A("""
            s_getpc_b64 s[90:91]
            k_pc:
            v_lshlrev_b32 v2, 4, v0
            v_mov_b32 v3, s91
            v_add_co_u32 v2, vcc, s90, v2
            v_addc_co_u32 v3, vcc, 0, v3, vcc
            """)
            for i in range(NPF):
                A(f"v_cmp_gt_i32 vcc, (k_code_end-k_pc-{4096*i})/16, v0")
                A("s_and_saveexec_b64 s[92:93], vcc")
                A(f"s_cbranch_execz k_pf_done")
                A("global_load_dwordx4 v[160:163], v[2:3], off")
                A("s_mov_b64 exec, s[92:93]")
                A("v_add_co_u32 v2, vcc, 0x1000, v2")
                A("v_addc_co_u32 v3, vcc, 0, v3, vcc")
            A("k_pf_done:")
            A("s_mov_b64 exec, -1")
    stamp(A, 0)
    if PFFIRST: emit_pf()
    WS = f"s[{S_WS}:{S_WS+3}]"
    A(f"""
    s_load_dwordx2 s[4:5], s[0:1], {ARG['x']}
    s_load_dwordx2 s[6:7], s[0:1], {ARG['ws']}
    s_load_dwordx4 s[44:47], s[0:1], {ARG['lar']}
    s_load_dwordx4 s[48:51], s[0:1], {ARG['cre']}
    s_load_dwordx4 s[56:59], s[0:1], {ARG['ldt']}
    s_load_dwordx4 s[60:63], s[0:1], {ARG['wr']}
    s_load_dwordx4 s[64:67], s[0:1], {ARG['wu']}
    s_load_dwordx4 s[68:71], s[0:1], {ARG['out']}
    """)
    if PFFIRST == 0:
        emit_pf()
    A(f"""
    s_and_b32 s52, s2, 7
    s_lshr_b32 s53, s2, 3
    s_mul_i32 s54, s52, 20
    s_add_u32 s{S_TB}, s54, s53
    s_cmp_lt_u32 s2, 160
    s_cbranch_scc1 k_tb_done
    s_mul_i32 s54, s52, 12
    s_add_u32 s54, s54, s53
    s_add_u32 s{S_TB}, s54, 140
    k_tb_done:
    s_lshl_b32 s{S_T0}, s{S_TB}, 3
    v_lshrrev_b32 v2, 6, v0
    v_and_b32 v1, 63, v0
    s_nop 0
    v_readfirstlane_b32 s3, v2
    v_and_b32 v{VTOK}, 7, v1
    v_lshrrev_b32 v5, 3, v1
    v_add_u32 v6, s{S_T0}, v{VTOK}
    s_movk_i32 s52, 1280
    v_mul_lo_u32 v6, v6, s52
    s_mul_i32 s53, s3, 320
    v_lshl_add_u32 v{VCH}, v5, 3, s53
    v_add_u32 v{VROW}, v6, v{VCH}
    s_waitcnt lgkmcnt(0)
    """)
    srd(A, S_WS, 6, 7, 0, WS_SIZE)
    srd(A, S_X, 4, 5, 0, 2621440)
    A(f"""
    v_mov_b32 v199, 0
    s_mov_b32 s52, {WS_FL}
    s_cmp_lg_u32 s2, {NONWG}
    s_cbranch_scc1 k_non0
    buffer_load_dword v197, v199, {WS}, s52 offen sc1
    k_non0:
    """)
    for i in range(5):
        A(f"buffer_load_dwordx2 v[{200+2*i}:{201+2*i}], v{VROW}, s[{S_X}:{S_X+3}], 0 offen offset:{64*i}")
    srd(A, S_DBG, 70, 71, 0, 256)
    srd(A, S_WR, 60, 61, 0, 1280)
    for i in range(5):
        A(f"buffer_load_dwordx2 v[{VW+2*i}:{VW+2*i+1}], v{VCH}, s[{S_WR}:{S_WR+3}], 0 offen offset:{64*i}")
    srd(A, S_X, 68, 69, 0, 2621440)
    def small_clears():
        A(f"""
        s_mov_b64 exec, 0x3fffffff
        s_mul_i32 s52, s2, 480
        s_add_u32 s52, s52, {WS_SM}
        buffer_store_dwordx4 v[40:43], v44, {WS}, s52 offen sc1
        s_mov_b64 exec, 0xffff
        v_mov_b32 v46, 0
        v_mov_b32 v47, 0
        v_mov_b32 v48, 0
        v_mov_b32 v49, 0
        v_lshrrev_b32 v45, 1, v1
        v_lshlrev_b32 v45, 13, v45
        v_and_b32 v50, 1, v1
        v_lshl_add_u32 v45, v50, 4, v45
        s_lshl_b32 s52, s{S_TB}, 5
        s_add_u32 s52, s52, {WS_KEY}
        buffer_store_dwordx4 v[46:49], v45, {WS}, s52 offen sc1
        s_mov_b64 exec, -1
        """)
    def publish_flag(tag):
        A(f"""
        s_cmp_lg_u32 s3, 0
        s_cbranch_scc1 {tag}_w
        s_waitcnt vmcnt(0)
        v_cmp_eq_u32 vcc, 0, v198
        s_mov_b64 s[54:55], vcc
        s_cmp_eq_u64 vcc, 0
        s_cbranch_scc1 {tag}_have
        """)
        masked_poll(A, [dict(mask=54, loads=[f"buffer_load_dword v198, v199, s[{S_DBG}:{S_DBG+3}], 0 offen sc1"], regs=[198], tmp=197, sent="min")], 53, 1, tag + "non")
        A(f"""
        {tag}_have:
        v_mov_b32 v197, {L_NON}
        ds_write_b32 v197, v198
        s_waitcnt lgkmcnt(0)
        {tag}_w:
        s_waitcnt vmcnt(0)
        s_barrier
        s_cmp_lg_u32 s3, 0
        s_cbranch_scc1 {tag}_done
        v_lshlrev_b32 v197, 10, v1
        s_lshl_b32 s52, s2, 2
        s_add_u32 s52, s52, {WS_FL}
        s_mov_b64 exec, 0xff
        buffer_store_dword v198, v197, {WS}, s52 offen sc1
        s_mov_b64 exec, -1
        {tag}_done:
        v_mov_b32 v197, {L_NON}
        ds_read_b32 v199, v197
        """)
    A(f"""
    v_mov_b32 v40, -1
    v_mov_b32 v41, -1
    v_mov_b32 v42, -1
    v_mov_b32 v43, -1
    v_lshlrev_b32 v44, 4, v1
    s_cmp_ge_u32 s2, 160
    s_cbranch_scc1 k_p0_ffn
    """)
    srd(A, 24, 44, 45, 0, 245760)
    srd(A, 28, 46, 47, 0, 245760)
    srd(A, 32, 48, 49, 0, 245760)
    srd(A, 36, 50, 51, 0, 245760)
    A(f"""
    s_lshl_b32 s{S_D}, s2, 2
    s_add_u32 s{S_D}, s{S_D}, s3
    s_mul_i32 s{S_B}, s3, {WAVE_LDS}
    s_add_u32 s{S_B}, s{S_B}, {LBASE}
    s_add_u32 s{S_K}, s{S_B}, {KOFF}
    s_lshl_b32 s{S_AO}, s{S_D}, 12
    s_add_u32 s{S_AO}, s{S_AO}, {WS_AT}
    s_mul_i32 s52, s{S_D}, 384
    v_lshlrev_b32 v3, 1, v1
    s_and_b32 s53, s{S_D}, 0xfffffffe
    s_lshl_b32 s53, s53, 1
    s_load_dword s42, s[56:57], s53
    s_load_dword s{S_DS}, s[58:59], s53
    """)
    for p in range(3):
        for j in range(4):
            A(f"buffer_load_ushort v{100+4*p+j}, v3, s[{24+4*j}:{27+4*j}], s52 offen offset:{128*p}")
    A(f"""
    v_lshlrev_b32 v8, 3, v1
    v_mov_b32 v112, 0
    v_mov_b32 v113, 0
    v_mov_b32 v114, 0
    v_mov_b32 v115, 0
    v_cmp_gt_u32 vcc, 48, v1
    s_and_saveexec_b64 s[54:55], vcc
    buffer_load_dwordx2 v[112:113], v8, s[32:35], s52 offen
    buffer_load_dwordx2 v[114:115], v8, s[36:39], s52 offen
    s_mov_b64 exec, s[54:55]
    s_waitcnt vmcnt(19)
    """)
    for i in range(4):
        A(f"buffer_store_dwordx4 v[40:43], v44, {WS}, s{S_AO} offen offset:{1024*i} sc1")
    A("s_branch k_p0_join")
    A("k_p0_ffn:")
    A("s_sub_u32 s38, s2, 160")
    A("s_waitcnt vmcnt(5)")
    A("k_p0_join:")
    A(f"""
    s_cmp_lg_u32 s2, {NONWG}
    s_cbranch_scc1 k_non1
    s_cmp_lg_u32 s3, 0
    s_cbranch_scc1 k_non1
    v_add_u32 v197, 1, v197
    v_max_u32 v197, 1, v197
    s_mov_b64 exec, 1
    buffer_store_dword v197, v199, s[{S_DBG}:{S_DBG+3}], 0 offen sc1
    s_mov_b64 exec, -1
    k_non1:
    """)
    stamp(A, 1)
    A("s_cmp_lg_u32 s3, 0")
    A("s_cbranch_scc1 k_p0_j2")
    small_clears()
    A("k_p0_j2:")
    for i in range(10):
        unpack_bf16(A, 200 + i, VXF + 2*i, VXF + 2*i + 1)
    ln_stats(A, VXF)
    for i in range(10):
        a_, b_ = VXF + 2*i, VXF + 2*i + 1
        t = 86 + 2 * (i % 2)
        A(f"v_pk_add_f32 v[{t}:{t+1}], v[{a_}:{b_}], v[78:79] op_sel_hi:[1,0] neg_lo:[0,1] neg_hi:[0,1]")
        rnd(A, t, t); rnd(A, t+1, t+1)
        A(f"v_pk_mul_f32 v[{t}:{t+1}], v[{t}:{t+1}], v[80:81] op_sel_hi:[1,0]")
        rnd(A, t, t); rnd(A, t+1, t+1)
        A(f"v_cvt_pk_f16_f32 v{30+i}, v{t}, v{t+1}")
    A(f"""
    s_movk_i32 s52, {TSTR}
    v_mul_lo_u32 v6, v{VTOK}, s52
    v_add_u32 v6, v6, v{VCH}
    """)
    for i in range(5):
        A(f"ds_write_b64 v6, v[{30+2*i}:{31+2*i}] offset:{L_AT + 64*i}")
    A(f"""
    v_bfe_u32 v3, v1, 2, 2
    v_mul_lo_u32 v3, v3, s52
    v_lshrrev_b32 v4, 4, v1
    v_lshl_add_u32 v3, v4, 5, v3
    v_and_b32 v4, 3, v1
    v_lshl_add_u32 v3, v4, 3, v3
    s_lshl_b32 s53, s3, 7
    v_add_u32 v3, s53, v3
    v_lshlrev_b32 v4, 4, v0
    s_mul_i32 s52, s{S_TB}, 10240
    s_add_u32 s52, s52, {WS_UB}
    s_add_u32 s53, s52, 4096
    s_add_u32 s54, s52, 8192
    s_waitcnt lgkmcnt(0)
    s_barrier
    ds_read_b64_tr_b16 v[8:9], v3 offset:{L_AT}
    ds_read_b64_tr_b16 v[10:11], v3 offset:{L_AT + 4*TSTR}
    ds_read_b64_tr_b16 v[12:13], v3 offset:{L_AT + 512}
    ds_read_b64_tr_b16 v[14:15], v3 offset:{L_AT + 4*TSTR + 512}
    ds_read_b64_tr_b16 v[16:17], v3 offset:{L_AT + 1024}
    ds_read_b64_tr_b16 v[18:19], v3 offset:{L_AT + 4*TSTR + 1024}
    s_waitcnt lgkmcnt(0)
    buffer_store_dwordx4 v[8:11], v4, {WS}, s52 offen sc1
    buffer_store_dwordx4 v[12:15], v4, {WS}, s53 offen sc1
    s_cmp_ge_u32 s3, 2
    s_cbranch_scc1 k_ln1_skip
    buffer_store_dwordx4 v[16:19], v4, {WS}, s54 offen sc1
    k_ln1_skip:
    s_cmp_lg_u32 s3, 0
    s_cbranch_scc1 k_non2
    buffer_load_dword v198, v199, s[{S_DBG}:{S_DBG+3}], 0 offen sc1
    k_non2:
    """)
    stamp(A, 2)
    A("s_cmp_lt_u32 s2, 160")
    A("s_cbranch_scc1 k_conv_role")
    publish_flag("ff")
    A("v_mov_b32 v{VSW}, 0".replace("{VSW}", str(VSW)))
    A("s_mov_b32 s52, 0x3f803f80")
    for i in range(10):
        A(f"v_dot2_f32_bf16 v{VSW}, v{VW+i}, s52, v{VSW}")
    A("s_waitcnt lgkmcnt(0)")
    A(f"v_readfirstlane_b32 s{S_NON}, v199")
    stamp(A, 3)
    A("s_branch k_ffn_pre")
    A("k_conv_role:")
    A("s_waitcnt vmcnt(6)")
    def flag_poll(sleep, first_issued=False):
        L = newlbl("flg")
        if not first_issued:
            flag_setup()
        A(f"s_mov_b32 s53, 0")
        if first_issued:
            A(f"s_branch {L}_chk")
        A(f"{L}:")
        A(f"s_mov_b64 exec, s[54:55]")
        A(f"buffer_load_dwordx4 v[192:195], v196, {WS}, s51 offen sc1")
        A("s_mov_b64 exec, -1")
        A(f"{L}_chk:")
        A("s_waitcnt vmcnt(0)")
        A(f"v_xor_b32 v192, s{S_NON}, v192")
        A(f"v_xor_b32 v193, s{S_NON}, v193")
        A(f"v_xor_b32 v194, s{S_NON}, v194")
        A(f"v_xor_b32 v195, s{S_NON}, v195")
        A("v_or3_b32 v197, v192, v193, v194")
        A("v_or_b32 v197, v197, v195")
        A("v_cmp_ne_u32 vcc, 0, v197")
        A("s_and_b64 s[54:55], s[54:55], vcc")
        A("s_cmp_eq_u64 s[54:55], 0")
        A(f"s_cbranch_scc1 {L}_done")
        A("s_add_u32 s53, s53, 1")
        A(f"s_sleep {sleep}")
        A(f"s_cmp_lt_u32 s53, {POLL_LIMIT}")
        A(f"s_cbranch_scc1 {L}")
        A(f"{L}_done:")
    def flag_setup():
        A(f"""
        v_lshlrev_b32 v196, 4, v1
        s_and_b32 s51, s2, 7
        s_lshl_b32 s51, s51, 10
        s_add_u32 s51, s51, {WS_FL}
        s_mov_b64 s[54:55], -1
        """)
    def hook0():
        publish_flag("cf")
        A("v_mov_b32 v{VSW}, 0".replace("{VSW}", str(VSW)))
        A("s_mov_b32 s52, 0x3f803f80")
        for i in range(10):
            A(f"v_dot2_f32_bf16 v{VSW}, v{VW+i}, s52, v{VSW}")
        stamp(A, 3)
    G = 200
    def gather_issue():
        A(f"""
        v_lshrrev_b32 v216, 2, v1
        s_movk_i32 s52, 10240
        v_mul_lo_u32 v217, v216, s52
        v_and_b32 v218, 3, v1
        v_lshl_add_u32 v217, v218, 4, v217
        s_mul_i32 s52, s3, {64*10240}
        s_lshl_b32 s53, s2, 6
        s_add_u32 s52, s52, s53
        s_add_u32 s52, s52, {WS_UB}
        """)
        for i in range(4):
            A(f"buffer_load_dwordx4 v[{G+4*i}:{G+4*i+3}], v217, {WS}, s52 offen sc1")
            if i < 3: A(f"s_add_u32 s52, s52, {16*10240}")
        A(f"""
        s_movk_i32 s52, {WAVE_LDS}
        v_mul_lo_u32 v218, v218, s52
        v_lshl_add_u32 v218, v216, 4, v218
        s_lshl_b32 s52, s3, 10
        s_add_u32 s52, s52, {LBASE + 32}
        v_add_u32 v218, s52, v218
        """)
    def flag_check():
        A(f"v_xor_b32 v192, s{S_NON}, v192")
        A(f"v_xor_b32 v193, s{S_NON}, v193")
        A(f"v_xor_b32 v194, s{S_NON}, v194")
        A(f"v_xor_b32 v195, s{S_NON}, v195")
        A("v_or3_b32 v197, v192, v193, v194")
        A("v_or_b32 v197, v197, v195")
        A("v_cmp_ne_u32 vcc, 0, v197")
        A("s_and_b64 s[54:55], s[54:55], vcc")
    def p1_hook():
        A("s_waitcnt lgkmcnt(15)")
        A(f"v_readfirstlane_b32 s{S_NON}, v199")
        flag_setup()
        A(f"buffer_load_dwordx4 v[192:195], v196, {WS}, s51 offen sc1")
    def mid_hook():
        A("s_mov_b32 s50, 0")
        A("s_waitcnt vmcnt(0)")
        flag_check()
        A("s_cmp_eq_u64 s[54:55], 0")
        A("s_cbranch_scc0 kg_noearly")
        gather_issue()
        A("s_mov_b32 s50, 1")
        A("s_branch kg_early_done")
        A("kg_noearly:")
        A(f"s_mov_b64 exec, s[54:55]")
        A(f"buffer_load_dwordx4 v[192:195], v196, {WS}, s51 offen sc1")
        A("s_mov_b64 exec, -1")
        A("kg_early_done:")
    def tail_hook():
        stamp(A, 4)
        A("s_cmp_eq_u32 s50, 1")
        A("s_cbranch_scc1 kg_tail_done")
        flag_poll(1, first_issued=True)
        gather_issue()
        A("kg_tail_done:")
        stamp(A, 5)
    kgen(A, mid_hook, tail_hook, hook0, p1_hook)
    A(f"""
    v_lshlrev_b32 v9, 4, v1
    v_add_u32 v9, s{S_B}, v9
    v_add_u32 v10, 4096, v9
    v_cmp_gt_u32 vcc, 2, v1
    v_and_b32 v21, 15, v1
    v_lshrrev_b32 v22, 4, v1
    v_cndmask_b32 v10, v10, v9, vcc
    v_add_u32 v23, 1, v21
    v_and_b32 v24, 3, v23
    s_movk_i32 s53, 4160
    v_mul_lo_u32 v24, v24, s53
    v_lshrrev_b32 v23, 2, v23
    v_lshl_add_u32 v24, v23, 3, v24
    v_lshl_add_u32 v24, v22, 4, v24
    v_add_u32 v24, s{S_B}, v24
    v_lshlrev_b32 v25, 5, v21
    v_sub_u32 v25, {2*2032 - 64*56}, v25
    v_lshl_add_u32 v25, v22, 4, v25
    v_add_u32 v25, s{S_K}, v25
    v_lshlrev_b32 v26, 5, v21
    v_lshl_add_u32 v27, v22, 3, v26
    v_add_u32 v27, 32, v27
    v_add_u32 v27, s{S_B}, v27
    v_lshrrev_b32 v28, 1, v22
    v_lshl_add_u32 v26, v28, 4, v26
    v_and_b32 v28, 1, v22
    v_lshlrev_b32 v28, 30, v28
    v_or_b32 v26, v26, v28
    s_waitcnt lgkmcnt(0)
    s_barrier
    s_mov_b64 exec, 0xf
    ds_write_b128 v10, v[16:19]
    s_mov_b64 exec, -1
    """)
    for i in range(4):
        A(f"s_waitcnt vmcnt({3-i})")
        A(f"ds_write_b128 v218, v[{G+4*i}:{G+4*i+3}] offset:{256*i}")
    R = 128
    A(f"""
    v_mov_b32 v{R+32}, 0
    v_mov_b32 v{R+33}, 0
    v_mov_b32 v{R+34}, 0
    v_mov_b32 v{R+35}, 0
    s_waitcnt lgkmcnt(0)
    s_barrier
    """)
    stamp(A, 6)
    for i in range(4):
        A(f"ds_read_b128 v[{R+8*i}:{R+8*i+3}], v9 offset:{32 + 1024*i}")
        A(f"ds_read_b64 v[{R+8*i+4}:{R+8*i+5}], v9 offset:{48 + 1024*i}")
    A(f"ds_read_b64 v[{R+36}:{R+37}], v9 offset:16")
    nw = 0
    for i in range(5):
        r = R + 8*i
        reads_after = (2 * (3 - i) + 1) if i < 4 else 0
        A(f"s_waitcnt lgkmcnt({min(15, reads_after + nw)})")
        T1, T2, T3 = 176, 180, 184
        if i % 2: T1, T2, T3 = 188, 192, 196
        A(f"v_alignbit_b32 v{T1}, v{r+1}, v{r}, 16")
        A(f"v_alignbit_b32 v{T1+1}, v{r+2}, v{r+1}, 16")
        A(f"v_alignbit_b32 v{T1+2}, v{r+3}, v{r+2}, 16")
        A(f"v_alignbit_b32 v{T1+3}, v{r+4}, v{r+3}, 16")
        off = (32 + 1024*i) if i < 4 else 0
        if i == 4: A("s_mov_b64 exec, 3")
        A(f"ds_write_b128 v9, v[{T1}:{T1+3}] offset:{CB[1] + off}")
        A(f"v_mov_b32 v{T2}, v{r+1}")
        A(f"v_mov_b32 v{T2+1}, v{r+2}")
        A(f"v_mov_b32 v{T2+2}, v{r+3}")
        A(f"v_mov_b32 v{T2+3}, v{r+4}")
        A(f"ds_write_b128 v9, v[{T2}:{T2+3}] offset:{CB[2] + off}")
        A(f"v_mov_b32 v{T3}, v{T1+1}")
        A(f"v_mov_b32 v{T3+1}, v{T1+2}")
        A(f"v_mov_b32 v{T3+2}, v{T1+3}")
        A(f"v_alignbit_b32 v{T3+3}, v{r+5}, v{r+4}, 16")
        A(f"ds_write_b128 v9, v[{T3}:{T3+3}] offset:{CB[3] + off}")
        if i == 4: A("s_mov_b64 exec, -1")
        nw += 3
    A("s_waitcnt lgkmcnt(0)")
    stamp(A, 12)
    def a_setup():
        A(f"""
        v_lshlrev_b32 v3, 12, v0
        s_lshl_b32 s43, s{S_T0}, 1
        s_add_u32 s43, s43, {WS_AT}
        s_add_u32 s44, s43, {256*4096}
        s_add_u32 s45, s43, {512*4096}
        s_mov_b64 s[54:55], -1
        s_mov_b64 s[56:57], -1
        s_mov_b64 s[58:59], -1
        """)
    asets = [dict(mask=54, loads=[f"buffer_load_dwordx4 v[8:11], v3, {WS}, s43 offen sc1"], regs=[8,9,10,11], tmp=20),
             dict(mask=56, loads=[f"buffer_load_dwordx4 v[12:15], v3, {WS}, s44 offen sc1"], regs=[12,13,14,15], tmp=20),
             dict(mask=58, loads=[f"buffer_load_dwordx4 v[16:19], v3, {WS}, s45 offen sc1"], regs=[16,17,18,19], tmp=20)]
    agroups = [dict(mask=54, loads=[(f"buffer_load_dwordx4 {{dst}}, v3, {WS}, s43 offen sc1", 4, 8)], tmp=20),
               dict(mask=56, loads=[(f"buffer_load_dwordx4 {{dst}}, v3, {WS}, s44 offen sc1", 4, 12)], tmp=20),
               dict(mask=58, loads=[(f"buffer_load_dwordx4 {{dst}}, v3, {WS}, s45 offen sc1", 4, 16)], tmp=20)]
    def mask3():
        L = newlbl("m3")
        A(f"s_cmp_lt_u32 s3, 2")
        A(f"s_cbranch_scc1 {L}")
        A("s_mov_b64 s[58:59], 0")
        A(f"{L}:")
    a_setup()
    def a_hook():
        for st in asets:
            for ld in st["loads"]: A(ld.replace(" sc1", APLAIN))
    nst = conv_main(A, AHOOK, a_hook if AHOOK >= 0 else None)
    stamp(A, 7)
    if CDELAY: A(f"s_sleep {CDELAY}")
    mask3()
    if PIPE:
        pipe_poll(A, agroups, 46, "apollc", PK_A, 164, PSTAG)
    else:
        masked_poll(A, asets, 46, ASLEEP, "apollc", first=(("issued", nst) if AHOOK >= 0 else None))
    cnt_stamp(A, 0, 46)
    A("s_branch k_ln2c")
    A("k_ffn_pre:")
    srd(A, 24, 62, 63, 0, 640*3072)
    srd(A, 28, 64, 65, 0, 640*3072)
    srd(A, 32, 66, 67, 0, 1536*1280)
    if WPF:
        A(f"""
        s_and_b32 s39, s38, 7
        s_lshr_b32 s42, s38, 3
        s_mul_i32 s52, s42, 160
        v_add_u32 v8, s52, v0
        v_mul_u32_u24 v9, 0x5556, v8
        v_lshrrev_b32 v9, 16, v9
        v_mul_u32_u24 v10, 3, v9
        v_sub_u32 v10, v8, v10
        v_mul_u32_u24 v9, 3072, v9
        v_lshl_add_u32 v9, v10, 7, v9
        s_mul_i32 s52, s39, 384
        v_mov_b32 v11, 0x7fffffff
        v_cmp_gt_u32 vcc, 160, v0
        s_lshl_b32 s53, s42, 8
        v_add_u32 v12, s53, v0
        v_cndmask_b32 v9, v11, v9, vcc
        buffer_load_dword v160, v9, s[24:27], s52 offen
        buffer_load_dword v161, v9, s[28:31], s52 offen
        v_lshrrev_b32 v10, 1, v12
        v_mul_u32_u24 v10, 1280, v10
        v_and_b32 v12, 1, v12
        v_lshl_add_u32 v10, v12, 7, v10
        s_mul_i32 s52, s39, 160
        s_and_b32 s52, s52, 0xffffff80
        buffer_load_dword v162, v10, s[32:35], s52 offen
        """)
    A(f"""
    s_sub_u32 s38, s2, 160
    s_and_b32 s39, s38, 7
    s_lshr_b32 s42, s38, 3
    s_mul_i32 s36, s39, 12
    s_add_u32 s36, s36, s42
    s_mul_i32 s37, s39, 10
    s_add_u32 s37, s37, s42
    v_lshrrev_b32 v3, 1, v0
    s_movk_i32 s46, 3072
    v_mul_lo_u32 v3, v3, s46
    v_and_b32 v4, 1, v0
    v_lshl_add_u32 v3, v4, 4, v3
    s_lshl_b32 s43, s36, 5
    s_lshl_b32 s44, s3, 10
    """)
    for it in range(5):
        A(f"s_add_u32 s45, s43, {it*128*3072}")
        A(f"s_add_u32 s47, s44, {L_G + it*4096}")
        A("s_mov_b32 m0, s47")
        A("s_nop 0")
        A("buffer_load_dwordx4 v3, s[24:27], s45 offen lds")
        A(f"s_add_u32 s47, s44, {L_U + it*4096}")
        A("s_mov_b32 m0, s47")
        A("s_nop 0")
        A("buffer_load_dwordx4 v3, s[28:31], s45 offen lds")
    A(f"""
    s_cmp_ge_u32 s38, 80
    s_cbranch_scc1 k_ffn_nowd
    s_movk_i32 s46, 1280
    v_mul_lo_u32 v3, v0, s46
    s_lshl_b32 s43, s37, 4
    """)
    for it in range(6):
        A(f"s_add_u32 s45, s43, {it*256*1280}")
        A(f"s_add_u32 s47, s44, {L_WD + it*4096}")
        A("s_mov_b32 m0, s47")
        A("s_nop 0")
        A("buffer_load_dwordx4 v3, s[32:35], s45 offen lds")
    A("k_ffn_nowd:")
    flag_poll(8)
    stamp(A, 5)
    if CANARY:
        A(f"""
        s_cmp_lg_u32 s3, 0
        s_cbranch_scc1 k_can_done
        v_lshlrev_b32 v3, 12, v0
        s_and_b32 s43, s{S_TB}, 31
        s_add_u32 s43, s43, {32*CTILE}
        s_lshl_b32 s43, s43, 4
        s_add_u32 s43, s43, {WS_AT}
        s_mov_b64 s[54:55], -1
        """)
        masked_poll(A, [dict(mask=54, loads=[f"buffer_load_dwordx4 v[8:11], v3, {WS}, s43 offen sc1"], regs=[8, 9, 10, 11], tmp=12)], 46, CSLEEP, "can")
        cnt_stamp(A, 2, 46)
        A("k_can_done:")
        A("s_barrier")
    stamp(A, 7)
    A("s_branch k_ln2b")
    A("k_ln2b:")
    a_setup()
    mask3()
    if PIPE:
        pipe_poll(A, agroups, 46, "apoll", PK_A, 164, PSTAG)
    else:
        masked_poll(A, asets, 46, FSLEEP, "apoll", first=("plain" if (APLAIN == "" and CANARY) else None))
    cnt_stamp(A, 0, 46)
    A("k_ln2c:")
    A(f"""
    v_lshlrev_b32 v3, 4, v0
    ds_write_b128 v3, v[8:11] offset:{L_AT}
    ds_write_b128 v3, v[12:15] offset:{L_AT+4096}
    s_cmp_ge_u32 s3, 2
    s_cbranch_scc1 k_ln2_w3
    ds_write_b128 v3, v[16:19] offset:{L_AT+8192}
    k_ln2_w3:
    v_lshrrev_b32 v8, 4, v1
    v_lshlrev_b32 v8, 3, v8
    v_bfe_u32 v9, v1, 1, 1
    v_lshl_add_u32 v8, v9, 2, v8
    v_bfe_u32 v9, v1, 2, 2
    v_add_u32 v8, v8, v9
    s_mul_i32 s47, s3, 160
    v_add_u32 v8, s47, v8
    v_lshlrev_b32 v8, 4, v8
    v_and_b32 v9, 1, v1
    v_lshl_add_u32 v8, v9, 3, v8
    s_waitcnt lgkmcnt(0)
    s_barrier
    """)
    stamp(A, 8)
    for i in range(5):
        A(f"ds_read_b64_tr_b16 v[{30+2*i}:{31+2*i}], v8 offset:{L_AT+512*i}")
    H = 40
    for i in range(10):
        a, b = H + 2*i, H + 2*i + 1
        if i % 2 == 0: A(f"s_waitcnt lgkmcnt({4 - i//2})")
        unpack_bf16(A, 30 + i, a, b)
        A(f"v_pk_add_f32 v[{a}:{b}], v[{a}:{b}], v[{VXF+2*i}:{VXF+2*i+1}]")
        rnd(A, a, a); rnd(A, b, b)
    ln_stats_r(A, H)
    A(f"""
    v_cvt_pk_bf16_f32 v78+0, v90, v90
    """.replace("v78+0", "v88"))
    A(f"""
    v_and_b32 v88, 0xffff, v88
    v_xor_b32 v89, 0xffff, v88
    v_or_b32 v91, 0x8000, v88
    v_cmp_lt_u32 vcc, 0x7fff, v88
    v_lshlrev_b32 v87, 16, v88
    v_add_u32 v79, s{S_T0}, v{VTOK}
    v_cndmask_b32 v88, v91, v89, vcc
    v_lshlrev_b32 v88, 16, v88
    v_sub_u32 v91, 0xffff, v79
    v_or_b32 v86, v88, v91
    s_cmp_lg_u32 s3, 0
    s_cbranch_scc1 k_nokey
    v_lshlrev_b32 v88, 2, v79
    v_lshrrev_b32 v89, 3, v1
    v_lshl_add_u32 v88, v89, 13, v88
    s_mov_b32 s47, {WS_KEY}
    buffer_store_dword v86, v88, {WS}, s47 offen sc1
    k_nokey:
    """)
    stamp(A, 9)
    A(f"""
    v_lshlrev_b32 v9, 5, v0
    s_and_b32 s47, s2, {KREP-1}
    s_lshl_b32 s47, s47, 13
    s_add_u32 s47, s47, {WS_KEY}
    s_mov_b64 s[54:55], -1
    """)
    for i in range(10):
        a, b = H + 2*i, H + 2*i + 1
        t = 82 + 2 * (i % 2)
        A(f"v_pk_add_f32 v[{t}:{t+1}], v[{a}:{b}], v[78:79] op_sel_hi:[1,0] neg_lo:[0,1] neg_hi:[0,1]")
        rnd(A, t, t); rnd(A, t+1, t+1)
        A(f"v_pk_mul_f32 v[{t}:{t+1}], v[{t}:{t+1}], v[80:81] op_sel_hi:[1,0]")
        A(f"v_cvt_pk_bf16_f32 v{30+i}, v{t}, v{t+1}")
        unpack_bf16(A, 30 + i, 70, 71)
        A(f"v_pk_add_f32 v[70:71], v[70:71], v[{a}:{b}]")
        A(f"v_cvt_pk_bf16_f32 v{10+i}, v70, v71")
    if KDELAY:
        A("s_cmp_ge_u32 s2, 160")
        A("s_cbranch_scc1 k_kd")
        A(f"s_sleep {KDELAY}")
        A("k_kd:")
    if PIPE:
        pipe_poll(A, [dict(mask=54, loads=[(f"buffer_load_dwordx4 {{dst}}, v9, {WS}, s47 offen sc1", 4, 90), (f"buffer_load_dwordx4 {{dst}}, v9, {WS}, s47 offen offset:16 sc1", 4, 94)],
                           sent="min", tmp=98)], 46, "kpoll", PK_K, 164, PSTAG)
    else:
        masked_poll(A, [dict(mask=54, loads=[f"buffer_load_dwordx4 v[90:93], v9, {WS}, s47 offen sc1", f"buffer_load_dwordx4 v[94:97], v9, {WS}, s47 offen offset:16 sc1"],
                             regs=list(range(90, 98)), tmp=98, sent="min")], 46, KSLEEP, "kpoll")
    cnt_stamp(A, 1, 46)
    stamp(A, 10)
    A(f"""
    s_mov_b32 s50, -1
    s_mov_b64 s[52:53], 0
    s_mov_b32 s51, 0
    k_own:
    v_cmp_gt_u32 vcc, s50, v86
    s_nop 1
    v_cndmask_b32 v98, 0, v86, vcc
    """)
    for pat in ("quad_perm:[1,0,3,2]", "quad_perm:[2,3,0,1]", "row_half_mirror"):
        A("s_nop 1")
        A(f"v_max_u32_dpp v98, v98, v98 {pat} {DPP}")
    A(f"""
    s_nop 0
    v_readfirstlane_b32 s54, v98
    s_nop 3
    s_cmp_eq_u32 s54, 0
    s_cbranch_scc1 k_own_done
    s_mov_b32 s55, 0
    """)
    for r in range(8):
        A(f"v_cmp_lt_u32 vcc, s54, v{90+r}")
        A(f"s_bcnt1_i32_b64 s56, vcc")
        A(f"s_add_u32 s55, s55, s56")
    A(f"""
    s_lshl_b32 s56, s51, 4
    s_lshl_b32 s57, s3, 2
    s_add_u32 s57, s57, s56
    s_add_u32 s57, s57, {L_CNT}
    v_mov_b32 v99, s57
    v_mov_b32 v100, s55
    s_add_u32 s56, s56, {L_CNT}
    v_mov_b32 v101, s56
    s_mov_b64 exec, 1
    ds_write_b32 v99, v100
    s_mov_b64 exec, -1
    s_waitcnt lgkmcnt(0)
    s_barrier
    ds_read_b128 v[102:105], v101
    s_waitcnt lgkmcnt(0)
    v_add_u32 v102, v102, v103
    v_add3_u32 v102, v102, v104, v105
    s_nop 0
    v_readfirstlane_b32 s55, v102
    s_nop 3
    s_cmp_ge_u32 s55, 8
    s_cbranch_scc1 k_own_done
    v_cmp_eq_u32 vcc, s54, v86
    s_or_b64 s[52:53], s[52:53], vcc
    s_and_saveexec_b64 s[48:49], vcc
    s_mul_i32 s56, s55, 1280
    s_add_u32 s57, s56, {WS_HS}
    s_add_u32 s56, s56, {WS_ZS}
    """)
    for i in range(5):
        A(f"buffer_store_dwordx2 v[{30+2*i}:{31+2*i}], v{VCH}, {WS}, s56 offen offset:{64*i} sc1")
    for i in range(10):
        A(f"v_cvt_pk_bf16_f32 v{106+i}, v{H+2*i}, v{H+2*i+1}")
    for i in range(5):
        A(f"buffer_store_dwordx2 v[{106+2*i}:{107+2*i}], v{VCH}, {WS}, s57 offen offset:{64*i} sc1")
    A(f"""
    s_cmp_lg_u32 s3, 0
    s_cbranch_scc1 k_own_nometa
    v_cmp_gt_u32 vcc, 8, v1
    s_and_b64 exec, exec, vcc
    v_mul_f32 v99, {hex(F_LOG2E)}, v87
    v_exp_f32 v99, -v99
    s_nop 0
    v_add_f32 v99, 1.0, v99
    v_rcp_f32 v99, v99
    s_nop 0
    v_cvt_pk_bf16_f32 v99, 0, v99
    s_lshl_b32 s56, s55, 2
    s_add_u32 s56, s56, {WS_META}
    v_mov_b32 v100, 0
    buffer_store_dword v79, v100, {WS}, s56 offen sc1
    buffer_store_dword v99, v100, {WS}, s56 offen offset:32 sc1
    k_own_nometa:
    s_mov_b64 exec, -1
    s_mov_b32 s50, s54
    s_xor_b32 s51, s51, 1
    s_branch k_own
    k_own_done:
    """)
    stamp(A, 11)
    A("s_andn2_b64 exec, exec, s[52:53]")
    for i in range(5):
        A(f"buffer_store_dwordx2 v[{10+2*i}:{11+2*i}], v{VROW}, s[{S_X}:{S_X+3}], 0 offen offset:{64*i} {OUTF}")
    A("s_mov_b64 exec, -1")
    A("s_cmp_lt_u32 s2, 160")
    A("s_cbranch_scc1 k_end")
    A(f"""
    v_lshrrev_b32 v7, 4, v1
    s_movk_i32 s46, 1280
    v_mul_lo_u32 v9, v{VTOK}, s46
    v_lshl_add_u32 v9, v7, 4, v9
    s_mul_i32 s47, s3, 320
    s_add_u32 s47, s47, {WS_ZS}
    v_lshlrev_b32 v10, 3, v7
    v_bfe_u32 v11, v1, 2, 2
    v_add_u32 v10, v10, v11
    v_lshlrev_b32 v10, 5, v10
    v_and_b32 v11, 3, v1
    v_lshl_add_u32 v10, v11, 3, v10
    s_mul_i32 s44, s3, {5*32*32}
    s_add_u32 s44, s44, {L_G}
    v_add_u32 v10, s44, v10
    """)
    for i in range(5):
        A(f"ds_read_b64_tr_b16 v[{120+4*i}:{121+4*i}], v10 offset:{1024*i}")
        A(f"ds_read_b64_tr_b16 v[{122+4*i}:{123+4*i}], v10 offset:{1024*i + 128}")
        A(f"ds_read_b64_tr_b16 v[{140+4*i}:{141+4*i}], v10 offset:{L_U - L_G + 1024*i}")
        A(f"ds_read_b64_tr_b16 v[{142+4*i}:{143+4*i}], v10 offset:{L_U - L_G + 1024*i + 128}")
        if i % 2 == 1: A("s_waitcnt lgkmcnt(0)")
    A("s_mov_b64 s[54:55], -1")
    if ZDELAY: A(f"s_sleep {ZDELAY}")
    if PIPE:
        pipe_poll(A, [dict(mask=54, loads=[(f"buffer_load_dwordx4 {{dst}}, v9, {WS}, s47 offen offset:{64*i} sc1", 4, 40+4*i) for i in range(5)], tmp=60)], 46, "zpoll", 2, 164, PSTAG2)
    else:
        masked_poll(A, [dict(mask=54, loads=[f"buffer_load_dwordx4 v[{40+4*i}:{43+4*i}], v9, {WS}, s47 offen offset:{64*i} sc1" for i in range(5)],
                             regs=list(range(40, 60)), tmp=60)], 46, 1, "zpoll")
    cnt_stamp(A, 3, 46)
    stamp(A, 12)
    A("s_waitcnt lgkmcnt(0)")
    for i in range(5):
        c = "0" if i == 0 else "v[80:83]"
        A(f"v_mfma_f32_16x16x32_bf16 v[80:83], v[{40+4*i}:{43+4*i}], v[{120+4*i}:{123+4*i}], {c}")
        c = "0" if i == 0 else "v[84:87]"
        A(f"v_mfma_f32_16x16x32_bf16 v[84:87], v[{40+4*i}:{43+4*i}], v[{140+4*i}:{143+4*i}], {c}")
    A(f"""
    v_lshlrev_b32 v11, 4, v1
    s_lshl_b32 s44, s3, 11
    v_add_u32 v12, s44, v11
    s_lshl_b32 s44, s3, 2
    v_add_u32 v11, s44, v11
    s_nop 5
    ds_write_b128 v12, v[80:83] offset:{L_RED}
    ds_write_b128 v12, v[84:87] offset:{L_RED+1024}
    s_waitcnt lgkmcnt(0)
    s_barrier
    """)
    for w in range(4):
        A(f"ds_read_b32 v{40+w}, v11 offset:{L_RED + 2048*w}")
        A(f"ds_read_b32 v{44+w}, v11 offset:{L_RED + 2048*w + 1024}")
    A(f"""
    v_and_b32 v13, 15, v1
    v_lshlrev_b32 v12, 1, v13
    v_lshrrev_b32 v7, 4, v1
    s_movk_i32 s46, {4*3072}
    v_mul_lo_u32 v14, v7, s46
    v_add_u32 v12, v12, v14
    s_lshl_b32 s44, s36, 5
    s_mul_i32 s45, s3, 3072
    s_add_u32 s44, s44, s45
    s_add_u32 s44, s44, {WS_HID}
    s_waitcnt lgkmcnt(0)
    v_add_f32 v40, v40, v41
    v_add_f32 v42, v42, v43
    v_add_f32 v44, v44, v45
    v_add_f32 v46, v46, v47
    v_add_f32 v40, v40, v42
    v_add_f32 v44, v44, v46
    v_cvt_pk_bf16_f32 v40, 0, v40
    v_cvt_pk_bf16_f32 v44, 0, v44
    v_mul_f32 v52, {hex(F_LOG2E)}, v40
    v_exp_f32 v52, -v52
    s_nop 0
    v_add_f32 v52, 1.0, v52
    v_rcp_f32 v52, v52
    s_nop 0
    v_mul_f32 v52, v52, v40
    v_cvt_pk_bf16_f32 v52, 0, v52
    v_mul_f32 v52, v52, v44
    v_cvt_pk_bf16_f32 v52, v52, v52
    s_mov_b32 s58, 0x05040100
    s_nop 0
    v_mov_b32_dpp v53, v52 quad_perm:[1,1,3,3] {DPP}
    v_perm_b32 v56, v53, v52, s58
    s_nop 1
    v_mov_b32_dpp v57, v56 row_shl:2 {DPP}
    v_mov_b32_dpp v58, v56 row_shl:4 {DPP}
    v_mov_b32_dpp v59, v56 row_shl:6 {DPP}
    v_and_b32 v11, 7, v1
    v_cmp_eq_u32 vcc, 0, v11
    v_cmp_gt_u32 s[48:49], 2, v7
    s_and_b64 vcc, vcc, s[48:49]
    s_and_saveexec_b64 s[48:49], vcc
    buffer_store_dwordx4 v[56:59], v12, {WS}, s44 offen sc1
    s_add_u32 s45, s44, 24576
    buffer_store_dwordx4 v[56:59], v12, {WS}, s45 offen sc1
    s_add_u32 s45, s44, 49152
    buffer_store_dwordx4 v[56:59], v12, {WS}, s45 offen sc1
    s_add_u32 s45, s44, 73728
    buffer_store_dwordx4 v[56:59], v12, {WS}, s45 offen sc1
    s_mov_b64 exec, -1
    """)
    stamp(A, 13)
    A("s_cmp_ge_u32 s38, 80")
    A("s_cbranch_scc1 k_end")
    A(f"""
    v_bfe_u32 v5, v1, 3, 1
    v_lshrrev_b32 v7, 4, v1
    s_movk_i32 s46, 3072
    v_mul_lo_u32 v9, v{VTOK}, s46
    s_movk_i32 s46, 1536
    v_mul_lo_u32 v10, v5, s46
    v_add_u32 v9, v9, v10
    v_lshl_add_u32 v9, v7, 4, v9
    s_mul_i32 s47, s3, {6*64}
    s_and_b32 s46, s2, {HREP-1}
    s_mul_i32 s46, s46, 24576
    s_add_u32 s47, s47, s46
    s_add_u32 s47, s47, {WS_HID}
    v_lshlrev_b32 v14, 3, v7
    v_bfe_u32 v15, v1, 2, 2
    v_add_u32 v14, v14, v15
    v_bfe_u32 v15, v1, 1, 1
    s_movk_i32 s46, 768
    v_mul_lo_u32 v15, v15, s46
    v_add_u32 v14, v14, v15
    v_lshlrev_b32 v14, 4, v14
    v_and_b32 v15, 1, v1
    v_lshl_add_u32 v14, v15, 3, v14
    s_mul_i32 s44, s3, {6*512}
    s_add_u32 s44, s44, {L_WD}
    v_add_u32 v14, s44, v14
    """)
    for i in range(6):
        A(f"ds_read_b64_tr_b16 v[{120+4*i}:{121+4*i}], v14 offset:{512*i}")
        A(f"ds_read_b64_tr_b16 v[{122+4*i}:{123+4*i}], v14 offset:{512*i + 64}")
    A(f"""
    v_lshrrev_b32 v20, 3, v1
    v_and_b32 v21, 7, v1
    s_movk_i32 s46, 1280
    v_mul_lo_u32 v35, v20, s46
    v_lshl_add_u32 v35, v21, 1, v35
    v_and_b32 v35, 0xfffffffc, v35
    s_lshl_b32 s44, s37, 4
    s_add_u32 s50, s44, {WS_ZS}
    s_add_u32 s51, s44, {WS_HS}
    v_lshlrev_b32 v32, 2, v20
    s_mov_b32 s45, {WS_META}
    s_mov_b64 s[54:55], -1
    s_mov_b64 s[56:57], 0
    s_cmp_lg_u32 s3, 0
    s_cbranch_scc1 k_g2_m
    s_mov_b64 s[56:57], -1
    k_g2_m:
    """)
    if HDELAY: A(f"s_sleep {HDELAY}")
    if PIPE:
        pipe_poll(A, [dict(mask=54, loads=[(f"buffer_load_dwordx4 {{dst}}, v9, {WS}, s47 offen offset:{64*i} sc1", 4, 40+4*i) for i in range(6)], tmp=65),
                      dict(mask=56, loads=[(f"buffer_load_dword {{dst}}, v35, {WS}, s50 offen sc1", 1, 36), (f"buffer_load_dword {{dst}}, v35, {WS}, s51 offen sc1", 1, 37),
                                           (f"buffer_load_dword {{dst}}, v32, {WS}, s45 offen sc1", 1, 33), (f"buffer_load_dword {{dst}}, v32, {WS}, s45 offen offset:32 sc1", 1, 34)], tmp=64)],
                  46, "hpoll", 2, 164, PSTAG2)
    else:
        masked_poll(A, [dict(mask=54, loads=[f"buffer_load_dwordx4 v[{40+4*i}:{43+4*i}], v9, {WS}, s47 offen offset:{64*i} sc1" for i in range(6)],
                             regs=list(range(40, 64)), tmp=65),
                        dict(mask=56, loads=[f"buffer_load_dword v36, v35, {WS}, s50 offen sc1", f"buffer_load_dword v37, v35, {WS}, s51 offen sc1",
                                             f"buffer_load_dword v33, v32, {WS}, s45 offen sc1", f"buffer_load_dword v34, v32, {WS}, s45 offen offset:32 sc1"],
                             regs=[36, 37, 33, 34], tmp=64)], 46, 1, "hpoll")
    cnt_stamp(A, 4, 46)
    stamp(A, 14)
    A("s_waitcnt lgkmcnt(0)")
    for i in range(6):
        c = "0" if i == 0 else "v[88:91]"
        A(f"v_mfma_f32_16x16x32_bf16 v[88:91], v[{40+4*i}:{43+4*i}], v[{120+4*i}:{123+4*i}], {c}")
    A(f"""
    v_lshlrev_b32 v15, 4, v1
    s_lshl_b32 s44, s3, 10
    v_add_u32 v16, s44, v15
    s_barrier
    s_nop 4
    ds_write_b128 v16, v[88:91] offset:{L_RED}
    s_waitcnt lgkmcnt(0)
    s_barrier
    s_cmp_lg_u32 s3, 0
    s_cbranch_scc1 k_end
    v_lshrrev_b32 v22, 2, v20
    v_lshl_add_u32 v22, v22, 4, v21
    v_lshlrev_b32 v22, 4, v22
    v_and_b32 v23, 3, v20
    v_lshl_add_u32 v22, v23, 2, v22
    """)
    for w in range(4):
        A(f"ds_read_b32 v{24+2*w}, v22 offset:{L_RED + 1024*w}")
        A(f"ds_read_b32 v{25+2*w}, v22 offset:{L_RED + 1024*w + 640}")
    A(f"""
    v_and_b32 v38, 1, v21
    v_cmp_eq_u32 vcc, 1, v38
    v_lshlrev_b32 v38, 16, v36
    v_and_b32 v36, 0xffff0000, v36
    v_cndmask_b32 v36, v38, v36, vcc
    v_lshlrev_b32 v38, 16, v37
    v_and_b32 v37, 0xffff0000, v37
    v_cndmask_b32 v37, v38, v37, vcc
    s_movk_i32 s46, 1280
    v_mul_lo_u32 v35, v33, s46
    v_lshl_add_u32 v35, v21, 1, v35
    s_lshl_b32 s44, s37, 4
    s_waitcnt lgkmcnt(0)
    v_add_f32 v24, v24, v25
    v_add_f32 v26, v26, v27
    v_add_f32 v28, v28, v29
    v_add_f32 v30, v30, v31
    v_add_f32 v24, v24, v26
    v_add_f32 v28, v28, v30
    v_add_f32 v24, v24, v28
    v_cvt_pk_bf16_f32 v24, 0, v24
    v_mul_f32 v24, v24, v34
    v_cvt_pk_bf16_f32 v24, 0, v24
    v_add_f32 v24, v36, v24
    v_cvt_pk_bf16_f32 v24, 0, v24
    v_add_f32 v24, v37, v24
    v_cvt_pk_bf16_f32 v24, v24, v24
    buffer_store_short v24, v35, s[{S_X}:{S_X+3}], s44 offen
    k_end:
    """)
    stamp_flush(A)
    A("k_exit:")
    A("s_endpgm")
    A("k_code_end:")
    A("s_endpgm")
    return name

def main():
    global STAMP
    if "--stamp" in sys.argv:
        STAMP = True
        sys.argv.remove("--stamp")
    hdr = open("cdna_kernels/%s.s.ref" % NAME).read().split("; Override launch")[0]
    b = Asm(); name = gen_main(b)
    out = hdr + f"; @launch grid=(256,1,1) block=(256,1,1) lds={LDS_TOTAL}\n"
    out += '.amdgcn_target "amdgcn-amd-amdhsa--gfx950"\n.text\n'
    out += b.text()
    out += '.section .rodata,"a"\n.p2align 6\n' + gen.kernel_desc(name, 512, 100, 256)
    path = sys.argv[1] if len(sys.argv) > 1 else "cdna_kernels/%s.s" % NAME
    open(path, "w").write(out)
    print("wrote", path, len(out))

if __name__ == "__main__":
    main()
```

```python
import sys, os, struct
from gen import Asm as Asm0, srd, DPP, allreduce16, xor16, xor32, f32bits
from gen import F_INV640, F_LOG2E, F_INV2PI, F_EPS, ARG, NAME
import gen
from gen import Asm as Asm0

WS_UB = 0x000000
WS_AT = 0x280000
WS_KEY = 0x500000
WS_SM = 0x510000
WS_ZS = WS_SM
WS_HS = WS_SM + 10240
WS_META = WS_SM + 20480
WS_HID = WS_SM + 20736
WS_FL = 0x530000
WS_SIZE = 0x540000
WS_STAMP = 0x1000000

STAMP = False
KSTAMP = os.environ.get('KSTAMP', '0') == '1'
class Asm(Asm0):
    pass

def stamp(A, k):
    if STAMP:
        A("s_memrealtime s[98:99]")
        A("s_waitcnt lgkmcnt(0)")
        A(f"v_writelane_b32 v255, s98, {k}")

def cnt_stamp(A, k, sreg):
    if STAMP:
        A(f"v_writelane_b32 v254, s{sreg}, {k}")

def stamp_flush(A):
    if STAMP and DBGWG >= 0:
        A("s_waitcnt vmcnt(0) lgkmcnt(0)")
        stamp(A, 15)
        A(f"s_cmp_lg_u32 s2, {DBGWG}")
        A("s_cbranch_scc1 k_dbg_skip")
        A("s_cmp_lg_u32 s3, 0")
        A("s_cbranch_scc1 k_dbg_skip")
        A("v_readlane_b32 s90, v255, 0")
        A("s_nop 3")
        A("v_subrev_u32 v255, s90, v255")
        A("v_and_b32 v3, 63, v0")
        A("v_lshlrev_b32 v2, 2, v3")
        A("s_mov_b64 exec, 0xfffe")
        A(f"buffer_store_dword v255, v2, s[{S_DBG}:{S_DBG+3}], 0 offen")
        A("k_dbg_skip:")
        return
    if STAMP:
        A("s_waitcnt vmcnt(0) lgkmcnt(0)")
        stamp(A, 15)
        A(f"s_load_dwordx2 s[88:89], s[0:1], {ARG['ws']}")
        A("s_waitcnt lgkmcnt(0)")
        srd(A, 84, 88, 89, WS_STAMP, 0x40000)
        A("v_lshrrev_b32 v2, 6, v0")
        A("s_lshl_b32 s91, s2, 2")
        A("v_add_u32 v2, s91, v2")
        A("v_lshlrev_b32 v2, 6, v2")
        A("v_and_b32 v3, 63, v0")
        A("v_lshl_add_u32 v2, v3, 2, v2")
        A("s_mov_b64 exec, 0xffff")
        A("buffer_store_dword v255, v2, s[84:87], 0 offen")
        A("v_add_u32 v2, 0x20000, v2")
        A("buffer_store_dword v254, v2, s[84:87], 0 offen")

WAVE_LDS = 30432
CB = [0, 4160, 8320, 12480]
KOFF = 16640
TSTR = 1352
L_AT = 0
L_MISC = 10816
L_ST = L_MISC
L_RP = L_MISC + 256
L_CNT = L_MISC + 384
L_NON = L_MISC + 448
L_RED = L_MISC + 512
LBASE = 19712
L_G, L_U, L_WD = LBASE, LBASE + 20480, LBASE + 40960
LDS_TOTAL = LBASE + 4 * WAVE_LDS
POLL_LIMIT = 40000
ZDELAY = int(os.environ.get('ZDELAY', '8'))
HDELAY = int(os.environ.get('HDELAY', '6'))
KDELAY = int(os.environ.get('KDELAY', '32'))
PIPE = os.environ.get('PIPE', '0') == '1'
PK_A = int(os.environ.get('PK_A', '3'))
PK_K = int(os.environ.get('PK_K', '3'))
PSTAG = int(os.environ.get('PSTAG', '8'))
PSTAG2 = int(os.environ.get('PSTAG2', '12'))
KREP = int(os.environ.get('KREP', '8'))
HREP = int(os.environ.get('HREP', '4'))
VERB = True
PFFIRST = int(os.environ.get('PFFIRST', '0'))
CTILE = int(os.environ.get('CTILE', '3'))
EARLYG = os.environ.get('EARLYG', '1') == '1'
OUTF = os.environ.get('OUTF', '')
DBGWG = int(os.environ.get('DBGWG', '-1'))
NONWG = int(os.environ.get('NONWG', '0'))
CDELAY = int(os.environ.get('CDELAY', '0'))
WPF = os.environ.get('WPF', '1') == '1'
CSLEEP = int(os.environ.get('CSLEEP', '8'))
CANARY = os.environ.get('CANARY', '1') == '1'
FSLEEP = int(os.environ.get('FSLEEP', '2'))
APLAIN = ' sc1' if os.environ.get('APLAIN', '0') == '0' else ''
AHOOK = int(os.environ.get('AHOOK', '-1'))
CODEPF = os.environ.get('CODEPF', '1') == '1'
NPF = int(os.environ.get('NPF', '8'))
KSLEEP = int(os.environ.get('KSLEEP', '3'))
ASLEEP = int(os.environ.get('ASLEEP', '2'))

S_WS, S_X, S_DBG, S_WR = 8, 12, 20, 16
S_TB, S_T0 = 40, 41
S_D, S_B, S_K, S_AO, S_F, S_DS, S_NON = 74, 75, 76, 77, 78, 79, 72
VXF = 220
VW = 240
VROW, VCH, VTOK = 250, 251, 252

lblc = [0]
def newlbl(p):
    lblc[0] += 1
    return f"{p}_{lblc[0]}"

def rnd(A, d, s):
    A(f"v_cvt_pk_bf16_f32 v{d}, 0, v{s}")

def unpack_bf16(A, src, dlo, dhi):
    A(f"v_lshlrev_b32 v{dlo}, 16, v{src}")
    A(f"v_and_b32 v{dhi}, 0xffff0000, v{src}")

def red8(A, x, t):
    A("s_nop 1")
    A(f"v_add_f32_dpp v{x}, v{x}, v{x} row_ror:8 {DPP}")
    xor16(A, "v_add_f32", x, t)
    xor32(A, "v_add_f32", x, t)

def ln_stats(A, H):
    A(f"v_pk_add_f32 v[72:73], v[{H}:{H+1}], v[{H+2}:{H+3}]")
    A(f"v_pk_add_f32 v[74:75], v[{H+4}:{H+5}], v[{H+6}:{H+7}]")
    for i in range(4, 10, 2):
        A(f"v_pk_add_f32 v[72:73], v[72:73], v[{H+2*i}:{H+2*i+1}]")
        A(f"v_pk_add_f32 v[74:75], v[74:75], v[{H+2*i+2}:{H+2*i+3}]")
    A("v_pk_add_f32 v[72:73], v[72:73], v[74:75]")
    A("v_add_f32 v72, v72, v73")
    red8(A, 72, 73)
    A(f"v_mul_f32 v72, {hex(f32bits(1/160))}, v72")
    for i in range(10):
        t = 70 if i % 2 == 0 else 76
        acc = 74 if i % 2 == 0 else 82
        A(f"v_pk_add_f32 v[{t}:{t+1}], v[{H+2*i}:{H+2*i+1}], v[72:73] op_sel_hi:[1,0] neg_lo:[0,1] neg_hi:[0,1]")
        if i < 2: A(f"v_pk_mul_f32 v[{acc}:{acc+1}], v[{t}:{t+1}], v[{t}:{t+1}]")
        else: A(f"v_pk_fma_f32 v[{acc}:{acc+1}], v[{t}:{t+1}], v[{t}:{t+1}], v[{acc}:{acc+1}]")
    A("v_pk_add_f32 v[74:75], v[74:75], v[82:83]")
    A("v_add_f32 v73, v74, v75")
    red8(A, 73, 74)
    A(f"""
    v_lshlrev_b32 v76, 3, v{VTOK}
    v_add_u32 v76, {L_ST}, v76
    s_lshl_b32 s47, s3, 6
    v_add_u32 v77, s47, v76
    v_cmp_gt_u32 vcc, 8, v1
    s_and_saveexec_b64 s[48:49], vcc
    ds_write_b64 v77, v[72:73]
    s_mov_b64 exec, s[48:49]
    s_waitcnt lgkmcnt(0)
    s_barrier
    ds_read_b64 v[78:79], v76
    ds_read_b64 v[80:81], v76 offset:64
    ds_read_b64 v[82:83], v76 offset:128
    ds_read_b64 v[84:85], v76 offset:192
    s_waitcnt lgkmcnt(0)
    v_add_f32 v72, v78, v80
    v_add_f32 v73, v82, v84
    v_add_f32 v72, v72, v73
    v_mul_f32 v72, 0.25, v72
    v_sub_f32 v78, v78, v72
    v_sub_f32 v80, v80, v72
    v_sub_f32 v82, v82, v72
    v_sub_f32 v84, v84, v72
    v_mul_f32 v73, v78, v78
    v_fmac_f32 v73, v80, v80
    v_fmac_f32 v73, v82, v82
    v_fmac_f32 v73, v84, v84
    v_add_f32 v79, v79, v81
    v_add_f32 v83, v83, v85
    v_add_f32 v79, v79, v83
    v_fmac_f32 v79, {hex(f32bits(160))}, v73
    v_mul_f32 v74, {hex(F_INV640)}, v79
    v_cvt_pk_bf16_f32 v78, 0, v72
    v_cvt_pk_bf16_f32 v75, 0, v74
    v_add_f32 v75, {hex(F_EPS)}, v75
    v_cvt_pk_bf16_f32 v75, 0, v75
    v_sqrt_f32 v75, v75
    s_nop 0
    v_cvt_pk_bf16_f32 v75, 0, v75
    v_rcp_f32 v80, v75
    s_nop 0
    """)

def cmul(A, z, x, y, t):
    A(f"v_pk_mul_f32 v[{t}:{t+1}], v[{x}:{x+1}], v[{y}:{y+1}] op_sel:[0,0] op_sel_hi:[1,0]")
    A(f"v_pk_fma_f32 v[{z}:{z+1}], v[{x}:{x+1}], v[{y}:{y+1}], v[{t}:{t+1}] op_sel:[1,1,0] op_sel_hi:[0,1,1] neg_lo:[1,0,0]")

class Poll:
    pass

def masked_poll(A, sets, cnt, sleep, tag, first=None):
    L = newlbl(tag)
    A(f"s_mov_b32 s{cnt}, 0")
    if first == "plain":
        for st in sets:
            for ld in st["loads"]: A(ld.replace(" sc1", ""))
        A("s_waitcnt vmcnt(0)")
        A(f"s_branch {L}_chk")
    elif first is not None:
        A(f"s_waitcnt vmcnt({first[1]})")
        A(f"s_branch {L}_chk")
    A(f"{L}:")
    for k, st in enumerate(sets):
        m = st["mask"]
        A(f"s_mov_b64 exec, s[{m}:{m+1}]")
        A(f"s_cbranch_execz {L}_sk{k}")
        for ld in st["loads"]: A(ld)
        A(f"{L}_sk{k}:")
    A("s_mov_b64 exec, -1")
    A("s_waitcnt vmcnt(0)")
    A(f"{L}_chk:")
    for k, st in enumerate(sets):
        m = st["mask"]; regs = st["regs"]; t = st["tmp"]
        op = "max" if st.get("sent", "max") == "max" else "min"
        r = list(regs)
        if len(r) == 1:
            src = r[0]
        else:
            if len(r) >= 3:
                A(f"v_{op}3_u32 v{t}, v{r[0]}, v{r[1]}, v{r[2]}"); r = r[3:]
            else:
                A(f"v_{op}_u32 v{t}, v{r[0]}, v{r[1]}"); r = r[2:]
            while len(r) >= 2:
                A(f"v_{op}3_u32 v{t}, v{t}, v{r[0]}, v{r[1]}"); r = r[2:]
            if r: A(f"v_{op}_u32 v{t}, v{t}, v{r[0]}")
            src = t
        sent = "-1" if op == "max" else "0"
        A(f"v_cmp_eq_u32 vcc, {sent}, v{src}")
        A(f"s_and_b64 s[{m}:{m+1}], s[{m}:{m+1}], vcc")
    m0 = sets[0]["mask"]
    if len(sets) == 1:
        A(f"s_cmp_eq_u64 s[{m0}:{m0+1}], 0")
    else:
        A(f"s_or_b64 vcc, s[{m0}:{m0+1}], s[{sets[1]['mask']}:{sets[1]['mask']+1}]")
        for st in sets[2:]:
            A(f"s_or_b64 vcc, vcc, s[{st['mask']}:{st['mask']+1}]")
        A("s_cmp_eq_u64 vcc, 0")
    A(f"s_cbranch_scc1 {L}_done")
    A(f"s_add_u32 s{cnt}, s{cnt}, 1")
    if sleep: A(f"s_sleep {sleep}")
    A(f"s_cmp_lt_u32 s{cnt}, {POLL_LIMIT}")
    A(f"s_cbranch_scc1 {L}")
    A(f"{L}_done:")


def pipe_poll(A, groups, cnt, tag, K, SB, stag, sleep=0, NEW=92):
    L = newlbl(tag)
    tot = sum(w for g in groups for (_, w, _) in g["loads"])
    n = sum(len(g["loads"]) for g in groups)
    def stage(j):
        out = []; r = SB + j * tot
        for g in groups:
            lst = []
            for (fmt, w, fin) in g["loads"]:
                lst.append((fmt, w, fin, r)); r += w
            out.append(lst)
        return out
    def issue(j):
        for g, lst in zip(groups, stage(j)):
            m = g["mask"]
            A(f"s_or_b64 exec, s[{m}:{m+1}], 1")
            for (fmt, w, fin, r) in lst:
                dst = f"v{r}" if w == 1 else f"v[{r}:{r+w-1}]"
                A(fmt.format(dst=dst))
        A("s_mov_b64 exec, -1")
    A(f"s_mov_b32 s{cnt}, 0")
    for j in range(K):
        issue(j)
        if j < K - 1 and stag: A(f"s_sleep {stag}")
    A(f"{L}:")
    for j in range(K):
        A(f"s_waitcnt vmcnt({(K-1)*n})")
        for gi, (g, lst) in enumerate(zip(groups, stage(j))):
            m = g["mask"]; t = g["tmp"]
            op = "max" if g.get("sent", "max") == "max" else "min"
            regs = [r + i for (_, w, _, r) in lst for i in range(w)]
            r = list(regs)
            if len(r) == 1: src = r[0]
            else:
                if len(r) >= 3:
                    A(f"v_{op}3_u32 v{t}, v{r[0]}, v{r[1]}, v{r[2]}"); r = r[3:]
                else:
                    A(f"v_{op}_u32 v{t}, v{r[0]}, v{r[1]}"); r = r[2:]
                while len(r) >= 2:
                    A(f"v_{op}3_u32 v{t}, v{t}, v{r[0]}, v{r[1]}"); r = r[2:]
                if r: A(f"v_{op}_u32 v{t}, v{t}, v{r[0]}")
                src = t
            sent = "-1" if op == "max" else "0"
            A(f"v_cmp_ne_u32 vcc, {sent}, v{src}")
            A(f"s_and_b64 s[{NEW}:{NEW+1}], vcc, s[{m}:{m+1}]")
            A(f"s_cbranch_scc0 {L}_s{j}_{gi}")
            A(f"s_mov_b64 exec, s[{NEW}:{NEW+1}]")
            for (_, w, fin, rr) in lst:
                for i in range(w): A(f"v_mov_b32 v{fin+i}, v{rr+i}")
            A("s_mov_b64 exec, -1")
            A(f"s_andn2_b64 s[{m}:{m+1}], s[{m}:{m+1}], s[{NEW}:{NEW+1}]")
            A(f"{L}_s{j}_{gi}:")
        m0 = groups[0]["mask"]
        if len(groups) == 1:
            A(f"s_cmp_eq_u64 s[{m0}:{m0+1}], 0")
        else:
            A(f"s_or_b64 vcc, s[{m0}:{m0+1}], s[{groups[1]['mask']}:{groups[1]['mask']+1}]")
            for g in groups[2:]:
                A(f"s_or_b64 vcc, vcc, s[{g['mask']}:{g['mask']+1}]")
            A("s_cmp_eq_u64 vcc, 0")
        A(f"s_cbranch_scc1 {L}_done")
        issue(j)
        if sleep: A(f"s_sleep {sleep}")
    A(f"s_add_u32 s{cnt}, s{cnt}, 1")
    A(f"s_cmp_lt_u32 s{cnt}, {POLL_LIMIT}")
    A(f"s_cbranch_scc1 {L}")
    A(f"{L}_done:")

def kgen(A, mid_hook, tail_hook, hook0, p1_hook=None):
    TS = 272; TBUF = 14416; TT = 28832
    A(f"""
    s_bitcmp1_b32 s{S_D}, 0
    s_cbranch_scc1 kg_odd
    s_lshl_b32 s42, s42, 16
    s_lshl_b32 s{S_DS}, s{S_DS}, 16
    kg_odd:
    s_and_b32 s42, s42, 0xffff0000
    s_and_b32 s{S_DS}, s{S_DS}, 0xffff0000
    v_mov_b32 v14, {hex(F_LOG2E)}
    v_mul_f32 v15, s42, v14
    v_exp_f32 v15, v15
    s_mov_b32 s43, 0x7fff7fff
    v_and_b32 v112, s43, v112
    v_and_b32 v113, s43, v113
    v_and_b32 v114, s43, v114
    v_and_b32 v115, s43, v115
    v_cvt_pk_bf16_f32 v15, 0, v15
    v_pk_max_u16 v112, v112, v113
    v_pk_max_u16 v114, v114, v115
    v_pk_max_u16 v10, v112, v114
    v_lshrrev_b32 v11, 16, v10
    v_and_b32 v10, 0xffff, v10
    v_max_u32 v10, v10, v11
    """)
    E1, W8, E256, X2, X3, X4, X6, E512, XA, XB, CX, TX, C, CY, TY = 18, 20, 22, 24, 26, 28, 32, 34, 36, 38, 40, 42, 44, 116, 118
    PX, PY = [46, 47, 122, 123], [120, 121, 124, 125]
    WDELAY = int(os.environ.get('WDELAY', '1'))
    D = 48
    FR = 128
    def setup_a(p):
        L = []; a = L.append
        lar, aim = 100 + 4*p, 101 + 4*p
        a(f"v_lshlrev_b32 v{lar}, 16, v{lar}")
        a(f"v_lshlrev_b32 v{aim}, 16, v{aim}")
        a(f"v_mul_f32 v4, v14, v{lar}")
        a(f"v_exp_f32 v4, v4")
        a(f"v_mul_f32 v5, v{aim}, v15")
        a(f"v_mul_f32 v5, {hex(F_INV2PI)}, v5")
        a(f"v_cvt_pk_bf16_f32 v4, 0, v4")
        a(f"v_mul_f32 v4, v4, v15")
        a(f"v_mul_f32 v4, v4, v14")
        for k, (dst, pw) in enumerate(((E1, 1), (W8, 8), (E256, 256))):
            m, f = 6 + 2*(k % 2), 7 + 2*(k % 2)
            if pw == 1:
                a(f"v_exp_f32 v{m}, -v4")
                a(f"v_fract_f32 v{f}, v5")
            else:
                a(f"v_mul_f32 v{m}, {hex(f32bits(pw))}, v4")
                a(f"v_mul_f32 v{f}, {hex(f32bits(pw))}, v5")
                a(f"v_exp_f32 v{m}, -v{m}")
                a(f"v_fract_f32 v{f}, v{f}")
            a(f"v_cos_f32 v{dst}, v{f}")
            a(f"v_sin_f32 v{dst+1}, v{f}")
            a("s_nop 0")
            a(f"v_mul_f32 v{dst}, v{dst}, v{m}")
            a(f"v_mul_f32 v{dst+1}, v{dst+1}, v{m}")
        return L
    def setup_c(p):
        cre, cim = 102 + 4*p, 103 + 4*p
        return [f"v_lshlrev_b32 v{cre}, 16, v{cre}", f"v_lshlrev_b32 v{cim}, 16, v{cim}",
                f"v_mul_f32 v{C}, v{cre}, v11", f"v_mul_f32 v{C+1}, v{cim}, v11"]
    def cm(z, x, y, t):
        return [f"v_pk_mul_f32 v[{t}:{t+1}], v[{x}:{x+1}], v[{y}:{y+1}] op_sel:[0,0] op_sel_hi:[1,0]",
                f"v_pk_fma_f32 v[{z}:{z+1}], v[{x}:{x+1}], v[{y}:{y+1}], v[{t}:{t+1}] op_sel:[1,1,0] op_sel_hi:[0,1,1] neg_lo:[1,0,0]"]
    def tables():
        cnt = [0, 0]
        pendw = [[], []]
        def put(row, pair, neg, which, const=None):
            P = (PX, PY)[which]; r = P[cnt[which] % len(P)]; cnt[which] += 1
            L = [f"v_mov_b32 v{r}, {hex(const)}"] if const is not None else [f"v_cvt_pk_f16_f32 v{r}, v{pair}, {'-' if neg else ''}v{pair+1}"]
            pendw[which].append(f"ds_write_addtid_b32 v{r} offset:{row*TS}")
            if len(pendw[which]) > WDELAY:
                L.append(pendw[which].pop(0))
            return L
        X = []
        X += put(0, None, False, 0, const=0x3c00)
        X += put(1, E1, False, 0)
        X += cm(X2, E1, E1, TX) + put(2, X2, False, 0)
        X += put(8, E256, False, 0)
        X += cm(E512, E256, E256, TX) + put(12, E512, False, 0)
        X += cm(X3, X2, E1, TX) + put(3, X3, False, 0)
        X += cm(X4, X2, X2, TX) + put(4, X4, False, 0)
        X += cm(XA, E512, E256, TX) + put(14, XA, False, 0)
        X += cm(CX, X4, E1, TX) + put(5, CX, False, 0)
        X += cm(X6, X4, X2, TX) + put(6, X6, False, 0)
        X += cm(CX, X4, X3, TX) + put(7, CX, False, 0)
        X += cm(CX, E256, X2, TX) + put(9, CX, False, 0)
        X += cm(CX, E256, X4, TX) + put(10, CX, False, 0)
        X += cm(CX, E256, X6, TX) + put(11, CX, False, 0)
        X += cm(CX, E512, X4, TX) + put(13, CX, False, 0)
        X += cm(CX, XA, X4, TX) + put(15, CX, False, 0)
        X += cm(XA, E512, E512, TX) + put(16, XA, False, 0)
        X += cm(CX, XA, E256, TX) + put(17, CX, False, 0)
        X += cm(XB, XA, E512, TX) + put(18, XB, False, 0)
        X += cm(CX, XB, E256, TX) + put(19, CX, False, 0)
        X += cm(CX, XA, XA, TX) + put(20, CX, False, 0)
        Y = []
        Y += put(21, C, True, 1)
        Y += cm(CY, C, W8, TY) + put(22, CY, True, 1)
        for c in range(2, 32):
            Y += cm(CY, CY, W8, TY) + put(21 + c, CY, True, 1)
        X += pendw[0]; Y += pendw[1]
        out = []; i = j = 0
        while i < len(X) or j < len(Y):
            if j >= len(Y) or (i < len(X) and i * len(Y) <= j * len(X)):
                out.append(X[i]); i += 1
            else:
                out.append(Y[j]); j += 1
        return out
    sa = setup_a(0)
    red = []
    R_ = Asm0()
    allreduce16(R_, "v_max_u32", 10); xor16(R_, "v_max_u32", 10, 11); xor32(R_, "v_max_u32", 10, 11)
    R_(f"""
    v_lshlrev_b32 v10, 16, v10
    v_mul_f32 v10, v10, v15
    v_lshrrev_b32 v10, 23, v10
    v_max_u32 v10, 5, v10
    v_min_u32 v10, 0xfe, v10
    v_sub_u32 v11, 0x103, v10
    v_lshlrev_b32 v11, 23, v11
    v_subrev_u32 v30, 4, v10
    v_lshlrev_b32 v30, 23, v30
    v_mul_f32 v11, v11, v15
    v_lshrrev_b32 v13, 5, v1
    v_and_b32 v16, 31, v1
    v_mul_u32_u24 v16, {TS}, v16
    v_lshl_add_u32 v13, v13, 4, v16
    v_add_u32 v13, s{S_B}, v13
    """)
    for ins in R_.l: A(ins.strip())
    for ins in sa: A(ins)
    for ins in setup_c(0): A(ins)
    A(f"s_mov_b32 m0, s{S_B}")
    A("s_nop 0")
    for ins in tables(): A(ins)
    hook0()
    A(f"s_add_u32 s43, s{S_B}, 0")
    for p in range(3):
        buf = p % 2
        for s in range(8):
            A(f"ds_read_b128 v[{FR+8*s}:{FR+8*s+3}], v13 offset:{TBUF*buf + 32*s}")
            A(f"ds_read_b128 v[{FR+8*s+4}:{FR+8*s+7}], v13 offset:{TBUF*buf + 21*TS + 32*s}")
        if p == 1 and p1_hook is not None:
            p1_hook()
        if p < 2:
            A(f"s_add_u32 s43, s{S_B}, {TBUF*((p+1)%2)}")
            A("s_mov_b32 m0, s43")
            nxt = setup_a(p + 1) + setup_c(p + 1) + tables()
        else:
            mid_hook()
            nxt = []
            H_ = Asm0()
            H_(f"""
            v_and_b32 v14, 31, v1
            v_lshrrev_b32 v15, 5, v1
            v_lshlrev_b32 v16, 4, v14
            v_lshl_add_u32 v16, v15, 3, v16
            v_sub_u32 v17, {TT+504}, v16
            v_add_u32 v17, s{S_B}, v17
            v_add_u32 v16, {TT+1024}, v16
            v_add_u32 v16, s{S_B}, v16
            v_lshlrev_b32 v18, 3, v14
            v_add_u32 v18, {TT+512}, v18
            v_add_u32 v19, 4, v18
            v_lshlrev_b32 v20, 2, v14
            v_add_u32 v20, {TT+768}, v20
            v_add_u32 v21, 128, v20
            v_cmp_eq_u32 vcc, 0, v15
            s_nop 1
            v_cndmask_b32 v18, v20, v18, vcc
            v_cndmask_b32 v19, v21, v19, vcc
            v_add_u32 v18, s{S_B}, v18
            v_add_u32 v19, s{S_B}, v19
            s_add_u32 s43, s{S_B}, {TT}
            v_sub_u32 v4, 127, v1
            v_add_u32 v5, 1, v4
            v_and_b32 v6, 31, v4
            v_lshrrev_b32 v7, 5, v4
            v_lshlrev_b32 v6, 4, v6
            v_lshl_add_u32 v6, v7, 1, v6
            v_and_b32 v8, 31, v5
            v_lshrrev_b32 v7, 5, v5
            v_lshlrev_b32 v8, 4, v8
            v_lshl_add_u32 v8, v7, 1, v8
            v_add_u32 v6, s43, v6
            v_add_u32 v8, s43, v8
            v_sub_u32 v9, 63, v1
            v_lshlrev_b32 v10, 2, v9
            v_add_u32 v10, s43, v10
            v_sub_u32 v11, 31, v1
            v_and_b32 v11, 31, v11
            v_lshlrev_b32 v11, 3, v11
            v_add_u32 v11, s43, v11
            v_and_b32 v9, 31, v9
            v_lshlrev_b32 v9, 4, v9
            v_sub_u32 v9, 496, v9
            v_add_u32 v9, s43, v9
            v_lshlrev_b32 v3, 4, v1
            v_add_u32 v3, s{S_K}, v3
            """)
            nxt = [x.strip() for x in H_.l]
        nlds_after = 0
        per = (len(nxt) + 7) // 8 if nxt else 0
        lead = min(int(os.environ.get('LEAD', '30')) if p < 2 else 20, len(nxt))
        pos = 0
        for ins in nxt[:lead]:
            A(ins); pos += 1
            if ins.startswith("ds_"): nlds_after += 1
        rest = nxt[lead:]
        per = (len(rest) + 7) // 8 if rest else 0
        for s in range(8):
            need = 2 * (7 - s) + nlds_after
            if need <= 15: A(f"s_waitcnt lgkmcnt({need})")
            else: A("s_waitcnt lgkmcnt(15)") if False else A(f"s_waitcnt lgkmcnt({min(15, need)})")
            c = "0" if (s == 0 and p == 0) else f"v[{D}:{D+15}]"
            A(f"v_mfma_f32_32x32x16_f16 v[{D}:{D+15}], v[{FR+8*s}:{FR+8*s+3}], v[{FR+8*s+4}:{FR+8*s+7}], {c}")
            for ins in rest[s*per:(s+1)*per]:
                A(ins)
                if ins.startswith("ds_"): nlds_after += 1
    tail_hook()
    A(f"""
    s_nop 7
    s_nop 3
    v_cvt_pk_f16_f32 v22, v{D+3}, v{D+2}
    v_cvt_pk_f16_f32 v23, v{D+1}, v{D}
    ds_write_b64 v17, v[22:23]
    v_cvt_pk_f16_f32 v24, v{D+4}, v{D+5}
    v_cvt_pk_f16_f32 v25, v{D+6}, v{D+7}
    ds_write_b32 v18, v24
    ds_write_b32 v19, v25
    v_cvt_pk_f16_f32 v26, v{D+8}, v{D+9}
    v_cvt_pk_f16_f32 v27, v{D+10}, v{D+11}
    ds_write_b64 v16, v[26:27]
    s_mov_b32 s44, 0x05040100
    s_mov_b32 s45, 0x01000100
    s_mov_b32 s46, 0x03020302
    s_mov_b32 s47, 0x07060100
    s_mov_b32 s48, 0x03020504
    v_and_b32 v7, 1, v4
    v_cmp_eq_u32 vcc, 1, v7
    s_waitcnt lgkmcnt(0)
    ds_read_u16 v32, v6 offset:1024
    ds_read_u16 v33, v8 offset:1024
    ds_read_u16 v34, v6 offset:1020
    ds_read_u16 v35, v8 offset:1020
    ds_read2_b32 v[36:37], v10 offset0:192 offset1:193
    ds_read_b64 v[38:39], v11 offset:512
    ds_read_u16 v40, v11 offset:520
    ds_read_b128 v[44:47], v9
    s_waitcnt lgkmcnt(4)
    v_cndmask_b32 v41, v32, v33, vcc
    v_cndmask_b32 v42, v34, v35, vcc
    v_perm_b32 v48, v33, v33, s45
    v_perm_b32 v49, v41, v33, s44
    v_perm_b32 v50, v32, v32, s45
    v_mov_b32 v51, v50
    ds_write_b128 v3, v[48:51]
    v_perm_b32 v52, v35, v35, s45
    v_perm_b32 v53, v42, v35, s44
    v_perm_b32 v54, v34, v34, s45
    v_mov_b32 v55, v54
    ds_write_b128 v3, v[52:55] offset:1024
    s_waitcnt lgkmcnt(2)
    v_perm_b32 v56, v37, v37, s45
    v_perm_b32 v57, v36, v36, s46
    v_alignbit_b32 v58, v36, v36, 16
    v_perm_b32 v59, v36, v36, s45
    ds_write_b128 v3, v[56:59] offset:2048
    v_perm_b32 v60, v39, v40, s47
    v_perm_b32 v61, v39, v39, s45
    v_perm_b32 v62, v39, v38, s48
    v_perm_b32 v63, v38, v38, s45
    v_cmp_gt_u32 vcc, 32, v1
    s_nop 1
    v_cndmask_b32 v60, v44, v60, vcc
    v_cndmask_b32 v61, v45, v61, vcc
    v_cndmask_b32 v62, v46, v62, vcc
    v_cndmask_b32 v63, v47, v63, vcc
    ds_write_b128 v3, v[60:63] offset:3072
    v_mov_b32 v16, 0
    v_mov_b32 v17, 0
    v_mov_b32 v18, 0
    v_mov_b32 v19, 0
    v_cmp_gt_u32 vcc, 30, v1
    s_and_saveexec_b64 s[52:53], vcc
    ds_write_b128 v3, v[16:19] offset:4096
    s_mov_b64 exec, s[52:53]
    """)

def conv_main(A, hook_idx=None, hook=None):
    ACC, AR, NR, EP = 32, 64, 12, 112
    mf = [(q, al) for al in range(64) for q in range(al // 8, 8)]
    first_use = {}
    for i, (q, al) in enumerate(mf):
        first_use.setdefault(("A", al), i)
        first_use.setdefault(("B", 8*q - al), i)
    loads = sorted(first_use.items(), key=lambda kv: (kv[1], kv[0][0]))
    last_of_tile = {q: max(i for i, (qq, al) in enumerate(mf) if qq == q) for q in range(8)}
    lastuse_A = {al: max(i for i, (q, a2) in enumerate(mf) if a2 == al) for al in range(64)}
    def epi_instrs(q):
        a = ACC + 4 * q
        e = EP + 16 * (q % 2)
        U = e + 14
        L = [("lds", f"ds_read_b64 v[{U}:{U+1}], v27 offset:{512*q}")]
        for j in range(4): L.append(("v", f"v_cvt_pk_bf16_f32 v{e+j}, 0, v{a+j}"))
        L.append(("waitu", None))
        L.append(("v", f"v_fma_mix_f32 v{e+4}, v{U}, s{S_DS}, 0 op_sel_hi:[1,0,0]"))
        L.append(("v", f"v_fma_mix_f32 v{e+5}, v{U}, s{S_DS}, 0 op_sel:[1,0,0] op_sel_hi:[1,0,0]"))
        L.append(("v", f"v_fma_mix_f32 v{e+6}, v{U+1}, s{S_DS}, 0 op_sel_hi:[1,0,0]"))
        L.append(("v", f"v_fma_mix_f32 v{e+7}, v{U+1}, s{S_DS}, 0 op_sel:[1,0,0] op_sel_hi:[1,0,0]"))
        for j in range(4): L.append(("v", f"v_cvt_pk_bf16_f32 v{e+4+j}, 0, v{e+4+j}"))
        for j in range(4): L.append(("v", f"v_fmac_f32 v{e+4+j}, v30, v{e+j}"))
        L.append(("v", f"v_cvt_pk_bf16_f32 v{e}, v{e+4}, v{e+5}"))
        L.append(("v", f"v_cvt_pk_bf16_f32 v{e+1}, v{e+6}, v{e+7}"))
        L.append(("gap", None))
        L.append(("v", f"v_permlane16_swap_b32 v{e}, v{e+2}"))
        L.append(("v", f"v_permlane16_swap_b32 v{e+1}, v{e+3}"))
        L.append(("st", f"buffer_store_dwordx4 v[{e}:{e+3}], v26, s[{S_WS}:{S_WS+3}], s{S_AO} offen offset:{512*q} sc1"))
        return L
    ldsq = []
    cur = [0]
    LAT = 6
    def lds_wait_for(idset, extend=True):
        idxs = [i for i, n in enumerate(ldsq) if n[0] in idset]
        if not idxs: return False
        k = max(idxs)
        if extend:
            while k + 1 < len(ldsq) and ldsq[k+1][1] <= cur[0] - LAT: k += 1
        A(f"s_waitcnt lgkmcnt({len(ldsq) - 1 - k})")
        del ldsq[:k+1]
        return True
    def issue_load(key):
        kind, v = key
        if kind == "A":
            r = AR + 4 * (v % NR)
            A(f"ds_read_b64 v[{r}:{r+1}], v24 offset:{64*v}"); ldsq.append((key, cur[0]))
            A(f"ds_read_b64 v[{r+2}:{r+3}], v24 offset:{64*v+8}"); ldsq.append((key, cur[0]))
        else:
            r = 4 * (v + 7)
            A(f"ds_read_b128 a[{r}:{r+3}], v25 offset:{64*(56-v)}"); ldsq.append((key, cur[0]))
    li = 0
    epi_q = []
    stores_after = [0]
    WINDOW, MAXQ = 12, 14
    for i, (q, al) in enumerate(mf):
        cur[0] = i
        budget = 2 if i > 0 else 99
        need = {("A", al), ("B", 8*q - al)}
        if any(n[0] in need for n in ldsq): budget -= 1
        while li < len(loads):
            key, dl = loads[li]
            n = 2 if key[0] == "A" else 1
            must = dl <= i
            if not must:
                if dl - i > WINDOW or budget <= 0: break
                if len(ldsq) + n > MAXQ: break
                if key[0] == "A" and key[1] >= NR and lastuse_A[key[1] - NR] >= i: break
            else:
                if len(ldsq) + n > 15:
                    A(f"s_waitcnt lgkmcnt({15-n})"); del ldsq[:len(ldsq) - (15 - n)]
            issue_load(key)
            budget -= n
            li += 1
        while budget > 0 and epi_q and epi_q[0][0] <= i:
            _, kind, txt, eq = epi_q.pop(0)
            if kind == "lds":
                if len(ldsq) + 1 > 15:
                    A("s_waitcnt lgkmcnt(14)"); del ldsq[:len(ldsq) - 14]
                A(txt); ldsq.append((("EU", eq), i))
            elif kind == "waitu":
                if lds_wait_for({("EU", eq)}): budget -= 1
                continue
            elif kind == "gap":
                if epi_q: epi_q[0] = (i + 2,) + epi_q[0][1:]
                break
            else:
                A(txt)
                if kind == "st": stores_after[0] += 1
            budget -= 1
        if hook is not None and i == hook_idx:
            hook(); stores_after[0] = 0
        lds_wait_for(need)
        r = AR + 4 * (al % NR)
        g = 8 * q - al
        c = "0" if al == 0 else f"v[{ACC+4*q}:{ACC+4*q+3}]"
        A(f"v_mfma_f32_16x16x32_f16 v[{ACC+4*q}:{ACC+4*q+3}], v[{r}:{r+3}], a[{4*(g+7)}:{4*(g+7)+3}], {c}")
        if i == last_of_tile[q]:
            for kind, txt in epi_instrs(q):
                epi_q.append((i + (1 if kind == "lds" else 8), kind, txt, q))
    cur[0] = len(mf) + 100
    A("s_nop 7")
    for _, kind, txt, eq in epi_q:
        if kind == "lds":
            A(txt); ldsq.append((("EU", eq), 0))
        elif kind == "waitu":
            lds_wait_for({("EU", eq)}, extend=False)
        elif kind == "gap":
            A("s_nop 1")
        else:
            A(txt)
            if kind == "st": stores_after[0] += 1
    return stores_after[0]

def gen_main(A):
    name = NAME + "_kernel"
    A.l.append(f".globl {name}")
    A.l.append(".p2align 8")
    A.l.append(f".type {name},@function")
    A.l.append(f"{name}:")
    A("s_cmp_ge_u32 s2, 256")
    A("s_cbranch_scc1 k_exit")
    if STAMP: A("v_mov_b32 v255, 0")
    if STAMP: A("v_mov_b32 v254, 0")
    def emit_pf():
        if CODEPF:
            A("""
            s_getpc_b64 s[90:91]
            k_pc:
            v_lshlrev_b32 v2, 4, v0
            v_mov_b32 v3, s91
            v_add_co_u32 v2, vcc, s90, v2
            v_addc_co_u32 v3, vcc, 0, v3, vcc
            """)
            for i in range(NPF):
                A(f"v_cmp_gt_i32 vcc, (k_code_end-k_pc-{4096*i})/16, v0")
                A("s_and_saveexec_b64 s[92:93], vcc")
                A(f"s_cbranch_execz k_pf_done")
                A("global_load_dwordx4 v[160:163], v[2:3], off")
                A("s_mov_b64 exec, s[92:93]")
                A("v_add_co_u32 v2, vcc, 0x1000, v2")
                A("v_addc_co_u32 v3, vcc, 0, v3, vcc")
            A("k_pf_done:")
            A("s_mov_b64 exec, -1")
    stamp(A, 0)
    if PFFIRST: emit_pf()
    WS = f"s[{S_WS}:{S_WS+3}]"
    A(f"""
    s_load_dwordx2 s[4:5], s[0:1], {ARG['x']}
    s_load_dwordx2 s[6:7], s[0:1], {ARG['ws']}
    s_load_dwordx4 s[44:47], s[0:1], {ARG['lar']}
    s_load_dwordx4 s[48:51], s[0:1], {ARG['cre']}
    s_load_dwordx4 s[56:59], s[0:1], {ARG['ldt']}
    s_load_dwordx4 s[60:63], s[0:1], {ARG['wr']}
    s_load_dwordx4 s[64:67], s[0:1], {ARG['wu']}
    s_load_dwordx4 s[68:71], s[0:1], {ARG['out']}
    """)
    if PFFIRST == 0:
        emit_pf()
    A(f"""
    s_and_b32 s52, s2, 7
    s_lshr_b32 s53, s2, 3
    s_mul_i32 s54, s52, 20
    s_add_u32 s{S_TB}, s54, s53
    s_cmp_lt_u32 s2, 160
    s_cbranch_scc1 k_tb_done
    s_mul_i32 s54, s52, 12
    s_add_u32 s54, s54, s53
    s_add_u32 s{S_TB}, s54, 140
    k_tb_done:
    s_lshl_b32 s{S_T0}, s{S_TB}, 3
    v_lshrrev_b32 v2, 6, v0
    v_and_b32 v1, 63, v0
    s_nop 0
    v_readfirstlane_b32 s3, v2
    v_and_b32 v{VTOK}, 7, v1
    v_lshrrev_b32 v5, 3, v1
    v_add_u32 v6, s{S_T0}, v{VTOK}
    s_movk_i32 s52, 1280
    v_mul_lo_u32 v6, v6, s52
    s_mul_i32 s53, s3, 320
    v_lshl_add_u32 v{VCH}, v5, 3, s53
    v_add_u32 v{VROW}, v6, v{VCH}
    s_waitcnt lgkmcnt(0)
    """)
    srd(A, S_WS, 6, 7, 0, WS_SIZE)
    srd(A, S_X, 4, 5, 0, 2621440)
    A(f"""
    v_mov_b32 v199, 0
    s_mov_b32 s52, {WS_FL}
    s_cmp_lg_u32 s2, {NONWG}
    s_cbranch_scc1 k_non0
    buffer_load_dword v197, v199, {WS}, s52 offen sc1
    k_non0:
    """)
    for i in range(5):
        A(f"buffer_load_dwordx2 v[{200+2*i}:{201+2*i}], v{VROW}, s[{S_X}:{S_X+3}], 0 offen offset:{64*i}")
    srd(A, S_DBG, 70, 71, 0, 256)
    srd(A, S_WR, 60, 61, 0, 1280)
    for i in range(5):
        A(f"buffer_load_dwordx2 v[{VW+2*i}:{VW+2*i+1}], v{VCH}, s[{S_WR}:{S_WR+3}], 0 offen offset:{64*i}")
    srd(A, S_X, 68, 69, 0, 2621440)
    def small_clears():
        A(f"""
        s_mov_b64 exec, 0x3fffffff
        s_mul_i32 s52, s2, 480
        s_add_u32 s52, s52, {WS_SM}
        buffer_store_dwordx4 v[40:43], v44, {WS}, s52 offen sc1
        s_mov_b64 exec, 0xffff
        v_mov_b32 v46, 0
        v_mov_b32 v47, 0
        v_mov_b32 v48, 0
        v_mov_b32 v49, 0
        v_lshrrev_b32 v45, 1, v1
        v_lshlrev_b32 v45, 13, v45
        v_and_b32 v50, 1, v1
        v_lshl_add_u32 v45, v50, 4, v45
        s_lshl_b32 s52, s{S_TB}, 5
        s_add_u32 s52, s52, {WS_KEY}
        buffer_store_dwordx4 v[46:49], v45, {WS}, s52 offen sc1
        s_mov_b64 exec, -1
        """)
    def publish_flag(tag):
        A(f"""
        s_cmp_lg_u32 s3, 0
        s_cbranch_scc1 {tag}_w
        s_waitcnt vmcnt(0)
        v_cmp_eq_u32 vcc, 0, v198
        s_mov_b64 s[54:55], vcc
        s_cmp_eq_u64 vcc, 0
        s_cbranch_scc1 {tag}_have
        """)
        masked_poll(A, [dict(mask=54, loads=[f"buffer_load_dword v198, v199, s[{S_DBG}:{S_DBG+3}], 0 offen sc1"], regs=[198], tmp=197, sent="min")], 53, 1, tag + "non")
        A(f"""
        {tag}_have:
        v_mov_b32 v197, {L_NON}
        ds_write_b32 v197, v198
        s_waitcnt lgkmcnt(0)
        {tag}_w:
        s_waitcnt vmcnt(0)
        s_barrier
        s_cmp_lg_u32 s3, 0
        s_cbranch_scc1 {tag}_done
        v_lshlrev_b32 v197, 10, v1
        s_lshl_b32 s52, s2, 2
        s_add_u32 s52, s52, {WS_FL}
        s_mov_b64 exec, 0xff
        buffer_store_dword v198, v197, {WS}, s52 offen sc1
        s_mov_b64 exec, -1
        {tag}_done:
        v_mov_b32 v197, {L_NON}
        ds_read_b32 v199, v197
        """)
    A(f"""
    v_mov_b32 v40, -1
    v_mov_b32 v41, -1
    v_mov_b32 v42, -1
    v_mov_b32 v43, -1
    v_lshlrev_b32 v44, 4, v1
    s_cmp_ge_u32 s2, 160
    s_cbranch_scc1 k_p0_ffn
    """)
    srd(A, 24, 44, 45, 0, 245760)
    srd(A, 28, 46, 47, 0, 245760)
    srd(A, 32, 48, 49, 0, 245760)
    srd(A, 36, 50, 51, 0, 245760)
    A(f"""
    s_lshl_b32 s{S_D}, s2, 2
    s_add_u32 s{S_D}, s{S_D}, s3
    s_mul_i32 s{S_B}, s3, {WAVE_LDS}
    s_add_u32 s{S_B}, s{S_B}, {LBASE}
    s_add_u32 s{S_K}, s{S_B}, {KOFF}
    s_lshl_b32 s{S_AO}, s{S_D}, 12
    s_add_u32 s{S_AO}, s{S_AO}, {WS_AT}
    s_mul_i32 s52, s{S_D}, 384
    v_lshlrev_b32 v3, 1, v1
    s_and_b32 s53, s{S_D}, 0xfffffffe
    s_lshl_b32 s53, s53, 1
    s_load_dword s42, s[56:57], s53
    s_load_dword s{S_DS}, s[58:59], s53
    """)
    for p in range(3):
        for j in range(4):
            A(f"buffer_load_ushort v{100+4*p+j}, v3, s[{24+4*j}:{27+4*j}], s52 offen offset:{128*p}")
    A(f"""
    v_lshlrev_b32 v8, 3, v1
    v_mov_b32 v112, 0
    v_mov_b32 v113, 0
    v_mov_b32 v114, 0
    v_mov_b32 v115, 0
    v_cmp_gt_u32 vcc, 48, v1
    s_and_saveexec_b64 s[54:55], vcc
    buffer_load_dwordx2 v[112:113], v8, s[32:35], s52 offen
    buffer_load_dwordx2 v[114:115], v8, s[36:39], s52 offen
    s_mov_b64 exec, s[54:55]
    s_waitcnt vmcnt(19)
    """)
    for i in range(4):
        A(f"buffer_store_dwordx4 v[40:43], v44, {WS}, s{S_AO} offen offset:{1024*i} sc1")
    A("s_branch k_p0_join")
    A("k_p0_ffn:")
    A("s_sub_u32 s38, s2, 160")
    A("s_waitcnt vmcnt(5)")
    A("k_p0_join:")
    A(f"""
    s_cmp_lg_u32 s2, {NONWG}
    s_cbranch_scc1 k_non1
    s_cmp_lg_u32 s3, 0
    s_cbranch_scc1 k_non1
    v_add_u32 v197, 1, v197
    v_max_u32 v197, 1, v197
    s_mov_b64 exec, 1
    buffer_store_dword v197, v199, s[{S_DBG}:{S_DBG+3}], 0 offen sc1
    s_mov_b64 exec, -1
    k_non1:
    """)
    stamp(A, 1)
    A("s_cmp_lg_u32 s3, 0")
    A("s_cbranch_scc1 k_p0_j2")
    small_clears()
    A("k_p0_j2:")
    for i in range(10):
        unpack_bf16(A, 200 + i, VXF + 2*i, VXF + 2*i + 1)
    ln_stats(A, VXF)
    for i in range(10):
        a_, b_ = VXF + 2*i, VXF + 2*i + 1
        t = 86 + 2 * (i % 2)
        A(f"v_pk_add_f32 v[{t}:{t+1}], v[{a_}:{b_}], v[78:79] op_sel_hi:[1,0] neg_lo:[0,1] neg_hi:[0,1]")
        rnd(A, t, t); rnd(A, t+1, t+1)
        A(f"v_pk_mul_f32 v[{t}:{t+1}], v[{t}:{t+1}], v[80:81] op_sel_hi:[1,0]")
        rnd(A, t, t); rnd(A, t+1, t+1)
        A(f"v_cvt_pk_f16_f32 v{30+i}, v{t}, v{t+1}")
    A(f"""
    s_movk_i32 s52, {TSTR}
    v_mul_lo_u32 v6, v{VTOK}, s52
    v_add_u32 v6, v6, v{VCH}
    """)
    for i in range(5):
        A(f"ds_write_b64 v6, v[{30+2*i}:{31+2*i}] offset:{L_AT + 64*i}")
    A(f"""
    v_bfe_u32 v3, v1, 2, 2
    v_mul_lo_u32 v3, v3, s52
    v_lshrrev_b32 v4, 4, v1
    v_lshl_add_u32 v3, v4, 5, v3
    v_and_b32 v4, 3, v1
    v_lshl_add_u32 v3, v4, 3, v3
    s_lshl_b32 s53, s3, 7
    v_add_u32 v3, s53, v3
    v_lshlrev_b32 v4, 4, v0
    s_mul_i32 s52, s{S_TB}, 10240
    s_add_u32 s52, s52, {WS_UB}
    s_add_u32 s53, s52, 4096
    s_add_u32 s54, s52, 8192
    s_waitcnt lgkmcnt(0)
    s_barrier
    ds_read_b64_tr_b16 v[8:9], v3 offset:{L_AT}
    ds_read_b64_tr_b16 v[10:11], v3 offset:{L_AT + 4*TSTR}
    ds_read_b64_tr_b16 v[12:13], v3 offset:{L_AT + 512}
    ds_read_b64_tr_b16 v[14:15], v3 offset:{L_AT + 4*TSTR + 512}
    ds_read_b64_tr_b16 v[16:17], v3 offset:{L_AT + 1024}
    ds_read_b64_tr_b16 v[18:19], v3 offset:{L_AT + 4*TSTR + 1024}
    s_waitcnt lgkmcnt(0)
    buffer_store_dwordx4 v[8:11], v4, {WS}, s52 offen sc1
    buffer_store_dwordx4 v[12:15], v4, {WS}, s53 offen sc1
    s_cmp_ge_u32 s3, 2
    s_cbranch_scc1 k_ln1_skip
    buffer_store_dwordx4 v[16:19], v4, {WS}, s54 offen sc1
    k_ln1_skip:
    s_cmp_lg_u32 s3, 0
    s_cbranch_scc1 k_non2
    buffer_load_dword v198, v199, s[{S_DBG}:{S_DBG+3}], 0 offen sc1
    k_non2:
    """)
    stamp(A, 2)
    A("s_cmp_lt_u32 s2, 160")
    A("s_cbranch_scc1 k_conv_role")
    publish_flag("ff")
    A("s_waitcnt lgkmcnt(0)")
    A(f"v_readfirstlane_b32 s{S_NON}, v199")
    stamp(A, 3)
    A("s_branch k_ffn_pre")
    A("k_conv_role:")
    A("s_waitcnt vmcnt(6)")
    def flag_poll(sleep, first_issued=False):
        L = newlbl("flg")
        if not first_issued:
            flag_setup()
        A(f"s_mov_b32 s53, 0")
        if first_issued:
            A(f"s_branch {L}_chk")
        A(f"{L}:")
        A(f"s_mov_b64 exec, s[54:55]")
        A(f"buffer_load_dwordx4 v[192:195], v196, {WS}, s51 offen sc1")
        A("s_mov_b64 exec, -1")
        A(f"{L}_chk:")
        A("s_waitcnt vmcnt(0)")
        A(f"v_xor_b32 v192, s{S_NON}, v192")
        A(f"v_xor_b32 v193, s{S_NON}, v193")
        A(f"v_xor_b32 v194, s{S_NON}, v194")
        A(f"v_xor_b32 v195, s{S_NON}, v195")
        A("v_or3_b32 v197, v192, v193, v194")
        A("v_or_b32 v197, v197, v195")
        A("v_cmp_ne_u32 vcc, 0, v197")
        A("s_and_b64 s[54:55], s[54:55], vcc")
        A("s_cmp_eq_u64 s[54:55], 0")
        A(f"s_cbranch_scc1 {L}_done")
        A("s_add_u32 s53, s53, 1")
        A(f"s_sleep {sleep}")
        A(f"s_cmp_lt_u32 s53, {POLL_LIMIT}")
        A(f"s_cbranch_scc1 {L}")
        A(f"{L}_done:")
    def flag_setup():
        A(f"""
        v_lshlrev_b32 v196, 4, v1
        s_and_b32 s51, s2, 7
        s_lshl_b32 s51, s51, 10
        s_add_u32 s51, s51, {WS_FL}
        s_mov_b64 s[54:55], -1
        """)
    def hook0():
        publish_flag("cf")
        stamp(A, 3)
    G = 200
    def gather_issue():
        A(f"""
        v_lshrrev_b32 v216, 2, v1
        s_movk_i32 s52, 10240
        v_mul_lo_u32 v217, v216, s52
        v_and_b32 v218, 3, v1
        v_lshl_add_u32 v217, v218, 4, v217
        s_mul_i32 s52, s3, {64*10240}
        s_lshl_b32 s53, s2, 6
        s_add_u32 s52, s52, s53
        s_add_u32 s52, s52, {WS_UB}
        """)
        for i in range(4):
            A(f"buffer_load_dwordx4 v[{G+4*i}:{G+4*i+3}], v217, {WS}, s52 offen sc1")
            if i < 3: A(f"s_add_u32 s52, s52, {16*10240}")
        A(f"""
        s_movk_i32 s52, {WAVE_LDS}
        v_mul_lo_u32 v218, v218, s52
        v_lshl_add_u32 v218, v216, 4, v218
        s_lshl_b32 s52, s3, 10
        s_add_u32 s52, s52, {LBASE + 32}
        v_add_u32 v218, s52, v218
        """)
    def flag_check():
        A(f"v_xor_b32 v192, s{S_NON}, v192")
        A(f"v_xor_b32 v193, s{S_NON}, v193")
        A(f"v_xor_b32 v194, s{S_NON}, v194")
        A(f"v_xor_b32 v195, s{S_NON}, v195")
        A("v_or3_b32 v197, v192, v193, v194")
        A("v_or_b32 v197, v197, v195")
        A("v_cmp_ne_u32 vcc, 0, v197")
        A("s_and_b64 s[54:55], s[54:55], vcc")
    def p1_hook():
        A("s_waitcnt lgkmcnt(15)")
        A(f"v_readfirstlane_b32 s{S_NON}, v199")
        flag_setup()
        A(f"buffer_load_dwordx4 v[192:195], v196, {WS}, s51 offen sc1")
    def mid_hook():
        A("s_mov_b32 s50, 0")
        A("s_waitcnt vmcnt(0)")
        flag_check()
        A("s_cmp_eq_u64 s[54:55], 0")
        A("s_cbranch_scc0 kg_noearly")
        gather_issue()
        A("s_mov_b32 s50, 1")
        A("s_branch kg_early_done")
        A("kg_noearly:")
        A(f"s_mov_b64 exec, s[54:55]")
        A(f"buffer_load_dwordx4 v[192:195], v196, {WS}, s51 offen sc1")
        A("s_mov_b64 exec, -1")
        A("kg_early_done:")
    def tail_hook():
        stamp(A, 4)
        A("s_cmp_eq_u32 s50, 1")
        A("s_cbranch_scc1 kg_tail_done")
        flag_poll(1, first_issued=True)
        gather_issue()
        A("kg_tail_done:")
        stamp(A, 5)
    kgen(A, mid_hook, tail_hook, hook0, p1_hook)
    A(f"""
    v_lshlrev_b32 v9, 4, v1
    v_add_u32 v9, s{S_B}, v9
    v_add_u32 v10, 4096, v9
    v_cmp_gt_u32 vcc, 2, v1
    v_and_b32 v21, 15, v1
    v_lshrrev_b32 v22, 4, v1
    v_cndmask_b32 v10, v10, v9, vcc
    v_add_u32 v23, 1, v21
    v_and_b32 v24, 3, v23
    s_movk_i32 s53, 4160
    v_mul_lo_u32 v24, v24, s53
    v_lshrrev_b32 v23, 2, v23
    v_lshl_add_u32 v24, v23, 3, v24
    v_lshl_add_u32 v24, v22, 4, v24
    v_add_u32 v24, s{S_B}, v24
    v_lshlrev_b32 v25, 5, v21
    v_sub_u32 v25, {2*2032 - 64*56}, v25
    v_lshl_add_u32 v25, v22, 4, v25
    v_add_u32 v25, s{S_K}, v25
    v_lshlrev_b32 v26, 5, v21
    v_lshl_add_u32 v27, v22, 3, v26
    v_add_u32 v27, 32, v27
    v_add_u32 v27, s{S_B}, v27
    v_lshrrev_b32 v28, 1, v22
    v_lshl_add_u32 v26, v28, 4, v26
    v_and_b32 v28, 1, v22
    v_lshlrev_b32 v28, 30, v28
    v_or_b32 v26, v26, v28
    s_waitcnt lgkmcnt(0)
    s_barrier
    s_mov_b64 exec, 0xf
    ds_write_b128 v10, v[16:19]
    s_mov_b64 exec, -1
    """)
    for i in range(4):
        A(f"s_waitcnt vmcnt({3-i})")
        A(f"ds_write_b128 v218, v[{G+4*i}:{G+4*i+3}] offset:{256*i}")
    R = 128
    A(f"""
    v_mov_b32 v{R+32}, 0
    v_mov_b32 v{R+33}, 0
    v_mov_b32 v{R+34}, 0
    v_mov_b32 v{R+35}, 0
    s_waitcnt lgkmcnt(0)
    s_barrier
    """)
    stamp(A, 6)
    for i in range(4):
        A(f"ds_read_b128 v[{R+8*i}:{R+8*i+3}], v9 offset:{32 + 1024*i}")
        A(f"ds_read_b64 v[{R+8*i+4}:{R+8*i+5}], v9 offset:{48 + 1024*i}")
    A(f"ds_read_b64 v[{R+36}:{R+37}], v9 offset:16")
    nw = 0
    for i in range(5):
        r = R + 8*i
        reads_after = (2 * (3 - i) + 1) if i < 4 else 0
        A(f"s_waitcnt lgkmcnt({min(15, reads_after + nw)})")
        T1, T2, T3 = 176, 180, 184
        if i % 2: T1, T2, T3 = 188, 192, 196
        A(f"v_alignbit_b32 v{T1}, v{r+1}, v{r}, 16")
        A(f"v_alignbit_b32 v{T1+1}, v{r+2}, v{r+1}, 16")
        A(f"v_alignbit_b32 v{T1+2}, v{r+3}, v{r+2}, 16")
        A(f"v_alignbit_b32 v{T1+3}, v{r+4}, v{r+3}, 16")
        off = (32 + 1024*i) if i < 4 else 0
        if i == 4: A("s_mov_b64 exec, 3")
        A(f"ds_write_b128 v9, v[{T1}:{T1+3}] offset:{CB[1] + off}")
        A(f"v_mov_b32 v{T2}, v{r+1}")
        A(f"v_mov_b32 v{T2+1}, v{r+2}")
        A(f"v_mov_b32 v{T2+2}, v{r+3}")
        A(f"v_mov_b32 v{T2+3}, v{r+4}")
        A(f"ds_write_b128 v9, v[{T2}:{T2+3}] offset:{CB[2] + off}")
        A(f"v_mov_b32 v{T3}, v{T1+1}")
        A(f"v_mov_b32 v{T3+1}, v{T1+2}")
        A(f"v_mov_b32 v{T3+2}, v{T1+3}")
        A(f"v_alignbit_b32 v{T3+3}, v{r+5}, v{r+4}, 16")
        A(f"ds_write_b128 v9, v[{T3}:{T3+3}] offset:{CB[3] + off}")
        if i == 4: A("s_mov_b64 exec, -1")
        nw += 3
    A("s_waitcnt lgkmcnt(0)")
    stamp(A, 12)
    def a_setup():
        A(f"""
        v_lshlrev_b32 v3, 12, v0
        s_lshl_b32 s43, s{S_T0}, 1
        s_add_u32 s43, s43, {WS_AT}
        s_add_u32 s44, s43, {256*4096}
        s_add_u32 s45, s43, {512*4096}
        s_mov_b64 s[54:55], -1
        s_mov_b64 s[56:57], -1
        s_mov_b64 s[58:59], -1
        """)
    asets = [dict(mask=54, loads=[f"buffer_load_dwordx4 v[8:11], v3, {WS}, s43 offen sc1"], regs=[8,9,10,11], tmp=20),
             dict(mask=56, loads=[f"buffer_load_dwordx4 v[12:15], v3, {WS}, s44 offen sc1"], regs=[12,13,14,15], tmp=20),
             dict(mask=58, loads=[f"buffer_load_dwordx4 v[16:19], v3, {WS}, s45 offen sc1"], regs=[16,17,18,19], tmp=20)]
    agroups = [dict(mask=54, loads=[(f"buffer_load_dwordx4 {{dst}}, v3, {WS}, s43 offen sc1", 4, 8)], tmp=20),
               dict(mask=56, loads=[(f"buffer_load_dwordx4 {{dst}}, v3, {WS}, s44 offen sc1", 4, 12)], tmp=20),
               dict(mask=58, loads=[(f"buffer_load_dwordx4 {{dst}}, v3, {WS}, s45 offen sc1", 4, 16)], tmp=20)]
    def mask3():
        L = newlbl("m3")
        A(f"s_cmp_lt_u32 s3, 2")
        A(f"s_cbranch_scc1 {L}")
        A("s_mov_b64 s[58:59], 0")
        A(f"{L}:")
    a_setup()
    def a_hook():
        for st in asets:
            for ld in st["loads"]: A(ld.replace(" sc1", APLAIN))
    nst = conv_main(A, AHOOK, a_hook if AHOOK >= 0 else None)
    stamp(A, 7)
    if CDELAY: A(f"s_sleep {CDELAY}")
    mask3()
    if PIPE:
        pipe_poll(A, agroups, 46, "apollc", PK_A, 164, PSTAG)
    else:
        masked_poll(A, asets, 46, ASLEEP, "apollc", first=(("issued", nst) if AHOOK >= 0 else None))
    cnt_stamp(A, 0, 46)
    A("s_branch k_ln2c")
    A("k_ffn_pre:")
    srd(A, 24, 62, 63, 0, 640*3072)
    srd(A, 28, 64, 65, 0, 640*3072)
    srd(A, 32, 66, 67, 0, 1536*1280)
    if WPF:
        A(f"""
        s_and_b32 s39, s38, 7
        s_lshr_b32 s42, s38, 3
        s_mul_i32 s52, s42, 160
        v_add_u32 v8, s52, v0
        v_mul_u32_u24 v9, 0x5556, v8
        v_lshrrev_b32 v9, 16, v9
        v_mul_u32_u24 v10, 3, v9
        v_sub_u32 v10, v8, v10
        v_mul_u32_u24 v9, 3072, v9
        v_lshl_add_u32 v9, v10, 7, v9
        s_mul_i32 s52, s39, 384
        v_mov_b32 v11, 0x7fffffff
        v_cmp_gt_u32 vcc, 160, v0
        s_lshl_b32 s53, s42, 8
        v_add_u32 v12, s53, v0
        v_cndmask_b32 v9, v11, v9, vcc
        buffer_load_dword v160, v9, s[24:27], s52 offen
        buffer_load_dword v161, v9, s[28:31], s52 offen
        v_lshrrev_b32 v10, 1, v12
        v_mul_u32_u24 v10, 1280, v10
        v_and_b32 v12, 1, v12
        v_lshl_add_u32 v10, v12, 7, v10
        s_mul_i32 s52, s39, 160
        s_and_b32 s52, s52, 0xffffff80
        buffer_load_dword v162, v10, s[32:35], s52 offen
        """)
    A(f"""
    s_sub_u32 s38, s2, 160
    s_and_b32 s39, s38, 7
    s_lshr_b32 s42, s38, 3
    s_mul_i32 s36, s39, 12
    s_add_u32 s36, s36, s42
    s_mul_i32 s37, s39, 10
    s_add_u32 s37, s37, s42
    v_lshrrev_b32 v3, 1, v0
    s_movk_i32 s46, 3072
    v_mul_lo_u32 v3, v3, s46
    v_and_b32 v4, 1, v0
    v_lshl_add_u32 v3, v4, 4, v3
    s_lshl_b32 s43, s36, 5
    s_lshl_b32 s44, s3, 10
    """)
    for it in range(5):
        A(f"s_add_u32 s45, s43, {it*128*3072}")
        A(f"s_add_u32 s47, s44, {L_G + it*4096}")
        A("s_mov_b32 m0, s47")
        A("s_nop 0")
        A("buffer_load_dwordx4 v3, s[24:27], s45 offen lds")
        A(f"s_add_u32 s47, s44, {L_U + it*4096}")
        A("s_mov_b32 m0, s47")
        A("s_nop 0")
        A("buffer_load_dwordx4 v3, s[28:31], s45 offen lds")
    A(f"""
    s_cmp_ge_u32 s38, 80
    s_cbranch_scc1 k_ffn_nowd
    s_movk_i32 s46, 1280
    v_mul_lo_u32 v3, v0, s46
    s_lshl_b32 s43, s37, 4
    """)
    for it in range(6):
        A(f"s_add_u32 s45, s43, {it*256*1280}")
        A(f"s_add_u32 s47, s44, {L_WD + it*4096}")
        A("s_mov_b32 m0, s47")
        A("s_nop 0")
        A("buffer_load_dwordx4 v3, s[32:35], s45 offen lds")
    A("k_ffn_nowd:")
    flag_poll(8)
    stamp(A, 5)
    if CANARY:
        A(f"""
        s_cmp_lg_u32 s3, 0
        s_cbranch_scc1 k_can_done
        v_lshlrev_b32 v3, 12, v0
        s_and_b32 s43, s{S_TB}, 31
        s_add_u32 s43, s43, {32*CTILE}
        s_lshl_b32 s43, s43, 4
        s_add_u32 s43, s43, {WS_AT}
        s_mov_b64 s[54:55], -1
        """)
        masked_poll(A, [dict(mask=54, loads=[f"buffer_load_dwordx4 v[8:11], v3, {WS}, s43 offen sc1"], regs=[8, 9, 10, 11], tmp=12)], 46, CSLEEP, "can")
        cnt_stamp(A, 2, 46)
        A("k_can_done:")
        A("s_barrier")
    stamp(A, 7)
    A("s_branch k_ln2b")
    A("k_ln2b:")
    a_setup()
    mask3()
    if PIPE:
        pipe_poll(A, agroups, 46, "apoll", PK_A, 164, PSTAG)
    else:
        masked_poll(A, asets, 46, FSLEEP, "apoll", first=("plain" if (APLAIN == "" and CANARY) else None))
    cnt_stamp(A, 0, 46)
    A("k_ln2c:")
    A(f"""
    v_lshlrev_b32 v3, 4, v0
    ds_write_b128 v3, v[8:11] offset:{L_AT}
    ds_write_b128 v3, v[12:15] offset:{L_AT+4096}
    s_cmp_ge_u32 s3, 2
    s_cbranch_scc1 k_ln2_w3
    ds_write_b128 v3, v[16:19] offset:{L_AT+8192}
    k_ln2_w3:
    v_lshrrev_b32 v8, 4, v1
    v_lshlrev_b32 v8, 3, v8
    v_bfe_u32 v9, v1, 1, 1
    v_lshl_add_u32 v8, v9, 2, v8
    v_bfe_u32 v9, v1, 2, 2
    v_add_u32 v8, v8, v9
    s_mul_i32 s47, s3, 160
    v_add_u32 v8, s47, v8
    v_lshlrev_b32 v8, 4, v8
    v_and_b32 v9, 1, v1
    v_lshl_add_u32 v8, v9, 3, v8
    s_waitcnt lgkmcnt(0)
    s_barrier
    """)
    stamp(A, 8)
    for i in range(5):
        A(f"ds_read_b64_tr_b16 v[{30+2*i}:{31+2*i}], v8 offset:{L_AT+512*i}")
    H = 40
    for i in range(10):
        a, b = H + 2*i, H + 2*i + 1
        if i % 2 == 0: A(f"s_waitcnt lgkmcnt({4 - i//2})")
        unpack_bf16(A, 30 + i, a, b)
        A(f"v_pk_add_f32 v[{a}:{b}], v[{a}:{b}], v[{VXF+2*i}:{VXF+2*i+1}]")
        rnd(A, a, a); rnd(A, b, b)
    ln_stats(A, H)
    A("v_mov_b32 v82, 0")
    A("v_mov_b32 v83, 0")
    for i in range(10):
        a, b = H + 2*i, H + 2*i + 1
        t = 86 + 2 * (i % 2)
        A(f"v_pk_add_f32 v[{t}:{t+1}], v[{a}:{b}], v[78:79] op_sel_hi:[1,0] neg_lo:[0,1] neg_hi:[0,1]")
        rnd(A, t, t); rnd(A, t+1, t+1)
        A(f"v_pk_mul_f32 v[{t}:{t+1}], v[{t}:{t+1}], v[80:81] op_sel_hi:[1,0]")
        A(f"v_cvt_pk_bf16_f32 v{30+i}, v{t}, v{t+1}")
        A(f"v_dot2_f32_bf16 v{82 + i % 2}, v{30+i}, v{VW+i}, v{82 + i % 2}")
    A("s_nop 2")
    A("v_add_f32 v82, v82, v83")
    red8(A, 82, 83)
    A(f"""
    v_lshlrev_b32 v76, 2, v{VTOK}
    v_add_u32 v76, {L_RP}, v76
    s_lshl_b32 s47, s3, 5
    v_add_u32 v77, s47, v76
    v_cmp_gt_u32 vcc, 8, v1
    s_and_saveexec_b64 s[48:49], vcc
    ds_write_b32 v77, v82
    s_mov_b64 exec, s[48:49]
    s_waitcnt lgkmcnt(0)
    s_barrier
    ds_read_b32 v78, v76
    ds_read_b32 v79, v76 offset:32
    ds_read_b32 v80, v76 offset:64
    ds_read_b32 v81, v76 offset:96
    s_waitcnt lgkmcnt(0)
    v_add_f32 v78, v78, v79
    v_add_f32 v80, v80, v81
    v_add_f32 v78, v78, v80
    v_cvt_pk_bf16_f32 v78, v78, v78
    v_and_b32 v78, 0xffff, v78
    v_xor_b32 v79, 0xffff, v78
    v_or_b32 v80, 0x8000, v78
    v_cmp_lt_u32 vcc, 0x7fff, v78
    v_lshlrev_b32 v87, 16, v78
    s_nop 0
    v_cndmask_b32 v78, v80, v79, vcc
    v_lshlrev_b32 v78, 16, v78
    v_add_u32 v79, s{S_T0}, v{VTOK}
    v_sub_u32 v80, 0xffff, v79
    v_or_b32 v86, v78, v80
    s_cmp_lg_u32 s3, 0
    s_cbranch_scc1 k_nokey
    v_lshlrev_b32 v80, 2, v79
    v_lshrrev_b32 v81, 3, v1
    v_lshl_add_u32 v80, v81, 13, v80
    s_mov_b32 s47, {WS_KEY}
    buffer_store_dword v86, v80, {WS}, s47 offen sc1
    k_nokey:
    """)
    stamp(A, 9)
    A(f"""
    v_lshlrev_b32 v9, 5, v0
    s_and_b32 s47, s2, {KREP-1}
    s_lshl_b32 s47, s47, 13
    s_add_u32 s47, s47, {WS_KEY}
    s_mov_b64 s[54:55], -1
    """)
    for i in range(10):
        a, b = H + 2*i, H + 2*i + 1
        unpack_bf16(A, 30 + i, 70, 71)
        A(f"v_pk_add_f32 v[70:71], v[70:71], v[{a}:{b}]")
        A(f"v_cvt_pk_bf16_f32 v{10+i}, v70, v71")
    if KDELAY:
        A("s_cmp_ge_u32 s2, 160")
        A("s_cbranch_scc1 k_kd")
        A("; poll back-off: the keys of the late token blocks cannot be published yet; polling them early only slows the producers' stores")
        A(f"s_sleep {KDELAY}")
        A("k_kd:")
    if PIPE:
        pipe_poll(A, [dict(mask=54, loads=[(f"buffer_load_dwordx4 {{dst}}, v9, {WS}, s47 offen sc1", 4, 90), (f"buffer_load_dwordx4 {{dst}}, v9, {WS}, s47 offen offset:16 sc1", 4, 94)],
                           sent="min", tmp=98)], 46, "kpoll", PK_K, 164, PSTAG)
    else:
        masked_poll(A, [dict(mask=54, loads=[f"buffer_load_dwordx4 v[90:93], v9, {WS}, s47 offen sc1", f"buffer_load_dwordx4 v[94:97], v9, {WS}, s47 offen offset:16 sc1"],
                             regs=list(range(90, 98)), tmp=98, sent="min")], 46, KSLEEP, "kpoll")
    cnt_stamp(A, 1, 46)
    stamp(A, 10)
    A(f"""
    s_mov_b32 s50, -1
    s_mov_b64 s[52:53], 0
    s_mov_b32 s51, 0
    k_own:
    v_cmp_gt_u32 vcc, s50, v86
    s_nop 1
    v_cndmask_b32 v98, 0, v86, vcc
    """)
    for pat in ("quad_perm:[1,0,3,2]", "quad_perm:[2,3,0,1]", "row_half_mirror"):
        A("s_nop 1")
        A(f"v_max_u32_dpp v98, v98, v98 {pat} {DPP}")
    A(f"""
    s_nop 0
    v_readfirstlane_b32 s54, v98
    s_nop 3
    s_cmp_eq_u32 s54, 0
    s_cbranch_scc1 k_own_done
    s_mov_b32 s55, 0
    """)
    for r in range(8):
        A(f"v_cmp_lt_u32 vcc, s54, v{90+r}")
        A(f"s_bcnt1_i32_b64 s56, vcc")
        A(f"s_add_u32 s55, s55, s56")
    A(f"""
    s_lshl_b32 s56, s51, 4
    s_lshl_b32 s57, s3, 2
    s_add_u32 s57, s57, s56
    s_add_u32 s57, s57, {L_CNT}
    v_mov_b32 v99, s57
    v_mov_b32 v100, s55
    s_add_u32 s56, s56, {L_CNT}
    v_mov_b32 v101, s56
    s_mov_b64 exec, 1
    ds_write_b32 v99, v100
    s_mov_b64 exec, -1
    s_waitcnt lgkmcnt(0)
    s_barrier
    ds_read_b128 v[102:105], v101
    s_waitcnt lgkmcnt(0)
    v_add_u32 v102, v102, v103
    v_add3_u32 v102, v102, v104, v105
    s_nop 0
    v_readfirstlane_b32 s55, v102
    s_nop 3
    s_cmp_ge_u32 s55, 8
    s_cbranch_scc1 k_own_done
    v_cmp_eq_u32 vcc, s54, v86
    s_or_b64 s[52:53], s[52:53], vcc
    s_and_saveexec_b64 s[48:49], vcc
    s_mul_i32 s56, s55, 1280
    s_add_u32 s57, s56, {WS_HS}
    s_add_u32 s56, s56, {WS_ZS}
    """)
    for i in range(5):
        A(f"buffer_store_dwordx2 v[{30+2*i}:{31+2*i}], v{VCH}, {WS}, s56 offen offset:{64*i} sc1")
    for i in range(10):
        A(f"v_cvt_pk_bf16_f32 v{106+i}, v{H+2*i}, v{H+2*i+1}")
    for i in range(5):
        A(f"buffer_store_dwordx2 v[{106+2*i}:{107+2*i}], v{VCH}, {WS}, s57 offen offset:{64*i} sc1")
    A(f"""
    s_cmp_lg_u32 s3, 0
    s_cbranch_scc1 k_own_nometa
    v_cmp_gt_u32 vcc, 8, v1
    s_and_b64 exec, exec, vcc
    v_mul_f32 v99, {hex(F_LOG2E)}, v87
    v_exp_f32 v99, -v99
    s_nop 0
    v_add_f32 v99, 1.0, v99
    v_rcp_f32 v99, v99
    s_nop 0
    v_cvt_pk_bf16_f32 v99, 0, v99
    s_lshl_b32 s56, s55, 2
    s_add_u32 s56, s56, {WS_META}
    v_mov_b32 v100, 0
    buffer_store_dword v79, v100, {WS}, s56 offen sc1
    buffer_store_dword v99, v100, {WS}, s56 offen offset:32 sc1
    k_own_nometa:
    s_mov_b64 exec, -1
    s_mov_b32 s50, s54
    s_xor_b32 s51, s51, 1
    s_branch k_own
    k_own_done:
    """)
    stamp(A, 11)
    A("s_andn2_b64 exec, exec, s[52:53]")
    for i in range(5):
        A(f"buffer_store_dwordx2 v[{10+2*i}:{11+2*i}], v{VROW}, s[{S_X}:{S_X+3}], 0 offen offset:{64*i} {OUTF}")
    A("s_mov_b64 exec, -1")
    A("s_cmp_lt_u32 s2, 160")
    A("s_cbranch_scc1 k_end")
    A(f"""
    v_lshrrev_b32 v7, 4, v1
    s_movk_i32 s46, 1280
    v_mul_lo_u32 v9, v{VTOK}, s46
    v_lshl_add_u32 v9, v7, 4, v9
    s_mul_i32 s47, s3, 320
    s_add_u32 s47, s47, {WS_ZS}
    v_lshlrev_b32 v10, 3, v7
    v_bfe_u32 v11, v1, 2, 2
    v_add_u32 v10, v10, v11
    v_lshlrev_b32 v10, 5, v10
    v_and_b32 v11, 3, v1
    v_lshl_add_u32 v10, v11, 3, v10
    s_mul_i32 s44, s3, {5*32*32}
    s_add_u32 s44, s44, {L_G}
    v_add_u32 v10, s44, v10
    """)
    for i in range(5):
        A(f"ds_read_b64_tr_b16 v[{120+4*i}:{121+4*i}], v10 offset:{1024*i}")
        A(f"ds_read_b64_tr_b16 v[{122+4*i}:{123+4*i}], v10 offset:{1024*i + 128}")
        A(f"ds_read_b64_tr_b16 v[{140+4*i}:{141+4*i}], v10 offset:{L_U - L_G + 1024*i}")
        A(f"ds_read_b64_tr_b16 v[{142+4*i}:{143+4*i}], v10 offset:{L_U - L_G + 1024*i + 128}")
        if i % 2 == 1: A("s_waitcnt lgkmcnt(0)")
    A("s_mov_b64 s[54:55], -1")
    if ZDELAY:
        A("; poll back-off before the first look at the selected rows (hand-off from the owning workgroups)")
        A(f"s_sleep {ZDELAY}")
    if PIPE:
        pipe_poll(A, [dict(mask=54, loads=[(f"buffer_load_dwordx4 {{dst}}, v9, {WS}, s47 offen offset:{64*i} sc1", 4, 40+4*i) for i in range(5)], tmp=60)], 46, "zpoll", 2, 164, PSTAG2)
    else:
        masked_poll(A, [dict(mask=54, loads=[f"buffer_load_dwordx4 v[{40+4*i}:{43+4*i}], v9, {WS}, s47 offen offset:{64*i} sc1" for i in range(5)],
                             regs=list(range(40, 60)), tmp=60)], 46, 1, "zpoll")
    cnt_stamp(A, 3, 46)
    stamp(A, 12)
    A("s_waitcnt lgkmcnt(0)")
    for i in range(5):
        c = "0" if i == 0 else "v[80:83]"
        A(f"v_mfma_f32_16x16x32_bf16 v[80:83], v[{40+4*i}:{43+4*i}], v[{120+4*i}:{123+4*i}], {c}")
        c = "0" if i == 0 else "v[84:87]"
        A(f"v_mfma_f32_16x16x32_bf16 v[84:87], v[{40+4*i}:{43+4*i}], v[{140+4*i}:{143+4*i}], {c}")
    A(f"""
    v_lshlrev_b32 v11, 4, v1
    s_lshl_b32 s44, s3, 11
    v_add_u32 v12, s44, v11
    s_lshl_b32 s44, s3, 2
    v_add_u32 v11, s44, v11
    s_nop 5
    ds_write_b128 v12, v[80:83] offset:{L_RED}
    ds_write_b128 v12, v[84:87] offset:{L_RED+1024}
    s_waitcnt lgkmcnt(0)
    s_barrier
    """)
    for w in range(4):
        A(f"ds_read_b32 v{40+w}, v11 offset:{L_RED + 2048*w}")
        A(f"ds_read_b32 v{44+w}, v11 offset:{L_RED + 2048*w + 1024}")
    A(f"""
    v_and_b32 v13, 15, v1
    v_lshlrev_b32 v12, 1, v13
    v_lshrrev_b32 v7, 4, v1
    s_movk_i32 s46, {4*3072}
    v_mul_lo_u32 v14, v7, s46
    v_add_u32 v12, v12, v14
    s_lshl_b32 s44, s36, 5
    s_mul_i32 s45, s3, 3072
    s_add_u32 s44, s44, s45
    s_add_u32 s44, s44, {WS_HID}
    s_waitcnt lgkmcnt(0)
    v_add_f32 v40, v40, v41
    v_add_f32 v42, v42, v43
    v_add_f32 v44, v44, v45
    v_add_f32 v46, v46, v47
    v_add_f32 v40, v40, v42
    v_add_f32 v44, v44, v46
    v_cvt_pk_bf16_f32 v40, 0, v40
    v_cvt_pk_bf16_f32 v44, 0, v44
    v_mul_f32 v52, {hex(F_LOG2E)}, v40
    v_exp_f32 v52, -v52
    s_nop 0
    v_add_f32 v52, 1.0, v52
    v_rcp_f32 v52, v52
    s_nop 0
    v_mul_f32 v52, v52, v40
    v_cvt_pk_bf16_f32 v52, 0, v52
    v_mul_f32 v52, v52, v44
    v_cvt_pk_bf16_f32 v52, v52, v52
    s_mov_b32 s58, 0x05040100
    s_nop 0
    v_mov_b32_dpp v53, v52 quad_perm:[1,1,3,3] {DPP}
    v_perm_b32 v56, v53, v52, s58
    s_nop 1
    v_mov_b32_dpp v57, v56 row_shl:2 {DPP}
    v_mov_b32_dpp v58, v56 row_shl:4 {DPP}
    v_mov_b32_dpp v59, v56 row_shl:6 {DPP}
    v_and_b32 v11, 7, v1
    v_cmp_eq_u32 vcc, 0, v11
    v_cmp_gt_u32 s[48:49], 2, v7
    s_and_b64 vcc, vcc, s[48:49]
    s_and_saveexec_b64 s[48:49], vcc
    buffer_store_dwordx4 v[56:59], v12, {WS}, s44 offen sc1
    s_add_u32 s45, s44, 24576
    buffer_store_dwordx4 v[56:59], v12, {WS}, s45 offen sc1
    s_add_u32 s45, s44, 49152
    buffer_store_dwordx4 v[56:59], v12, {WS}, s45 offen sc1
    s_add_u32 s45, s44, 73728
    buffer_store_dwordx4 v[56:59], v12, {WS}, s45 offen sc1
    s_mov_b64 exec, -1
    """)
    stamp(A, 13)
    A("s_cmp_ge_u32 s38, 80")
    A("s_cbranch_scc1 k_end")
    A(f"""
    v_bfe_u32 v5, v1, 3, 1
    v_lshrrev_b32 v7, 4, v1
    s_movk_i32 s46, 3072
    v_mul_lo_u32 v9, v{VTOK}, s46
    s_movk_i32 s46, 1536
    v_mul_lo_u32 v10, v5, s46
    v_add_u32 v9, v9, v10
    v_lshl_add_u32 v9, v7, 4, v9
    s_mul_i32 s47, s3, {6*64}
    s_and_b32 s46, s2, {HREP-1}
    s_mul_i32 s46, s46, 24576
    s_add_u32 s47, s47, s46
    s_add_u32 s47, s47, {WS_HID}
    v_lshlrev_b32 v14, 3, v7
    v_bfe_u32 v15, v1, 2, 2
    v_add_u32 v14, v14, v15
    v_bfe_u32 v15, v1, 1, 1
    s_movk_i32 s46, 768
    v_mul_lo_u32 v15, v15, s46
    v_add_u32 v14, v14, v15
    v_lshlrev_b32 v14, 4, v14
    v_and_b32 v15, 1, v1
    v_lshl_add_u32 v14, v15, 3, v14
    s_mul_i32 s44, s3, {6*512}
    s_add_u32 s44, s44, {L_WD}
    v_add_u32 v14, s44, v14
    """)
    for i in range(6):
        A(f"ds_read_b64_tr_b16 v[{120+4*i}:{121+4*i}], v14 offset:{512*i}")
        A(f"ds_read_b64_tr_b16 v[{122+4*i}:{123+4*i}], v14 offset:{512*i + 64}")
    A(f"""
    v_lshrrev_b32 v20, 3, v1
    v_and_b32 v21, 7, v1
    s_movk_i32 s46, 1280
    v_mul_lo_u32 v35, v20, s46
    v_lshl_add_u32 v35, v21, 1, v35
    v_and_b32 v35, 0xfffffffc, v35
    s_lshl_b32 s44, s37, 4
    s_add_u32 s50, s44, {WS_ZS}
    s_add_u32 s51, s44, {WS_HS}
    v_lshlrev_b32 v32, 2, v20
    s_mov_b32 s45, {WS_META}
    s_mov_b64 s[54:55], -1
    s_mov_b64 s[56:57], 0
    s_cmp_lg_u32 s3, 0
    s_cbranch_scc1 k_g2_m
    s_mov_b64 s[56:57], -1
    k_g2_m:
    """)
    if HDELAY:
        A("; poll back-off before the first look at the hidden activations (hand-off from the gate/up workgroups)")
        A(f"s_sleep {HDELAY}")
    if PIPE:
        pipe_poll(A, [dict(mask=54, loads=[(f"buffer_load_dwordx4 {{dst}}, v9, {WS}, s47 offen offset:{64*i} sc1", 4, 40+4*i) for i in range(6)], tmp=65),
                      dict(mask=56, loads=[(f"buffer_load_dword {{dst}}, v35, {WS}, s50 offen sc1", 1, 36), (f"buffer_load_dword {{dst}}, v35, {WS}, s51 offen sc1", 1, 37),
                                           (f"buffer_load_dword {{dst}}, v32, {WS}, s45 offen sc1", 1, 33), (f"buffer_load_dword {{dst}}, v32, {WS}, s45 offen offset:32 sc1", 1, 34)], tmp=64)],
                  46, "hpoll", 2, 164, PSTAG2)
    else:
        masked_poll(A, [dict(mask=54, loads=[f"buffer_load_dwordx4 v[{40+4*i}:{43+4*i}], v9, {WS}, s47 offen offset:{64*i} sc1" for i in range(6)],
                             regs=list(range(40, 64)), tmp=65),
                        dict(mask=56, loads=[f"buffer_load_dword v36, v35, {WS}, s50 offen sc1", f"buffer_load_dword v37, v35, {WS}, s51 offen sc1",
                                             f"buffer_load_dword v33, v32, {WS}, s45 offen sc1", f"buffer_load_dword v34, v32, {WS}, s45 offen offset:32 sc1"],
                             regs=[36, 37, 33, 34], tmp=64)], 46, 1, "hpoll")
    cnt_stamp(A, 4, 46)
    stamp(A, 14)
    A("s_waitcnt lgkmcnt(0)")
    for i in range(6):
        c = "0" if i == 0 else "v[88:91]"
        A(f"v_mfma_f32_16x16x32_bf16 v[88:91], v[{40+4*i}:{43+4*i}], v[{120+4*i}:{123+4*i}], {c}")
    A(f"""
    v_lshlrev_b32 v15, 4, v1
    s_lshl_b32 s44, s3, 10
    v_add_u32 v16, s44, v15
    s_barrier
    s_nop 4
    ds_write_b128 v16, v[88:91] offset:{L_RED}
    s_waitcnt lgkmcnt(0)
    s_barrier
    s_cmp_lg_u32 s3, 0
    s_cbranch_scc1 k_end
    v_lshrrev_b32 v22, 2, v20
    v_lshl_add_u32 v22, v22, 4, v21
    v_lshlrev_b32 v22, 4, v22
    v_and_b32 v23, 3, v20
    v_lshl_add_u32 v22, v23, 2, v22
    """)
    for w in range(4):
        A(f"ds_read_b32 v{24+2*w}, v22 offset:{L_RED + 1024*w}")
        A(f"ds_read_b32 v{25+2*w}, v22 offset:{L_RED + 1024*w + 640}")
    A(f"""
    v_and_b32 v38, 1, v21
    v_cmp_eq_u32 vcc, 1, v38
    v_lshlrev_b32 v38, 16, v36
    v_and_b32 v36, 0xffff0000, v36
    v_cndmask_b32 v36, v38, v36, vcc
    v_lshlrev_b32 v38, 16, v37
    v_and_b32 v37, 0xffff0000, v37
    v_cndmask_b32 v37, v38, v37, vcc
    s_movk_i32 s46, 1280
    v_mul_lo_u32 v35, v33, s46
    v_lshl_add_u32 v35, v21, 1, v35
    s_lshl_b32 s44, s37, 4
    s_waitcnt lgkmcnt(0)
    v_add_f32 v24, v24, v25
    v_add_f32 v26, v26, v27
    v_add_f32 v28, v28, v29
    v_add_f32 v30, v30, v31
    v_add_f32 v24, v24, v26
    v_add_f32 v28, v28, v30
    v_add_f32 v24, v24, v28
    v_cvt_pk_bf16_f32 v24, 0, v24
    v_mul_f32 v24, v24, v34
    v_cvt_pk_bf16_f32 v24, 0, v24
    v_add_f32 v24, v36, v24
    v_cvt_pk_bf16_f32 v24, 0, v24
    v_add_f32 v24, v37, v24
    v_cvt_pk_bf16_f32 v24, v24, v24
    buffer_store_short v24, v35, s[{S_X}:{S_X+3}], s44 offen
    k_end:
    """)
    stamp_flush(A)
    A("k_exit:")
    A("s_endpgm")
    A("k_code_end:")
    A("s_endpgm")
    return name

DESC = '; ---------------------------------------------------------------------------------------------------------------\n; One persistent kernel, 256 workgroups (one per CU) x 4 waves.  WG < 160: "conv" role (4 channels, one per wave),\n;   2. conv waves build K[l] = 2 Re sum_n C_n exp(a_n pos_l) for the 641 distinct bf16-rounded positions as a rank-192\n; Hand-offs between WGs: write-through (sc1) stores + sc1 polls on sentinel-cleared buffers; all polls are bounded.\n; ---------------------------------------------------------------------------------------------------------------\n'

def main():
    global STAMP
    if "--stamp" in sys.argv:
        STAMP = True
        sys.argv.remove("--stamp")
    hdr = open("cdna_kernels/%s.s.ref" % NAME).read().split("; Override launch")[0]
    b = Asm(); name = gen_main(b)
    out = hdr + f"; @launch grid=(256,1,1) block=(256,1,1) lds={LDS_TOTAL}\n"
    out += '.amdgcn_target "amdgcn-amd-amdhsa--gfx950"\n' + DESC + '.text\n'
    out += b.text()
    out += '.section .rodata,"a"\n.p2align 6\n' + gen.kernel_desc(name, 512, 100, 256)
    path = sys.argv[1] if len(sys.argv) > 1 else "cdna_kernels/%s.s" % NAME
    open(path, "w").write(out)
    print("wrote", path, len(out))

if __name__ == "__main__":
    main()
```

```python
import sys, os, struct
from gen import Asm as Asm0, srd, DPP, allreduce16, xor16, xor32, f32bits
from gen import F_INV640, F_LOG2E, F_INV2PI, F_EPS, ARG, NAME
import gen
from gen import Asm as Asm0

WS_UB = 0x000000
WS_AT = 0x280000
WS_KEY = 0x500000
WS_SM = 0x510000
WS_ZS = WS_SM
WS_HS = WS_SM + 10240
WS_META = WS_SM + 20480
WS_HID = WS_SM + 20736
WS_FL = 0x530000
WS_SIZE = 0x540000
WS_STAMP = 0x1000000

STAMP = False
KSTAMP = os.environ.get('KSTAMP', '0') == '1'
class Asm(Asm0):
    pass

def stamp(A, k):
    if STAMP:
        A("s_memrealtime s[98:99]")
        A("s_waitcnt lgkmcnt(0)")
        A(f"v_writelane_b32 v255, s98, {k}")

def cnt_stamp(A, k, sreg):
    if STAMP:
        A(f"v_writelane_b32 v254, s{sreg}, {k}")

def stamp_flush(A):
    if STAMP and DBGWG >= 0:
        A("s_waitcnt vmcnt(0) lgkmcnt(0)")
        stamp(A, 15)
        A(f"s_cmp_lg_u32 s2, {DBGWG}")
        A("s_cbranch_scc1 k_dbg_skip")
        A("s_cmp_lg_u32 s3, 0")
        A("s_cbranch_scc1 k_dbg_skip")
        A("v_readlane_b32 s90, v255, 0")
        A("s_nop 3")
        A("v_subrev_u32 v255, s90, v255")
        A("v_and_b32 v3, 63, v0")
        A("v_lshlrev_b32 v2, 2, v3")
        A("s_mov_b64 exec, 0xfffe")
        A(f"buffer_store_dword v255, v2, s[{S_DBG}:{S_DBG+3}], 0 offen")
        A("k_dbg_skip:")
        return
    if STAMP:
        A("s_waitcnt vmcnt(0) lgkmcnt(0)")
        stamp(A, 15)
        A(f"s_load_dwordx2 s[88:89], s[0:1], {ARG['ws']}")
        A("s_waitcnt lgkmcnt(0)")
        srd(A, 84, 88, 89, WS_STAMP, 0x40000)
        A("v_lshrrev_b32 v2, 6, v0")
        A("s_lshl_b32 s91, s2, 2")
        A("v_add_u32 v2, s91, v2")
        A("v_lshlrev_b32 v2, 6, v2")
        A("v_and_b32 v3, 63, v0")
        A("v_lshl_add_u32 v2, v3, 2, v2")
        A("s_mov_b64 exec, 0xffff")
        A("buffer_store_dword v255, v2, s[84:87], 0 offen")
        A("v_add_u32 v2, 0x20000, v2")
        A("buffer_store_dword v254, v2, s[84:87], 0 offen")

WAVE_LDS = 30432
CB = [0, 4160, 8320, 12480]
KOFF = 16640
TSTR = 1352
L_AT = 0
L_MISC = 10816
L_ST = L_MISC
L_RP = L_MISC + 256
L_CNT = L_MISC + 384
L_NON = L_MISC + 448
L_RED = L_MISC + 512
LBASE = 19712
L_G, L_U, L_WD = LBASE, LBASE + 20480, LBASE + 40960
LDS_TOTAL = LBASE + 4 * WAVE_LDS
POLL_LIMIT = 40000
ZDELAY = int(os.environ.get('ZDELAY', '8'))
HDELAY = int(os.environ.get('HDELAY', '6'))
KDELAY = int(os.environ.get('KDELAY', '32'))
PIPE = os.environ.get('PIPE', '0') == '1'
PK_A = int(os.environ.get('PK_A', '3'))
PK_K = int(os.environ.get('PK_K', '3'))
PSTAG = int(os.environ.get('PSTAG', '8'))
PSTAG2 = int(os.environ.get('PSTAG2', '12'))
KREP = int(os.environ.get('KREP', '8'))
HREP = int(os.environ.get('HREP', '4'))
VERB = True
PFFIRST = int(os.environ.get('PFFIRST', '0'))
CTILE = int(os.environ.get('CTILE', '3'))
EARLYG = os.environ.get('EARLYG', '1') == '1'
OUTF = os.environ.get('OUTF', '')
DBGWG = int(os.environ.get('DBGWG', '-1'))
NONWG = int(os.environ.get('NONWG', '0'))
CDELAY = int(os.environ.get('CDELAY', '0'))
WPF = os.environ.get('WPF', '1') == '1'
CSLEEP = int(os.environ.get('CSLEEP', '8'))
CANARY = os.environ.get('CANARY', '1') == '1'
FSLEEP = int(os.environ.get('FSLEEP', '2'))
APLAIN = ' sc1' if os.environ.get('APLAIN', '0') == '0' else ''
AHOOK = int(os.environ.get('AHOOK', '-1'))
CODEPF = os.environ.get('CODEPF', '1') == '1'
NPF = int(os.environ.get('NPF', '8'))
KSLEEP = int(os.environ.get('KSLEEP', '3'))
ASLEEP = int(os.environ.get('ASLEEP', '2'))

S_WS, S_X, S_DBG, S_WR = 8, 12, 20, 16
S_TB, S_T0 = 40, 41
S_D, S_B, S_K, S_AO, S_F, S_DS, S_NON = 74, 75, 76, 77, 78, 79, 72
VXF = 220
VW = 240
VROW, VCH, VTOK = 250, 251, 252

lblc = [0]
def newlbl(p):
    lblc[0] += 1
    return f"{p}_{lblc[0]}"

def rnd(A, d, s):
    A(f"v_cvt_pk_bf16_f32 v{d}, 0, v{s}")

def unpack_bf16(A, src, dlo, dhi):
    A(f"v_lshlrev_b32 v{dlo}, 16, v{src}")
    A(f"v_and_b32 v{dhi}, 0xffff0000, v{src}")

def red8(A, x, t):
    A("s_nop 1")
    A(f"v_add_f32_dpp v{x}, v{x}, v{x} row_ror:8 {DPP}")
    xor16(A, "v_add_f32", x, t)
    xor32(A, "v_add_f32", x, t)

def ln_stats(A, H):
    A(f"v_pk_add_f32 v[72:73], v[{H}:{H+1}], v[{H+2}:{H+3}]")
    A(f"v_pk_add_f32 v[74:75], v[{H+4}:{H+5}], v[{H+6}:{H+7}]")
    for i in range(4, 10, 2):
        A(f"v_pk_add_f32 v[72:73], v[72:73], v[{H+2*i}:{H+2*i+1}]")
        A(f"v_pk_add_f32 v[74:75], v[74:75], v[{H+2*i+2}:{H+2*i+3}]")
    A("v_pk_add_f32 v[72:73], v[72:73], v[74:75]")
    A("v_add_f32 v72, v72, v73")
    red8(A, 72, 73)
    A(f"v_mul_f32 v72, {hex(f32bits(1/160))}, v72")
    for i in range(10):
        t = 70 if i % 2 == 0 else 76
        acc = 74 if i % 2 == 0 else 82
        A(f"v_pk_add_f32 v[{t}:{t+1}], v[{H+2*i}:{H+2*i+1}], v[72:73] op_sel_hi:[1,0] neg_lo:[0,1] neg_hi:[0,1]")
        if i < 2: A(f"v_pk_mul_f32 v[{acc}:{acc+1}], v[{t}:{t+1}], v[{t}:{t+1}]")
        else: A(f"v_pk_fma_f32 v[{acc}:{acc+1}], v[{t}:{t+1}], v[{t}:{t+1}], v[{acc}:{acc+1}]")
    A("v_pk_add_f32 v[74:75], v[74:75], v[82:83]")
    A("v_add_f32 v73, v74, v75")
    red8(A, 73, 74)
    A(f"""
    v_lshlrev_b32 v76, 3, v{VTOK}
    v_add_u32 v76, {L_ST}, v76
    s_lshl_b32 s47, s3, 6
    v_add_u32 v77, s47, v76
    v_cmp_gt_u32 vcc, 8, v1
    s_and_saveexec_b64 s[48:49], vcc
    ds_write_b64 v77, v[72:73]
    s_mov_b64 exec, s[48:49]
    s_waitcnt lgkmcnt(0)
    s_barrier
    ds_read_b64 v[78:79], v76
    ds_read_b64 v[80:81], v76 offset:64
    ds_read_b64 v[82:83], v76 offset:128
    ds_read_b64 v[84:85], v76 offset:192
    s_waitcnt lgkmcnt(0)
    v_add_f32 v72, v78, v80
    v_add_f32 v73, v82, v84
    v_add_f32 v72, v72, v73
    v_mul_f32 v72, 0.25, v72
    v_sub_f32 v78, v78, v72
    v_sub_f32 v80, v80, v72
    v_sub_f32 v82, v82, v72
    v_sub_f32 v84, v84, v72
    v_mul_f32 v73, v78, v78
    v_fmac_f32 v73, v80, v80
    v_fmac_f32 v73, v82, v82
    v_fmac_f32 v73, v84, v84
    v_add_f32 v79, v79, v81
    v_add_f32 v83, v83, v85
    v_add_f32 v79, v79, v83
    v_fmac_f32 v79, {hex(f32bits(160))}, v73
    v_mul_f32 v74, {hex(F_INV640)}, v79
    v_cvt_pk_bf16_f32 v78, 0, v72
    v_cvt_pk_bf16_f32 v75, 0, v74
    v_add_f32 v75, {hex(F_EPS)}, v75
    v_cvt_pk_bf16_f32 v75, 0, v75
    v_sqrt_f32 v75, v75
    s_nop 0
    v_cvt_pk_bf16_f32 v75, 0, v75
    v_rcp_f32 v80, v75
    s_nop 0
    """)

def cmul(A, z, x, y, t):
    A(f"v_pk_mul_f32 v[{t}:{t+1}], v[{x}:{x+1}], v[{y}:{y+1}] op_sel:[0,0] op_sel_hi:[1,0]")
    A(f"v_pk_fma_f32 v[{z}:{z+1}], v[{x}:{x+1}], v[{y}:{y+1}], v[{t}:{t+1}] op_sel:[1,1,0] op_sel_hi:[0,1,1] neg_lo:[1,0,0]")

class Poll:
    pass

def masked_poll(A, sets, cnt, sleep, tag, first=None):
    L = newlbl(tag)
    A(f"s_mov_b32 s{cnt}, 0")
    if first == "plain":
        for st in sets:
            for ld in st["loads"]: A(ld.replace(" sc1", ""))
        A("s_waitcnt vmcnt(0)")
        A(f"s_branch {L}_chk")
    elif first is not None:
        A(f"s_waitcnt vmcnt({first[1]})")
        A(f"s_branch {L}_chk")
    A(f"{L}:")
    for k, st in enumerate(sets):
        m = st["mask"]
        A(f"s_mov_b64 exec, s[{m}:{m+1}]")
        A(f"s_cbranch_execz {L}_sk{k}")
        for ld in st["loads"]: A(ld)
        A(f"{L}_sk{k}:")
    A("s_mov_b64 exec, -1")
    A("s_waitcnt vmcnt(0)")
    A(f"{L}_chk:")
    for k, st in enumerate(sets):
        m = st["mask"]; regs = st["regs"]; t = st["tmp"]
        op = "max" if st.get("sent", "max") == "max" else "min"
        r = list(regs)
        if len(r) == 1:
            src = r[0]
        else:
            if len(r) >= 3:
                A(f"v_{op}3_u32 v{t}, v{r[0]}, v{r[1]}, v{r[2]}"); r = r[3:]
            else:
                A(f"v_{op}_u32 v{t}, v{r[0]}, v{r[1]}"); r = r[2:]
            while len(r) >= 2:
                A(f"v_{op}3_u32 v{t}, v{t}, v{r[0]}, v{r[1]}"); r = r[2:]
            if r: A(f"v_{op}_u32 v{t}, v{t}, v{r[0]}")
            src = t
        sent = "-1" if op == "max" else "0"
        A(f"v_cmp_eq_u32 vcc, {sent}, v{src}")
        A(f"s_and_b64 s[{m}:{m+1}], s[{m}:{m+1}], vcc")
    m0 = sets[0]["mask"]
    if len(sets) == 1:
        A(f"s_cmp_eq_u64 s[{m0}:{m0+1}], 0")
    else:
        A(f"s_or_b64 vcc, s[{m0}:{m0+1}], s[{sets[1]['mask']}:{sets[1]['mask']+1}]")
        for st in sets[2:]:
            A(f"s_or_b64 vcc, vcc, s[{st['mask']}:{st['mask']+1}]")
        A("s_cmp_eq_u64 vcc, 0")
    A(f"s_cbranch_scc1 {L}_done")
    A(f"s_add_u32 s{cnt}, s{cnt}, 1")
    if sleep: A(f"s_sleep {sleep}")
    A(f"s_cmp_lt_u32 s{cnt}, {POLL_LIMIT}")
    A(f"s_cbranch_scc1 {L}")
    A(f"{L}_done:")


def pipe_poll(A, groups, cnt, tag, K, SB, stag, sleep=0, NEW=92):
    L = newlbl(tag)
    tot = sum(w for g in groups for (_, w, _) in g["loads"])
    n = sum(len(g["loads"]) for g in groups)
    def stage(j):
        out = []; r = SB + j * tot
        for g in groups:
            lst = []
            for (fmt, w, fin) in g["loads"]:
                lst.append((fmt, w, fin, r)); r += w
            out.append(lst)
        return out
    def issue(j):
        for g, lst in zip(groups, stage(j)):
            m = g["mask"]
            A(f"s_or_b64 exec, s[{m}:{m+1}], 1")
            for (fmt, w, fin, r) in lst:
                dst = f"v{r}" if w == 1 else f"v[{r}:{r+w-1}]"
                A(fmt.format(dst=dst))
        A("s_mov_b64 exec, -1")
    A(f"s_mov_b32 s{cnt}, 0")
    for j in range(K):
        issue(j)
        if j < K - 1 and stag: A(f"s_sleep {stag}")
    A(f"{L}:")
    for j in range(K):
        A(f"s_waitcnt vmcnt({(K-1)*n})")
        for gi, (g, lst) in enumerate(zip(groups, stage(j))):
            m = g["mask"]; t = g["tmp"]
            op = "max" if g.get("sent", "max") == "max" else "min"
            regs = [r + i for (_, w, _, r) in lst for i in range(w)]
            r = list(regs)
            if len(r) == 1: src = r[0]
            else:
                if len(r) >= 3:
                    A(f"v_{op}3_u32 v{t}, v{r[0]}, v{r[1]}, v{r[2]}"); r = r[3:]
                else:
                    A(f"v_{op}_u32 v{t}, v{r[0]}, v{r[1]}"); r = r[2:]
                while len(r) >= 2:
                    A(f"v_{op}3_u32 v{t}, v{t}, v{r[0]}, v{r[1]}"); r = r[2:]
                if r: A(f"v_{op}_u32 v{t}, v{t}, v{r[0]}")
                src = t
            sent = "-1" if op == "max" else "0"
            A(f"v_cmp_ne_u32 vcc, {sent}, v{src}")
            A(f"s_and_b64 s[{NEW}:{NEW+1}], vcc, s[{m}:{m+1}]")
            A(f"s_cbranch_scc0 {L}_s{j}_{gi}")
            A(f"s_mov_b64 exec, s[{NEW}:{NEW+1}]")
            for (_, w, fin, rr) in lst:
                for i in range(w): A(f"v_mov_b32 v{fin+i}, v{rr+i}")
            A("s_mov_b64 exec, -1")
            A(f"s_andn2_b64 s[{m}:{m+1}], s[{m}:{m+1}], s[{NEW}:{NEW+1}]")
            A(f"{L}_s{j}_{gi}:")
        m0 = groups[0]["mask"]
        if len(groups) == 1:
            A(f"s_cmp_eq_u64 s[{m0}:{m0+1}], 0")
        else:
            A(f"s_or_b64 vcc, s[{m0}:{m0+1}], s[{groups[1]['mask']}:{groups[1]['mask']+1}]")
            for g in groups[2:]:
                A(f"s_or_b64 vcc, vcc, s[{g['mask']}:{g['mask']+1}]")
            A("s_cmp_eq_u64 vcc, 0")
        A(f"s_cbranch_scc1 {L}_done")
        issue(j)
        if sleep: A(f"s_sleep {sleep}")
    A(f"s_add_u32 s{cnt}, s{cnt}, 1")
    A(f"s_cmp_lt_u32 s{cnt}, {POLL_LIMIT}")
    A(f"s_cbranch_scc1 {L}")
    A(f"{L}_done:")

def kgen(A, mid_hook, tail_hook, hook0, p1_hook=None):
    TS = 272; TBUF = 14416; TT = 28832
    A(f"""
    s_bitcmp1_b32 s{S_D}, 0
    s_cbranch_scc1 kg_odd
    s_lshl_b32 s42, s42, 16
    s_lshl_b32 s{S_DS}, s{S_DS}, 16
    kg_odd:
    s_and_b32 s42, s42, 0xffff0000
    s_and_b32 s{S_DS}, s{S_DS}, 0xffff0000
    v_mov_b32 v14, {hex(F_LOG2E)}
    v_mul_f32 v15, s42, v14
    v_exp_f32 v15, v15
    s_mov_b32 s43, 0x7fff7fff
    v_and_b32 v112, s43, v112
    v_and_b32 v113, s43, v113
    v_and_b32 v114, s43, v114
    v_and_b32 v115, s43, v115
    v_cvt_pk_bf16_f32 v15, 0, v15
    v_pk_max_u16 v112, v112, v113
    v_pk_max_u16 v114, v114, v115
    v_pk_max_u16 v10, v112, v114
    v_lshrrev_b32 v11, 16, v10
    v_and_b32 v10, 0xffff, v10
    v_max_u32 v10, v10, v11
    """)
    E1, W8, E256, X2, X3, X4, X6, E512, XA, XB, CX, TX, C, CY, TY = 18, 20, 22, 24, 26, 28, 32, 34, 36, 38, 40, 42, 44, 116, 118
    PX, PY = [46, 47, 122, 123], [120, 121, 124, 125]
    WDELAY = int(os.environ.get('WDELAY', '1'))
    D = 48
    FR = 128
    def setup_a(p):
        L = []; a = L.append
        lar, aim = 100 + 4*p, 101 + 4*p
        a(f"v_lshlrev_b32 v{lar}, 16, v{lar}")
        a(f"v_lshlrev_b32 v{aim}, 16, v{aim}")
        a(f"v_mul_f32 v4, v14, v{lar}")
        a(f"v_exp_f32 v4, v4")
        a(f"v_mul_f32 v5, v{aim}, v15")
        a(f"v_mul_f32 v5, {hex(F_INV2PI)}, v5")
        a(f"v_cvt_pk_bf16_f32 v4, 0, v4")
        a(f"v_mul_f32 v4, v4, v15")
        a(f"v_mul_f32 v4, v4, v14")
        for k, (dst, pw) in enumerate(((E1, 1), (W8, 8), (E256, 256))):
            m, f = 6 + 2*(k % 2), 7 + 2*(k % 2)
            if pw == 1:
                a(f"v_exp_f32 v{m}, -v4")
                a(f"v_fract_f32 v{f}, v5")
            else:
                a(f"v_mul_f32 v{m}, {hex(f32bits(pw))}, v4")
                a(f"v_mul_f32 v{f}, {hex(f32bits(pw))}, v5")
                a(f"v_exp_f32 v{m}, -v{m}")
                a(f"v_fract_f32 v{f}, v{f}")
            a(f"v_cos_f32 v{dst}, v{f}")
            a(f"v_sin_f32 v{dst+1}, v{f}")
            a("s_nop 0")
            a(f"v_mul_f32 v{dst}, v{dst}, v{m}")
            a(f"v_mul_f32 v{dst+1}, v{dst+1}, v{m}")
        return L
    def setup_c(p):
        cre, cim = 102 + 4*p, 103 + 4*p
        return [f"v_lshlrev_b32 v{cre}, 16, v{cre}", f"v_lshlrev_b32 v{cim}, 16, v{cim}",
                f"v_mul_f32 v{C}, v{cre}, v11", f"v_mul_f32 v{C+1}, v{cim}, v11"]
    def cm(z, x, y, t):
        return [f"v_pk_mul_f32 v[{t}:{t+1}], v[{x}:{x+1}], v[{y}:{y+1}] op_sel:[0,0] op_sel_hi:[1,0]",
                f"v_pk_fma_f32 v[{z}:{z+1}], v[{x}:{x+1}], v[{y}:{y+1}], v[{t}:{t+1}] op_sel:[1,1,0] op_sel_hi:[0,1,1] neg_lo:[1,0,0]"]
    def tables():
        cnt = [0, 0]
        pendw = [[], []]
        def put(row, pair, neg, which, const=None):
            P = (PX, PY)[which]; r = P[cnt[which] % len(P)]; cnt[which] += 1
            L = [f"v_mov_b32 v{r}, {hex(const)}"] if const is not None else [f"v_cvt_pk_f16_f32 v{r}, v{pair}, {'-' if neg else ''}v{pair+1}"]
            pendw[which].append(f"ds_write_addtid_b32 v{r} offset:{row*TS}")
            if len(pendw[which]) > WDELAY:
                L.append(pendw[which].pop(0))
            return L
        X = []
        X += put(0, None, False, 0, const=0x3c00)
        X += put(1, E1, False, 0)
        X += cm(X2, E1, E1, TX) + put(2, X2, False, 0)
        X += put(8, E256, False, 0)
        X += cm(E512, E256, E256, TX) + put(12, E512, False, 0)
        X += cm(X3, X2, E1, TX) + put(3, X3, False, 0)
        X += cm(X4, X2, X2, TX) + put(4, X4, False, 0)
        X += cm(XA, E512, E256, TX) + put(14, XA, False, 0)
        X += cm(CX, X4, E1, TX) + put(5, CX, False, 0)
        X += cm(X6, X4, X2, TX) + put(6, X6, False, 0)
        X += cm(CX, X4, X3, TX) + put(7, CX, False, 0)
        X += cm(CX, E256, X2, TX) + put(9, CX, False, 0)
        X += cm(CX, E256, X4, TX) + put(10, CX, False, 0)
        X += cm(CX, E256, X6, TX) + put(11, CX, False, 0)
        X += cm(CX, E512, X4, TX) + put(13, CX, False, 0)
        X += cm(CX, XA, X4, TX) + put(15, CX, False, 0)
        X += cm(XA, E512, E512, TX) + put(16, XA, False, 0)
        X += cm(CX, XA, E256, TX) + put(17, CX, False, 0)
        X += cm(XB, XA, E512, TX) + put(18, XB, False, 0)
        X += cm(CX, XB, E256, TX) + put(19, CX, False, 0)
        X += cm(CX, XA, XA, TX) + put(20, CX, False, 0)
        Y = []
        Y += put(21, C, True, 1)
        Y += cm(CY, C, W8, TY) + put(22, CY, True, 1)
        for c in range(2, 32):
            Y += cm(CY, CY, W8, TY) + put(21 + c, CY, True, 1)
        X += pendw[0]; Y += pendw[1]
        out = []; i = j = 0
        while i < len(X) or j < len(Y):
            if j >= len(Y) or (i < len(X) and i * len(Y) <= j * len(X)):
                out.append(X[i]); i += 1
            else:
                out.append(Y[j]); j += 1
        return out
    sa = setup_a(0)
    red = []
    R_ = Asm0()
    allreduce16(R_, "v_max_u32", 10); xor16(R_, "v_max_u32", 10, 11); xor32(R_, "v_max_u32", 10, 11)
    R_(f"""
    v_lshlrev_b32 v10, 16, v10
    v_mul_f32 v10, v10, v15
    v_lshrrev_b32 v10, 23, v10
    v_max_u32 v10, 5, v10
    v_min_u32 v10, 0xfe, v10
    v_sub_u32 v11, 0x103, v10
    v_lshlrev_b32 v11, 23, v11
    v_subrev_u32 v30, 4, v10
    v_lshlrev_b32 v30, 23, v30
    v_mul_f32 v11, v11, v15
    v_lshrrev_b32 v13, 5, v1
    v_and_b32 v16, 31, v1
    v_mul_u32_u24 v16, {TS}, v16
    v_lshl_add_u32 v13, v13, 4, v16
    v_add_u32 v13, s{S_B}, v13
    """)
    for ins in R_.l: A(ins.strip())
    for ins in sa: A(ins)
    for ins in setup_c(0): A(ins)
    A(f"s_mov_b32 m0, s{S_B}")
    A("s_nop 0")
    for ins in tables(): A(ins)
    hook0()
    A(f"s_add_u32 s43, s{S_B}, 0")
    for p in range(3):
        buf = p % 2
        for s in range(8):
            A(f"ds_read_b128 v[{FR+8*s}:{FR+8*s+3}], v13 offset:{TBUF*buf + 32*s}")
            A(f"ds_read_b128 v[{FR+8*s+4}:{FR+8*s+7}], v13 offset:{TBUF*buf + 21*TS + 32*s}")
        if p == 1 and p1_hook is not None:
            p1_hook()
        if p < 2:
            A(f"s_add_u32 s43, s{S_B}, {TBUF*((p+1)%2)}")
            A("s_mov_b32 m0, s43")
            nxt = setup_a(p + 1) + setup_c(p + 1) + tables()
        else:
            mid_hook()
            nxt = []
            H_ = Asm0()
            H_(f"""
            v_and_b32 v14, 31, v1
            v_lshrrev_b32 v15, 5, v1
            v_lshlrev_b32 v16, 4, v14
            v_lshl_add_u32 v16, v15, 3, v16
            v_sub_u32 v17, {TT+504}, v16
            v_add_u32 v17, s{S_B}, v17
            v_add_u32 v16, {TT+1024}, v16
            v_add_u32 v16, s{S_B}, v16
            v_lshlrev_b32 v18, 3, v14
            v_add_u32 v18, {TT+512}, v18
            v_add_u32 v19, 4, v18
            v_lshlrev_b32 v20, 2, v14
            v_add_u32 v20, {TT+768}, v20
            v_add_u32 v21, 128, v20
            v_cmp_eq_u32 vcc, 0, v15
            s_nop 1
            v_cndmask_b32 v18, v20, v18, vcc
            v_cndmask_b32 v19, v21, v19, vcc
            v_add_u32 v18, s{S_B}, v18
            v_add_u32 v19, s{S_B}, v19
            s_add_u32 s43, s{S_B}, {TT}
            v_sub_u32 v4, 127, v1
            v_add_u32 v5, 1, v4
            v_and_b32 v6, 31, v4
            v_lshrrev_b32 v7, 5, v4
            v_lshlrev_b32 v6, 4, v6
            v_lshl_add_u32 v6, v7, 1, v6
            v_and_b32 v8, 31, v5
            v_lshrrev_b32 v7, 5, v5
            v_lshlrev_b32 v8, 4, v8
            v_lshl_add_u32 v8, v7, 1, v8
            v_add_u32 v6, s43, v6
            v_add_u32 v8, s43, v8
            v_sub_u32 v9, 63, v1
            v_lshlrev_b32 v10, 2, v9
            v_add_u32 v10, s43, v10
            v_sub_u32 v11, 31, v1
            v_and_b32 v11, 31, v11
            v_lshlrev_b32 v11, 3, v11
            v_add_u32 v11, s43, v11
            v_and_b32 v9, 31, v9
            v_lshlrev_b32 v9, 4, v9
            v_sub_u32 v9, 496, v9
            v_add_u32 v9, s43, v9
            v_lshlrev_b32 v3, 4, v1
            v_add_u32 v3, s{S_K}, v3
            """)
            nxt = [x.strip() for x in H_.l]
        nlds_after = 0
        per = (len(nxt) + 7) // 8 if nxt else 0
        lead = min(int(os.environ.get('LEAD', '30')) if p < 2 else 20, len(nxt))
        pos = 0
        for ins in nxt[:lead]:
            A(ins); pos += 1
            if ins.startswith("ds_"): nlds_after += 1
        rest = nxt[lead:]
        per = (len(rest) + 7) // 8 if rest else 0
        for s in range(8):
            need = 2 * (7 - s) + nlds_after
            if need <= 15: A(f"s_waitcnt lgkmcnt({need})")
            else: A("s_waitcnt lgkmcnt(15)") if False else A(f"s_waitcnt lgkmcnt({min(15, need)})")
            c = "0" if (s == 0 and p == 0) else f"v[{D}:{D+15}]"
            A(f"v_mfma_f32_32x32x16_f16 v[{D}:{D+15}], v[{FR+8*s}:{FR+8*s+3}], v[{FR+8*s+4}:{FR+8*s+7}], {c}")
            for ins in rest[s*per:(s+1)*per]:
                A(ins)
                if ins.startswith("ds_"): nlds_after += 1
    tail_hook()
    A(f"""
    s_nop 7
    s_nop 3
    v_cvt_pk_f16_f32 v22, v{D+3}, v{D+2}
    v_cvt_pk_f16_f32 v23, v{D+1}, v{D}
    ds_write_b64 v17, v[22:23]
    v_cvt_pk_f16_f32 v24, v{D+4}, v{D+5}
    v_cvt_pk_f16_f32 v25, v{D+6}, v{D+7}
    ds_write_b32 v18, v24
    ds_write_b32 v19, v25
    v_cvt_pk_f16_f32 v26, v{D+8}, v{D+9}
    v_cvt_pk_f16_f32 v27, v{D+10}, v{D+11}
    ds_write_b64 v16, v[26:27]
    s_mov_b32 s44, 0x05040100
    s_mov_b32 s45, 0x01000100
    s_mov_b32 s46, 0x03020302
    s_mov_b32 s47, 0x07060100
    s_mov_b32 s48, 0x03020504
    v_and_b32 v7, 1, v4
    v_cmp_eq_u32 vcc, 1, v7
    s_waitcnt lgkmcnt(0)
    ds_read_u16 v32, v6 offset:1024
    ds_read_u16 v33, v8 offset:1024
    ds_read_u16 v34, v6 offset:1020
    ds_read_u16 v35, v8 offset:1020
    ds_read2_b32 v[36:37], v10 offset0:192 offset1:193
    ds_read_b64 v[38:39], v11 offset:512
    ds_read_u16 v40, v11 offset:520
    ds_read_b128 v[44:47], v9
    s_waitcnt lgkmcnt(4)
    v_cndmask_b32 v41, v32, v33, vcc
    v_cndmask_b32 v42, v34, v35, vcc
    v_perm_b32 v48, v33, v33, s45
    v_perm_b32 v49, v41, v33, s44
    v_perm_b32 v50, v32, v32, s45
    v_mov_b32 v51, v50
    ds_write_b128 v3, v[48:51]
    v_perm_b32 v52, v35, v35, s45
    v_perm_b32 v53, v42, v35, s44
    v_perm_b32 v54, v34, v34, s45
    v_mov_b32 v55, v54
    ds_write_b128 v3, v[52:55] offset:1024
    s_waitcnt lgkmcnt(2)
    v_perm_b32 v56, v37, v37, s45
    v_perm_b32 v57, v36, v36, s46
    v_alignbit_b32 v58, v36, v36, 16
    v_perm_b32 v59, v36, v36, s45
    ds_write_b128 v3, v[56:59] offset:2048
    v_perm_b32 v60, v39, v40, s47
    v_perm_b32 v61, v39, v39, s45
    v_perm_b32 v62, v39, v38, s48
    v_perm_b32 v63, v38, v38, s45
    v_cmp_gt_u32 vcc, 32, v1
    s_nop 1
    v_cndmask_b32 v60, v44, v60, vcc
    v_cndmask_b32 v61, v45, v61, vcc
    v_cndmask_b32 v62, v46, v62, vcc
    v_cndmask_b32 v63, v47, v63, vcc
    ds_write_b128 v3, v[60:63] offset:3072
    v_mov_b32 v16, 0
    v_mov_b32 v17, 0
    v_mov_b32 v18, 0
    v_mov_b32 v19, 0
    v_cmp_gt_u32 vcc, 30, v1
    s_and_saveexec_b64 s[52:53], vcc
    ds_write_b128 v3, v[16:19] offset:4096
    s_mov_b64 exec, s[52:53]
    """)

def conv_main(A, hook_idx=None, hook=None):
    ACC, AR, NR, EP = 32, 64, int(os.environ.get('NR', '12')), 160
    mf = [(q, al) for al in range(64) for q in range(al // 8, 8)]
    first_use = {}
    for i, (q, al) in enumerate(mf):
        first_use.setdefault(("A", al), i)
        first_use.setdefault(("B", 8*q - al), i)
    loads = sorted(first_use.items(), key=lambda kv: (kv[1], kv[0][0]))
    last_of_tile = {q: max(i for i, (qq, al) in enumerate(mf) if qq == q) for q in range(8)}
    lastuse_A = {al: max(i for i, (q, a2) in enumerate(mf) if a2 == al) for al in range(64)}
    def epi_instrs(q):
        a = ACC + 4 * q
        e = EP + 16 * (q % 2)
        U = e + 14
        L = [("lds", f"ds_read_b64 v[{U}:{U+1}], v27 offset:{512*q}")]
        for j in range(4): L.append(("v", f"v_cvt_pk_bf16_f32 v{e+j}, 0, v{a+j}"))
        L.append(("waitu", None))
        L.append(("v", f"v_fma_mix_f32 v{e+4}, v{U}, s{S_DS}, 0 op_sel_hi:[1,0,0]"))
        L.append(("v", f"v_fma_mix_f32 v{e+5}, v{U}, s{S_DS}, 0 op_sel:[1,0,0] op_sel_hi:[1,0,0]"))
        L.append(("v", f"v_fma_mix_f32 v{e+6}, v{U+1}, s{S_DS}, 0 op_sel_hi:[1,0,0]"))
        L.append(("v", f"v_fma_mix_f32 v{e+7}, v{U+1}, s{S_DS}, 0 op_sel:[1,0,0] op_sel_hi:[1,0,0]"))
        for j in range(4): L.append(("v", f"v_cvt_pk_bf16_f32 v{e+4+j}, 0, v{e+4+j}"))
        for j in range(4): L.append(("v", f"v_fmac_f32 v{e+4+j}, v30, v{e+j}"))
        L.append(("v", f"v_cvt_pk_bf16_f32 v{e}, v{e+4}, v{e+5}"))
        L.append(("v", f"v_cvt_pk_bf16_f32 v{e+1}, v{e+6}, v{e+7}"))
        L.append(("gap", None))
        L.append(("v", f"v_permlane16_swap_b32 v{e}, v{e+2}"))
        L.append(("v", f"v_permlane16_swap_b32 v{e+1}, v{e+3}"))
        L.append(("st", f"buffer_store_dwordx4 v[{e}:{e+3}], v26, s[{S_WS}:{S_WS+3}], s{S_AO} offen offset:{512*q} sc1"))
        return L
    ldsq = []
    cur = [0]
    LAT = int(os.environ.get('LAT', '6'))
    def lds_wait_for(idset, extend=True):
        idxs = [i for i, n in enumerate(ldsq) if n[0] in idset]
        if not idxs: return False
        k = max(idxs)
        if extend:
            while k + 1 < len(ldsq) and ldsq[k+1][1] <= cur[0] - LAT: k += 1
        A(f"s_waitcnt lgkmcnt({len(ldsq) - 1 - k})")
        del ldsq[:k+1]
        return True
    def issue_load(key):
        kind, v = key
        if kind == "A":
            r = AR + 4 * (v % NR)
            A(f"ds_read_b64 v[{r}:{r+1}], v24 offset:{64*v}"); ldsq.append((key, cur[0]))
            A(f"ds_read_b64 v[{r+2}:{r+3}], v24 offset:{64*v+8}"); ldsq.append((key, cur[0]))
        else:
            r = 4 * (v + 7)
            A(f"ds_read_b128 a[{r}:{r+3}], v25 offset:{64*(56-v)}"); ldsq.append((key, cur[0]))
    li = 0
    epi_q = []
    stores_after = [0]
    WINDOW, MAXQ = int(os.environ.get('WINDOW', '12')), int(os.environ.get('MAXQ', '14'))
    BUD = int(os.environ.get('BUD', '2'))
    EDEL = int(os.environ.get('EDEL', '8'))
    for i, (q, al) in enumerate(mf):
        cur[0] = i
        budget = BUD if i > 0 else 99
        need = {("A", al), ("B", 8*q - al)}
        if any(n[0] in need for n in ldsq): budget -= 1
        while li < len(loads):
            key, dl = loads[li]
            n = 2 if key[0] == "A" else 1
            must = dl <= i
            if not must:
                if dl - i > WINDOW or budget <= 0: break
                if len(ldsq) + n > MAXQ: break
                if key[0] == "A" and key[1] >= NR and lastuse_A[key[1] - NR] >= i: break
            else:
                if len(ldsq) + n > 15:
                    A(f"s_waitcnt lgkmcnt({15-n})"); del ldsq[:len(ldsq) - (15 - n)]
            issue_load(key)
            budget -= n
            li += 1
        while budget > 0 and epi_q and epi_q[0][0] <= i:
            _, kind, txt, eq = epi_q.pop(0)
            if kind == "lds":
                if len(ldsq) + 1 > 15:
                    A("s_waitcnt lgkmcnt(14)"); del ldsq[:len(ldsq) - 14]
                A(txt); ldsq.append((("EU", eq), i))
            elif kind == "waitu":
                if lds_wait_for({("EU", eq)}): budget -= 1
                continue
            elif kind == "gap":
                if epi_q: epi_q[0] = (i + 2,) + epi_q[0][1:]
                break
            else:
                A(txt)
                if kind == "st": stores_after[0] += 1
            budget -= 1
        if hook is not None and i == hook_idx:
            hook(); stores_after[0] = 0
        lds_wait_for(need)
        r = AR + 4 * (al % NR)
        g = 8 * q - al
        c = "0" if al == 0 else f"v[{ACC+4*q}:{ACC+4*q+3}]"
        A(f"v_mfma_f32_16x16x32_f16 v[{ACC+4*q}:{ACC+4*q+3}], v[{r}:{r+3}], a[{4*(g+7)}:{4*(g+7)+3}], {c}")
        if i == last_of_tile[q]:
            for kind, txt in epi_instrs(q):
                epi_q.append((i + (1 if kind == "lds" else EDEL), kind, txt, q))
    cur[0] = len(mf) + 100
    A("s_nop 7")
    for _, kind, txt, eq in epi_q:
        if kind == "lds":
            A(txt); ldsq.append((("EU", eq), 0))
        elif kind == "waitu":
            lds_wait_for({("EU", eq)}, extend=False)
        elif kind == "gap":
            A("s_nop 1")
        else:
            A(txt)
            if kind == "st": stores_after[0] += 1
    return stores_after[0]

def gen_main(A):
    name = NAME + "_kernel"
    A.l.append(f".globl {name}")
    A.l.append(".p2align 8")
    A.l.append(f".type {name},@function")
    A.l.append(f"{name}:")
    A("s_cmp_ge_u32 s2, 256")
    A("s_cbranch_scc1 k_exit")
    if STAMP: A("v_mov_b32 v255, 0")
    if STAMP: A("v_mov_b32 v254, 0")
    def emit_pf():
        if CODEPF:
            A("""
            s_getpc_b64 s[90:91]
            k_pc:
            v_lshlrev_b32 v2, 4, v0
            v_mov_b32 v3, s91
            v_add_co_u32 v2, vcc, s90, v2
            v_addc_co_u32 v3, vcc, 0, v3, vcc
            """)
            for i in range(NPF):
                A(f"v_cmp_gt_i32 vcc, (k_code_end-k_pc-{4096*i})/16, v0")
                A("s_and_saveexec_b64 s[92:93], vcc")
                A(f"s_cbranch_execz k_pf_done")
                A("global_load_dwordx4 v[160:163], v[2:3], off")
                A("s_mov_b64 exec, s[92:93]")
                A("v_add_co_u32 v2, vcc, 0x1000, v2")
                A("v_addc_co_u32 v3, vcc, 0, v3, vcc")
            A("k_pf_done:")
            A("s_mov_b64 exec, -1")
    stamp(A, 0)
    if PFFIRST: emit_pf()
    WS = f"s[{S_WS}:{S_WS+3}]"
    A(f"""
    s_load_dwordx2 s[4:5], s[0:1], {ARG['x']}
    s_load_dwordx2 s[6:7], s[0:1], {ARG['ws']}
    s_load_dwordx4 s[44:47], s[0:1], {ARG['lar']}
    s_load_dwordx4 s[48:51], s[0:1], {ARG['cre']}
    s_load_dwordx4 s[56:59], s[0:1], {ARG['ldt']}
    s_load_dwordx4 s[60:63], s[0:1], {ARG['wr']}
    s_load_dwordx4 s[64:67], s[0:1], {ARG['wu']}
    s_load_dwordx4 s[68:71], s[0:1], {ARG['out']}
    """)
    if PFFIRST == 0:
        emit_pf()
    A(f"""
    s_and_b32 s52, s2, 7
    s_lshr_b32 s53, s2, 3
    s_mul_i32 s54, s52, 20
    s_add_u32 s{S_TB}, s54, s53
    s_cmp_lt_u32 s2, 160
    s_cbranch_scc1 k_tb_done
    s_mul_i32 s54, s52, 12
    s_add_u32 s54, s54, s53
    s_add_u32 s{S_TB}, s54, 140
    k_tb_done:
    s_lshl_b32 s{S_T0}, s{S_TB}, 3
    v_lshrrev_b32 v2, 6, v0
    v_and_b32 v1, 63, v0
    s_nop 0
    v_readfirstlane_b32 s3, v2
    v_and_b32 v{VTOK}, 7, v1
    v_lshrrev_b32 v5, 3, v1
    v_add_u32 v6, s{S_T0}, v{VTOK}
    s_movk_i32 s52, 1280
    v_mul_lo_u32 v6, v6, s52
    s_mul_i32 s53, s3, 320
    v_lshl_add_u32 v{VCH}, v5, 3, s53
    v_add_u32 v{VROW}, v6, v{VCH}
    s_waitcnt lgkmcnt(0)
    """)
    srd(A, S_WS, 6, 7, 0, WS_SIZE)
    srd(A, S_X, 4, 5, 0, 2621440)
    A(f"""
    v_mov_b32 v199, 0
    s_mov_b32 s52, {WS_FL}
    s_cmp_lg_u32 s2, {NONWG}
    s_cbranch_scc1 k_non0
    buffer_load_dword v197, v199, {WS}, s52 offen sc1
    k_non0:
    """)
    for i in range(5):
        A(f"buffer_load_dwordx2 v[{200+2*i}:{201+2*i}], v{VROW}, s[{S_X}:{S_X+3}], 0 offen offset:{64*i}")
    srd(A, S_DBG, 70, 71, 0, 256)
    srd(A, S_WR, 60, 61, 0, 1280)
    for i in range(5):
        A(f"buffer_load_dwordx2 v[{VW+2*i}:{VW+2*i+1}], v{VCH}, s[{S_WR}:{S_WR+3}], 0 offen offset:{64*i}")
    srd(A, S_X, 68, 69, 0, 2621440)
    def small_clears():
        A(f"""
        s_mov_b64 exec, 0x3fffffff
        s_mul_i32 s52, s2, 480
        s_add_u32 s52, s52, {WS_SM}
        buffer_store_dwordx4 v[40:43], v44, {WS}, s52 offen sc1
        s_mov_b64 exec, 0xffff
        v_mov_b32 v46, 0
        v_mov_b32 v47, 0
        v_mov_b32 v48, 0
        v_mov_b32 v49, 0
        v_lshrrev_b32 v45, 1, v1
        v_lshlrev_b32 v45, 13, v45
        v_and_b32 v50, 1, v1
        v_lshl_add_u32 v45, v50, 4, v45
        s_lshl_b32 s52, s{S_TB}, 5
        s_add_u32 s52, s52, {WS_KEY}
        buffer_store_dwordx4 v[46:49], v45, {WS}, s52 offen sc1
        s_mov_b64 exec, -1
        """)
    def publish_flag(tag):
        A(f"""
        s_cmp_lg_u32 s3, 0
        s_cbranch_scc1 {tag}_w
        s_waitcnt vmcnt(0)
        v_cmp_eq_u32 vcc, 0, v198
        s_mov_b64 s[54:55], vcc
        s_cmp_eq_u64 vcc, 0
        s_cbranch_scc1 {tag}_have
        """)
        masked_poll(A, [dict(mask=54, loads=[f"buffer_load_dword v198, v199, s[{S_DBG}:{S_DBG+3}], 0 offen sc1"], regs=[198], tmp=197, sent="min")], 53, 1, tag + "non")
        A(f"""
        {tag}_have:
        v_mov_b32 v197, {L_NON}
        ds_write_b32 v197, v198
        s_waitcnt lgkmcnt(0)
        {tag}_w:
        s_waitcnt vmcnt(0)
        s_barrier
        s_cmp_lg_u32 s3, 0
        s_cbranch_scc1 {tag}_done
        v_lshlrev_b32 v197, 10, v1
        s_lshl_b32 s52, s2, 2
        s_add_u32 s52, s52, {WS_FL}
        s_mov_b64 exec, 0xff
        buffer_store_dword v198, v197, {WS}, s52 offen sc1
        s_mov_b64 exec, -1
        {tag}_done:
        v_mov_b32 v197, {L_NON}
        ds_read_b32 v199, v197
        """)
    A(f"""
    v_mov_b32 v40, -1
    v_mov_b32 v41, -1
    v_mov_b32 v42, -1
    v_mov_b32 v43, -1
    v_lshlrev_b32 v44, 4, v1
    s_cmp_ge_u32 s2, 160
    s_cbranch_scc1 k_p0_ffn
    """)
    srd(A, 24, 44, 45, 0, 245760)
    srd(A, 28, 46, 47, 0, 245760)
    srd(A, 32, 48, 49, 0, 245760)
    srd(A, 36, 50, 51, 0, 245760)
    A(f"""
    s_lshl_b32 s{S_D}, s2, 2
    s_add_u32 s{S_D}, s{S_D}, s3
    s_mul_i32 s{S_B}, s3, {WAVE_LDS}
    s_add_u32 s{S_B}, s{S_B}, {LBASE}
    s_add_u32 s{S_K}, s{S_B}, {KOFF}
    s_lshl_b32 s{S_AO}, s{S_D}, 12
    s_add_u32 s{S_AO}, s{S_AO}, {WS_AT}
    s_mul_i32 s52, s{S_D}, 384
    v_lshlrev_b32 v3, 1, v1
    s_and_b32 s53, s{S_D}, 0xfffffffe
    s_lshl_b32 s53, s53, 1
    s_load_dword s42, s[56:57], s53
    s_load_dword s{S_DS}, s[58:59], s53
    """)
    for p in range(3):
        for j in range(4):
            A(f"buffer_load_ushort v{100+4*p+j}, v3, s[{24+4*j}:{27+4*j}], s52 offen offset:{128*p}")
    A(f"""
    v_lshlrev_b32 v8, 3, v1
    v_mov_b32 v112, 0
    v_mov_b32 v113, 0
    v_mov_b32 v114, 0
    v_mov_b32 v115, 0
    v_cmp_gt_u32 vcc, 48, v1
    s_and_saveexec_b64 s[54:55], vcc
    buffer_load_dwordx2 v[112:113], v8, s[32:35], s52 offen
    buffer_load_dwordx2 v[114:115], v8, s[36:39], s52 offen
    s_mov_b64 exec, s[54:55]
    s_waitcnt vmcnt(19)
    """)
    for i in range(4):
        A(f"buffer_store_dwordx4 v[40:43], v44, {WS}, s{S_AO} offen offset:{1024*i} sc1")
    A("s_branch k_p0_join")
    A("k_p0_ffn:")
    A("s_sub_u32 s38, s2, 160")
    A("s_waitcnt vmcnt(5)")
    A("k_p0_join:")
    A(f"""
    s_cmp_lg_u32 s2, {NONWG}
    s_cbranch_scc1 k_non1
    s_cmp_lg_u32 s3, 0
    s_cbranch_scc1 k_non1
    v_add_u32 v197, 1, v197
    v_max_u32 v197, 1, v197
    s_mov_b64 exec, 1
    buffer_store_dword v197, v199, s[{S_DBG}:{S_DBG+3}], 0 offen sc1
    s_mov_b64 exec, -1
    k_non1:
    """)
    stamp(A, 1)
    A("s_cmp_lg_u32 s3, 0")
    A("s_cbranch_scc1 k_p0_j2")
    small_clears()
    A("k_p0_j2:")
    for i in range(10):
        unpack_bf16(A, 200 + i, VXF + 2*i, VXF + 2*i + 1)
    ln_stats(A, VXF)
    for i in range(10):
        a_, b_ = VXF + 2*i, VXF + 2*i + 1
        t = 86 + 2 * (i % 2)
        A(f"v_pk_add_f32 v[{t}:{t+1}], v[{a_}:{b_}], v[78:79] op_sel_hi:[1,0] neg_lo:[0,1] neg_hi:[0,1]")
        rnd(A, t, t); rnd(A, t+1, t+1)
        A(f"v_pk_mul_f32 v[{t}:{t+1}], v[{t}:{t+1}], v[80:81] op_sel_hi:[1,0]")
        rnd(A, t, t); rnd(A, t+1, t+1)
        A(f"v_cvt_pk_f16_f32 v{30+i}, v{t}, v{t+1}")
    A(f"""
    s_movk_i32 s52, {TSTR}
    v_mul_lo_u32 v6, v{VTOK}, s52
    v_add_u32 v6, v6, v{VCH}
    """)
    for i in range(5):
        A(f"ds_write_b64 v6, v[{30+2*i}:{31+2*i}] offset:{L_AT + 64*i}")
    A(f"""
    v_bfe_u32 v3, v1, 2, 2
    v_mul_lo_u32 v3, v3, s52
    v_lshrrev_b32 v4, 4, v1
    v_lshl_add_u32 v3, v4, 5, v3
    v_and_b32 v4, 3, v1
    v_lshl_add_u32 v3, v4, 3, v3
    s_lshl_b32 s53, s3, 7
    v_add_u32 v3, s53, v3
    v_lshlrev_b32 v4, 4, v0
    s_mul_i32 s52, s{S_TB}, 10240
    s_add_u32 s52, s52, {WS_UB}
    s_add_u32 s53, s52, 4096
    s_add_u32 s54, s52, 8192
    s_waitcnt lgkmcnt(0)
    s_barrier
    ds_read_b64_tr_b16 v[8:9], v3 offset:{L_AT}
    ds_read_b64_tr_b16 v[10:11], v3 offset:{L_AT + 4*TSTR}
    ds_read_b64_tr_b16 v[12:13], v3 offset:{L_AT + 512}
    ds_read_b64_tr_b16 v[14:15], v3 offset:{L_AT + 4*TSTR + 512}
    ds_read_b64_tr_b16 v[16:17], v3 offset:{L_AT + 1024}
    ds_read_b64_tr_b16 v[18:19], v3 offset:{L_AT + 4*TSTR + 1024}
    s_waitcnt lgkmcnt(0)
    buffer_store_dwordx4 v[8:11], v4, {WS}, s52 offen sc1
    buffer_store_dwordx4 v[12:15], v4, {WS}, s53 offen sc1
    s_cmp_ge_u32 s3, 2
    s_cbranch_scc1 k_ln1_skip
    buffer_store_dwordx4 v[16:19], v4, {WS}, s54 offen sc1
    k_ln1_skip:
    s_cmp_lg_u32 s3, 0
    s_cbranch_scc1 k_non2
    buffer_load_dword v198, v199, s[{S_DBG}:{S_DBG+3}], 0 offen sc1
    k_non2:
    """)
    stamp(A, 2)
    A("s_cmp_lt_u32 s2, 160")
    A("s_cbranch_scc1 k_conv_role")
    publish_flag("ff")
    A("s_waitcnt lgkmcnt(0)")
    A(f"v_readfirstlane_b32 s{S_NON}, v199")
    stamp(A, 3)
    A("s_branch k_ffn_pre")
    A("k_conv_role:")
    A("s_waitcnt vmcnt(6)")
    def flag_poll(sleep, first_issued=False):
        L = newlbl("flg")
        if not first_issued:
            flag_setup()
        A(f"s_mov_b32 s53, 0")
        if first_issued:
            A(f"s_branch {L}_chk")
        A(f"{L}:")
        A(f"s_mov_b64 exec, s[54:55]")
        A(f"buffer_load_dwordx4 v[192:195], v196, {WS}, s51 offen sc1")
        A("s_mov_b64 exec, -1")
        A(f"{L}_chk:")
        A("s_waitcnt vmcnt(0)")
        A(f"v_xor_b32 v192, s{S_NON}, v192")
        A(f"v_xor_b32 v193, s{S_NON}, v193")
        A(f"v_xor_b32 v194, s{S_NON}, v194")
        A(f"v_xor_b32 v195, s{S_NON}, v195")
        A("v_or3_b32 v197, v192, v193, v194")
        A("v_or_b32 v197, v197, v195")
        A("v_cmp_ne_u32 vcc, 0, v197")
        A("s_and_b64 s[54:55], s[54:55], vcc")
        A("s_cmp_eq_u64 s[54:55], 0")
        A(f"s_cbranch_scc1 {L}_done")
        A("s_add_u32 s53, s53, 1")
        A(f"s_sleep {sleep}")
        A(f"s_cmp_lt_u32 s53, {POLL_LIMIT}")
        A(f"s_cbranch_scc1 {L}")
        A(f"{L}_done:")
    def flag_setup():
        A(f"""
        v_lshlrev_b32 v196, 4, v1
        s_and_b32 s51, s2, 7
        s_lshl_b32 s51, s51, 10
        s_add_u32 s51, s51, {WS_FL}
        s_mov_b64 s[54:55], -1
        """)
    def hook0():
        publish_flag("cf")
        stamp(A, 3)
    G = 200
    def gather_issue():
        A(f"""
        v_lshrrev_b32 v216, 2, v1
        s_movk_i32 s52, 10240
        v_mul_lo_u32 v217, v216, s52
        v_and_b32 v218, 3, v1
        v_lshl_add_u32 v217, v218, 4, v217
        s_mul_i32 s52, s3, {64*10240}
        s_lshl_b32 s53, s2, 6
        s_add_u32 s52, s52, s53
        s_add_u32 s52, s52, {WS_UB}
        """)
        for i in range(4):
            A(f"buffer_load_dwordx4 v[{G+4*i}:{G+4*i+3}], v217, {WS}, s52 offen sc1")
            if i < 3: A(f"s_add_u32 s52, s52, {16*10240}")
        A(f"""
        s_movk_i32 s52, {WAVE_LDS}
        v_mul_lo_u32 v218, v218, s52
        v_lshl_add_u32 v218, v216, 4, v218
        s_lshl_b32 s52, s3, 10
        s_add_u32 s52, s52, {LBASE + 32}
        v_add_u32 v218, s52, v218
        """)
    def flag_check():
        A(f"v_xor_b32 v192, s{S_NON}, v192")
        A(f"v_xor_b32 v193, s{S_NON}, v193")
        A(f"v_xor_b32 v194, s{S_NON}, v194")
        A(f"v_xor_b32 v195, s{S_NON}, v195")
        A("v_or3_b32 v197, v192, v193, v194")
        A("v_or_b32 v197, v197, v195")
        A("v_cmp_ne_u32 vcc, 0, v197")
        A("s_and_b64 s[54:55], s[54:55], vcc")
    def p1_hook():
        A("s_waitcnt lgkmcnt(15)")
        A(f"v_readfirstlane_b32 s{S_NON}, v199")
        flag_setup()
        A(f"buffer_load_dwordx4 v[192:195], v196, {WS}, s51 offen sc1")
    def mid_hook():
        A("s_mov_b32 s50, 0")
        A("s_waitcnt vmcnt(0)")
        flag_check()
        A("s_cmp_eq_u64 s[54:55], 0")
        A("s_cbranch_scc0 kg_noearly")
        gather_issue()
        A("s_mov_b32 s50, 1")
        A("s_branch kg_early_done")
        A("kg_noearly:")
        A(f"s_mov_b64 exec, s[54:55]")
        A(f"buffer_load_dwordx4 v[192:195], v196, {WS}, s51 offen sc1")
        A("s_mov_b64 exec, -1")
        A("kg_early_done:")
    def tail_hook():
        stamp(A, 4)
        A("s_cmp_eq_u32 s50, 1")
        A("s_cbranch_scc1 kg_tail_done")
        flag_poll(1, first_issued=True)
        gather_issue()
        A("kg_tail_done:")
        stamp(A, 5)
    kgen(A, mid_hook, tail_hook, hook0, p1_hook)
    A(f"""
    v_lshlrev_b32 v9, 4, v1
    v_add_u32 v9, s{S_B}, v9
    v_add_u32 v10, 4096, v9
    v_cmp_gt_u32 vcc, 2, v1
    v_and_b32 v21, 15, v1
    v_lshrrev_b32 v22, 4, v1
    v_cndmask_b32 v10, v10, v9, vcc
    v_add_u32 v23, 1, v21
    v_and_b32 v24, 3, v23
    s_movk_i32 s53, 4160
    v_mul_lo_u32 v24, v24, s53
    v_lshrrev_b32 v23, 2, v23
    v_lshl_add_u32 v24, v23, 3, v24
    v_lshl_add_u32 v24, v22, 4, v24
    v_add_u32 v24, s{S_B}, v24
    v_lshlrev_b32 v25, 5, v21
    v_sub_u32 v25, {2*2032 - 64*56}, v25
    v_lshl_add_u32 v25, v22, 4, v25
    v_add_u32 v25, s{S_K}, v25
    v_lshlrev_b32 v26, 5, v21
    v_lshl_add_u32 v27, v22, 3, v26
    v_add_u32 v27, 32, v27
    v_add_u32 v27, s{S_B}, v27
    v_lshrrev_b32 v28, 1, v22
    v_lshl_add_u32 v26, v28, 4, v26
    v_and_b32 v28, 1, v22
    v_lshlrev_b32 v28, 30, v28
    v_or_b32 v26, v26, v28
    s_waitcnt lgkmcnt(0)
    s_barrier
    s_mov_b64 exec, 0xf
    ds_write_b128 v10, v[16:19]
    s_mov_b64 exec, -1
    """)
    for i in range(4):
        A(f"s_waitcnt vmcnt({3-i})")
        A(f"ds_write_b128 v218, v[{G+4*i}:{G+4*i+3}] offset:{256*i}")
    R = 128
    A(f"""
    v_mov_b32 v{R+32}, 0
    v_mov_b32 v{R+33}, 0
    v_mov_b32 v{R+34}, 0
    v_mov_b32 v{R+35}, 0
    s_waitcnt lgkmcnt(0)
    s_barrier
    """)
    stamp(A, 6)
    for i in range(4):
        A(f"ds_read_b128 v[{R+8*i}:{R+8*i+3}], v9 offset:{32 + 1024*i}")
        A(f"ds_read_b64 v[{R+8*i+4}:{R+8*i+5}], v9 offset:{48 + 1024*i}")
    A(f"ds_read_b64 v[{R+36}:{R+37}], v9 offset:16")
    nw = 0
    for i in range(5):
        r = R + 8*i
        reads_after = (2 * (3 - i) + 1) if i < 4 else 0
        A(f"s_waitcnt lgkmcnt({min(15, reads_after + nw)})")
        T1, T2, T3 = 176, 180, 184
        if i % 2: T1, T2, T3 = 188, 192, 196
        A(f"v_alignbit_b32 v{T1}, v{r+1}, v{r}, 16")
        A(f"v_alignbit_b32 v{T1+1}, v{r+2}, v{r+1}, 16")
        A(f"v_alignbit_b32 v{T1+2}, v{r+3}, v{r+2}, 16")
        A(f"v_alignbit_b32 v{T1+3}, v{r+4}, v{r+3}, 16")
        off = (32 + 1024*i) if i < 4 else 0
        if i == 4: A("s_mov_b64 exec, 3")
        A(f"ds_write_b128 v9, v[{T1}:{T1+3}] offset:{CB[1] + off}")
        A(f"v_mov_b32 v{T2}, v{r+1}")
        A(f"v_mov_b32 v{T2+1}, v{r+2}")
        A(f"v_mov_b32 v{T2+2}, v{r+3}")
        A(f"v_mov_b32 v{T2+3}, v{r+4}")
        A(f"ds_write_b128 v9, v[{T2}:{T2+3}] offset:{CB[2] + off}")
        A(f"v_mov_b32 v{T3}, v{T1+1}")
        A(f"v_mov_b32 v{T3+1}, v{T1+2}")
        A(f"v_mov_b32 v{T3+2}, v{T1+3}")
        A(f"v_alignbit_b32 v{T3+3}, v{r+5}, v{r+4}, 16")
        A(f"ds_write_b128 v9, v[{T3}:{T3+3}] offset:{CB[3] + off}")
        if i == 4: A("s_mov_b64 exec, -1")
        nw += 3
    A("s_waitcnt lgkmcnt(0)")
    stamp(A, 12)
    def a_setup():
        A(f"""
        v_lshlrev_b32 v3, 12, v0
        s_lshl_b32 s43, s{S_T0}, 1
        s_add_u32 s43, s43, {WS_AT}
        s_add_u32 s44, s43, {256*4096}
        s_add_u32 s45, s43, {512*4096}
        s_mov_b64 s[54:55], -1
        s_mov_b64 s[56:57], -1
        s_mov_b64 s[58:59], -1
        """)
    asets = [dict(mask=54, loads=[f"buffer_load_dwordx4 v[8:11], v3, {WS}, s43 offen sc1"], regs=[8,9,10,11], tmp=20),
             dict(mask=56, loads=[f"buffer_load_dwordx4 v[12:15], v3, {WS}, s44 offen sc1"], regs=[12,13,14,15], tmp=20),
             dict(mask=58, loads=[f"buffer_load_dwordx4 v[16:19], v3, {WS}, s45 offen sc1"], regs=[16,17,18,19], tmp=20)]
    agroups = [dict(mask=54, loads=[(f"buffer_load_dwordx4 {{dst}}, v3, {WS}, s43 offen sc1", 4, 8)], tmp=20),
               dict(mask=56, loads=[(f"buffer_load_dwordx4 {{dst}}, v3, {WS}, s44 offen sc1", 4, 12)], tmp=20),
               dict(mask=58, loads=[(f"buffer_load_dwordx4 {{dst}}, v3, {WS}, s45 offen sc1", 4, 16)], tmp=20)]
    def mask3():
        L = newlbl("m3")
        A(f"s_cmp_lt_u32 s3, 2")
        A(f"s_cbranch_scc1 {L}")
        A("s_mov_b64 s[58:59], 0")
        A(f"{L}:")
    a_setup()
    def a_hook():
        for st in asets:
            for ld in st["loads"]: A(ld.replace(" sc1", APLAIN))
    nst = conv_main(A, AHOOK, a_hook if AHOOK >= 0 else None)
    stamp(A, 7)
    if CDELAY: A(f"s_sleep {CDELAY}")
    mask3()
    if PIPE:
        pipe_poll(A, agroups, 46, "apollc", PK_A, 164, PSTAG)
    else:
        masked_poll(A, asets, 46, ASLEEP, "apollc", first=(("issued", nst) if AHOOK >= 0 else None))
    cnt_stamp(A, 0, 46)
    A("s_branch k_ln2c")
    A("k_ffn_pre:")
    srd(A, 24, 62, 63, 0, 640*3072)
    srd(A, 28, 64, 65, 0, 640*3072)
    srd(A, 32, 66, 67, 0, 1536*1280)
    if WPF:
        A(f"""
        s_and_b32 s39, s38, 7
        s_lshr_b32 s42, s38, 3
        s_mul_i32 s52, s42, 160
        v_add_u32 v8, s52, v0
        v_mul_u32_u24 v9, 0x5556, v8
        v_lshrrev_b32 v9, 16, v9
        v_mul_u32_u24 v10, 3, v9
        v_sub_u32 v10, v8, v10
        v_mul_u32_u24 v9, 3072, v9
        v_lshl_add_u32 v9, v10, 7, v9
        s_mul_i32 s52, s39, 384
        v_mov_b32 v11, 0x7fffffff
        v_cmp_gt_u32 vcc, 160, v0
        s_lshl_b32 s53, s42, 8
        v_add_u32 v12, s53, v0
        v_cndmask_b32 v9, v11, v9, vcc
        buffer_load_dword v160, v9, s[24:27], s52 offen
        buffer_load_dword v161, v9, s[28:31], s52 offen
        v_lshrrev_b32 v10, 1, v12
        v_mul_u32_u24 v10, 1280, v10
        v_and_b32 v12, 1, v12
        v_lshl_add_u32 v10, v12, 7, v10
        s_mul_i32 s52, s39, 160
        s_and_b32 s52, s52, 0xffffff80
        buffer_load_dword v162, v10, s[32:35], s52 offen
        """)
    A(f"""
    s_sub_u32 s38, s2, 160
    s_and_b32 s39, s38, 7
    s_lshr_b32 s42, s38, 3
    s_mul_i32 s36, s39, 12
    s_add_u32 s36, s36, s42
    s_mul_i32 s37, s39, 10
    s_add_u32 s37, s37, s42
    v_lshrrev_b32 v3, 1, v0
    s_movk_i32 s46, 3072
    v_mul_lo_u32 v3, v3, s46
    v_and_b32 v4, 1, v0
    v_lshl_add_u32 v3, v4, 4, v3
    s_lshl_b32 s43, s36, 5
    s_lshl_b32 s44, s3, 10
    """)
    for it in range(5):
        A(f"s_add_u32 s45, s43, {it*128*3072}")
        A(f"s_add_u32 s47, s44, {L_G + it*4096}")
        A("s_mov_b32 m0, s47")
        A("s_nop 0")
        A("buffer_load_dwordx4 v3, s[24:27], s45 offen lds")
        A(f"s_add_u32 s47, s44, {L_U + it*4096}")
        A("s_mov_b32 m0, s47")
        A("s_nop 0")
        A("buffer_load_dwordx4 v3, s[28:31], s45 offen lds")
    A(f"""
    s_cmp_ge_u32 s38, 80
    s_cbranch_scc1 k_ffn_nowd
    s_movk_i32 s46, 1280
    v_mul_lo_u32 v3, v0, s46
    s_lshl_b32 s43, s37, 4
    """)
    for it in range(6):
        A(f"s_add_u32 s45, s43, {it*256*1280}")
        A(f"s_add_u32 s47, s44, {L_WD + it*4096}")
        A("s_mov_b32 m0, s47")
        A("s_nop 0")
        A("buffer_load_dwordx4 v3, s[32:35], s45 offen lds")
    A("k_ffn_nowd:")
    flag_poll(8)
    stamp(A, 5)
    if CANARY:
        A(f"""
        s_cmp_lg_u32 s3, 0
        s_cbranch_scc1 k_can_done
        v_lshlrev_b32 v3, 12, v0
        s_and_b32 s43, s{S_TB}, 31
        s_add_u32 s43, s43, {32*CTILE}
        s_lshl_b32 s43, s43, 4
        s_add_u32 s43, s43, {WS_AT}
        s_mov_b64 s[54:55], -1
        """)
        masked_poll(A, [dict(mask=54, loads=[f"buffer_load_dwordx4 v[8:11], v3, {WS}, s43 offen sc1"], regs=[8, 9, 10, 11], tmp=12)], 46, CSLEEP, "can")
        cnt_stamp(A, 2, 46)
        A("k_can_done:")
        A("s_barrier")
    stamp(A, 7)
    A("s_branch k_ln2b")
    A("k_ln2b:")
    a_setup()
    mask3()
    if PIPE:
        pipe_poll(A, agroups, 46, "apoll", PK_A, 164, PSTAG)
    else:
        masked_poll(A, asets, 46, FSLEEP, "apoll", first=("plain" if (APLAIN == "" and CANARY) else None))
    cnt_stamp(A, 0, 46)
    A("k_ln2c:")
    A(f"""
    v_lshlrev_b32 v3, 4, v0
    ds_write_b128 v3, v[8:11] offset:{L_AT}
    ds_write_b128 v3, v[12:15] offset:{L_AT+4096}
    s_cmp_ge_u32 s3, 2
    s_cbranch_scc1 k_ln2_w3
    ds_write_b128 v3, v[16:19] offset:{L_AT+8192}
    k_ln2_w3:
    v_lshrrev_b32 v8, 4, v1
    v_lshlrev_b32 v8, 3, v8
    v_bfe_u32 v9, v1, 1, 1
    v_lshl_add_u32 v8, v9, 2, v8
    v_bfe_u32 v9, v1, 2, 2
    v_add_u32 v8, v8, v9
    s_mul_i32 s47, s3, 160
    v_add_u32 v8, s47, v8
    v_lshlrev_b32 v8, 4, v8
    v_and_b32 v9, 1, v1
    v_lshl_add_u32 v8, v9, 3, v8
    s_waitcnt lgkmcnt(0)
    s_barrier
    """)
    stamp(A, 8)
    for i in range(5):
        A(f"ds_read_b64_tr_b16 v[{30+2*i}:{31+2*i}], v8 offset:{L_AT+512*i}")
    H = 40
    for i in range(10):
        a, b = H + 2*i, H + 2*i + 1
        if i % 2 == 0: A(f"s_waitcnt lgkmcnt({4 - i//2})")
        unpack_bf16(A, 30 + i, a, b)
        A(f"v_pk_add_f32 v[{a}:{b}], v[{a}:{b}], v[{VXF+2*i}:{VXF+2*i+1}]")
        rnd(A, a, a); rnd(A, b, b)
    ln_stats(A, H)
    A("v_mov_b32 v82, 0")
    A("v_mov_b32 v83, 0")
    for i in range(10):
        a, b = H + 2*i, H + 2*i + 1
        t = 86 + 2 * (i % 2)
        A(f"v_pk_add_f32 v[{t}:{t+1}], v[{a}:{b}], v[78:79] op_sel_hi:[1,0] neg_lo:[0,1] neg_hi:[0,1]")
        rnd(A, t, t); rnd(A, t+1, t+1)
        A(f"v_pk_mul_f32 v[{t}:{t+1}], v[{t}:{t+1}], v[80:81] op_sel_hi:[1,0]")
        A(f"v_cvt_pk_bf16_f32 v{30+i}, v{t}, v{t+1}")
        A(f"v_dot2_f32_bf16 v{82 + i % 2}, v{30+i}, v{VW+i}, v{82 + i % 2}")
    A("s_nop 2")
    A("v_add_f32 v82, v82, v83")
    red8(A, 82, 83)
    A(f"""
    v_lshlrev_b32 v76, 2, v{VTOK}
    v_add_u32 v76, {L_RP}, v76
    s_lshl_b32 s47, s3, 5
    v_add_u32 v77, s47, v76
    v_cmp_gt_u32 vcc, 8, v1
    s_and_saveexec_b64 s[48:49], vcc
    ds_write_b32 v77, v82
    s_mov_b64 exec, s[48:49]
    s_waitcnt lgkmcnt(0)
    s_barrier
    ds_read_b32 v78, v76
    ds_read_b32 v79, v76 offset:32
    ds_read_b32 v80, v76 offset:64
    ds_read_b32 v81, v76 offset:96
    s_waitcnt lgkmcnt(0)
    v_add_f32 v78, v78, v79
    v_add_f32 v80, v80, v81
    v_add_f32 v78, v78, v80
    v_cvt_pk_bf16_f32 v78, v78, v78
    v_and_b32 v78, 0xffff, v78
    v_xor_b32 v79, 0xffff, v78
    v_or_b32 v80, 0x8000, v78
    v_cmp_lt_u32 vcc, 0x7fff, v78
    v_lshlrev_b32 v87, 16, v78
    s_nop 0
    v_cndmask_b32 v78, v80, v79, vcc
    v_lshlrev_b32 v78, 16, v78
    v_add_u32 v79, s{S_T0}, v{VTOK}
    v_sub_u32 v80, 0xffff, v79
    v_or_b32 v86, v78, v80
    s_cmp_lg_u32 s3, 0
    s_cbranch_scc1 k_nokey
    v_lshlrev_b32 v80, 2, v79
    v_lshrrev_b32 v81, 3, v1
    v_lshl_add_u32 v80, v81, 13, v80
    s_mov_b32 s47, {WS_KEY}
    buffer_store_dword v86, v80, {WS}, s47 offen sc1
    k_nokey:
    """)
    stamp(A, 9)
    A(f"""
    v_lshlrev_b32 v9, 5, v0
    s_and_b32 s47, s2, {KREP-1}
    s_lshl_b32 s47, s47, 13
    s_add_u32 s47, s47, {WS_KEY}
    s_mov_b64 s[54:55], -1
    """)
    for i in range(10):
        a, b = H + 2*i, H + 2*i + 1
        unpack_bf16(A, 30 + i, 70, 71)
        A(f"v_pk_add_f32 v[70:71], v[70:71], v[{a}:{b}]")
        A(f"v_cvt_pk_bf16_f32 v{10+i}, v70, v71")
    if KDELAY:
        A("s_cmp_ge_u32 s2, 160")
        A("s_cbranch_scc1 k_kd")
        A("; poll back-off: the keys of the late token blocks cannot be published yet; polling them early only slows the producers' stores")
        A(f"s_sleep {KDELAY}")
        A("k_kd:")
    if PIPE:
        pipe_poll(A, [dict(mask=54, loads=[(f"buffer_load_dwordx4 {{dst}}, v9, {WS}, s47 offen sc1", 4, 90), (f"buffer_load_dwordx4 {{dst}}, v9, {WS}, s47 offen offset:16 sc1", 4, 94)],
                           sent="min", tmp=98)], 46, "kpoll", PK_K, 164, PSTAG)
    else:
        masked_poll(A, [dict(mask=54, loads=[f"buffer_load_dwordx4 v[90:93], v9, {WS}, s47 offen sc1", f"buffer_load_dwordx4 v[94:97], v9, {WS}, s47 offen offset:16 sc1"],
                             regs=list(range(90, 98)), tmp=98, sent="min")], 46, KSLEEP, "kpoll")
    cnt_stamp(A, 1, 46)
    stamp(A, 10)
    A(f"""
    s_mov_b32 s50, -1
    s_mov_b64 s[52:53], 0
    s_mov_b32 s51, 0
    k_own:
    v_cmp_gt_u32 vcc, s50, v86
    s_nop 1
    v_cndmask_b32 v98, 0, v86, vcc
    """)
    for pat in ("quad_perm:[1,0,3,2]", "quad_perm:[2,3,0,1]", "row_half_mirror"):
        A("s_nop 1")
        A(f"v_max_u32_dpp v98, v98, v98 {pat} {DPP}")
    A(f"""
    s_nop 0
    v_readfirstlane_b32 s54, v98
    s_nop 3
    s_cmp_eq_u32 s54, 0
    s_cbranch_scc1 k_own_done
    s_mov_b32 s55, 0
    """)
    for r in range(8):
        A(f"v_cmp_lt_u32 vcc, s54, v{90+r}")
        A(f"s_bcnt1_i32_b64 s56, vcc")
        A(f"s_add_u32 s55, s55, s56")
    A(f"""
    s_lshl_b32 s56, s51, 4
    s_lshl_b32 s57, s3, 2
    s_add_u32 s57, s57, s56
    s_add_u32 s57, s57, {L_CNT}
    v_mov_b32 v99, s57
    v_mov_b32 v100, s55
    s_add_u32 s56, s56, {L_CNT}
    v_mov_b32 v101, s56
    s_mov_b64 exec, 1
    ds_write_b32 v99, v100
    s_mov_b64 exec, -1
    s_waitcnt lgkmcnt(0)
    s_barrier
    ds_read_b128 v[102:105], v101
    s_waitcnt lgkmcnt(0)
    v_add_u32 v102, v102, v103
    v_add3_u32 v102, v102, v104, v105
    s_nop 0
    v_readfirstlane_b32 s55, v102
    s_nop 3
    s_cmp_ge_u32 s55, 8
    s_cbranch_scc1 k_own_done
    v_cmp_eq_u32 vcc, s54, v86
    s_or_b64 s[52:53], s[52:53], vcc
    s_and_saveexec_b64 s[48:49], vcc
    s_mul_i32 s56, s55, 1280
    s_add_u32 s57, s56, {WS_HS}
    s_add_u32 s56, s56, {WS_ZS}
    """)
    for i in range(5):
        A(f"buffer_store_dwordx2 v[{30+2*i}:{31+2*i}], v{VCH}, {WS}, s56 offen offset:{64*i} sc1")
    for i in range(10):
        A(f"v_cvt_pk_bf16_f32 v{106+i}, v{H+2*i}, v{H+2*i+1}")
    for i in range(5):
        A(f"buffer_store_dwordx2 v[{106+2*i}:{107+2*i}], v{VCH}, {WS}, s57 offen offset:{64*i} sc1")
    A(f"""
    s_cmp_lg_u32 s3, 0
    s_cbranch_scc1 k_own_nometa
    v_cmp_gt_u32 vcc, 8, v1
    s_and_b64 exec, exec, vcc
    v_mul_f32 v99, {hex(F_LOG2E)}, v87
    v_exp_f32 v99, -v99
    s_nop 0
    v_add_f32 v99, 1.0, v99
    v_rcp_f32 v99, v99
    s_nop 0
    v_cvt_pk_bf16_f32 v99, 0, v99
    s_lshl_b32 s56, s55, 2
    s_add_u32 s56, s56, {WS_META}
    v_mov_b32 v100, 0
    buffer_store_dword v79, v100, {WS}, s56 offen sc1
    buffer_store_dword v99, v100, {WS}, s56 offen offset:32 sc1
    k_own_nometa:
    s_mov_b64 exec, -1
    s_mov_b32 s50, s54
    s_xor_b32 s51, s51, 1
    s_branch k_own
    k_own_done:
    """)
    stamp(A, 11)
    A("s_andn2_b64 exec, exec, s[52:53]")
    for i in range(5):
        A(f"buffer_store_dwordx2 v[{10+2*i}:{11+2*i}], v{VROW}, s[{S_X}:{S_X+3}], 0 offen offset:{64*i} {OUTF}")
    A("s_mov_b64 exec, -1")
    A("s_cmp_lt_u32 s2, 160")
    A("s_cbranch_scc1 k_end")
    A(f"""
    v_lshrrev_b32 v7, 4, v1
    s_movk_i32 s46, 1280
    v_mul_lo_u32 v9, v{VTOK}, s46
    v_lshl_add_u32 v9, v7, 4, v9
    s_mul_i32 s47, s3, 320
    s_add_u32 s47, s47, {WS_ZS}
    v_lshlrev_b32 v10, 3, v7
    v_bfe_u32 v11, v1, 2, 2
    v_add_u32 v10, v10, v11
    v_lshlrev_b32 v10, 5, v10
    v_and_b32 v11, 3, v1
    v_lshl_add_u32 v10, v11, 3, v10
    s_mul_i32 s44, s3, {5*32*32}
    s_add_u32 s44, s44, {L_G}
    v_add_u32 v10, s44, v10
    """)
    for i in range(5):
        A(f"ds_read_b64_tr_b16 v[{120+4*i}:{121+4*i}], v10 offset:{1024*i}")
        A(f"ds_read_b64_tr_b16 v[{122+4*i}:{123+4*i}], v10 offset:{1024*i + 128}")
        A(f"ds_read_b64_tr_b16 v[{140+4*i}:{141+4*i}], v10 offset:{L_U - L_G + 1024*i}")
        A(f"ds_read_b64_tr_b16 v[{142+4*i}:{143+4*i}], v10 offset:{L_U - L_G + 1024*i + 128}")
        if i % 2 == 1: A("s_waitcnt lgkmcnt(0)")
    A("s_mov_b64 s[54:55], -1")
    if ZDELAY:
        A("; poll back-off before the first look at the selected rows (hand-off from the owning workgroups)")
        A(f"s_sleep {ZDELAY}")
    if PIPE:
        pipe_poll(A, [dict(mask=54, loads=[(f"buffer_load_dwordx4 {{dst}}, v9, {WS}, s47 offen offset:{64*i} sc1", 4, 40+4*i) for i in range(5)], tmp=60)], 46, "zpoll", 2, 164, PSTAG2)
    else:
        masked_poll(A, [dict(mask=54, loads=[f"buffer_load_dwordx4 v[{40+4*i}:{43+4*i}], v9, {WS}, s47 offen offset:{64*i} sc1" for i in range(5)],
                             regs=list(range(40, 60)), tmp=60)], 46, 1, "zpoll")
    cnt_stamp(A, 3, 46)
    stamp(A, 12)
    A("s_waitcnt lgkmcnt(0)")
    for i in range(5):
        c = "0" if i == 0 else "v[80:83]"
        A(f"v_mfma_f32_16x16x32_bf16 v[80:83], v[{40+4*i}:{43+4*i}], v[{120+4*i}:{123+4*i}], {c}")
        c = "0" if i == 0 else "v[84:87]"
        A(f"v_mfma_f32_16x16x32_bf16 v[84:87], v[{40+4*i}:{43+4*i}], v[{140+4*i}:{143+4*i}], {c}")
    A(f"""
    v_lshlrev_b32 v11, 4, v1
    s_lshl_b32 s44, s3, 11
    v_add_u32 v12, s44, v11
    s_lshl_b32 s44, s3, 2
    v_add_u32 v11, s44, v11
    s_nop 5
    ds_write_b128 v12, v[80:83] offset:{L_RED}
    ds_write_b128 v12, v[84:87] offset:{L_RED+1024}
    s_waitcnt lgkmcnt(0)
    s_barrier
    """)
    for w in range(4):
        A(f"ds_read_b32 v{40+w}, v11 offset:{L_RED + 2048*w}")
        A(f"ds_read_b32 v{44+w}, v11 offset:{L_RED + 2048*w + 1024}")
    A(f"""
    v_and_b32 v13, 15, v1
    v_lshlrev_b32 v12, 1, v13
    v_lshrrev_b32 v7, 4, v1
    s_movk_i32 s46, {4*3072}
    v_mul_lo_u32 v14, v7, s46
    v_add_u32 v12, v12, v14
    s_lshl_b32 s44, s36, 5
    s_mul_i32 s45, s3, 3072
    s_add_u32 s44, s44, s45
    s_add_u32 s44, s44, {WS_HID}
    s_waitcnt lgkmcnt(0)
    v_add_f32 v40, v40, v41
    v_add_f32 v42, v42, v43
    v_add_f32 v44, v44, v45
    v_add_f32 v46, v46, v47
    v_add_f32 v40, v40, v42
    v_add_f32 v44, v44, v46
    v_cvt_pk_bf16_f32 v40, 0, v40
    v_cvt_pk_bf16_f32 v44, 0, v44
    v_mul_f32 v52, {hex(F_LOG2E)}, v40
    v_exp_f32 v52, -v52
    s_nop 0
    v_add_f32 v52, 1.0, v52
    v_rcp_f32 v52, v52
    s_nop 0
    v_mul_f32 v52, v52, v40
    v_cvt_pk_bf16_f32 v52, 0, v52
    v_mul_f32 v52, v52, v44
    v_cvt_pk_bf16_f32 v52, v52, v52
    s_mov_b32 s58, 0x05040100
    s_nop 0
    v_mov_b32_dpp v53, v52 quad_perm:[1,1,3,3] {DPP}
    v_perm_b32 v56, v53, v52, s58
    s_nop 1
    v_mov_b32_dpp v57, v56 row_shl:2 {DPP}
    v_mov_b32_dpp v58, v56 row_shl:4 {DPP}
    v_mov_b32_dpp v59, v56 row_shl:6 {DPP}
    v_and_b32 v11, 7, v1
    v_cmp_eq_u32 vcc, 0, v11
    v_cmp_gt_u32 s[48:49], 2, v7
    s_and_b64 vcc, vcc, s[48:49]
    s_and_saveexec_b64 s[48:49], vcc
    buffer_store_dwordx4 v[56:59], v12, {WS}, s44 offen sc1
    s_add_u32 s45, s44, 24576
    buffer_store_dwordx4 v[56:59], v12, {WS}, s45 offen sc1
    s_add_u32 s45, s44, 49152
    buffer_store_dwordx4 v[56:59], v12, {WS}, s45 offen sc1
    s_add_u32 s45, s44, 73728
    buffer_store_dwordx4 v[56:59], v12, {WS}, s45 offen sc1
    s_mov_b64 exec, -1
    """)
    stamp(A, 13)
    A("s_cmp_ge_u32 s38, 80")
    A("s_cbranch_scc1 k_end")
    A(f"""
    v_bfe_u32 v5, v1, 3, 1
    v_lshrrev_b32 v7, 4, v1
    s_movk_i32 s46, 3072
    v_mul_lo_u32 v9, v{VTOK}, s46
    s_movk_i32 s46, 1536
    v_mul_lo_u32 v10, v5, s46
    v_add_u32 v9, v9, v10
    v_lshl_add_u32 v9, v7, 4, v9
    s_mul_i32 s47, s3, {6*64}
    s_and_b32 s46, s2, {HREP-1}
    s_mul_i32 s46, s46, 24576
    s_add_u32 s47, s47, s46
    s_add_u32 s47, s47, {WS_HID}
    v_lshlrev_b32 v14, 3, v7
    v_bfe_u32 v15, v1, 2, 2
    v_add_u32 v14, v14, v15
    v_bfe_u32 v15, v1, 1, 1
    s_movk_i32 s46, 768
    v_mul_lo_u32 v15, v15, s46
    v_add_u32 v14, v14, v15
    v_lshlrev_b32 v14, 4, v14
    v_and_b32 v15, 1, v1
    v_lshl_add_u32 v14, v15, 3, v14
    s_mul_i32 s44, s3, {6*512}
    s_add_u32 s44, s44, {L_WD}
    v_add_u32 v14, s44, v14
    """)
    for i in range(6):
        A(f"ds_read_b64_tr_b16 v[{120+4*i}:{121+4*i}], v14 offset:{512*i}")
        A(f"ds_read_b64_tr_b16 v[{122+4*i}:{123+4*i}], v14 offset:{512*i + 64}")
    A(f"""
    v_lshrrev_b32 v20, 3, v1
    v_and_b32 v21, 7, v1
    s_movk_i32 s46, 1280
    v_mul_lo_u32 v35, v20, s46
    v_lshl_add_u32 v35, v21, 1, v35
    v_and_b32 v35, 0xfffffffc, v35
    s_lshl_b32 s44, s37, 4
    s_add_u32 s50, s44, {WS_ZS}
    s_add_u32 s51, s44, {WS_HS}
    v_lshlrev_b32 v32, 2, v20
    s_mov_b32 s45, {WS_META}
    s_mov_b64 s[54:55], -1
    s_mov_b64 s[56:57], 0
    s_cmp_lg_u32 s3, 0
    s_cbranch_scc1 k_g2_m
    s_mov_b64 s[56:57], -1
    k_g2_m:
    """)
    if HDELAY:
        A("; poll back-off before the first look at the hidden activations (hand-off from the gate/up workgroups)")
        A(f"s_sleep {HDELAY}")
    if PIPE:
        pipe_poll(A, [dict(mask=54, loads=[(f"buffer_load_dwordx4 {{dst}}, v9, {WS}, s47 offen offset:{64*i} sc1", 4, 40+4*i) for i in range(6)], tmp=65),
                      dict(mask=56, loads=[(f"buffer_load_dword {{dst}}, v35, {WS}, s50 offen sc1", 1, 36), (f"buffer_load_dword {{dst}}, v35, {WS}, s51 offen sc1", 1, 37),
                                           (f"buffer_load_dword {{dst}}, v32, {WS}, s45 offen sc1", 1, 33), (f"buffer_load_dword {{dst}}, v32, {WS}, s45 offen offset:32 sc1", 1, 34)], tmp=64)],
                  46, "hpoll", 2, 164, PSTAG2)
    else:
        masked_poll(A, [dict(mask=54, loads=[f"buffer_load_dwordx4 v[{40+4*i}:{43+4*i}], v9, {WS}, s47 offen offset:{64*i} sc1" for i in range(6)],
                             regs=list(range(40, 64)), tmp=65),
                        dict(mask=56, loads=[f"buffer_load_dword v36, v35, {WS}, s50 offen sc1", f"buffer_load_dword v37, v35, {WS}, s51 offen sc1",
                                             f"buffer_load_dword v33, v32, {WS}, s45 offen sc1", f"buffer_load_dword v34, v32, {WS}, s45 offen offset:32 sc1"],
                             regs=[36, 37, 33, 34], tmp=64)], 46, 1, "hpoll")
    cnt_stamp(A, 4, 46)
    stamp(A, 14)
    A("s_waitcnt lgkmcnt(0)")
    for i in range(6):
        c = "0" if i == 0 else "v[88:91]"
        A(f"v_mfma_f32_16x16x32_bf16 v[88:91], v[{40+4*i}:{43+4*i}], v[{120+4*i}:{123+4*i}], {c}")
    A(f"""
    v_lshlrev_b32 v15, 4, v1
    s_lshl_b32 s44, s3, 10
    v_add_u32 v16, s44, v15
    s_barrier
    s_nop 4
    ds_write_b128 v16, v[88:91] offset:{L_RED}
    s_waitcnt lgkmcnt(0)
    s_barrier
    s_cmp_lg_u32 s3, 0
    s_cbranch_scc1 k_end
    v_lshrrev_b32 v22, 2, v20
    v_lshl_add_u32 v22, v22, 4, v21
    v_lshlrev_b32 v22, 4, v22
    v_and_b32 v23, 3, v20
    v_lshl_add_u32 v22, v23, 2, v22
    """)
    for w in range(4):
        A(f"ds_read_b32 v{24+2*w}, v22 offset:{L_RED + 1024*w}")
        A(f"ds_read_b32 v{25+2*w}, v22 offset:{L_RED + 1024*w + 640}")
    A(f"""
    v_and_b32 v38, 1, v21
    v_cmp_eq_u32 vcc, 1, v38
    v_lshlrev_b32 v38, 16, v36
    v_and_b32 v36, 0xffff0000, v36
    v_cndmask_b32 v36, v38, v36, vcc
    v_lshlrev_b32 v38, 16, v37
    v_and_b32 v37, 0xffff0000, v37
    v_cndmask_b32 v37, v38, v37, vcc
    s_movk_i32 s46, 1280
    v_mul_lo_u32 v35, v33, s46
    v_lshl_add_u32 v35, v21, 1, v35
    s_lshl_b32 s44, s37, 4
    s_waitcnt lgkmcnt(0)
    v_add_f32 v24, v24, v25
    v_add_f32 v26, v26, v27
    v_add_f32 v28, v28, v29
    v_add_f32 v30, v30, v31
    v_add_f32 v24, v24, v26
    v_add_f32 v28, v28, v30
    v_add_f32 v24, v24, v28
    v_cvt_pk_bf16_f32 v24, 0, v24
    v_mul_f32 v24, v24, v34
    v_cvt_pk_bf16_f32 v24, 0, v24
    v_add_f32 v24, v36, v24
    v_cvt_pk_bf16_f32 v24, 0, v24
    v_add_f32 v24, v37, v24
    v_cvt_pk_bf16_f32 v24, v24, v24
    buffer_store_short v24, v35, s[{S_X}:{S_X+3}], s44 offen
    k_end:
    """)
    stamp_flush(A)
    A("k_exit:")
    A("s_endpgm")
    A("k_code_end:")
    A("s_endpgm")
    return name

DESC = '; ---------------------------------------------------------------------------------------------------------------\n; One persistent kernel, 256 workgroups (one per CU) x 4 waves.  WG < 160: "conv" role (4 channels, one per wave),\n;   2. conv waves build K[l] = 2 Re sum_n C_n exp(a_n pos_l) for the 641 distinct bf16-rounded positions as a rank-192\n; Hand-offs between WGs: write-through (sc1) stores + sc1 polls on sentinel-cleared buffers; all polls are bounded.\n; ---------------------------------------------------------------------------------------------------------------\n'

def main():
    global STAMP
    if "--stamp" in sys.argv:
        STAMP = True
        sys.argv.remove("--stamp")
    hdr = open("cdna_kernels/%s.s.ref" % NAME).read().split("; Override launch")[0]
    b = Asm(); name = gen_main(b)
    out = hdr + f"; @launch grid=(256,1,1) block=(256,1,1) lds={LDS_TOTAL}\n"
    out += '.amdgcn_target "amdgcn-amd-amdhsa--gfx950"\n' + DESC + '.text\n'
    out += b.text()
    out += '.section .rodata,"a"\n.p2align 6\n' + gen.kernel_desc(name, 512, 100, 256)
    path = sys.argv[1] if len(sys.argv) > 1 else "cdna_kernels/%s.s" % NAME
    open(path, "w").write(out)
    print("wrote", path, len(out))

if __name__ == "__main__":
    main()
```
